```python
import torch

def _softmax(x, axis=-1):
    return torch.softmax(x, dim=axis)
def _gelu(x):
    return torch.nn.functional.gelu(x, approximate="tanh")
def _silu(x):
    return torch.nn.functional.silu(x)
def _sigmoid(x):
    return torch.sigmoid(x)
def _layernorm(x, axis=-1, eps=1e-5):
    m = x.mean(dim=axis, keepdim=True)
    v = x.var(dim=axis, keepdim=True, unbiased=False)
    return (x - m) / torch.sqrt(v + eps)
def _scatter_add(tgt, idx, src, axis=0):
    return tgt.clone().index_add_(axis, idx, src)
def _segment_sum(src, seg, n):
    out = torch.zeros((n,) + src.shape[1:], dtype=src.dtype)
    return out.index_add_(0, seg, src)
def _pad(x, pw):
    flat = tuple(v for pair in reversed(pw) for v in pair)
    return torch.nn.functional.pad(x, flat)

kernel_name = 'gated_mix__linear_attn_block__ssm_conv_s4__prompt'

def setup_inputs():

    _w = (lambda a: (lambda t: t.to(torch.bfloat16) if t.is_floating_point() else t)(torch.as_tensor(a)))
    def _A_setup():
        B, S, D = 1, 2048, 576
        return {
            "x": _w((lambda *s: torch.randn(*s, dtype=torch.bfloat16) * 0.05)(B, S, D)),
            "wqkv": _w((lambda *s: torch.randn(*s, dtype=torch.bfloat16) * 0.8)(D, 3 * D)),
            "wo": _w((lambda *s: torch.randn(*s, dtype=torch.bfloat16) * 0.05)(D, D)),
        }
    _A_in = _A_setup()

    def _B_setup():
        B, L, D, N = 1, 2048, 576, 128
        A_re = -(lambda _x: torch.exp(torch.as_tensor(_x)))((lambda *s: torch.randn(*s, dtype=torch.bfloat16) * 3.2)(D, N))
        A_im = torch.pi * (lambda *s: torch.randn(*s, dtype=torch.bfloat16) * 0.05)(D, N)
        B_re = (lambda *s: torch.randn(*s, dtype=torch.bfloat16) * 0.2)(D, N)
        B_im = (lambda *s: torch.randn(*s, dtype=torch.bfloat16) * 0.2)(D, N)
        C_re = (lambda *s: torch.randn(*s, dtype=torch.bfloat16) * 0.2)(D, N)
        C_im = (lambda *s: torch.randn(*s, dtype=torch.bfloat16) * 0.2)(D, N)
        log_dt = (lambda *s: torch.randn(*s, dtype=torch.bfloat16) * 0.05)(D) * 0.5 - 4.0
        Dskip = (lambda *s: torch.randn(*s, dtype=torch.bfloat16) * 0.05)(D)
        return {
            "u": _w((lambda *s: torch.randn(*s, dtype=torch.bfloat16) * 0.05)(B, L, D)),
            "A_re": _w(A_re),
            "A_im": _w(A_im),
            "B_re": _w(B_re),
            "B_im": _w(B_im),
            "C_re": _w(C_re),
            "C_im": _w(C_im),
            "log_dt": _w(log_dt),
            "Dskip": _w(Dskip),
        }
    _B_in = _B_setup()

    return {
        "A_x": _A_in["x"],
        "A_wqkv": _A_in["wqkv"],
        "A_wo": _A_in["wo"],
        "B_u": _B_in["u"],
        "B_A_re": _B_in["A_re"],
        "B_A_im": _B_in["A_im"],
        "B_B_re": _B_in["B_re"],
        "B_B_im": _B_in["B_im"],
        "B_C_re": _B_in["C_re"],
        "B_C_im": _B_in["C_im"],
        "B_log_dt": _B_in["log_dt"],
        "B_Dskip": _B_in["Dskip"],
        "gate_w": _w((lambda *s: torch.randn(*s, dtype=torch.bfloat16) * 0.05)(576) * 16.0),
    }

def reference(A_x, A_wqkv, A_wo, B_u, B_A_re, B_A_im, B_B_re, B_B_im, B_C_re, B_C_im, B_log_dt, B_Dskip, gate_w):
    def _A_ref(x, wqkv, wo):
        B, S, D = x.shape
        H = 32; Dh = D // H
        qkv = (lambda x, *d: x.permute(*d))((x @ wqkv).reshape(B, S, 3, H, Dh), 2, 0, 3, 1, 4)
        q, k, v = qkv[0], qkv[1], qkv[2]
        phi = lambda t: torch.where(t > 0, t + 1, torch.exp(t)) + 1e-6
        pq, pk = phi(q), phi(k)
        kv = torch.einsum("bhsd,bhse->bhde", pk, v)
        z = torch.einsum("bhsd->bhd", pk)
        num = torch.einsum("bhqd,bhde->bhqe", pq, kv)
        den = torch.einsum("bhqd,bhd->bhq", pq, z)[..., None] + 1e-6
        o = num / den
        return (lambda x, *d: x.permute(*d))(o, 0, 2, 1, 3).reshape(B, S, D) @ wo

    def _B_ref(u, A_re, A_im, B_re, B_im, C_re, C_im, log_dt, Dskip):
        Bsz, L, D = u.shape
        dt = torch.exp(log_dt)[:, None]
        A = A_re + 1j * A_im
        Bc = B_re + 1j * B_im
        Cc = C_re + 1j * C_im
        logdA = dt * A
        dB = dt * Bc
        l = (lambda x, dt: x.to(dt))(torch.arange(L), A_re.dtype)
        P = torch.exp(logdA[:, :, None] * l[None, None, :])
        K = torch.einsum("dn,dnl,dn->dl", Cc, P, dB).real
        L2 = 2 * L
        Kp = _pad(K, ((0, 0), (0, L)))
        up = (lambda x, *d: x.permute(*d))(u, 0, 2, 1)
        up = _pad(up, ((0, 0), (0, 0), (0, L)))
        Kf = (lambda x, axes=(-2,-1): torch.fft.rfft2(x.float(), dim=axes))(Kp[:, None, :], axes=(-2, -1))
        Uf = (lambda x, axes=(-2,-1): torch.fft.rfft2(x.float(), dim=axes))(up[:, :, None, :], axes=(-2, -1))
        Yf = Uf * Kf[None, :, :, :]
        y = (lambda x, s, axes=(-2,-1): torch.fft.irfft2(x, s=s, dim=axes).to(torch.bfloat16))(Yf, (1, L2), axes=(-2, -1))[:, :, 0, :L]
        y = (lambda x, *d: x.permute(*d))(y, 0, 2, 1) + u * Dskip[None, None, :]
        return y

    x = A_x
    g = _sigmoid((x * gate_w).sum(-1, keepdims=True))
    a = _A_ref(x, A_wqkv, A_wo)
    b = _B_ref(x, B_A_re, B_A_im, B_B_re, B_B_im, B_C_re, B_C_im, B_log_dt, B_Dskip)
    return g * a + (1 - g) * b
```

```python
import struct

def f32bits(x):
    return struct.unpack('<I', struct.pack('<f', x))[0]

class Asm:
    def __init__(self):
        self.lines = []
        self.nlabel = 0
    def __call__(self, s):
        for ln in s.strip('\n').split('\n'):
            self.lines.append('    ' + ln.strip())
    def label(self, name):
        self.lines.append(name + ':')
    def newlabel(self, prefix='L'):
        self.nlabel += 1
        return '%s_%d' % (prefix, self.nlabel)
    def comment(self, s):
        self.lines.append('    ; ' + s)
    def nop(self, n):
        while n > 0:
            k = min(n, 16)
            self('s_nop %d' % (k - 1))
            n -= k
    def text(self):
        return '\n'.join(self.lines) + '\n'

def vr(base, n=1):
    return 'v%d' % base if n == 1 else 'v[%d:%d]' % (base, base + n - 1)
def ar(base, n=1):
    return 'a%d' % base if n == 1 else 'a[%d:%d]' % (base, base + n - 1)
def sr(base, n=1):
    return 's%d' % base if n == 1 else 's[%d:%d]' % (base, base + n - 1)

def srd(a, d, base_lo, nbytes, add=None):
    if add is None:
        a('s_mov_b32 s%d, s%d' % (d, base_lo))
        a('s_and_b32 s%d, s%d, 0xffff' % (d + 1, base_lo + 1))
    else:
        a('s_add_u32 s%d, s%d, %s' % (d, base_lo, add))
        a('s_addc_u32 s%d, s%d, 0' % (d + 1, base_lo + 1))
        a('s_and_b32 s%d, s%d, 0xffff' % (d + 1, d + 1))
    a('s_mov_b32 s%d, %s' % (d + 2, nbytes if isinstance(nbytes, str) else '0x%x' % nbytes))
    a('s_mov_b32 s%d, 0x20000' % (d + 3))

def kernel_desc(name, vgpr, sgpr=102, accum=None):
    if accum is None:
        accum = (vgpr + 3) // 4 * 4
    return '''.section .rodata,"a"
.p2align 6
.amdhsa_kernel %s
  .amdhsa_next_free_vgpr %d
  .amdhsa_next_free_sgpr %d
  .amdhsa_accum_offset %d
  .amdhsa_group_segment_fixed_size 0
  .amdhsa_kernarg_size 128
  .amdhsa_user_sgpr_count 2
  .amdhsa_user_sgpr_kernarg_segment_ptr 1
  .amdhsa_system_sgpr_workgroup_id_x 1
  .amdhsa_float_denorm_mode_32 3
  .amdhsa_float_denorm_mode_16_64 3
.end_amdhsa_kernel
''' % (name, vgpr, sgpr, accum)
```

```python
from asmlib import *
import math

WS_PQ = 0x000000
WS_XT = 0x240000
WS_BT = 0x480000
WS_KC = 0x6C0000
KC_STRIDE = 1536
WS_KVP = 0x800000
KVP_RB = 32 * 19 * 24 * 4
WS_KVT = 0x900000
WS_G = 0x910000
WS_END = 0x920000

N_GEMM = 192
N_PREP = 288
K1_GRID = N_GEMM + N_PREP
K1_LDS = 73728

LOG2E = 1.4426950408889634

P_X, P_W, P_WO, P_BU, P_ARE, P_AIM, P_BRE, P_BIM = 16, 18, 20, 22, 24, 26, 28, 30
P_CRE, P_CIM, P_LDT, P_DSK, P_GW, P_OUT, P_DBG, P_WS = 32, 34, 36, 38, 40, 42, 44, 46


class Cnt:
    def __init__(self, a, name, cap):
        self.a, self.name, self.cap = a, name, cap
        self.ops = []
    def issue(self, tag):
        self.ops.append(tag)
    def wait(self, tag):
        idx = max(i for i, t in enumerate(self.ops) if t == tag) if tag in self.ops else None
        if idx is None:
            return
        n = len(self.ops) - 1 - idx
        n = min(n, self.cap)
        self.a('s_waitcnt %s(%d)' % (self.name, n))
        self.ops = self.ops[len(self.ops) - n:] if n > 0 else []
    def wait_all(self):
        self.a('s_waitcnt %s(0)' % self.name)
        self.ops = []


def load_kernargs(a):
    a('s_load_dwordx16 s[16:31], s[0:1], 0')
    a('s_load_dwordx16 s[32:47], s[0:1], 64')


def phi_batch(a, pairs, tmp, s_l2e, s_eps, keep_raw=None):
    n = len(pairs)
    H = lambda i: (keep_raw[i] if keep_raw else tmp + 6 * i)
    T = lambda i: tmp + 6 * i + 2
    E = lambda i: tmp + 6 * i + 4
    for i, (a0, a1, d) in enumerate(pairs):
        a('v_cvt_pk_bf16_f32 v%d, v%d, v%d' % (H(i), a0, a1))
    for i in range(n):
        a('v_lshlrev_b32 v%d, 16, v%d' % (T(i), H(i)))
        a('v_and_b32 v%d, 0xffff0000, v%d' % (T(i) + 1, H(i)))
    for i in range(n):
        a('v_pk_mul_f32 %s, %s, %s' % (vr(E(i), 2), vr(T(i), 2), sr(s_l2e, 2)))
    for i in range(n):
        a('v_exp_f32_e64 v%d, v%d clamp' % (E(i), E(i)))
        a('v_exp_f32_e64 v%d, v%d clamp' % (E(i) + 1, E(i) + 1))
    for i in range(n):
        a('v_max_f32 v%d, 0, v%d' % (T(i), T(i)))
        a('v_max_f32 v%d, 0, v%d' % (T(i) + 1, T(i) + 1))
    for i in range(n):
        a('v_pk_add_f32 %s, %s, %s' % (vr(E(i), 2), vr(E(i), 2), vr(T(i), 2)))
    for i in range(n):
        a('v_cvt_pk_bf16_f32 v%d, v%d, v%d' % (E(i), E(i), E(i) + 1))
    for i in range(n):
        a('v_lshlrev_b32 v%d, 16, v%d' % (T(i), E(i)))
        a('v_and_b32 v%d, 0xffff0000, v%d' % (T(i) + 1, E(i)))
    for i in range(n):
        a('v_pk_add_f32 %s, %s, %s' % (vr(T(i), 2), vr(T(i), 2), sr(s_eps, 2)))
    for i, (a0, a1, d) in enumerate(pairs):
        a('v_cvt_pk_bf16_f32 v%d, v%d, v%d' % (d, T(i), T(i) + 1))


V_LANE, V_AOFF, V_DMA, V_TR, V_TR2 = 1, 2, 4, 9, 232
V_A, V_B, V_ACC = 16, 88, 160
SLOT = 18432
S_SX, S_SW, S_SWS = 48, 52, 56
S_WAVE = 3


def gemm_main(a, qtype):
    vm = Cnt(a, 'vmcnt', 63)
    lg = Cnt(a, 'lgkmcnt', 15)

    def dma(c):
        slot = (c % 4) * SLOT
        a('s_mov_b32 s10, 0x%x' % (c * 64 * 3456))
        for i in range(4):
            a('s_add_u32 m0, s8, 0x%x' % (slot + i * 1024))
            a('s_nop 0')
            a('buffer_load_dwordx4 v%d, %s, s10 offen lds' % (V_DMA + i, sr(S_SW, 4)))
            vm.issue(('W', c))
        a('s_add_u32 m0, s9, 0x%x' % (slot + 16384))
        a('s_mov_b32 exec_hi, 0')
        a('buffer_load_dwordx4 v%d, %s, s10 offen lds' % (V_DMA + 4, sr(S_SW, 4)))
        a('s_mov_b32 exec_hi, -1')
        vm.issue(('W', c))

    def aload(k):
        r = V_A + (k % 9) * 8
        for rt in range(2):
            a('buffer_load_dwordx4 %s, v%d, %s, 0 offen offset:%d' % (vr(r + 4 * rt, 4), V_AOFF + rt, sr(S_SX, 4), k * 64))
            vm.issue(('A', k))

    def bread(k, j):
        c, kk = k // 2, k % 2
        r = V_B + (k % 2) * 36 + 4 * j
        for hh in range(2):
            off = (c % 2) * SLOT + (8 * hh + 32 * kk) * 288 + 32 * j
            a('ds_read_b64_tr_b16 %s, v%d offset:%d' % (vr(r + 2 * hh, 2), V_TR if (c % 4) < 2 else V_TR2, off))
            lg.issue(('B', k, j))

    dma(0); aload(0); aload(1)
    dma(1); aload(2); aload(3)
    dma(2); aload(4); aload(5)
    dma(3); aload(6); aload(7); aload(8)
    vm.wait(('W', 0))
    a('s_barrier')
    for j in range(9):
        bread(0, j)
        if j == 6:
            pass
    for k in range(18):
        c, kk = k // 2, k % 2
        if kk == 1 and c + 1 <= 8:
            vm.wait(('W', c + 1))
            a('s_barrier')
            if c >= 1 and c + 3 <= 8:
                dma(c + 3)
        vm.wait(('A', k))
        ra = V_A + (k % 9) * 8
        for j in range(9):
            lg.wait(('B', k, j))
            rb = V_B + (k % 2) * 36 + 4 * j
            for rt in range(2):
                acc = V_ACC + (rt * 9 + j) * 4
                cin = '0' if k == 0 else vr(acc, 4)
                if qtype:
                    a('v_mfma_f32_16x16x32_bf16 %s, %s, %s, %s' % (vr(acc, 4), vr(rb, 4), vr(ra + 4 * rt, 4), cin))
                else:
                    a('v_mfma_f32_16x16x32_bf16 %s, %s, %s, %s' % (vr(acc, 4), vr(ra + 4 * rt, 4), vr(rb, 4), cin))
            if k + 1 < 18:
                bread(k + 1, j)
        if k + 9 < 18:
            aload(k + 9)
    a.nop(10)


def gemm_part(a):
    a.label('K1_GEMM')
    a('''
    s_and_b32 s4, s2, 7
    s_lshr_b32 s5, s2, 3
    s_and_b32 s6, s4, 3
    s_lshl_b32 s6, s6, 2
    s_and_b32 s7, s5, 3
    s_add_u32 s6, s6, s7
    s_lshr_b32 s4, s4, 2
    s_mul_i32 s4, s4, 6
    s_lshr_b32 s5, s5, 2
    s_add_u32 s7, s4, s5
    ''')
    a('''
    s_mul_i32 s4, s7, 11
    s_lshr_b32 s4, s4, 5
    s_mul_i32 s5, s4, 3
    s_sub_u32 s5, s7, s5
    s_sub_u32 s11, s7, s4
    s_sub_u32 s11, s11, 1
    ''')
    a('''
    s_mul_i32 s12, s4, 288
    s_mul_i32 s13, s11, 144
    s_add_u32 s13, s13, 1152
    s_cmp_eq_u32 s5, 0
    s_cselect_b32 s12, s12, s13
    s_cselect_b32 s13, 0, 1008
    s_lshl_b32 s8, s3, 12
    s_lshl_b32 s9, s3, 9
    ''')
    a('''
    v_and_b32 v10, 15, v1
    v_lshrrev_b32 v11, 4, v1
    ''')
    a('''
    s_lshl_b32 s14, s6, 7
    s_lshl_b32 s15, s3, 5
    s_add_u32 s14, s14, s15
    v_add_u32 v12, s14, v10
    v_mul_u32_u24 v12, 1152, v12
    v_lshl_add_u32 v2, v11, 4, v12
    v_add_u32 v3, 18432, v2
    ''')
    for i in range(5):
        if i < 4:
            a('s_lshl_b32 s15, s3, 8')
            a('s_add_u32 s15, s15, %d' % (64 * i))
        else:
            a('s_lshl_b32 s15, s3, 5')
            a('s_add_u32 s15, s15, 1024')
        a('''
        v_add_u32 v12, s15, v1
        v_mul_u32_u24 v13, 3641, v12
        v_lshrrev_b32 v13, 16, v13
        v_mul_u32_u24 v14, 18, v13
        v_sub_u32 v14, v12, v14
        v_and_b32 v12, 0x33, v13
        v_and_b32 v15, 4, v13
        v_lshl_or_b32 v12, v15, 1, v12
        v_and_b32 v15, 8, v13
        v_lshrrev_b32 v15, 1, v15
        v_or_b32 v12, v12, v15
        v_mul_u32_u24 v12, 3456, v12
        v_lshl_add_u32 v12, v14, 4, v12
        v_add_u32 v12, s12, v12
        v_cmp_le_u32 vcc, 9, v14
        v_mov_b32 v15, s13
        s_nop 0
        v_cndmask_b32 v15, 0, v15, vcc
        v_add_u32 v%d, v12, v15
        ''' % (V_DMA + i))
    a('''
    v_lshrrev_b32 v12, 2, v10
    v_and_b32 v13, 1, v11
    v_lshl_add_u32 v12, v13, 2, v12
    v_lshrrev_b32 v13, 1, v11
    v_lshl_add_u32 v12, v13, 4, v12
    v_mul_u32_u24 v12, 288, v12
    v_and_b32 v13, 3, v1
    v_lshl_add_u32 v9, v13, 3, v12
    v_add_u32 v232, 36864, v9
    ''')
    a('s_waitcnt lgkmcnt(0)')
    srd(a, S_SX, P_X, 2048 * 576 * 2)
    srd(a, S_SW, P_W, 576 * 1728 * 2)
    srd(a, S_SWS, P_WS, WS_END)
    a('s_mov_b32 s60, 0x%x' % f32bits(LOG2E))
    a('s_mov_b32 s61, 0x%x' % f32bits(LOG2E))
    a('s_mov_b32 s62, 0x%x' % f32bits(1e-6))
    a('s_mov_b32 s63, 0x%x' % f32bits(1e-6))
    a('s_cmp_eq_u32 s5, 0')
    a('s_cbranch_scc0 K1_GEMM_KV')

    gemm_main(a, True)
    def P(rt, j):
        if j < 8:
            return V_A + (rt * 8 + j) * 2
        return V_A + 32 + rt * 2
    allp = []
    for rt in range(2):
        for j in range(9):
            acc = V_ACC + (rt * 9 + j) * 4
            allp.append((acc, acc + 1, P(rt, j)))
            allp.append((acc + 2, acc + 3, P(rt, j) + 1))
    a('''
    v_add_u32 v12, s14, v10
    v_mul_u32_u24 v12, 1152, v12
    v_add_u32 v12, s12, v12
    v_lshrrev_b32 v13, 1, v11
    v_lshl_add_u32 v12, v13, 4, v12
    v_and_b32 v13, 1, v11
    v_lshl_add_u32 v14, v13, 5, v12
    v_mul_u32_u24 v13, 18432, v13
    v_add_u32 v15, v12, v13
    ''')
    a('v_add_u32 v13, 18432, v14')
    for b in range(0, 36, 8):
        phi_batch(a, allp[b:b + 8], V_B, 60, 62)
    a.nop(2)
    for rt in range(2):
        for m in range(4):
            p = P(rt, 2 * m)
            a('v_permlane16_swap_b32 v%d, v%d' % (p, p + 2))
            a('v_permlane16_swap_b32 v%d, v%d' % (p + 1, p + 3))
    p = P(0, 8)
    a('v_permlane16_swap_b32 v%d, v%d' % (p, p + 2))
    a('v_permlane16_swap_b32 v%d, v%d' % (p + 1, p + 3))
    a.nop(2)
    for rt in range(2):
        for m in range(4):
            p = P(rt, 2 * m)
            a('buffer_store_dwordx4 %s, v%d, %s, 0 offen offset:%d' % (vr(p, 4), 14 if rt == 0 else 13, sr(S_SWS, 4), 64 * m))
    a('buffer_store_dwordx4 %s, v15, %s, 0 offen offset:256' % (vr(P(0, 8), 4), sr(S_SWS, 4)))
    a('s_endpgm')

    a.label('K1_GEMM_KV')
    gemm_main(a, False)
    O = lambda j: V_A + 4 * j
    pk = []
    for j in range(5):
        for rt in range(2):
            acc = V_ACC + (rt * 9 + j) * 4
            pk.append((acc, acc + 1, O(j) + 2 * rt))
            pk.append((acc + 2, acc + 3, O(j) + 2 * rt + 1))
    phi_batch(a, pk[0:8], V_B, 60, 62)
    phi_batch(a, pk[8:16], V_B, 60, 62)
    RAW = V_A + 40
    phi_batch(a, pk[16:20], V_B, 60, 62, keep_raw=[RAW + i for i in range(4)])
    a('v_cmp_gt_u32 vcc, 8, v10')
    for j in range(5, 9):
        for rt in range(2):
            acc = V_ACC + (rt * 9 + j) * 4
            a('v_cvt_pk_bf16_f32 v%d, v%d, v%d' % (O(j) + 2 * rt, acc, acc + 1))
            a('v_cvt_pk_bf16_f32 v%d, v%d, v%d' % (O(j) + 2 * rt + 1, acc + 2, acc + 3))
    for i in range(4):
        a('v_cndmask_b32 v%d, v%d, v%d, vcc' % (O(4) + i, RAW + i, O(4) + i))
    a.nop(2)
    pairs = [(0, 4), (0, 5), (1, 4), (1, 5), (1, 6), (2, 5), (2, 6), (2, 7), (3, 6), (3, 7), (3, 8), (4, 7), (4, 8)]
    KV = lambda p: V_ACC + 4 * p
    for p, (ta, tb) in enumerate(pairs):
        a('v_mfma_f32_16x16x32_bf16 %s, %s, %s, 0' % (vr(KV(p), 4), vr(O(ta), 4), vr(O(tb), 4)))
    a('s_mov_b32 s64, 0x3f803f80')
    Z = V_B
    for t in range(5):
        a('v_dot2_f32_bf16 v%d, v%d, s64, 0' % (Z + t, O(t)))
    for i in range(1, 4):
        for t in range(5):
            a('v_dot2_f32_bf16 v%d, v%d, s64, v%d' % (Z + t, O(t) + i, Z + t))
    a('s_barrier')
    a('''
    s_lshl_b32 s15, s3, 10
    v_lshlrev_b32 v12, 4, v1
    v_add_u32 v13, s15, v12
    ''')
    for p in range(13):
        a('ds_write_b128 v13, %s offset:%d' % (vr(KV(p), 4), p * 4096))
    a('''
    s_lshl_b32 s15, s3, 2
    v_add_u32 v14, s15, v11
    v_mul_u32_u24 v14, 320, v14
    v_lshl_add_u32 v14, v10, 2, v14
    ''')
    for t in range(5):
        a('ds_write_b32 v14, v%d offset:%d' % (Z + t, 53248 + 64 * t))
    a('s_waitcnt lgkmcnt(0)')
    a('s_barrier')
    ta_bits = sum(ta << (4 * p) for p, (ta, tb) in enumerate(pairs))
    tb_bits = sum(tb << (4 * p) for p, (ta, tb) in enumerate(pairs))
    a('s_mov_b32 s64, 0x%x' % (ta_bits & 0xffffffff))
    a('s_mov_b32 s65, 0x%x' % (ta_bits >> 32))
    a('s_mov_b32 s66, 0x%x' % (tb_bits & 0xffffffff))
    a('s_mov_b32 s67, 0x%x' % (tb_bits >> 32))
    a('s_mul_i32 s68, s6, %d' % KVP_RB)
    a('s_mul_i32 s69, s11, %d' % (4 * 19 * 24 * 4))
    a('s_add_u32 s68, s68, s69')
    a('s_add_u32 s68, s68, 0x%x' % WS_KVP)
    a('s_lshl_b32 s15, s3, 12')
    a('v_add_u32 v13, s15, v12')
    done = a.newlabel('K1_KVZ')
    for it in range(4):
        if it == 3:
            a('s_cmp_lg_u32 s3, 0')
            a('s_cbranch_scc1 %s' % done)
        R = V_A
        for w in range(4):
            a('ds_read_b128 %s, v13 offset:%d' % (vr(R + 4 * w, 4), it * 16384 + w * 1024))
        a('''
        s_add_u32 s15, s3, %d
        s_lshl_b32 s15, s15, 2
        s_lshr_b64 s[70:71], s[64:65], s15
        s_and_b32 s70, s70, 15
        s_lshr_b64 s[72:73], s[66:67], s15
        s_and_b32 s72, s72, 15
        s_lshl_b32 s72, s72, 4
        s_sub_u32 s72, s72, 72
        v_add_u32 v14, s72, v10
        v_mul_i32_i24 v15, 57, v14
        v_ashrrev_i32 v15, 10, v15
        v_mul_i32_i24 v40, 18, v15
        v_sub_u32 v40, v14, v40
        v_sub_u32 v41, s70, v15
        v_lshlrev_b32 v41, 4, v41
        v_lshl_add_u32 v41, v11, 2, v41
        v_mul_i32_i24 v42, 19, v15
        v_add_u32 v42, v42, v40
        v_mul_i32_i24 v42, 24, v42
        v_add_u32 v42, v42, v41
        v_lshlrev_b32 v42, 2, v42
        v_cmp_gt_u32 vcc, 72, v14
        s_mov_b64 s[74:75], vcc
        v_cmp_gt_u32 vcc, 21, v41
        s_and_b64 vcc, vcc, s[74:75]
        v_mov_b32 v43, 0x40000000
        s_nop 0
        v_cndmask_b32 v42, v43, v42, vcc
        s_waitcnt lgkmcnt(0)
        ''' % (4 * it))
        a('v_pk_add_f32 %s, %s, %s' % (vr(R, 2), vr(R, 2), vr(R + 4, 2)))
        a('v_pk_add_f32 %s, %s, %s' % (vr(R + 2, 2), vr(R + 2, 2), vr(R + 6, 2)))
        a('v_pk_add_f32 %s, %s, %s' % (vr(R + 8, 2), vr(R + 8, 2), vr(R + 12, 2)))
        a('v_pk_add_f32 %s, %s, %s' % (vr(R + 10, 2), vr(R + 10, 2), vr(R + 14, 2)))
        D = 44 + 4 * it
        a('v_pk_add_f32 %s, %s, %s' % (vr(D, 2), vr(R, 2), vr(R + 8, 2)))
        a('v_pk_add_f32 %s, %s, %s' % (vr(D + 2, 2), vr(R + 2, 2), vr(R + 10, 2)))
        a('buffer_store_dwordx4 %s, v42, %s, s68 offen' % (vr(D, 4), sr(S_SWS, 4)))
    a('s_endpgm')
    a.label(done)
    a('s_cmp_lt_u32 s3, 2')
    fin = a.newlabel('K1_KVEND')
    a('s_cbranch_scc1 %s' % fin)
    a('''
    v_subrev_u32 v14, 128, v0
    v_cmp_gt_u32 vcc, 72, v14
    s_and_saveexec_b64 s[74:75], vcc
    s_cbranch_execz %s
    v_lshlrev_b32 v15, 2, v14
    ''' % fin)
    for i in range(16):
        a('ds_read_b32 v%d, v15 offset:%d' % (V_A + i, 53248 + 320 * i))
    a('''
    v_mul_u32_u24 v40, 57, v14
    v_lshrrev_b32 v40, 10, v40
    v_lshlrev_b32 v41, 4, v40
    v_sub_u32 v41, v14, v41
    v_mul_u32_u24 v42, 19, v40
    v_add_u32 v42, 18, v42
    v_mul_u32_u24 v42, 24, v42
    v_add_u32 v42, v42, v41
    v_lshlrev_b32 v42, 2, v42
    s_waitcnt lgkmcnt(0)
    ''')
    for st in (8, 4, 2, 1):
        for i in range(st):
            a('v_add_f32 v%d, v%d, v%d' % (V_A + i, V_A + i, V_A + i + st))
    a('buffer_store_dword v%d, v42, %s, s68 offen' % (V_A, sr(S_SWS, 4)))
    a.label(fin)
    a('s_endpgm')


KG_ROW = 272
KG_LO = 32 * KG_ROW
KG_WAVE = 2 * KG_LO


def cmul(a, d, x, y, t):
    a('v_pk_mul_f32 %s, %s, %s op_sel:[1,1] op_sel_hi:[1,0]' % (vr(t, 2), vr(x, 2), vr(y, 2)))
    a('v_pk_fma_f32 %s, %s, %s, %s op_sel:[0,0,0] op_sel_hi:[0,1,1] neg_lo:[0,0,1]' % (vr(d, 2), vr(x, 2), vr(y, 2), vr(t, 2)))


def split_write(a, rows, tmp, vaddr, s_c1, s_c2):
    n = len(rows)
    for i, (r, p) in enumerate(rows):
        a('v_cvt_pk_bf16_f32 v%d, v%d, v%d' % (tmp + 4 * i, p, p + 1))
    for i, (r, p) in enumerate(rows):
        a('v_dot2_f32_bf16 v%d, v%d, s%d, v%d' % (tmp + 4 * i + 2, tmp + 4 * i, s_c1, p))
        a('v_dot2_f32_bf16 v%d, v%d, s%d, v%d' % (tmp + 4 * i + 3, tmp + 4 * i, s_c2, p + 1))
    for i, (r, p) in enumerate(rows):
        a('ds_write_b32 v%d, v%d offset:%d' % (vaddr, tmp + 4 * i, r * KG_ROW))
    if n < 3:
        a.nop(3)
    for i, (r, p) in enumerate(rows):
        a('v_cvt_pk_bf16_f32 v%d, v%d, v%d' % (tmp + 4 * i + 1, tmp + 4 * i + 2, tmp + 4 * i + 3))
    for i, (r, p) in enumerate(rows):
        a('ds_write_b32 v%d, v%d offset:%d' % (vaddr, tmp + 4 * i + 1, KG_LO + r * KG_ROW))


def deval(a, items, L, tmp):
    for i, (A, d) in enumerate(items):
        a('v_mul_f32 v%d, 0x%x, v%d' % (tmp + 4 * i, f32bits(float(A)), L))
        a('v_mul_f32 v%d, 0x%x, v%d' % (tmp + 4 * i + 1, f32bits(float(A)), L + 1))
    for i, (A, d) in enumerate(items):
        a('v_fract_f32 v%d, v%d' % (tmp + 4 * i + 1, tmp + 4 * i + 1))
        a('v_exp_f32 v%d, v%d' % (tmp + 4 * i, tmp + 4 * i))
    for i, (A, d) in enumerate(items):
        a('v_cos_f32 v%d, v%d' % (tmp + 4 * i + 2, tmp + 4 * i + 1))
        a('v_sin_f32 v%d, v%d' % (tmp + 4 * i + 3, tmp + 4 * i + 1))
    a.nop(1)
    for i, (A, d) in enumerate(items):
        a('v_pk_mul_f32 %s, %s, %s op_sel:[0,0] op_sel_hi:[0,1]' % (vr(d, 2), vr(tmp + 4 * i, 2), vr(tmp + 4 * i + 2, 2)))


def prep_part(a):
    a.label('K1_PREP')
    a('s_sub_u32 s4, s2, %d' % N_GEMM)
    a('''
    s_mul_i32 s5, s4, 7282
    s_lshr_b32 s5, s5, 16
    s_mul_i32 s6, s5, 9
    s_sub_u32 s6, s4, s6
    s_lshr_b32 s7, s3, 1
    s_lshl_b32 s8, s4, 1
    s_add_u32 s8, s8, s7
    s_and_b32 s9, s3, 1
    s_mul_i32 s10, s3, %d
    v_and_b32 v10, 15, v1
    v_lshrrev_b32 v11, 4, v1
    ''' % KG_WAVE)
    a('''
    s_lshl_b32 s11, s8, 8
    s_lshl_b32 s12, s9, 7
    s_add_u32 s11, s11, s12
    v_lshl_add_u32 v2, v1, 1, s11
    s_lshl_b32 s12, s4, 2
    s_waitcnt lgkmcnt(0)
    s_load_dword s13, s[36:37], s12
    global_load_ushort v12, v2, s[24:25]
    global_load_ushort v13, v2, s[26:27]
    global_load_ushort v14, v2, s[28:29]
    global_load_ushort v15, v2, s[30:31]
    global_load_ushort v16, v2, s[32:33]
    global_load_ushort v17, v2, s[34:35]
    ''')
    a('''
    s_lshl_b32 s11, s5, 6
    v_add_u32 v3, s11, v1
    v_mul_u32_u24 v3, 1152, v3
    s_lshl_b32 s11, s6, 7
    s_lshl_b32 s12, s3, 5
    s_add_u32 s11, s11, s12
    v_add_u32 v3, s11, v3
    global_load_dwordx4 v[20:23], v3, s[16:17]
    global_load_dwordx4 v[24:27], v3, s[16:17] offset:16
    ''')
    GX, GW = 176, 212
    nog = a.newlabel('K1_NOG')
    a('''
    s_cmp_eq_u32 s3, 3
    s_cselect_b32 s14, 1, 0
    s_cmp_lt_u32 s4, 256
    s_cselect_b32 s14, s14, 0
    s_cmp_eq_u32 s14, 0
    s_cbranch_scc1 %s
    s_lshl_b32 s11, s4, 3
    v_lshrrev_b32 v4, 3, v1
    v_add_u32 v4, s11, v4
    v_mul_u32_u24 v5, 1152, v4
    v_and_b32 v6, 7, v1
    v_lshlrev_b32 v6, 4, v6
    v_add_u32 v5, v5, v6
    ''' % nog)
    for i in range(9):
        a('global_load_dwordx4 %s, v5, s[16:17] offset:%d' % (vr(GX + 4 * i, 4), 128 * i))
        a('global_load_dwordx4 %s, v6, s[40:41] offset:%d' % (vr(GW + 4 * i, 4), 128 * i))
    a.label(nog)
    srd(a, S_SWS, P_WS, WS_END)
    a('s_mov_b32 s60, 0x0000bf80')
    a('s_mov_b32 s61, 0xbf800000')
    a('s_waitcnt vmcnt(0) lgkmcnt(0)')
    a('''
    v_lshl_add_u32 v7, v1, 5, s10
    ds_write_b128 v7, v[20:23]
    ds_write_b128 v7, v[24:27] offset:16
    ''')
    a('''
    v_lshrrev_b32 v8, 2, v10
    v_lshl_add_u32 v8, v11, 4, v8
    v_lshlrev_b32 v8, 5, v8
    v_and_b32 v9, 3, v1
    v_lshl_add_u32 v8, v9, 3, v8
    v_add_u32 v8, s10, v8
    s_waitcnt lgkmcnt(0)
    ds_read_b64_tr_b16 v[20:21], v8
    ds_read_b64_tr_b16 v[22:23], v8 offset:128
    ds_read_b64_tr_b16 v[24:25], v8 offset:256
    ds_read_b64_tr_b16 v[26:27], v8 offset:384
    ''')
    a('''
    s_lshl_b32 s11, s6, 6
    s_lshl_b32 s12, s3, 4
    s_add_u32 s11, s11, s12
    v_add_u32 v9, s11, v10
    v_lshlrev_b32 v9, 12, v9
    v_lshl_add_u32 v9, v11, 5, v9
    s_lshl_b32 s11, s5, 7
    s_add_u32 s11, s11, 0x%x
    s_waitcnt lgkmcnt(0)
    buffer_store_dwordx4 v[20:23], v9, %s, s11 offen
    buffer_store_dwordx4 v[24:27], v9, %s, s11 offen offset:16
    ''' % (WS_XT, sr(S_SWS, 4), sr(S_SWS, 4)))
    a('''
    s_lshl_b32 s12, s7, 4
    s_lshr_b32 s13, s13, s12
    s_lshl_b32 s13, s13, 16
    v_mov_b32 v18, s13
    v_mul_f32 v18, 0x%x, v18
    v_exp_f32 v18, v18
    v_lshlrev_b32 v12, 16, v12
    v_lshlrev_b32 v13, 16, v13
    v_cvt_pk_bf16_f32 v18, v18, v18
    v_lshlrev_b32 v14, 16, v14
    v_lshlrev_b32 v15, 16, v15
    v_lshlrev_b32 v18, 16, v18
    v_lshlrev_b32 v16, 16, v16
    v_lshlrev_b32 v17, 16, v17
    v_mul_f32 v12, v18, v12
    v_mul_f32 v13, v18, v13
    v_mul_f32 v14, v18, v14
    v_mul_f32 v15, v18, v15
    v_mul_f32 v28, 0x%x, v12
    v_mul_f32 v29, 0x%x, v13
    v_mov_b32 v30, v28
    v_sub_f32 v31, 0, v29
    ''' % (f32bits(LOG2E), f32bits(LOG2E), f32bits(1.0 / (2 * math.pi))))
    L, LC = 28, 30
    X0 = 32
    cmul(a, X0, 16, 14, 34)
    a('v_sub_f32 v%d, 0, v%d' % (X0 + 1, X0 + 1))
    a('v_lshl_add_u32 v7, v1, 2, s10')
    YB = 40
    Y = lambda b: YB + 2 * b
    TMP = 80
    T2 = 112
    OUT = 128
    deval(a, [(8, Y(1)), (16, Y(2)), (32, Y(4)), (64, Y(8)), (128, Y(16))], L, TMP)
    a('v_mov_b32 v%d, 0x3f80' % TMP)
    a('v_mov_b32 v%d, 0' % (TMP + 1))
    a('ds_write_b32 v7, v%d' % TMP)
    a('ds_write_b32 v7, v%d offset:%d' % (TMP + 1, KG_LO))
    cmul(a, Y(3), Y(2), Y(1), T2)
    cmul(a, Y(5), Y(4), Y(1), T2 + 2)
    cmul(a, Y(6), Y(4), Y(2), T2 + 4)
    cmul(a, Y(9), Y(8), Y(1), T2 + 6)
    cmul(a, Y(10), Y(8), Y(2), T2 + 8)
    cmul(a, Y(12), Y(8), Y(4), T2 + 10)
    cmul(a, Y(7), Y(4), Y(3), T2)
    cmul(a, Y(11), Y(8), Y(3), T2 + 2)
    cmul(a, Y(13), Y(8), Y(5), T2 + 4)
    cmul(a, Y(14), Y(8), Y(6), T2 + 6)
    cmul(a, Y(15), Y(8), Y(7), T2 + 8)
    split_write(a, [(b, Y(b)) for b in range(1, 9)], TMP, 7, 60, 61)
    split_write(a, [(b, Y(b)) for b in range(9, 17)], TMP, 7, 60, 61)
    for b0 in (1, 9):
        bs = [b for b in range(b0, b0 + 8) if b <= 15]
        for i, b in enumerate(bs):
            cmul(a, OUT + 2 * i, Y(16), Y(b), T2 + 2 * i)
        split_write(a, [(16 + b, OUT + 2 * i) for i, b in enumerate(bs)], TMP, 7, 60, 61)
    a('''
    v_and_b32 v8, 31, v1
    v_mul_u32_u24 v8, %d, v8
    v_lshrrev_b32 v9, 5, v1
    v_lshl_add_u32 v8, v9, 4, v8
    v_add_u32 v8, s10, v8
    s_waitcnt lgkmcnt(0)
    ''' % KG_ROW)
    BF = 112
    for k in range(8):
        a('ds_read_b128 %s, v8 offset:%d' % (vr(BF + 4 * k, 4), 32 * k))
        a('ds_read_b128 %s, v8 offset:%d' % (vr(BF + 32 + 4 * k, 4), KG_LO + 32 * k))
    E = {1: 12, 2: 14, 4: 16, 256: 18, 512: 20, 1024: 22, 2048: 24}
    deval(a, [(A, r) for A, r in E.items()], LC, TMP)
    XR = lambda r: 36 + 2 * r
    def X(r): return X0 if r == 0 else XR(r)
    T3 = 2
    tp = [2, 4, 26, 34]
    seq = [(1, 0, 256), (2, 0, 512), (4, 0, 1024), (8, 0, 2048), (9, 0, 4), (13, 0, 2), (17, 0, 1),
           (3, 2, 256), (5, 1, 1024), (6, 2, 1024), (10, 1, 4), (11, 2, 4), (14, 1, 2), (15, 9, 2), (18, 13, 1), (19, 9, 1),
           (7, 3, 1024), (12, 3, 4), (16, 10, 2), (20, 15, 1)]
    for i, (r, src, A) in enumerate(seq):
        cmul(a, X(r), X(src), E[A], tp[i % 4])
    a('s_waitcnt lgkmcnt(0)')
    split_write(a, [(r, X(r)) for r in range(0, 8)], TMP, 7, 60, 61)
    split_write(a, [(r, X(r)) for r in range(8, 16)], TMP, 7, 60, 61)
    split_write(a, [(r, X(r)) for r in range(16, 21)], TMP, 7, 60, 61)
    a('s_waitcnt lgkmcnt(0)')
    AF = 12
    for k in range(8):
        a('ds_read_b128 %s, v8 offset:%d' % (vr(AF + 4 * k, 4), 32 * k))
        a('ds_read_b128 %s, v8 offset:%d' % (vr(AF + 32 + 4 * k, 4), KG_LO + 32 * k))
    ACC = 80
    for k in range(8):
        a('s_waitcnt lgkmcnt(%d)' % (14 - 2 * k))
        cin = '0' if k == 0 else vr(ACC, 16)
        a('v_mfma_f32_32x32x16_bf16 %s, %s, %s, %s' % (vr(ACC, 16), vr(AF + 32 + 4 * k, 4), vr(BF + 4 * k, 4), cin))
        a('v_mfma_f32_32x32x16_bf16 %s, %s, %s, %s' % (vr(ACC, 16), vr(AF + 4 * k, 4), vr(BF + 32 + 4 * k, 4), vr(ACC, 16)))
        a('v_mfma_f32_32x32x16_bf16 %s, %s, %s, %s' % (vr(ACC, 16), vr(AF + 4 * k, 4), vr(BF + 4 * k, 4), vr(ACC, 16)))
    a.nop(16)
    even = a.newlabel('K1_EVEN')
    a('v_lshlrev_b32 v9, 4, v1')
    a('s_cmp_eq_u32 s9, 0')
    a('s_cbranch_scc1 %s' % even)
    a('v_add_u32 v9, s10, v9')
    for i in range(3):
        a('ds_write_b128 v9, %s offset:%d' % (vr(ACC + 4 * i, 4), 1024 * i))
    a('s_waitcnt lgkmcnt(0)')
    a('s_barrier')
    endl = a.newlabel('K1_PEND')
    a('s_cmp_eq_u32 s14, 0')
    a('s_cbranch_scc1 %s' % endl)
    a('s_mov_b32 s62, 0x3f803f80')
    a('v_mov_b32 v12, 0')
    a('v_mov_b32 v13, 0')
    for i in range(0, 36, 4):
        for k in range(4):
            a('v_and_b32 v%d, 0xffff, v%d' % (20 + 2 * k, GW + i + k))
            a('v_and_b32 v%d, 0xffff0000, v%d' % (21 + 2 * k, GW + i + k))
        for k in range(4):
            a('v_dot2_f32_bf16 v%d, v%d, v%d, 0' % (30 + 2 * k, GX + i + k, 20 + 2 * k))
            a('v_dot2_f32_bf16 v%d, v%d, v%d, 0' % (31 + 2 * k, GX + i + k, 21 + 2 * k))
        a.nop(3)
        for k in range(4):
            a('v_cvt_pk_bf16_f32 v%d, v%d, v%d' % (40 + k, 30 + 2 * k, 31 + 2 * k))
        a('v_dot2_f32_bf16 v12, v40, s62, v12')
        a('v_dot2_f32_bf16 v13, v41, s62, v13')
        a('v_dot2_f32_bf16 v12, v42, s62, v12')
        a('v_dot2_f32_bf16 v13, v43, s62, v13')
    a.nop(3)
    a('v_add_f32 v12, v12, v13')
    a.nop(2)
    a('v_add_f32_dpp v12, v12, v12 quad_perm:[1,0,3,2] row_mask:0xf bank_mask:0xf')
    a.nop(2)
    a('v_add_f32_dpp v12, v12, v12 quad_perm:[2,3,0,1] row_mask:0xf bank_mask:0xf')
    a.nop(2)
    a('v_add_f32_dpp v12, v12, v12 row_half_mirror row_mask:0xf bank_mask:0xf')
    a('''
    v_cvt_pk_bf16_f32 v12, v12, v12
    v_lshlrev_b32 v12, 16, v12
    v_mul_f32 v12, 0x%x, v12
    v_exp_f32 v12, v12
    s_nop 0
    v_add_f32 v12, 1.0, v12
    v_rcp_f32 v12, v12
    s_nop 0
    v_cvt_pk_bf16_f32 v12, v12, v12
    v_lshlrev_b32 v12, 16, v12
    v_lshrrev_b32 v13, 3, v1
    v_lshlrev_b32 v13, 2, v13
    s_lshl_b32 s11, s4, 5
    s_add_u32 s11, s11, 0x%x
    v_and_b32 v14, 7, v1
    v_cmp_eq_u32 vcc, 0, v14
    s_and_saveexec_b64 s[74:75], vcc
    buffer_store_dword v12, v13, %s, s11 offen
    ''' % (f32bits(-LOG2E), WS_G, sr(S_SWS, 4)))
    a.label(endl)
    a('s_endpgm')
    a.label(even)
    a('s_add_u32 s11, s10, %d' % KG_WAVE)
    a('v_add_u32 v9, s11, v9')
    a('s_barrier')
    for i in range(3):
        a('ds_read_b128 %s, v9 offset:%d' % (vr(12 + 4 * i, 4), 1024 * i))
    a('''
    s_mov_b32 s64, 1
    s_mov_b32 s65, -1
    s_mov_b32 s66, -1
    s_mov_b32 s67, 0
    s_waitcnt lgkmcnt(0)
    ''')
    for i in range(0, 12, 2):
        a('v_pk_add_f32 %s, %s, %s' % (vr(ACC + i, 2), vr(ACC + i, 2), vr(12 + i, 2)))
    a('v_cndmask_b32 v%d, 0, v%d, s[64:65]' % (ACC + 4, ACC + 4))
    for i in (9, 10, 11):
        a('v_cndmask_b32 v%d, 0, v%d, s[66:67]' % (ACC + i, ACC + i))
    a('v_max3_f32 v12, abs(v%d), abs(v%d), abs(v%d)' % (ACC, ACC + 1, ACC + 2))
    a('v_max3_f32 v13, abs(v%d), abs(v%d), abs(v%d)' % (ACC + 3, ACC + 4, ACC + 5))
    a('v_max3_f32 v14, abs(v%d), abs(v%d), abs(v%d)' % (ACC + 6, ACC + 7, ACC + 8))
    a('v_max3_f32 v15, abs(v%d), abs(v%d), abs(v%d)' % (ACC + 9, ACC + 10, ACC + 11))
    a('v_max3_f32 v12, v12, v13, v14')
    a('v_max_f32 v12, v12, v15')
    for dpp in ('quad_perm:[1,0,3,2]', 'quad_perm:[2,3,0,1]', 'row_half_mirror', 'row_mirror'):
        a.nop(2)
        a('v_max_f32_dpp v12, v12, v12 %s row_mask:0xf bank_mask:0xf' % dpp)
    a.nop(2)
    a('''
    v_readlane_b32 s64, v12, 0
    v_readlane_b32 s65, v12, 16
    v_readlane_b32 s66, v12, 32
    v_readlane_b32 s67, v12, 48
    s_nop 3
    s_max_u32 s64, s64, s65
    s_max_u32 s66, s66, s67
    s_max_u32 s64, s64, s66
    s_lshr_b32 s64, s64, 23
    s_sub_u32 s64, 268, s64
    s_min_u32 s64, s64, 254
    s_lshl_b32 s66, s64, 23
    s_mov_b32 s67, s66
    ''')
    for i in range(0, 12, 2):
        a('v_pk_mul_f32 %s, %s, s[66:67]' % (vr(ACC + i, 2), vr(ACC + i, 2)))
    for i in range(0, 12, 2):
        a('v_cvt_pk_f16_f32 v%d, v%d, v%d' % (12 + i // 2, ACC + i, ACC + i + 1))
    a('''
    v_and_b32 v8, 31, v1
    v_lshlrev_b32 v8, 1, v8
    v_lshrrev_b32 v9, 5, v1
    v_lshl_add_u32 v8, v9, 8, v8
    s_mul_i32 s11, s8, %d
    s_add_u32 s11, s11, 0x%x
    ''' % (KC_STRIDE, WS_KC))
    for r in range(12):
        off = (8 * (r >> 2) + (r & 3)) * 64
        if r % 2 == 0:
            a('buffer_store_short v%d, v8, %s, s11 offen offset:%d' % (12 + r // 2, sr(S_SWS, 4), off))
        else:
            a('buffer_store_short_d16_hi v%d, v8, %s, s11 offen offset:%d' % (12 + r // 2, sr(S_SWS, 4), off))
    a('''
    v_mov_b32 v9, s64
    v_mov_b32 v8, 0
    s_lshl_b32 s11, s8, 2
    s_add_u32 s11, s11, 0x%x
    s_mov_b64 exec, 1
    buffer_store_dword v9, v8, %s, s11 offen
    s_endpgm
    ''' % (WS_KC + 576 * KC_STRIDE, sr(S_SWS, 4)))


def gen_k1(a):
    a.lines.append('.globl k1_kernel\n.p2align 8\n.type k1_kernel,@function\nk1_kernel:')
    a('s_cmp_ge_u32 s2, %d' % K1_GRID)
    a('s_cbranch_scc1 K1_EXIT')
    load_kernargs(a)
    a('''
    v_lshrrev_b32 v2, 6, v0
    v_and_b32 v1, 63, v0
    s_nop 0
    v_readfirstlane_b32 s3, v2
    s_cmp_ge_u32 s2, %d
    s_cbranch_scc1 K1_PREP
    ''' % N_GEMM)
    gemm_part(a)
    prep_part(a)
    a.label('K1_EXIT')
    a('s_endpgm')
```

```python
from asmlib import *
from gen_k1 import *

N_CONV = 576
N_RED = 15
K2_GRID = N_CONV + N_RED
CSZ = 4160
UC = 0
KL = 4 * CSZ
K2_LDS = 32768
K2_VGPR = 160

S_SU, S_SWS2 = 48, 56


def conv_part(a):
    a('''
    v_and_b32 v10, 15, v1
    v_lshrrev_b32 v11, 4, v1
    s_lshl_b32 s4, s2, 12
    s_add_u32 s4, s4, 0x%x
    s_mul_i32 s5, s2, %d
    s_add_u32 s5, s5, 0x%x
    s_lshl_b32 s6, s2, 2
    s_add_u32 s6, s6, 0x%x
    s_lshr_b32 s7, s2, 1
    s_lshl_b32 s7, s7, 2
    v_lshlrev_b32 v2, 4, v1
    v_lshlrev_b32 v3, 4, v0
    s_waitcnt lgkmcnt(0)
    s_load_dword s8, s[46:47], s6
    s_load_dword s9, s[38:39], s7
    ''' % (WS_XT, KC_STRIDE, WS_KC, WS_KC + 576 * KC_STRIDE))
    srd(a, S_SU, P_WS, 4096, add='s4')
    srd(a, S_SWS2, P_WS, WS_END)
    M = 96
    for i in range(4):
        a('buffer_load_dwordx4 %s, v2, %s, 0 offen offset:%d' % (vr(M + 4 * i, 4), sr(S_SU, 4), 1024 * i))
    D = 16
    a('buffer_load_dwordx4 %s, v3, %s, 0 offen' % (vr(D, 4), sr(S_SU, 4)))
    a('buffer_load_dwordx2 %s, v3, %s, 0 offen offset:16' % (vr(D + 4, 2), sr(S_SU, 4)))
    V0, V0N, V4, V2, V6, V1, V3, V5, V7 = 0, 1, 288, 416, 480, 544, 576, 608, 640
    C = [[V0, V1, V2, V3, V4, V5, V6, V7],
         [V0, V0, V2, V4, V4, V4, V6, V0N],
         [V0, V0, V0, V4, V4, V4, V0N, V0N],
         [V0, V0, V0, V0, None, V0N, V0N, V0N]]
    a('''
    v_cmp_gt_u32 s[64:65], 32, v0
    v_cmp_gt_u32 s[66:67], 64, v0
    v_cmp_gt_u32 vcc, 128, v0
    s_mov_b64 s[68:69], vcc
    v_and_b32 v12, 1, v0
    v_lshlrev_b32 v13, 1, v0
    ''')
    KT = 24
    for e in range(8):
        c3 = C[3][e]
        if c3 is None:
            a('v_mov_b32 v14, v12')
        else:
            a('v_mov_b32 v14, %d' % c3)
        prev = c3
        for seg, mk in ((2, 's[68:69]'), (1, 's[66:67]'), (0, 's[64:65]')):
            if C[seg][e] != prev or (seg < 2 and C[seg][e] != C[seg + 1][e]):
                a('v_mov_b32 v15, %d' % C[seg][e])
                a('v_cndmask_b32 v14, v14, v15, %s' % mk)
            prev = C[seg][e]
        a('v_lshl_add_u32 v14, v14, 1, v13')
        slot = 7 - e
        a('buffer_load_ushort v%d, v14, %s, s5 offen' % (112 + slot, sr(S_SWS2, 4)))
    UE = 28
    a('''
    s_lshl_b32 s10, s3, 10
    v_lshlrev_b32 v4, 5, v10
    v_lshl_add_u32 v4, v11, 3, v4
    v_add_u32 v4, s10, v4
    buffer_load_dwordx2 v[28:29], v4, %s, 0 offen
    buffer_load_dwordx2 v[30:31], v4, %s, 0 offen offset:512
    ''' % (sr(S_SU, 4), sr(S_SU, 4)))
    FP = 32
    a('''
    v_mov_b32 v32, 0
    v_mov_b32 v33, 0
    v_mov_b32 v34, 0
    v_mov_b32 v35, 0
    v_lshlrev_b32 v5, 4, v1
    v_subrev_u32 v5, 16, v5
    buffer_load_dwordx2 v[36:37], v5, %s, 0 offen
    ''' % sr(S_SU, 4))
    a('''
    v_subrev_u32 v6, 64, v0
    v_cmp_gt_u32 vcc, 30, v6
    v_lshlrev_b32 v6, 4, v6
    s_and_saveexec_b64 s[70:71], vcc
    ds_write_b128 v6, v[32:35] offset:%d
    s_mov_b64 exec, s[70:71]
    ''' % KL)
    a('s_waitcnt vmcnt(13)')
    a('s_mov_b32 s11, 0x7fff7fff')
    for i in range(16):
        a('v_and_b32 v%d, s11, v%d' % (M + i, M + i))
    for st in (8, 4, 2, 1):
        for i in range(st):
            a('v_pk_max_u16 v%d, v%d, v%d' % (M + i, M + i, M + i + st))
    a('v_lshrrev_b32 v12, 16, v%d' % M)
    a('v_and_b32 v13, 0xffff, v%d' % M)
    a('v_max_u32 v12, v12, v13')
    for dpp in ('quad_perm:[1,0,3,2]', 'quad_perm:[2,3,0,1]', 'row_half_mirror', 'row_mirror'):
        a.nop(2)
        a('v_max_u32_dpp v12, v12, v12 %s row_mask:0xf bank_mask:0xf' % dpp)
    a.nop(2)
    a('''
    v_readlane_b32 s64, v12, 0
    v_readlane_b32 s65, v12, 16
    v_readlane_b32 s66, v12, 32
    v_readlane_b32 s67, v12, 48
    s_nop 3
    s_max_u32 s64, s64, s65
    s_max_u32 s66, s66, s67
    s_max_u32 s64, s64, s66
    s_lshr_b32 s64, s64, 7
    s_sub_u32 s64, 268, s64
    s_min_u32 s64, s64, 254
    s_lshl_b32 s66, s64, 23
    s_mov_b32 s67, s66
    s_waitcnt vmcnt(0) lgkmcnt(0)
    s_add_u32 s12, s64, s8
    s_sub_u32 s12, 254, s12
    ''')
    for k in range(4):
        a('v_lshl_or_b32 v%d, v%d, 16, v%d' % (KT + k, 112 + 2 * k + 1, 112 + 2 * k))
    a('ds_write_b128 v3, %s offset:%d' % (vr(KT, 4), KL + 480))

    def make_copies(src, vaddr, off):
        T = 40
        for k in range(6):
            a('v_lshlrev_b32 v%d, 16, v%d' % (T + 2 * k, src + k))
            a('v_and_b32 v%d, 0xffff0000, v%d' % (T + 2 * k + 1, src + k))
        for k in range(6):
            a('v_pk_mul_f32 %s, %s, s[66:67]' % (vr(T + 2 * k, 2), vr(T + 2 * k, 2)))
        F = 56
        for k in range(6):
            a('v_cvt_pk_f16_f32 v%d, v%d, v%d' % (F + k, T + 2 * k, T + 2 * k + 1))
        for k in range(4):
            a('v_alignbit_b32 v%d, v%d, v%d, 16' % (64 + k, F + k + 1, F + k))
            a('v_mov_b32 v%d, v%d' % (68 + k, F + k + 1))
            a('v_alignbit_b32 v%d, v%d, v%d, 16' % (72 + k, F + k + 2, F + k + 1))
        a('ds_write_b128 v%d, %s offset:%d' % (vaddr, vr(F, 4), UC + off))
        a('ds_write_b128 v%d, v[64:67] offset:%d' % (vaddr, UC + CSZ + off))
        a('ds_write_b128 v%d, v[68:71] offset:%d' % (vaddr, UC + 2 * CSZ + off))
        a('ds_write_b128 v%d, v[72:75] offset:%d' % (vaddr, UC + 3 * CSZ + off))
    make_copies(D, 3, 32)
    skip = a.newlabel('K2_NOFP')
    a('s_cmp_lg_u32 s3, 0')
    a('s_cbranch_scc1 %s' % skip)
    a('s_mov_b64 exec, 3')
    make_copies(FP, 2, 0)
    a('s_mov_b64 exec, -1')
    a.label(skip)
    a('''
    v_add_u32 v12, 1, v10
    v_and_b32 v13, 3, v12
    v_lshrrev_b32 v12, 2, v12
    v_mul_u32_u24 v13, %d, v13
    v_lshl_add_u32 v12, v12, 3, v13
    v_lshlrev_b32 v13, 4, v11
    v_sub_u32 v12, v12, v13
    s_lshl_b32 s10, s3, 6
    s_add_u32 s10, s10, %d
    v_add_u32 v5, s10, v12
    ''' % (CSZ, UC + 48))
    a('''
    v_lshlrev_b32 v12, 5, v10
    v_lshl_add_u32 v12, v11, 4, v12
    s_lshl_b32 s10, s3, 6
    s_sub_u32 s10, %d, s10
    v_add_u32 v6, s10, v12
    s_waitcnt lgkmcnt(0)
    s_barrier
    ''' % (KL + 192))
    lg = Cnt(a, 'lgkmcnt', 15)
    BF = 32
    AFR = 96
    ACC = 128
    def aread(t):
        r = AFR + 4 * (t % 8)
        a('ds_read_b64 %s, v5 offset:%d' % (vr(r, 2), 256 * t))
        lg.issue(('A', t))
        a('ds_read_b64 %s, v5 offset:%d' % (vr(r + 2, 2), 256 * t + 8))
        lg.issue(('A', t))
    def bread(s):
        a('ds_read_b128 %s, v6 offset:%d' % (vr(BF + 4 * s, 4), 256 * s))
        lg.issue(('B', s))
    aread(0)
    for n in range(8):
        bread(2 * n + 1)
    aread(1)
    for n in range(8):
        bread(2 * n)
    started = set()
    for t in range(16):
        for n in range(8):
            if 2 * n + 1 < t:
                continue
            s = 2 * n - t + 1
            lg.wait(('A', t))
            lg.wait(('B', s))
            cin = vr(ACC + 4 * n, 4) if n in started else '0'
            started.add(n)
            a('v_mfma_f32_16x16x32_f16 %s, %s, %s, %s' % (vr(ACC + 4 * n, 4), vr(AFR + 4 * (t % 8), 4), vr(BF + 4 * s, 4), cin))
        if t == 0:
            for tt in range(2, 5):
                aread(tt)
        elif t == 1:
            for tt in range(5, 8):
                aread(tt)
        if t + 8 < 16:
            aread(t + 8)
    a.nop(8)
    a('s_barrier')
    a('''
    s_lshl_b32 s10, s3, 10
    v_add_u32 v12, s10, v2
    ''')
    for n in range(8):
        a('ds_write_b128 v12, %s offset:%d' % (vr(ACC + 4 * n, 4), n * 4096))
    a('''
    s_lshl_b32 s10, s3, 13
    v_add_u32 v12, s10, v2
    s_waitcnt lgkmcnt(0)
    s_barrier
    ''')
    R = 32
    for t in range(2):
        for w in range(4):
            a('ds_read_b128 %s, v12 offset:%d' % (vr(R + 16 * t + 4 * w, 4), t * 4096 + w * 1024))
    a('''
    s_and_b32 s10, s2, 1
    s_lshl_b32 s10, s10, 4
    s_lshr_b32 s9, s9, s10
    s_lshl_b32 s68, s9, 16
    s_mov_b32 s69, s68
    ''')
    U = 64
    for k in range(4):
        a('v_lshlrev_b32 v%d, 16, v%d' % (U + 2 * k, UE + k))
        a('v_and_b32 v%d, 0xffff0000, v%d' % (U + 2 * k + 1, UE + k))
    for k in range(4):
        a('v_pk_mul_f32 %s, %s, s[68:69]' % (vr(U + 2 * k, 2), vr(U + 2 * k, 2)))
    for k in range(4):
        a('v_cvt_pk_bf16_f32 v%d, v%d, v%d' % (UE + k, U + 2 * k, U + 2 * k + 1))
    for k in range(4):
        a('v_lshlrev_b32 v%d, 16, v%d' % (U + 2 * k, UE + k))
        a('v_and_b32 v%d, 0xffff0000, v%d' % (U + 2 * k + 1, UE + k))
    a('s_waitcnt lgkmcnt(0)')
    for t in range(2):
        b = R + 16 * t
        for h in (0, 2):
            a('v_pk_add_f32 %s, %s, %s' % (vr(b + h, 2), vr(b + h, 2), vr(b + 4 + h, 2)))
            a('v_pk_add_f32 %s, %s, %s' % (vr(b + 8 + h, 2), vr(b + 8 + h, 2), vr(b + 12 + h, 2)))
    for t in range(2):
        b = R + 16 * t
        for h in (0, 2):
            a('v_pk_add_f32 %s, %s, %s' % (vr(b + h, 2), vr(b + h, 2), vr(b + 8 + h, 2)))
    for t in range(2):
        b = R + 16 * t
        for k in range(4):
            a('v_ldexp_f32 v%d, v%d, s12' % (b + k, b + k))
    Y = 72
    for t in range(2):
        b = R + 16 * t
        for h in range(2):
            a('v_cvt_pk_bf16_f32 v%d, v%d, v%d' % (Y + 2 * t + h, b + 2 * h, b + 2 * h + 1))
    for k in range(4):
        a('v_lshlrev_b32 v%d, 16, v%d' % (80 + 2 * k, Y + k))
        a('v_and_b32 v%d, 0xffff0000, v%d' % (81 + 2 * k, Y + k))
    for k in range(4):
        a('v_pk_add_f32 %s, %s, %s' % (vr(80 + 2 * k, 2), vr(80 + 2 * k, 2), vr(U + 2 * k, 2)))
    for k in range(4):
        a('v_cvt_pk_bf16_f32 v%d, v%d, v%d' % (Y + k, 80 + 2 * k, 81 + 2 * k))
    a('''
    s_lshl_b32 s10, s2, 12
    s_add_u32 s10, s10, 0x%x
    buffer_store_dwordx2 v[72:73], v4, %s, s10 offen
    buffer_store_dwordx2 v[74:75], v4, %s, s10 offen offset:512
    s_endpgm
    ''' % (WS_BT, sr(S_SWS2, 4), sr(S_SWS2, 4)))


def red_part(a):
    a.label('K2_RED')
    a('''
    s_sub_u32 s4, s2, %d
    s_lshl_b32 s4, s4, 8
    v_add_u32 v2, s4, v0
    v_cmp_gt_u32 vcc, 3648, v2
    s_and_saveexec_b64 s[70:71], vcc
    s_cbranch_execz K2_EXIT
    v_lshlrev_b32 v3, 4, v2
    s_waitcnt lgkmcnt(0)
    ''' % N_CONV)
    srd(a, S_SWS2, P_WS, WS_END)
    for rb in range(16):
        a('s_mov_b32 s5, 0x%x' % (WS_KVP + rb * KVP_RB))
        a('buffer_load_dwordx4 %s, v3, %s, s5 offen' % (vr(16 + 4 * rb, 4), sr(S_SWS2, 4)))
    a('''
    v_mul_u32_u24 v4, 575, v2
    v_lshrrev_b32 v4, 16, v4
    v_and_b32 v4, 3, v4
    v_lshlrev_b32 v4, 1, v4
    v_mul_u32_u24 v5, 10923, v2
    v_lshrrev_b32 v5, 16, v5
    v_mul_u32_u24 v5, 6, v5
    v_sub_u32 v5, v2, v5
    v_lshlrev_b32 v5, 2, v5
    v_sub_u32 v5, v5, v4
    v_add_u32 v6, 1, v5
    v_add_u32 v7, 2, v5
    v_add_u32 v8, 3, v5
    v_cmp_gt_u32 s[60:61], 18, v5
    v_cmp_gt_u32 s[62:63], 18, v6
    v_cmp_gt_u32 s[64:65], 18, v7
    v_cmp_gt_u32 s[66:67], 18, v8
    s_waitcnt vmcnt(0)
    ''')
    for st in (8, 4, 2, 1):
        for i in range(st):
            for h in (0, 2):
                a('v_pk_add_f32 %s, %s, %s' % (vr(16 + 4 * i + h, 2), vr(16 + 4 * i + h, 2), vr(16 + 4 * (i + st) + h, 2)))
    for i in range(4):
        a('v_cndmask_b32 v%d, 0, v%d, s[%d:%d]' % (16 + i, 16 + i, 60 + 2 * i, 61 + 2 * i))
    a('''
    v_cvt_pk_bf16_f32 v20, v16, v17
    v_cvt_pk_bf16_f32 v21, v18, v19
    v_lshlrev_b32 v3, 3, v2
    s_mov_b32 s5, 0x%x
    buffer_store_dwordx2 v[20:21], v3, %s, s5 offen
    ''' % (WS_KVT, sr(S_SWS2, 4)))


def gen_k2(a):
    a.lines.append('.globl k2_kernel\n.p2align 8\n.type k2_kernel,@function\nk2_kernel:')
    a('s_cmp_ge_u32 s2, %d' % K2_GRID)
    a('s_cbranch_scc1 K2_EXIT')
    load_kernargs(a)
    a('''
    v_lshrrev_b32 v2, 6, v0
    v_and_b32 v1, 63, v0
    s_nop 0
    v_readfirstlane_b32 s3, v2
    s_cmp_ge_u32 s2, %d
    s_cbranch_scc1 K2_RED
    ''' % N_CONV)
    conv_part(a)
    red_part(a)
    a.label('K2_EXIT')
    a('s_endpgm')
```

```python
from asmlib import *
from gen_k1 import *

K3_GRID = 256
WSLOT = 9216
BTL = 16 * WSLOT
K3_LDS = BTL + 9216
K3_ACCUM = 256
K3_VGPR = 256 + 164

S_SWO, S_SWS3, S_SOUT, S_SKV = 48, 52, 56, 60

STEPS = {0: [0], 1: [0, 1], 2: [0, 1], 3: [1, 2], 4: [1, 2], 5: [2, 3], 6: [2, 3], 7: [3, 4], 8: [3, 4]}


def gen_k3(a):
    a.lines.append('.globl k3_kernel\n.p2align 8\n.type k3_kernel,@function\nk3_kernel:')
    a('s_cmp_ge_u32 s2, %d' % K3_GRID)
    a('s_cbranch_scc1 K3_EXIT')
    load_kernargs(a)
    a('''
    v_lshrrev_b32 v2, 6, v0
    v_and_b32 v1, 63, v0
    s_nop 0
    v_readfirstlane_b32 s3, v2
    s_and_b32 s4, s2, 7
    s_lshr_b32 s5, s2, 3
    s_lshl_b32 s4, s4, 3
    s_and_b32 s6, s5, 7
    s_add_u32 s4, s4, s6
    s_lshl_b32 s4, s4, 5
    s_lshr_b32 s5, s5, 3
    s_mul_i32 s5, s5, 144
    v_and_b32 v10, 15, v1
    v_lshrrev_b32 v11, 4, v1
    s_mul_i32 s6, s3, 144
    s_mul_i32 s7, s3, %d
    ''' % (4 * WSLOT))
    vm = Cnt(a, 'vmcnt', 63)
    lg = Cnt(a, 'lgkmcnt', 15)
    a('''
    v_add_u32 v12, s4, v10
    v_mul_u32_u24 v12, 1152, v12
    v_lshl_add_u32 v12, v11, 4, v12
    s_lshl_b32 s8, s6, 1
    v_add_u32 v2, s8, v12
    v_add_u32 v3, 18432, v2
    ''')
    WD = 240
    a('s_mul_i32 s8, s6, 1152')
    a('s_lshl_b32 s9, s5, 1')
    a('s_add_u32 s8, s8, s9')
    for i in range(9):
        a('''
        v_add_u32 v12, %d, v1
        v_mul_u32_u24 v13, 3641, v12
        v_lshrrev_b32 v13, 16, v13
        v_mul_u32_u24 v14, 18, v13
        v_sub_u32 v14, v12, v14
        v_mul_u32_u24 v13, 1152, v13
        v_lshl_add_u32 v13, v14, 4, v13
        v_add_u32 v%d, s8, v13
        ''' % (64 * i, WD + i))
    a('s_waitcnt lgkmcnt(0)')
    srd(a, S_SWO, P_WO, 576 * 576 * 2)
    srd(a, S_SWS3, P_WS, WS_END)
    srd(a, S_SOUT, P_OUT, 2048 * 576 * 2)
    srd(a, S_SKV, P_WS, 32 * 19 * 24 * 2, add='0x%x' % WS_KVT)
    PQ = lambda k, st: 16 + (k * 2 + st) * 4
    for k in range(5):
        for st in range(2):
            a('buffer_load_dwordx4 %s, v%d, %s, 0 offen offset:%d' % (vr(PQ(k, st), 4), 2 + st, sr(S_SWS3, 4), 64 * k))
            vm.issue(('PQ', k))

    def wdma(k, n):
        slot = (k % 4) * WSLOT
        a('s_mov_b32 s10, 0x%x' % (k * 32 * 1152))
        for i in range(n):
            a('s_add_u32 m0, s7, 0x%x' % (slot + i * 1024))
            a('s_nop 0')
            a('buffer_load_dwordx4 v%d, %s, s10 offen lds' % (WD + i, sr(S_SWO, 4)))
            vm.issue(('W', k))

    ZF = lambda k: 124 + 4 * k
    KVF = {}
    idx = 0
    for c in range(9):
        for k in STEPS[c]:
            KVF[(c, k)] = 56 + 4 * idx
            idx += 1
    SEL = lambda c: 144 + 4 * c
    def frag_addr_setup():
        a('''
        s_lshl_b32 s9, s3, 3
        v_add_u32 v14, s9, v12
        v_mul_u32_u24 v14, 19, v14
        v_add_u32 v14, v14, v13
        v_mul_u32_u24 v14, 48, v14
        v_lshrrev_b32 v15, 2, v12
        v_mul_u32_u24 v15, 72, v15
        v_and_b32 v4, 3, v12
        v_lshl_add_u32 v15, v4, 4, v15
        v_lshlrev_b32 v4, 3, v11
        v_sub_u32 v15, v4, v15
        ''')
    def frag_load(dst, k, tag, extra_mask=None):
        a('v_add_u32 v4, %d, v15' % (32 * k))
        a('v_cmp_gt_u32 vcc, 24, v4')
        if extra_mask:
            a('s_and_b64 vcc, vcc, %s' % extra_mask)
        a('v_lshl_add_u32 v4, v4, 1, v14')
        a('s_nop 0')
        a('v_cndmask_b32 v4, v9, v4, vcc')
        a('buffer_load_dwordx4 %s, v4, %s, 0 offen' % (vr(dst, 4), sr(S_SKV, 4)))
        vm.issue(tag)
    a('v_mov_b32 v9, 0x40000000')
    a('''
    v_lshrrev_b32 v12, 2, v10
    v_lshlrev_b32 v12, 1, v12
    v_and_b32 v13, 1, v10
    v_add_u32 v12, v12, v13
    v_and_b32 v13, 2, v10
    v_cmp_eq_u32 s[64:65], 0, v13
    v_mov_b32 v13, 18
    ''')
    frag_addr_setup()
    for k in range(5):
        frag_load(ZF(k), k, ('Z', k), 's[64:65]')
    SELV = 224
    for c in range(9):
        a('''
        v_add_u32 v5, %d, v10
        v_mul_u32_u24 v12, 57, v5
        v_lshrrev_b32 v12, 10, v12
        v_mul_u32_u24 v13, 18, v12
        v_sub_u32 v13, v5, v13
        ''' % (16 * c))
        frag_addr_setup()
        for k in STEPS[c]:
            frag_load(KVF[(c, k)], k, ('KV', c))
        a('''
        v_lshrrev_b32 v4, 1, v12
        v_cmp_eq_u32 vcc, v4, v11
        v_and_b32 v4, 1, v12
        v_lshlrev_b32 v4, 4, v4
        v_mov_b32 v5, 0x3f80
        v_lshlrev_b32 v4, v4, v5
        v_cndmask_b32 v%d, 0, v4, vcc
        ''' % (SELV + c))
    for k in range(4):
        wdma(k, 9)
    a('''
    s_lshl_b32 s8, s5, 12
    s_lshl_b32 s9, s4, 1
    s_add_u32 s8, s8, s9
    s_add_u32 s8, s8, 0x%x
    v_lshrrev_b32 v12, 2, v1
    v_lshlrev_b32 v12, 12, v12
    v_and_b32 v13, 3, v1
    v_lshl_add_u32 v12, v13, 4, v12
    s_lshl_b32 s9, s3, 17
    s_add_u32 s9, s9, s8
    s_lshl_b32 s11, s3, 11
    s_add_u32 m0, s11, %d
    s_nop 0
    buffer_load_dwordx4 v12, %s, s9 offen lds
    s_add_u32 s9, s9, 0x10000
    s_add_u32 m0, s11, %d
    s_nop 0
    buffer_load_dwordx4 v12, %s, s9 offen lds
    s_add_u32 s9, s8, 0x80000
    s_mov_b32 m0, %d
    s_nop 0
    buffer_load_dwordx4 v12, %s, s9 offen lds
    ''' % (WS_BT, BTL, sr(S_SWS3, 4), BTL + 1024, sr(S_SWS3, 4), BTL + 8192, sr(S_SWS3, 4)))
    for i in range(3):
        vm.issue(('BT',))
    a('''
    s_and_b32 s12, s3, 1
    s_lshl_b32 s9, s12, 4
    s_add_u32 s9, s9, s4
    v_add_u32 v12, s9, v10
    v_lshlrev_b32 v12, 2, v12
    s_mov_b32 s9, 0x%x
    buffer_load_dword v8, v12, %s, s9 offen
    ''' % (WS_G, sr(S_SWS3, 4)))
    vm.issue(('G',))
    a('''
    v_lshrrev_b32 v12, 2, v10
    v_lshl_add_u32 v12, v11, 2, v12
    v_mul_u32_u24 v13, 288, v12
    v_and_b32 v14, 3, v1
    v_lshl_add_u32 v13, v14, 3, v13
    v_add_u32 v6, s7, v13
    v_lshlrev_b32 v13, 6, v12
    v_lshl_add_u32 v13, v14, 3, v13
    s_lshl_b32 s9, s12, 5
    s_lshr_b32 s13, s3, 1
    s_lshl_b32 s11, s13, 10
    s_add_u32 s9, s9, s11
    s_add_u32 s9, s9, %d
    v_add_u32 v7, s9, v13
    ''' % BTL)
    a('s_mov_b32 s66, 0x0000bf80')
    a('s_mov_b32 s67, 0xbf800000')
    a('s_mov_b32 s68, 0x%x' % f32bits(1e-6))
    DEN = lambda st: 216 + 4 * st
    for k in range(5):
        vm.wait(('PQ', k))
        vm.wait(('Z', k))
        for st in range(2):
            cin = '0' if k == 0 else vr(DEN(st), 4)
            a('v_mfma_f32_16x16x32_bf16 %s, %s, %s, %s' % (vr(DEN(st), 4), vr(ZF(k), 4), vr(PQ(k, st), 4), cin))
    NUM = lambda c, st: 144 + (c * 2 + st) * 4
    for c in range(9):
        vm.wait(('KV', c))
        for i, k in enumerate(STEPS[c]):
            for st in range(2):
                cin = '0' if i == 0 else vr(NUM(c, st), 4)
                a('v_mfma_f32_16x16x32_bf16 %s, %s, %s, %s' % (vr(NUM(c, st), 4), vr(KVF[(c, k)], 4), vr(PQ(k, st), 4), cin))
    RT = lambda st: 124 + 4 * st
    for st in range(2):
        d = DEN(st)
        t = 132 + 6 * st
        a('v_cvt_pk_bf16_f32 v%d, v%d, v%d' % (t, d, d + 1))
    for st in range(2):
        t = 132 + 6 * st
        a('v_lshlrev_b32 v%d, 16, v%d' % (t + 2, t))
        a('v_and_b32 v%d, 0xffff0000, v%d' % (t + 3, t))
    for st in range(2):
        t = 132 + 6 * st
        a('v_add_f32 v%d, s68, v%d' % (t + 2, t + 2))
        a('v_add_f32 v%d, s68, v%d' % (t + 3, t + 3))
    for st in range(2):
        t = 132 + 6 * st
        a('v_cvt_pk_bf16_f32 v%d, v%d, v%d' % (t, t + 2, t + 3))
    for st in range(2):
        t = 132 + 6 * st
        a('v_lshlrev_b32 v%d, 16, v%d' % (t + 2, t))
        a('v_and_b32 v%d, 0xffff0000, v%d' % (t + 3, t))
    for st in range(2):
        t = 132 + 6 * st
        a('v_rcp_f32 v%d, v%d' % (t + 2, t + 2))
        a('v_rcp_f32 v%d, v%d' % (t + 3, t + 3))
    a.nop(1)
    for term in range(3):
        for st in range(2):
            t = 132 + 6 * st
            a('v_cvt_pk_bf16_f32 v%d, v%d, v%d' % (RT(st) + term, t + 2, t + 3))
        if term < 2:
            for st in range(2):
                t = 132 + 6 * st
                a('v_dot2_f32_bf16 v%d, v%d, s66, v%d' % (t + 2, RT(st) + term, t + 2))
                a('v_dot2_f32_bf16 v%d, v%d, s67, v%d' % (t + 3, RT(st) + term, t + 3))
            a.nop(3)
    for st in range(2):
        a('v_mov_b32 v%d, 0' % (RT(st) + 3))
    WOF = lambda j, k: (k * 36 + 4 * j) if k < 4 else (144 + 2 * j)
    def woread(k):
        vm.wait(('W', k))
        for j in range(9):
            off = (k % 4) * WSLOT + 32 * j
            a('ds_read_b64_tr_b16 %s, v6 offset:%d' % (ar(WOF(j, k), 2), off))
            lg.issue(('WO', k))
            if k < 4:
                a('ds_read_b64_tr_b16 %s, v6 offset:%d' % (ar(WOF(j, k) + 2, 2), off + 16 * 288))
                lg.issue(('WO', k))
    woread(0)
    lg.wait(('WO', 0))
    wdma(4, 5)
    OB = 56
    SF = lambda i: 92 + 4 * i
    RR = lambda i: 100 + 4 * i
    TT = 116
    def sel_expand(c):
        for i in range(4):
            a('v_mov_b32 v%d, v%d' % (SF(c % 2) + i, SELV + c))
    sel_expand(0)
    for c in range(9):
        if c + 1 < 9:
            sel_expand(c + 1)
        else:
            a.nop(2)
        for st in range(2):
            a('v_mfma_f32_16x16x32_bf16 %s, %s, %s, 0' % (vr(RR((c % 2) * 2 + st), 4), vr(SF(c % 2), 4), vr(RT(st), 4)))
        def proc(cc):
            for st in range(2):
                n = NUM(cc, st)
                a('v_cvt_pk_bf16_f32 v%d, v%d, v%d' % (n, n, n + 1))
                a('v_cvt_pk_bf16_f32 v%d, v%d, v%d' % (n + 2, n + 2, n + 3))
            for st in range(2):
                n = NUM(cc, st)
                t = TT + 4 * st
                a('v_lshlrev_b32 v%d, 16, v%d' % (t, n))
                a('v_and_b32 v%d, 0xffff0000, v%d' % (t + 1, n))
                a('v_lshlrev_b32 v%d, 16, v%d' % (t + 2, n + 2))
                a('v_and_b32 v%d, 0xffff0000, v%d' % (t + 3, n + 2))
            for st in range(2):
                t = TT + 4 * st
                r = RR((cc % 2) * 2 + st)
                a('v_pk_mul_f32 %s, %s, %s' % (vr(t, 2), vr(t, 2), vr(r, 2)))
                a('v_pk_mul_f32 %s, %s, %s' % (vr(t + 2, 2), vr(t + 2, 2), vr(r + 2, 2)))
            for st in range(2):
                t = TT + 4 * st
                o = OB + st * 18 + 2 * cc
                a('v_cvt_pk_bf16_f32 v%d, v%d, v%d' % (o, t, t + 1))
                a('v_cvt_pk_bf16_f32 v%d, v%d, v%d' % (o + 1, t + 2, t + 3))
        if c >= 1:
            proc(c - 1)
        if c in (2, 4, 6):
            woread(c // 2)
    a.nop(4)
    proc(8)
    woread(4)
    a.nop(2)
    ACC = lambda j, st: 144 + (j * 2 + st) * 4
    for k in range(5):
        lg.wait(('WO', k))
        for j in range(9):
            for st in range(2):
                cin = '0' if k == 0 else vr(ACC(j, st), 4)
                if k < 4:
                    a('v_mfma_f32_16x16x32_bf16 %s, %s, %s, %s' % (vr(ACC(j, st), 4), ar(WOF(j, k), 4), vr(OB + st * 18 + 4 * k, 4), cin))
                else:
                    a('v_mfma_f32_16x16x16_bf16 %s, %s, %s, %s' % (vr(ACC(j, st), 4), ar(WOF(j, k), 2), vr(OB + st * 18 + 16, 2), cin))
    vm.wait_all()
    a.nop(8)
    a('s_barrier')
    a('''
    v_lshlrev_b32 v12, 4, v1
    s_lshl_b32 s9, s3, 10
    v_add_u32 v13, s9, v12
    v_add_u32 v14, 0x9000, v13
    ''')
    for t in range(18):
        j, st = t >> 1, t & 1
        if t < 9:
            a('ds_write_b128 v13, %s offset:%d' % (vr(ACC(j, st), 4), t * 4096))
        else:
            a('ds_write_b128 v14, %s offset:%d' % (vr(ACC(j, st), 4), (t - 9) * 4096))
    a('''
    s_lshl_b32 s9, s3, 12
    v_add_u32 v13, s9, v12
    v_add_u32 v14, 0x8000, v13
    s_lshl_b32 s9, s12, 4
    s_add_u32 s9, s9, s4
    v_add_u32 v15, s9, v10
    v_mul_u32_u24 v15, 1152, v15
    v_lshl_add_u32 v15, v11, 3, v15
    s_lshl_b32 s9, s13, 4
    s_add_u32 s9, s9, s5
    s_lshl_b32 s9, s9, 1
    v_add_u32 v15, s9, v15
    v_sub_f32 v9, 1.0, v8
    v_cvt_pk_bf16_f32 v9, v9, v9
    v_lshlrev_b32 v9, 16, v9
    s_waitcnt lgkmcnt(0)
    s_barrier
    ''')
    for it in range(5):
        if it == 4:
            a('s_cmp_ge_u32 s3, 2')
            a('s_cbranch_scc1 K3_EXIT')
        R = 16 + 24 * it
        for w in range(4):
            if it < 2:
                a('ds_read_b128 %s, v13 offset:%d' % (vr(R + 4 * w, 4), it * 16384 + w * 1024))
            else:
                a('ds_read_b128 %s, v14 offset:%d' % (vr(R + 4 * w, 4), (it - 2) * 16384 + w * 1024))
        a('ds_read_b64_tr_b16 %s, v7 offset:%d' % (vr(R + 16, 2), it * 2048))
        a('s_waitcnt lgkmcnt(0)')
        for h in (0, 2):
            a('v_pk_add_f32 %s, %s, %s' % (vr(R + h, 2), vr(R + h, 2), vr(R + 4 + h, 2)))
            a('v_pk_add_f32 %s, %s, %s' % (vr(R + 8 + h, 2), vr(R + 8 + h, 2), vr(R + 12 + h, 2)))
        for h in (0, 2):
            a('v_pk_add_f32 %s, %s, %s' % (vr(R + h, 2), vr(R + h, 2), vr(R + 8 + h, 2)))
        a('v_cvt_pk_bf16_f32 v%d, v%d, v%d' % (R + 4, R, R + 1))
        a('v_cvt_pk_bf16_f32 v%d, v%d, v%d' % (R + 5, R + 2, R + 3))
        for k in range(2):
            a('v_lshlrev_b32 v%d, 16, v%d' % (R + 2 * k, R + 4 + k))
            a('v_and_b32 v%d, 0xffff0000, v%d' % (R + 2 * k + 1, R + 4 + k))
            a('v_lshlrev_b32 v%d, 16, v%d' % (R + 8 + 2 * k, R + 16 + k))
            a('v_and_b32 v%d, 0xffff0000, v%d' % (R + 8 + 2 * k + 1, R + 16 + k))
        for k in range(4):
            a('v_mul_f32 v%d, v8, v%d' % (R + k, R + k))
            a('v_mul_f32 v%d, v9, v%d' % (R + 8 + k, R + 8 + k))
        for k in range(2):
            a('v_cvt_pk_bf16_f32 v%d, v%d, v%d' % (R + 4 + k, R + 2 * k, R + 2 * k + 1))
            a('v_cvt_pk_bf16_f32 v%d, v%d, v%d' % (R + 6 + k, R + 8 + 2 * k, R + 8 + 2 * k + 1))
        for k in range(2):
            a('v_lshlrev_b32 v%d, 16, v%d' % (R + 2 * k, R + 4 + k))
            a('v_and_b32 v%d, 0xffff0000, v%d' % (R + 2 * k + 1, R + 4 + k))
            a('v_lshlrev_b32 v%d, 16, v%d' % (R + 8 + 2 * k, R + 6 + k))
            a('v_and_b32 v%d, 0xffff0000, v%d' % (R + 8 + 2 * k + 1, R + 6 + k))
        for h in (0, 2):
            a('v_pk_add_f32 %s, %s, %s' % (vr(R + h, 2), vr(R + h, 2), vr(R + 8 + h, 2)))
        a('v_cvt_pk_bf16_f32 v%d, v%d, v%d' % (R + 18, R, R + 1))
        a('v_cvt_pk_bf16_f32 v%d, v%d, v%d' % (R + 19, R + 2, R + 3))
        a('buffer_store_dwordx2 %s, v15, %s, 0 offen offset:%d' % (vr(R + 18, 2), sr(S_SOUT, 4), it * 64))
    a.label('K3_EXIT')
    a('s_endpgm')
```

```python
import sys
from asmlib import *
import gen_k1
HEADER = open('gated_mix__linear_attn_block__ssm_conv_s4__prompt.s.ref').read().split('; Override launch')[0]
def build(kernels):
    a = Asm()
    launches = []
    descs = []
    if 1 in kernels:
        gen_k1.gen_k1(a)
        launches.append('; @launch kernel=k1_kernel grid=(%d,1,1) block=(256,1,1) lds=%d' % (gen_k1.K1_GRID, gen_k1.K1_LDS))
        descs.append(kernel_desc('k1_kernel', 256, 96))
    if 2 in kernels:
        import gen_k2
        gen_k2.gen_k2(a)
        launches.append('; @launch kernel=k2_kernel grid=(%d,1,1) block=(256,1,1) lds=%d' % (gen_k2.K2_GRID, gen_k2.K2_LDS))
        descs.append(kernel_desc('k2_kernel', gen_k2.K2_VGPR, 96))
    if 3 in kernels:
        import gen_k3
        gen_k3.gen_k3(a)
        launches.append('; @launch kernel=k3_kernel grid=(%d,1,1) block=(256,1,1) lds=%d' % (gen_k3.K3_GRID, gen_k3.K3_LDS))
        descs.append(kernel_desc('k3_kernel', gen_k3.K3_VGPR, 96, gen_k3.K3_ACCUM))
    txt = HEADER + '\n'.join(launches) + '\n.amdgcn_target "amdgcn-amd-amdhsa--gfx950"\n.text\n' + a.text() + ''.join(descs)
    return txt
if __name__ == '__main__':
    ks = [int(c) for c in sys.argv[1]]
    out = sys.argv[2]
    open(out, 'w').write(build(ks))
```

```python
import struct

def f32bits(x):
    return struct.unpack('<I', struct.pack('<f', x))[0]

class Asm:
    def __init__(self):
        self.lines = []
        self.nlabel = 0
    def __call__(self, s):
        for ln in s.strip('\n').split('\n'):
            self.lines.append('    ' + ln.strip())
    def label(self, name):
        self.lines.append(name + ':')
    def newlabel(self, prefix='L'):
        self.nlabel += 1
        return '%s_%d' % (prefix, self.nlabel)
    def comment(self, s):
        self.lines.append('    ; ' + s)
    def nop(self, n):
        while n > 0:
            k = min(n, 16)
            self('s_nop %d' % (k - 1))
            n -= k
    diag = False
    kidx = 0
    def stamp(self, i):
        if self.diag:
            self('s_memrealtime s[%d:%d]' % (80 + 2 * i, 81 + 2 * i))
    def stamp_init(self):
        if self.diag:
            for i in range(16):
                self('s_mov_b32 s%d, 0' % (80 + i))
            self.stamp(0)
    def endpgm(self):
        if self.diag:
            self.stamp(7)
            self('s_mov_b64 exec, -1')
            self('s_waitcnt lgkmcnt(0)')
            self('s_mov_b32 s76, s46')
            self('s_and_b32 s77, s47, 0xffff')
            self('s_mov_b32 s78, 0x2000000')
            self('s_mov_b32 s79, 0x20000')
            self('s_lshl_b32 s96, s2, 2')
            self('s_add_u32 s96, s96, s3')
            self('s_lshl_b32 s96, s96, 5')
            self('s_add_u32 s96, s96, 0x%x' % (0x1000000 + self.kidx * 0x40000))
            for i in range(8):
                self('v_mov_b32 v%d, s%d' % (2 + i, 80 + 2 * i))
            self('v_mov_b32 v1, 0')
            self('s_mov_b64 exec, 1')
            self('buffer_store_dwordx4 v[2:5], v1, s[76:79], s96 offen')
            self('buffer_store_dwordx4 v[6:9], v1, s[76:79], s96 offen offset:16')
        self('s_endpgm')
    def text(self):
        return '\n'.join(self.lines) + '\n'

def vr(base, n=1):
    return 'v%d' % base if n == 1 else 'v[%d:%d]' % (base, base + n - 1)
def ar(base, n=1):
    return 'a%d' % base if n == 1 else 'a[%d:%d]' % (base, base + n - 1)
def sr(base, n=1):
    return 's%d' % base if n == 1 else 's[%d:%d]' % (base, base + n - 1)

def srd(a, d, base_lo, nbytes, add=None):
    if add is None:
        a('s_mov_b32 s%d, s%d' % (d, base_lo))
        a('s_and_b32 s%d, s%d, 0xffff' % (d + 1, base_lo + 1))
    else:
        a('s_add_u32 s%d, s%d, %s' % (d, base_lo, add))
        a('s_addc_u32 s%d, s%d, 0' % (d + 1, base_lo + 1))
        a('s_and_b32 s%d, s%d, 0xffff' % (d + 1, d + 1))
    a('s_mov_b32 s%d, %s' % (d + 2, nbytes if isinstance(nbytes, str) else '0x%x' % nbytes))
    a('s_mov_b32 s%d, 0x20000' % (d + 3))

def kernel_desc(name, vgpr, sgpr=102, accum=None):
    if accum is None:
        accum = (vgpr + 3) // 4 * 4
    return '''.section .rodata,"a"
.p2align 6
.amdhsa_kernel %s
  .amdhsa_next_free_vgpr %d
  .amdhsa_next_free_sgpr %d
  .amdhsa_accum_offset %d
  .amdhsa_group_segment_fixed_size 0
  .amdhsa_kernarg_size 128
  .amdhsa_user_sgpr_count 2
  .amdhsa_user_sgpr_kernarg_segment_ptr 1
  .amdhsa_system_sgpr_workgroup_id_x 1
  .amdhsa_float_denorm_mode_32 3
  .amdhsa_float_denorm_mode_16_64 3
  .amdhsa_fp16_overflow 1
.end_amdhsa_kernel
''' % (name, vgpr, sgpr, accum)
```

```python
from asmlib import *
import math

WS_PQ = 0x000000
WS_XT = 0x240000
WS_BT = 0x480000
WS_KF = 0x6C0000
KF_STRIDE = 4608
WS_KVP = 0x950000
KVP_REC = 13 * 1024 + 512
WS_KVF = 0xB00000
WS_SEL = 0xB18000
WS_G = 0xB1C000
WS_PM = 0xB20000
WS_FLG = 0xB34000
WS_END = 0xB40000

N_GEMM = 192
N_PREP = 288
K1_GRID = N_GEMM + N_PREP
K1_LDS = 81920

import os
TOUCH = int(os.environ.get('TOUCH', '1'))
TOUCH_FLAGS = os.environ.get('TOUCH_FLAGS', '')
WFLAGS = os.environ.get('WFLAGS', '')
AFLAGS = os.environ.get('AFLAGS', '')
NOMEM = int(os.environ.get('NOMEM', '0'))
NOPREP = int(os.environ.get('NOPREP', '0'))
NOXS = int(os.environ.get('NOXS', '0'))
LOG2E = 1.4426950408889634

P_X, P_W, P_WO, P_BU, P_ARE, P_AIM, P_BRE, P_BIM = 16, 18, 20, 22, 24, 26, 28, 30
P_CRE, P_CIM, P_LDT, P_DSK, P_GW, P_OUT, P_DBG, P_WS = 32, 34, 36, 38, 40, 42, 44, 46


class Cnt:
    def __init__(self, a, name, cap):
        self.a, self.name, self.cap = a, name, cap
        self.ops = []
    def issue(self, tag):
        self.ops.append(tag)
    def wait(self, tag):
        idx = max(i for i, t in enumerate(self.ops) if t == tag) if tag in self.ops else None
        if idx is None:
            return
        n = len(self.ops) - 1 - idx
        n = min(n, self.cap)
        self.a('s_waitcnt %s(%d)' % (self.name, n))
        self.ops = self.ops[len(self.ops) - n:] if n > 0 else []
    def wait_all(self):
        self.a('s_waitcnt %s(0)' % self.name)
        self.ops = []


def load_kernargs(a):
    a('s_load_dwordx16 s[16:31], s[0:1], 0')
    a('s_load_dwordx16 s[32:47], s[0:1], 64')


def phi_batch(a, pairs, tmp, s_l2e, s_eps, keep_raw=None):
    n = len(pairs)
    H = lambda i: (keep_raw[i] if keep_raw else tmp + 6 * i)
    T = lambda i: tmp + 6 * i + 2
    E = lambda i: tmp + 6 * i + 4
    for i, (a0, a1, d) in enumerate(pairs):
        a('v_cvt_pk_bf16_f32 v%d, v%d, v%d' % (H(i), a0, a1))
    for i in range(n):
        a('v_lshlrev_b32 v%d, 16, v%d' % (T(i), H(i)))
        a('v_and_b32 v%d, 0xffff0000, v%d' % (T(i) + 1, H(i)))
    for i in range(n):
        a('v_pk_mul_f32 %s, %s, %s' % (vr(E(i), 2), vr(T(i), 2), sr(s_l2e, 2)))
    for i in range(n):
        a('v_exp_f32_e64 v%d, v%d clamp' % (E(i), E(i)))
        a('v_exp_f32_e64 v%d, v%d clamp' % (E(i) + 1, E(i) + 1))
    for i in range(n):
        a('v_max_f32 v%d, 0, v%d' % (T(i), T(i)))
        a('v_max_f32 v%d, 0, v%d' % (T(i) + 1, T(i) + 1))
    for i in range(n):
        a('v_pk_add_f32 %s, %s, %s' % (vr(E(i), 2), vr(E(i), 2), vr(T(i), 2)))
    for i in range(n):
        a('v_cvt_pk_bf16_f32 v%d, v%d, v%d' % (E(i), E(i), E(i) + 1))
    for i in range(n):
        a('v_lshlrev_b32 v%d, 16, v%d' % (T(i), E(i)))
        a('v_and_b32 v%d, 0xffff0000, v%d' % (T(i) + 1, E(i)))
    for i in range(n):
        a('v_pk_add_f32 %s, %s, %s' % (vr(T(i), 2), vr(T(i), 2), sr(s_eps, 2)))
    for i, (a0, a1, d) in enumerate(pairs):
        a('v_cvt_pk_bf16_f32 v%d, v%d, v%d' % (d, T(i), T(i) + 1))


V_XOFF, V_SW, V_DMA, V_TR, V_TR2, V_SR0, V_SR1 = 2, 3, 4, 9, 240, 241, 242
V_XR, V_AF, V_B, V_ACC = 16, 96, 128, 168
V_A = 16
V_T = 96
SLOT = 18432
SCR = 4 * SLOT
S_SX, S_SW, S_SWS = 48, 52, 56
PAIRS = [(0, 4), (0, 5), (1, 4), (1, 5), (1, 6), (2, 5), (2, 6), (2, 7), (3, 6), (3, 7), (3, 8), (4, 7), (4, 8)]


def gemm_main(a, qtype):
    vm = Cnt(a, 'vmcnt', 63)
    lg = Cnt(a, 'lgkmcnt', 15)

    def dma(c):
        if NOMEM: return
        slot = (c % 4) * SLOT
        a('s_mov_b32 s10, 0x%x' % (c * 64 * 3456))
        for i in range(4):
            a('s_add_u32 m0, s8, 0x%x' % (slot + i * 1024))
            a('s_nop 0')
            a('buffer_load_dwordx4 v%d, %s, s10 offen lds' % (V_DMA + i, sr(S_SW, 4)))
            vm.issue(('W', c))
        a('s_add_u32 m0, s9, 0x%x' % (slot + 16384))
        a('s_mov_b32 exec_hi, 0')
        a('buffer_load_dwordx4 v%d, %s, s10 offen lds' % (V_DMA + 4, sr(S_SW, 4)))
        a('s_mov_b32 exec_hi, -1')
        vm.issue(('W', c))

    def xload(c):
        if NOMEM: return
        r = V_XR + (c % 5) * 16
        for q in range(4):
            a('buffer_load_dwordx4 %s, v%d, %s, s%d offen offset:%d' % (vr(r + 4 * q, 4), V_XOFF, sr(S_SX, 4), 64 + q, c * 128))
            vm.issue(('X', c))

    def xstage(c):
        if NOXS: return
        vm.wait(('X', c))
        r = V_XR + (c % 5) * 16
        for rt in range(2):
            for q in range(2):
                a('ds_write_b128 v%d, %s offset:%d' % (V_SW, vr(r + 4 * (2 * rt + q), 4), 1024 * q))
                lg.issue(('XW', c))
            for kk in range(2):
                a('ds_read_b128 %s, v%d' % (vr(V_AF + (c % 2) * 16 + (kk * 2 + rt) * 4, 4), V_SR0 + kk))
                lg.issue(('A', c))

    def bread(k, j):
        c, kk = k // 2, k % 2
        r = V_B + ((k * 9 + j) % 10) * 4
        for hh in range(2):
            off = (c % 2) * SLOT + (8 * hh + 32 * kk) * 288 + 32 * j
            a('ds_read_b64_tr_b16 %s, v%d offset:%d' % (vr(r + 2 * hh, 2), V_TR if (c % 4) < 2 else V_TR2, off))
            lg.issue(('B', k, j))

    dma(0); xload(0)
    dma(1); xload(1)
    dma(2); xload(2)
    dma(3); xload(3); xload(4)
    a.stamp(1)
    xstage(0)
    xload(5)
    vm.wait(('W', 0))
    a('s_barrier')
    a.stamp(2)
    for j in range(9):
        bread(0, j)
    for k in range(18):
        c, kk = k // 2, k % 2
        if kk == 1 and c + 1 <= 8:
            vm.wait(('W', c + 1))
            a('s_barrier')
            if c >= 1 and c + 3 <= 8:
                dma(c + 3)
        if k == 6: a.stamp(3)
        if k == 12: a.stamp(4)
        lg.wait(('A', c))
        for j in range(9):
            if j % 3 == 0:
                lg.wait(('B', k, j + 2))
            rb = V_B + ((k * 9 + j) % 10) * 4
            for rt in range(2):
                ra = V_AF + (c % 2) * 16 + (kk * 2 + rt) * 4
                acc = V_ACC + (rt * 9 + j) * 4
                cin = '0' if k == 0 else vr(acc, 4)
                if qtype:
                    a('v_mfma_f32_16x16x32_bf16 %s, %s, %s, %s' % (vr(acc, 4), vr(rb, 4), vr(ra, 4), cin))
                else:
                    a('v_mfma_f32_16x16x32_bf16 %s, %s, %s, %s' % (vr(acc, 4), vr(ra, 4), vr(rb, 4), cin))
            if k + 1 < 18:
                bread(k + 1, j)
            if kk == 0 and j == 4 and c + 1 <= 8:
                xstage(c + 1)
                if c + 6 <= 8:
                    xload(c + 6)
    a.stamp(5)
    a.nop(10)


def gemm_part(a):
    a.label('K1_GEMM')
    a('s_setprio 3')
    a('''
    s_and_b32 s4, s97, 7
    s_lshr_b32 s5, s97, 3
    s_and_b32 s6, s4, 3
    s_lshl_b32 s6, s6, 2
    s_and_b32 s7, s5, 3
    s_add_u32 s6, s6, s7
    s_lshr_b32 s4, s4, 2
    s_mul_i32 s4, s4, 6
    s_lshr_b32 s5, s5, 2
    s_add_u32 s7, s4, s5
    ''')
    a('''
    s_mul_i32 s4, s7, 11
    s_lshr_b32 s4, s4, 5
    s_mul_i32 s5, s4, 3
    s_sub_u32 s5, s7, s5
    s_sub_u32 s11, s7, s4
    s_sub_u32 s11, s11, 1
    ''')
    a('''
    s_mul_i32 s12, s4, 288
    s_mul_i32 s13, s11, 144
    s_add_u32 s13, s13, 1152
    s_cmp_eq_u32 s5, 0
    s_cselect_b32 s12, s12, s13
    s_cselect_b32 s13, 0, 1008
    s_lshl_b32 s8, s3, 12
    s_lshl_b32 s9, s3, 9
    ''')
    a('''
    v_and_b32 v10, 15, v1
    v_lshrrev_b32 v11, 4, v1
    ''')
    a('''
    s_lshl_b32 s14, s6, 7
    s_lshl_b32 s15, s3, 5
    s_add_u32 s14, s14, s15
    v_lshrrev_b32 v13, 3, v1
    v_and_b32 v14, 7, v1
    v_add_u32 v12, s14, v13
    v_mul_u32_u24 v12, 1152, v12
    v_lshl_add_u32 v2, v14, 4, v12
    s_mov_b32 s64, 0
    s_mov_b32 s65, 9216
    s_mov_b32 s66, 18432
    s_mov_b32 s67, 27648
    s_lshl_b32 s15, s3, 11
    s_add_u32 s15, s15, %d
    v_xor_b32 v14, v14, v13
    v_lshlrev_b32 v14, 4, v14
    v_lshl_add_u32 v14, v13, 7, v14
    v_add_u32 v3, s15, v14
    v_and_b32 v13, 7, v10
    v_xor_b32 v13, v13, v11
    v_lshlrev_b32 v14, 7, v10
    v_add_u32 v14, s15, v14
    v_lshl_add_u32 v241, v13, 4, v14
    v_xor_b32 v13, 4, v13
    v_lshl_add_u32 v242, v13, 4, v14
    ''' % SCR)
    for i in range(5):
        if i < 4:
            a('s_lshl_b32 s15, s3, 8')
            a('s_add_u32 s15, s15, %d' % (64 * i))
        else:
            a('s_lshl_b32 s15, s3, 5')
            a('s_add_u32 s15, s15, 1024')
        a('''
        v_add_u32 v12, s15, v1
        v_mul_u32_u24 v13, 3641, v12
        v_lshrrev_b32 v13, 16, v13
        v_mul_u32_u24 v14, 18, v13
        v_sub_u32 v14, v12, v14
        v_and_b32 v12, 0x33, v13
        v_and_b32 v15, 4, v13
        v_lshl_or_b32 v12, v15, 1, v12
        v_and_b32 v15, 8, v13
        v_lshrrev_b32 v15, 1, v15
        v_or_b32 v12, v12, v15
        v_mul_u32_u24 v12, 3456, v12
        v_lshl_add_u32 v12, v14, 4, v12
        v_add_u32 v12, s12, v12
        v_cmp_le_u32 vcc, 9, v14
        v_mov_b32 v15, s13
        s_nop 0
        v_cndmask_b32 v15, 0, v15, vcc
        v_add_u32 v%d, v12, v15
        ''' % (V_DMA + i))
    a('''
    v_lshrrev_b32 v12, 2, v10
    v_and_b32 v13, 1, v11
    v_lshl_add_u32 v12, v13, 2, v12
    v_lshrrev_b32 v13, 1, v11
    v_lshl_add_u32 v12, v13, 4, v12
    v_mul_u32_u24 v12, 288, v12
    v_and_b32 v13, 3, v1
    v_lshl_add_u32 v9, v13, 3, v12
    v_add_u32 v240, 36864, v9
    ''')
    a('s_waitcnt lgkmcnt(0)')
    srd(a, S_SX, P_X, 2048 * 576 * 2)
    srd(a, S_SW, P_W, 576 * 1728 * 2)
    srd(a, S_SWS, P_WS, WS_END)
    a('s_mov_b32 s60, 0x%x' % f32bits(LOG2E))
    a('s_mov_b32 s61, 0x%x' % f32bits(LOG2E))
    a('s_mov_b32 s62, 0x%x' % f32bits(1e-6))
    a('s_mov_b32 s63, 0x%x' % f32bits(1e-6))
    a('s_cmp_eq_u32 s5, 0')
    a('s_cbranch_scc0 K1_GEMM_KV')

    gemm_main(a, True)
    P = lambda rt, j: V_A + (rt * 9 + j) * 2
    allp = []
    for rt in range(2):
        for j in range(9):
            acc = V_ACC + (rt * 9 + j) * 4
            allp.append((acc, acc + 1, P(rt, j)))
            allp.append((acc + 2, acc + 3, P(rt, j) + 1))
    RS = 304
    a('''
    s_mul_i32 s15, s3, 9728
    v_mul_u32_u24 v12, %d, v10
    v_lshl_add_u32 v12, v11, 3, v12
    v_add_u32 v12, s15, v12
    s_mul_i32 s64, s14, 1152
    s_add_u32 s64, s64, s12
    s_barrier
    ''' % RS)
    for b in range(0, 36, 6):
        phi_batch(a, allp[b:b + 6], V_T, 60, 62)
        for t in range(b // 2, b // 2 + 3):
            rt, j = t // 9, t % 9
            a('ds_write_b64 v12, %s offset:%d' % (vr(P(rt, j), 2), rt * 16 * RS + 32 * j))
    a.stamp(6)
    for i in range(9):
        a('''
        v_add_u32 v13, %d, v1
        v_mul_u32_u24 v14, 3641, v13
        v_lshrrev_b32 v14, 16, v14
        v_mul_u32_u24 v15, 18, v14
        v_sub_u32 v15, v13, v15
        v_lshlrev_b32 v15, 4, v15
        v_mul_u32_u24 v13, %d, v14
        v_add3_u32 v13, v13, v15, s15
        v_mul_u32_u24 v14, 1152, v14
        v_add_u32 v%d, v14, v15
        ds_read_b128 %s, v13
        ''' % (64 * i, RS, V_T + i, vr(V_ACC + 4 * i, 4)))
    for i in range(9):
        a('s_waitcnt lgkmcnt(%d)' % (8 - i))
        a('buffer_store_dwordx4 %s, v%d, %s, s64 offen' % (vr(V_ACC + 4 * i, 4), V_T + i, sr(S_SWS, 4)))
    a.endpgm()

    a.label('K1_GEMM_KV')
    gemm_main(a, False)
    O = lambda j: V_A + 4 * j
    pk = []
    for j in range(5):
        for rt in range(2):
            acc = V_ACC + (rt * 9 + j) * 4
            pk.append((acc, acc + 1, O(j) + 2 * rt))
            pk.append((acc + 2, acc + 3, O(j) + 2 * rt + 1))
    phi_batch(a, pk[0:8], V_T, 60, 62)
    phi_batch(a, pk[8:16], V_T, 60, 62)
    RAW = V_A + 40
    phi_batch(a, pk[16:20], V_T, 60, 62, keep_raw=[RAW + i for i in range(4)])
    a('v_cmp_gt_u32 vcc, 8, v10')
    for j in range(5, 9):
        for rt in range(2):
            acc = V_ACC + (rt * 9 + j) * 4
            a('v_cvt_pk_bf16_f32 v%d, v%d, v%d' % (O(j) + 2 * rt, acc, acc + 1))
            a('v_cvt_pk_bf16_f32 v%d, v%d, v%d' % (O(j) + 2 * rt + 1, acc + 2, acc + 3))
    for i in range(4):
        a('v_cndmask_b32 v%d, v%d, v%d, vcc' % (O(4) + i, RAW + i, O(4) + i))
    a.nop(2)
    pairs = PAIRS
    KV = lambda p: V_ACC + 4 * p
    for p, (ta, tb) in enumerate(pairs):
        a('v_mfma_f32_16x16x32_bf16 %s, %s, %s, 0' % (vr(KV(p), 4), vr(O(ta), 4), vr(O(tb), 4)))
    a('s_mov_b32 s64, 0x3f803f80')
    Z = V_T
    for t in range(5):
        a('v_dot2_f32_bf16 v%d, v%d, s64, 0' % (Z + t, O(t)))
    for i in range(1, 4):
        for t in range(5):
            a('v_dot2_f32_bf16 v%d, v%d, s64, v%d' % (Z + t, O(t) + i, Z + t))
    a.stamp(6)
    a('s_barrier')
    a('''
    s_lshl_b32 s15, s3, 10
    v_lshlrev_b32 v12, 4, v1
    v_add_u32 v13, s15, v12
    ''')
    for p in range(13):
        a('ds_write_b128 v13, %s offset:%d' % (vr(KV(p), 4), p * 4096))
    a('''
    s_lshl_b32 s15, s3, 2
    v_add_u32 v14, s15, v11
    v_mul_u32_u24 v14, 320, v14
    v_lshl_add_u32 v14, v10, 2, v14
    ''')
    for t in range(5):
        a('ds_write_b32 v14, v%d offset:%d' % (Z + t, 53248 + 64 * t))
    a('s_waitcnt lgkmcnt(0)')
    a('s_barrier')
    a('s_lshl_b32 s68, s6, 3')
    a('s_add_u32 s68, s68, s11')
    a('s_mul_i32 s68, s68, %d' % KVP_REC)
    a('s_add_u32 s68, s68, 0x%x' % WS_KVP)
    a('s_lshl_b32 s15, s3, 12')
    a('v_add_u32 v13, s15, v12')
    a('s_lshl_b32 s15, s3, 10')
    a('v_add_u32 v14, s15, v12')
    done = a.newlabel('K1_KVZ')
    for it in range(3):
        R = V_A + 16 * it
        for w in range(4):
            a('ds_read_b128 %s, v13 offset:%d' % (vr(R + 4 * w, 4), it * 16384 + w * 1024))
    def red_store(it):
        R = V_A + 16 * it
        a('v_pk_add_f32 %s, %s, %s' % (vr(R, 2), vr(R, 2), vr(R + 4, 2)))
        a('v_pk_add_f32 %s, %s, %s' % (vr(R + 2, 2), vr(R + 2, 2), vr(R + 6, 2)))
        a('v_pk_add_f32 %s, %s, %s' % (vr(R + 8, 2), vr(R + 8, 2), vr(R + 12, 2)))
        a('v_pk_add_f32 %s, %s, %s' % (vr(R + 10, 2), vr(R + 10, 2), vr(R + 14, 2)))
        a('v_pk_add_f32 %s, %s, %s' % (vr(R, 2), vr(R, 2), vr(R + 8, 2)))
        a('v_pk_add_f32 %s, %s, %s' % (vr(R + 2, 2), vr(R + 2, 2), vr(R + 10, 2)))
        a('s_add_u32 s69, s68, %d' % (4096 * it))
        a('buffer_store_dwordx4 %s, v14, %s, s69 offen' % (vr(R, 4), sr(S_SWS, 4)))
    for it in range(3):
        a('s_waitcnt lgkmcnt(%d)' % (8 - 4 * it))
        red_store(it)
    a('s_cmp_lg_u32 s3, 0')
    a('s_cbranch_scc1 %s' % done)
    for w in range(4):
        a('ds_read_b128 %s, v13 offset:%d' % (vr(V_A + 48 + 4 * w, 4), 3 * 16384 + w * 1024))
    a('s_waitcnt lgkmcnt(0)')
    red_store(3)
    a.endpgm()
    a.label(done)
    a('s_cmp_lt_u32 s3, 2')
    fin = a.newlabel('K1_KVEND')
    a('s_cbranch_scc1 %s' % fin)
    a('''
    v_subrev_u32 v14, 128, v0
    v_cmp_gt_u32 vcc, 80, v14
    s_and_saveexec_b64 s[74:75], vcc
    s_cbranch_execz %s
    v_lshlrev_b32 v15, 2, v14
    ''' % fin)
    for i in range(16):
        a('ds_read_b32 v%d, v15 offset:%d' % (V_T + i, 53248 + 320 * i))
    a('s_add_u32 s69, s68, 13312')
    a('s_waitcnt lgkmcnt(0)')
    for st in (8, 4, 2, 1):
        for i in range(st):
            a('v_add_f32 v%d, v%d, v%d' % (V_T + i, V_T + i, V_T + i + st))
    a('buffer_store_dword v%d, v15, %s, s69 offen' % (V_T, sr(S_SWS, 4)))
    a.label(fin)
    a.endpgm()


KG_ROW = 272
KG_LO = 32 * KG_ROW
KG_WAVE = 2 * KG_LO


def cmul(a, d, x, y, t):
    a('v_pk_mul_f32 %s, %s, %s op_sel:[1,1] op_sel_hi:[1,0]' % (vr(t, 2), vr(x, 2), vr(y, 2)))
    a('v_pk_fma_f32 %s, %s, %s, %s op_sel:[0,0,0] op_sel_hi:[0,1,1] neg_lo:[0,0,1]' % (vr(d, 2), vr(x, 2), vr(y, 2), vr(t, 2)))


def split_write(a, rows, tmp, vaddr, s_c1, s_c2):
    n = len(rows)
    for i, (r, p) in enumerate(rows):
        a('v_cvt_pk_bf16_f32 v%d, v%d, v%d' % (tmp + 4 * i, p, p + 1))
    for i, (r, p) in enumerate(rows):
        a('v_dot2_f32_bf16 v%d, v%d, s%d, v%d' % (tmp + 4 * i + 2, tmp + 4 * i, s_c1, p))
        a('v_dot2_f32_bf16 v%d, v%d, s%d, v%d' % (tmp + 4 * i + 3, tmp + 4 * i, s_c2, p + 1))
    for i, (r, p) in enumerate(rows):
        a('ds_write_b32 v%d, v%d offset:%d' % (vaddr, tmp + 4 * i, r * KG_ROW))
    if n < 3:
        a.nop(3)
    for i, (r, p) in enumerate(rows):
        a('v_cvt_pk_bf16_f32 v%d, v%d, v%d' % (tmp + 4 * i + 1, tmp + 4 * i + 2, tmp + 4 * i + 3))
    for i, (r, p) in enumerate(rows):
        a('ds_write_b32 v%d, v%d offset:%d' % (vaddr, tmp + 4 * i + 1, KG_LO + r * KG_ROW))


def deval(a, items, L, tmp):
    for i, (A, d) in enumerate(items):
        a('v_mul_f32 v%d, 0x%x, v%d' % (tmp + 4 * i, f32bits(float(A)), L))
        a('v_mul_f32 v%d, 0x%x, v%d' % (tmp + 4 * i + 1, f32bits(float(A)), L + 1))
    for i, (A, d) in enumerate(items):
        a('v_fract_f32 v%d, v%d' % (tmp + 4 * i + 1, tmp + 4 * i + 1))
        a('v_exp_f32 v%d, v%d' % (tmp + 4 * i, tmp + 4 * i))
    for i, (A, d) in enumerate(items):
        a('v_cos_f32 v%d, v%d' % (tmp + 4 * i + 2, tmp + 4 * i + 1))
        a('v_sin_f32 v%d, v%d' % (tmp + 4 * i + 3, tmp + 4 * i + 1))
    a.nop(1)
    for i, (A, d) in enumerate(items):
        a('v_pk_mul_f32 %s, %s, %s op_sel:[0,0] op_sel_hi:[0,1]' % (vr(d, 2), vr(tmp + 4 * i, 2), vr(tmp + 4 * i + 2, 2)))


def prep_part(a):
    a.label('K1_PREP')
    if NOPREP: a('s_endpgm')
    a('s_mov_b32 s4, s2')
    a('''
    s_mul_i32 s5, s4, 7282
    s_lshr_b32 s5, s5, 16
    s_mul_i32 s6, s5, 9
    s_sub_u32 s6, s4, s6
    s_lshr_b32 s7, s3, 1
    s_lshl_b32 s8, s4, 1
    s_add_u32 s8, s8, s7
    s_and_b32 s9, s3, 1
    s_mul_i32 s10, s3, %d
    v_and_b32 v10, 15, v1
    v_lshrrev_b32 v11, 4, v1
    ''' % KG_WAVE)
    a('''
    s_lshl_b32 s11, s8, 8
    s_lshl_b32 s12, s9, 7
    s_add_u32 s11, s11, s12
    v_lshl_add_u32 v2, v1, 1, s11
    s_lshl_b32 s12, s4, 2
    s_waitcnt lgkmcnt(0)
    s_load_dword s13, s[36:37], s12
    global_load_ushort v12, v2, s[24:25]
    global_load_ushort v13, v2, s[26:27]
    global_load_ushort v14, v2, s[28:29]
    global_load_ushort v15, v2, s[30:31]
    global_load_ushort v16, v2, s[32:33]
    global_load_ushort v17, v2, s[34:35]
    ''')
    a('''
    s_lshl_b32 s11, s5, 6
    s_lshl_b32 s12, s3, 4
    s_add_u32 s11, s11, s12
    v_lshrrev_b32 v3, 3, v1
    v_add_u32 v3, s11, v3
    v_mul_u32_u24 v3, 1152, v3
    v_and_b32 v4, 7, v1
    v_lshl_add_u32 v3, v4, 4, v3
    s_lshl_b32 s11, s6, 7
    v_add_u32 v3, s11, v3
    v_add_u32 v4, 9216, v3
    global_load_dwordx4 v[20:23], v3, s[16:17]
    global_load_dwordx4 v[24:27], v4, s[16:17]
    ''')
    GX, GW = 176, 212
    nog = a.newlabel('K1_NOG')
    a('''
    s_cmp_eq_u32 s3, 3
    s_cselect_b32 s14, 1, 0
    s_cmp_lt_u32 s4, 256
    s_cselect_b32 s14, s14, 0
    s_cmp_eq_u32 s14, 0
    s_cbranch_scc1 %s
    s_lshl_b32 s11, s4, 3
    v_lshrrev_b32 v4, 3, v1
    v_add_u32 v4, s11, v4
    v_mul_u32_u24 v5, 1152, v4
    v_and_b32 v6, 7, v1
    v_lshlrev_b32 v6, 4, v6
    v_add_u32 v5, v5, v6
    ''' % nog)
    for i in range(9):
        a('global_load_dwordx4 %s, v5, s[16:17] offset:%d' % (vr(GX + 4 * i, 4), 128 * i))
        a('global_load_dwordx4 %s, v6, s[40:41] offset:%d' % (vr(GW + 4 * i, 4), 128 * i))
    a.label(nog)
    if TOUCH:
        srd(a, 48, P_X, 2048 * 576 * 2)
        srd(a, 52, P_W, 576 * 1728 * 2)
        a('''
        s_and_b32 s64, s2, 7
        s_lshr_b32 s65, s2, 3
        s_lshl_b32 s65, s65, 2
        s_add_u32 s65, s65, s3
        s_lshl_b32 s67, s65, 6
        v_add_u32 v28, s67, v1
        v_mul_u32_u24 v29, 34953, v28
        v_lshrrev_b32 v29, 19, v29
        v_mul_u32_u24 v30, 15, v29
        v_sub_u32 v30, v28, v30
        v_mul_u32_u24 v31, 52, v30
        v_lshrrev_b32 v31, 8, v31
        v_mul_u32_u24 v32, 5, v31
        v_sub_u32 v32, v30, v32
        v_mul_u32_u24 v29, 3456, v29
        v_mul_u32_u24 v31, 1152, v31
        v_add_u32 v29, v29, v31
        v_lshl_add_u32 v29, v32, 7, v29
        s_lshr_b32 s66, s64, 2
        s_lshl_b32 s66, s66, 9
        v_add_u32 v29, s66, v29
        buffer_load_dword v78, v29, s[52:55], 0 offen
        s_and_b32 s66, s64, 3
        s_mul_i32 s66, s66, 589824
        s_lshl_b32 s65, s65, 12
        s_add_u32 s66, s66, s65
        v_lshlrev_b32 v28, 7, v1
        v_add_u32 v28, s66, v28
        s_mov_b32 exec_hi, 0
        buffer_load_dword v79, v28, s[48:51], 0 offen
        s_mov_b32 exec_hi, -1
        ''')
    srd(a, S_SWS, P_WS, WS_END)
    a('s_mov_b32 s60, 0x0000bf80')
    a('s_mov_b32 s61, 0xbf800000')
    a.stamp(1)
    a('s_waitcnt vmcnt(%d) lgkmcnt(0)' % (2 if TOUCH else 0))
    a.stamp(2)
    XTL = 4 * KG_WAVE
    a('''
    s_lshl_b32 s11, s3, 11
    s_add_u32 s11, s11, %d
    v_lshl_add_u32 v7, v1, 4, s11
    ds_write_b128 v7, v[20:23]
    ds_write_b128 v7, v[24:27] offset:1024
    v_lshrrev_b32 v8, 2, v10
    v_lshl_add_u32 v8, v11, 4, v8
    v_lshlrev_b32 v8, 7, v8
    v_and_b32 v9, 3, v1
    v_lshl_add_u32 v8, v9, 3, v8
    s_lshl_b32 s11, s3, 5
    s_add_u32 s11, s11, %d
    v_add_u32 v8, s11, v8
    s_waitcnt lgkmcnt(0)
    s_barrier
    ds_read_b64_tr_b16 v[20:21], v8
    ds_read_b64_tr_b16 v[22:23], v8 offset:512
    ds_read_b64_tr_b16 v[24:25], v8 offset:1024
    ds_read_b64_tr_b16 v[26:27], v8 offset:1536
    v_mul_u32_u24 v9, 144, v10
    v_lshl_add_u32 v9, v11, 5, v9
    v_add_u32 v9, s10, v9
    v_lshrrev_b32 v7, 3, v1
    v_mul_u32_u24 v8, 144, v7
    v_and_b32 v6, 7, v1
    v_lshl_add_u32 v8, v6, 4, v8
    v_add_u32 v8, s10, v8
    s_lshl_b32 s11, s6, 6
    s_lshl_b32 s12, s3, 4
    s_add_u32 s11, s11, s12
    v_add_u32 v7, s11, v7
    v_lshlrev_b32 v7, 12, v7
    v_lshl_add_u32 v6, v6, 4, v7
    s_lshl_b32 s15, s5, 7
    s_add_u32 s15, s15, 0x%x
    s_add_u32 s98, s15, 0x8000
    s_waitcnt lgkmcnt(0)
    ds_write_b128 v9, v[20:23]
    ds_write_b128 v9, v[24:27] offset:16
    ds_read_b128 v[248:251], v8
    ds_read_b128 v[252:255], v8 offset:1152
    ''' % (XTL, XTL, WS_XT))
    a('''
    s_lshl_b32 s12, s7, 4
    s_lshr_b32 s13, s13, s12
    s_lshl_b32 s13, s13, 16
    v_mov_b32 v18, s13
    v_mul_f32 v18, 0x%x, v18
    v_exp_f32 v18, v18
    v_lshlrev_b32 v12, 16, v12
    v_lshlrev_b32 v13, 16, v13
    v_cvt_pk_bf16_f32 v18, v18, v18
    v_lshlrev_b32 v14, 16, v14
    v_lshlrev_b32 v15, 16, v15
    v_lshlrev_b32 v18, 16, v18
    v_lshlrev_b32 v16, 16, v16
    v_lshlrev_b32 v17, 16, v17
    v_mul_f32 v12, v18, v12
    v_mul_f32 v13, v18, v13
    v_mul_f32 v14, v18, v14
    v_mul_f32 v15, v18, v15
    v_mul_f32 v28, 0x%x, v12
    v_mul_f32 v29, 0x%x, v13
    v_mov_b32 v30, v28
    v_sub_f32 v31, 0, v29
    ''' % (f32bits(LOG2E), f32bits(LOG2E), f32bits(1.0 / (2 * math.pi))))
    L, LC = 28, 30
    X0 = 32
    cmul(a, X0, 16, 14, 34)
    a('v_sub_f32 v%d, 0, v%d' % (X0 + 1, X0 + 1))
    a('v_lshl_add_u32 v7, v1, 2, s10')
    YB = 40
    Y = lambda b: YB + 2 * b
    TMP = 80
    T2 = 112
    OUT = 128
    deval(a, [(8, Y(1)), (16, Y(2)), (32, Y(4)), (64, Y(8)), (128, Y(16))], L, TMP)
    a('v_mov_b32 v%d, 0x3f80' % TMP)
    a('v_mov_b32 v%d, 0' % (TMP + 1))
    a('ds_write_b32 v7, v%d' % TMP)
    a('ds_write_b32 v7, v%d offset:%d' % (TMP + 1, KG_LO))
    cmul(a, Y(3), Y(2), Y(1), T2)
    cmul(a, Y(5), Y(4), Y(1), T2 + 2)
    cmul(a, Y(6), Y(4), Y(2), T2 + 4)
    cmul(a, Y(9), Y(8), Y(1), T2 + 6)
    cmul(a, Y(10), Y(8), Y(2), T2 + 8)
    cmul(a, Y(12), Y(8), Y(4), T2 + 10)
    cmul(a, Y(7), Y(4), Y(3), T2)
    cmul(a, Y(11), Y(8), Y(3), T2 + 2)
    cmul(a, Y(13), Y(8), Y(5), T2 + 4)
    cmul(a, Y(14), Y(8), Y(6), T2 + 6)
    cmul(a, Y(15), Y(8), Y(7), T2 + 8)
    split_write(a, [(b, Y(b)) for b in range(1, 9)], TMP, 7, 60, 61)
    split_write(a, [(b, Y(b)) for b in range(9, 17)], TMP, 7, 60, 61)
    for b0 in (1, 9):
        bs = [b for b in range(b0, b0 + 8) if b <= 15]
        for i, b in enumerate(bs):
            cmul(a, OUT + 2 * i, Y(16), Y(b), T2 + 2 * i)
        split_write(a, [(16 + b, OUT + 2 * i) for i, b in enumerate(bs)], TMP, 7, 60, 61)
    a.stamp(3)
    a('''
    v_and_b32 v8, 31, v1
    v_mul_u32_u24 v8, %d, v8
    v_lshrrev_b32 v9, 5, v1
    v_lshl_add_u32 v8, v9, 4, v8
    v_add_u32 v8, s10, v8
    s_waitcnt lgkmcnt(0)
    ''' % KG_ROW)
    BF = 112
    for k in range(8):
        a('ds_read_b128 %s, v8 offset:%d' % (vr(BF + 4 * k, 4), 32 * k))
        a('ds_read_b128 %s, v8 offset:%d' % (vr(BF + 32 + 4 * k, 4), KG_LO + 32 * k))
    E = {1: 12, 2: 14, 4: 16, 256: 18, 512: 20, 1024: 22, 2048: 24}
    deval(a, [(A, r) for A, r in E.items()], LC, TMP)
    XR = lambda r: 36 + 2 * r
    def X(r): return X0 if r == 0 else XR(r)
    T3 = 2
    tp = [2, 4, 26, 34]
    seq = [(1, 0, 256), (2, 0, 512), (4, 0, 1024), (8, 0, 2048), (9, 0, 4), (13, 0, 2), (17, 0, 1),
           (3, 2, 256), (5, 1, 1024), (6, 2, 1024), (10, 1, 4), (11, 2, 4), (14, 1, 2), (15, 9, 2), (18, 13, 1), (19, 9, 1),
           (7, 3, 1024), (12, 3, 4), (16, 10, 2), (20, 15, 1)]
    for i, (r, src, A) in enumerate(seq):
        cmul(a, X(r), X(src), E[A], tp[i % 4])
    a('s_waitcnt lgkmcnt(0)')
    split_write(a, [(r, X(r)) for r in range(0, 8)], TMP, 7, 60, 61)
    split_write(a, [(r, X(r)) for r in range(8, 16)], TMP, 7, 60, 61)
    split_write(a, [(r, X(r)) for r in range(16, 21)], TMP, 7, 60, 61)
    a('s_waitcnt lgkmcnt(0)')
    a.stamp(4)
    AF = 12
    for k in range(8):
        a('ds_read_b128 %s, v8 offset:%d' % (vr(AF + 4 * k, 4), 32 * k))
        a('ds_read_b128 %s, v8 offset:%d' % (vr(AF + 32 + 4 * k, 4), KG_LO + 32 * k))
    ACC = 80
    for k in range(8):
        a('s_waitcnt lgkmcnt(%d)' % (14 - 2 * k))
        cin = '0' if k == 0 else vr(ACC, 16)
        a('v_mfma_f32_32x32x16_bf16 %s, %s, %s, %s' % (vr(ACC, 16), vr(AF + 32 + 4 * k, 4), vr(BF + 4 * k, 4), cin))
        a('v_mfma_f32_32x32x16_bf16 %s, %s, %s, %s' % (vr(ACC, 16), vr(AF + 4 * k, 4), vr(BF + 32 + 4 * k, 4), vr(ACC, 16)))
        a('v_mfma_f32_32x32x16_bf16 %s, %s, %s, %s' % (vr(ACC, 16), vr(AF + 4 * k, 4), vr(BF + 4 * k, 4), vr(ACC, 16)))
    a.nop(16)
    a.stamp(5)
    a('buffer_store_dwordx4 v[248:251], v6, %s, s15 offen' % sr(S_SWS, 4))
    a('buffer_store_dwordx4 v[252:255], v6, %s, s98 offen' % sr(S_SWS, 4))
    a('s_mov_b32 s62, 0x7fff7fff')
    for i in range(8):
        a('v_and_b32 v%d, s62, v%d' % (100 + i, 248 + i))
    for h in (0, 4):
        a('v_pk_max_u16 v%d, v%d, v%d' % (100 + h, 100 + h, 101 + h))
        a('v_pk_max_u16 v%d, v%d, v%d' % (102 + h, 102 + h, 103 + h))
    for h in (0, 4):
        a('v_pk_max_u16 v%d, v%d, v%d' % (100 + h, 100 + h, 102 + h))
    for h in (0, 4):
        a('v_lshrrev_b32 v%d, 16, v%d' % (101 + h, 100 + h))
        a('v_and_b32 v%d, 0xffff, v%d' % (100 + h, 100 + h))
    for h in (0, 4):
        a('v_max_u32 v%d, v%d, v%d' % (100 + h, 100 + h, 101 + h))
    for dpp in ('quad_perm:[1,0,3,2]', 'quad_perm:[2,3,0,1]', 'row_half_mirror'):
        a.nop(1)
        for h in (0, 4):
            a('v_max_u32_dpp v%d, v%d, v%d %s row_mask:0xf bank_mask:0xf' % (100 + h, 100 + h, 100 + h, dpp))
    a('''
    v_lshrrev_b32 v101, 12, v6
    v_lshlrev_b32 v101, 7, v101
    s_lshl_b32 s62, s5, 2
    s_add_u32 s62, s62, 0x%x
    v_and_b32 v102, 7, v1
    v_cmp_eq_u32 vcc, 0, v102
    s_and_saveexec_b64 s[74:75], vcc
    buffer_store_dword v100, v101, %s, s62 offen
    buffer_store_dword v104, v101, %s, s62 offen offset:1024
    s_mov_b64 exec, s[74:75]
    ''' % (WS_PM, sr(S_SWS, 4), sr(S_SWS, 4)))
    if TOUCH:
        srd(a, 48, P_WO, 576 * 576 * 2)
        a('''
        s_lshr_b32 s65, s2, 3
        s_lshl_b32 s65, s65, 2
        s_add_u32 s65, s65, s3
        s_mul_i32 s65, s65, 4608
        v_lshlrev_b32 v101, 7, v1
        s_mov_b32 exec_hi, 0xf
        buffer_load_dword v78, v101, s[48:51], s65 offen
        s_mov_b64 exec, -1
        ''')
    even = a.newlabel('K1_EVEN')
    a('v_lshlrev_b32 v9, 4, v1')
    a('s_cmp_eq_u32 s9, 0')
    a('s_cbranch_scc1 %s' % even)
    a('v_add_u32 v9, s10, v9')
    for i in range(3):
        a('ds_write_b128 v9, %s offset:%d' % (vr(ACC + 4 * i, 4), 1024 * i))
    a('s_waitcnt lgkmcnt(0)')
    a('s_barrier')
    endl = a.newlabel('K1_PEND')
    nosel = a.newlabel('K1_NOSEL')
    zf = a.newlabel('K1_ZF')
    a('''
    s_cmp_lg_u32 s3, 1
    s_cbranch_scc1 %s
    s_cmp_gt_u32 s4, 9
    s_cbranch_scc1 %s
    s_cmp_eq_u32 s4, 9
    s_cbranch_scc1 %s
    s_lshl_b32 s11, s4, 4
    v_add_u32 v12, s11, v10
    v_mul_u32_u24 v12, 57, v12
    v_lshrrev_b32 v12, 10, v12
    v_lshrrev_b32 v13, 1, v12
    v_cmp_eq_u32 vcc, v13, v11
    v_and_b32 v13, 1, v12
    v_lshlrev_b32 v13, 4, v13
    v_mov_b32 v14, 0x3f80
    v_lshlrev_b32 v13, v13, v14
    v_cndmask_b32 v16, 0, v13, vcc
    v_mov_b32 v17, v16
    v_mov_b32 v18, v16
    v_mov_b32 v19, v16
    v_lshlrev_b32 v12, 4, v1
    s_lshl_b32 s11, s4, 10
    s_add_u32 s11, s11, 0x%x
    buffer_store_dwordx4 v[16:19], v12, %s, s11 offen
    s_branch %s
    ''' % (nosel, endl, zf, WS_SEL, sr(S_SWS, 4), endl))
    a.label(zf)
    a('''
    v_mov_b32 v16, 0
    v_mov_b32 v17, 0
    v_mov_b32 v18, 0
    v_mov_b32 v19, 0
    v_lshlrev_b32 v12, 4, v1
    s_mov_b32 s11, 0x%x
    buffer_store_dwordx4 v[16:19], v12, %s, s11 offen
    buffer_store_dwordx4 v[16:19], v12, %s, s11 offen offset:1024
    buffer_store_dwordx4 v[16:19], v12, %s, s11 offen offset:2048
    buffer_store_dwordx4 v[16:19], v12, %s, s11 offen offset:3072
    s_add_u32 s11, s11, 4096
    buffer_store_dwordx4 v[16:19], v12, %s, s11 offen
    s_branch %s
    ''' % ((WS_FLG,) + (sr(S_SWS, 4),) * 5 + (endl,)))
    a.label(nosel)
    a('s_cmp_eq_u32 s14, 0')
    a('s_cbranch_scc1 %s' % endl)
    a('s_mov_b32 s62, 0x3f803f80')
    a('v_mov_b32 v12, 0')
    a('v_mov_b32 v13, 0')
    for i in range(0, 36, 4):
        for k in range(4):
            a('v_and_b32 v%d, 0xffff, v%d' % (20 + 2 * k, GW + i + k))
            a('v_and_b32 v%d, 0xffff0000, v%d' % (21 + 2 * k, GW + i + k))
        for k in range(4):
            a('v_dot2_f32_bf16 v%d, v%d, v%d, 0' % (30 + 2 * k, GX + i + k, 20 + 2 * k))
            a('v_dot2_f32_bf16 v%d, v%d, v%d, 0' % (31 + 2 * k, GX + i + k, 21 + 2 * k))
        a.nop(3)
        for k in range(4):
            a('v_cvt_pk_bf16_f32 v%d, v%d, v%d' % (40 + k, 30 + 2 * k, 31 + 2 * k))
        a('v_dot2_f32_bf16 v12, v40, s62, v12')
        a('v_dot2_f32_bf16 v13, v41, s62, v13')
        a('v_dot2_f32_bf16 v12, v42, s62, v12')
        a('v_dot2_f32_bf16 v13, v43, s62, v13')
    a.nop(3)
    a('v_add_f32 v12, v12, v13')
    a.nop(2)
    a('v_add_f32_dpp v12, v12, v12 quad_perm:[1,0,3,2] row_mask:0xf bank_mask:0xf')
    a.nop(2)
    a('v_add_f32_dpp v12, v12, v12 quad_perm:[2,3,0,1] row_mask:0xf bank_mask:0xf')
    a.nop(2)
    a('v_add_f32_dpp v12, v12, v12 row_half_mirror row_mask:0xf bank_mask:0xf')
    a('''
    v_cvt_pk_bf16_f32 v12, v12, v12
    v_lshlrev_b32 v12, 16, v12
    v_mul_f32 v12, 0x%x, v12
    v_exp_f32 v12, v12
    s_nop 0
    v_add_f32 v12, 1.0, v12
    v_rcp_f32 v12, v12
    s_nop 0
    v_cvt_pk_bf16_f32 v12, v12, v12
    v_lshlrev_b32 v12, 16, v12
    v_lshrrev_b32 v13, 3, v1
    v_lshlrev_b32 v13, 2, v13
    s_lshl_b32 s11, s4, 5
    s_add_u32 s11, s11, 0x%x
    v_and_b32 v14, 7, v1
    v_cmp_eq_u32 vcc, 0, v14
    s_and_saveexec_b64 s[74:75], vcc
    buffer_store_dword v12, v13, %s, s11 offen
    ''' % (f32bits(-LOG2E), WS_G, sr(S_SWS, 4)))
    a.label(endl)
    a.endpgm()
    a.label(even)
    a('s_add_u32 s11, s10, %d' % KG_WAVE)
    a('v_add_u32 v9, s11, v9')
    a('s_barrier')
    for i in range(3):
        a('ds_read_b128 %s, v9 offset:%d' % (vr(12 + 4 * i, 4), 1024 * i))
    a('''
    s_mov_b32 s64, 1
    s_mov_b32 s65, -1
    s_mov_b32 s66, -1
    s_mov_b32 s67, 0
    s_waitcnt lgkmcnt(0)
    ''')
    for i in range(0, 12, 2):
        a('v_pk_add_f32 %s, %s, %s' % (vr(ACC + i, 2), vr(ACC + i, 2), vr(12 + i, 2)))
    a('v_cndmask_b32 v%d, 0, v%d, s[64:65]' % (ACC + 4, ACC + 4))
    for i in (9, 10, 11):
        a('v_cndmask_b32 v%d, 0, v%d, s[66:67]' % (ACC + i, ACC + i))
    a('v_max3_f32 v12, abs(v%d), abs(v%d), abs(v%d)' % (ACC, ACC + 1, ACC + 2))
    a('v_max3_f32 v13, abs(v%d), abs(v%d), abs(v%d)' % (ACC + 3, ACC + 4, ACC + 5))
    a('v_max3_f32 v14, abs(v%d), abs(v%d), abs(v%d)' % (ACC + 6, ACC + 7, ACC + 8))
    a('v_max3_f32 v15, abs(v%d), abs(v%d), abs(v%d)' % (ACC + 9, ACC + 10, ACC + 11))
    a('v_max3_f32 v12, v12, v13, v14')
    a('v_max_f32 v12, v12, v15')
    for dpp in ('quad_perm:[1,0,3,2]', 'quad_perm:[2,3,0,1]', 'row_half_mirror', 'row_mirror'):
        a.nop(2)
        a('v_max_f32_dpp v12, v12, v12 %s row_mask:0xf bank_mask:0xf' % dpp)
    a.nop(2)
    a('''
    v_readlane_b32 s64, v12, 0
    v_readlane_b32 s65, v12, 16
    v_readlane_b32 s66, v12, 32
    v_readlane_b32 s67, v12, 48
    s_nop 3
    s_max_u32 s64, s64, s65
    s_max_u32 s66, s66, s67
    s_max_u32 s64, s64, s66
    s_lshr_b32 s64, s64, 23
    s_sub_u32 s64, 268, s64
    s_min_u32 s64, s64, 254
    s_lshl_b32 s66, s64, 23
    s_mov_b32 s67, s66
    ''')
    for i in range(0, 12, 2):
        a('v_pk_mul_f32 %s, %s, s[66:67]' % (vr(ACC + i, 2), vr(ACC + i, 2)))
    for i in range(0, 12, 2):
        a('v_cvt_pk_f16_f32 v%d, v%d, v%d' % (12 + i // 2, ACC + i, ACC + i + 1))
    a('''
    v_and_b32 v8, 31, v1
    v_lshlrev_b32 v8, 1, v8
    v_lshrrev_b32 v9, 5, v1
    v_lshl_add_u32 v8, v9, 8, v8
    v_add_u32 v8, s10, v8
    s_mul_i32 s11, s8, %d
    s_add_u32 s11, s11, 0x%x
    ''' % (KF_STRIDE, WS_KF))
    for r in range(12):
        off = (8 * (r >> 2) + (r & 3)) * 64
        if r % 2 == 0:
            a('ds_write_b16 v8, v%d offset:%d' % (12 + r // 2, off))
        else:
            a('ds_write_b16_d16_hi v8, v%d offset:%d' % (12 + r // 2, off))
    V0, V0N, V4, V2, V6, V1, V3, V5, V7 = 0, 1, 288, 416, 480, 544, 576, 608, 640
    C0 = [V0, V1, V2, V3, V4, V5, V6, V7]
    C1 = [V0, V0, V2, V4, V4, V4, V6, V0N]
    a('v_lshl_add_u32 v8, v1, 1, s10')
    a('s_mov_b32 s66, -1')
    a('s_mov_b32 s67, 0')
    for e in range(8):
        if C0[e] == C1[e]:
            a('ds_read_u16 v%d, v8 offset:%d' % (20 + e, 2 * C0[e]))
        else:
            a('v_mov_b32 v9, %d' % (2 * C1[e]))
            a('v_mov_b32 v11, %d' % (2 * C0[e]))
            a('v_cndmask_b32 v9, v9, v11, s[66:67]')
            a('v_add_u32 v9, v9, v8')
            a('ds_read_u16 v%d, v9' % (20 + e))
    a('ds_read_u16 v28, v8 offset:%d' % (2 * (64 + V0)))
    a('ds_read_u16 v29, v8 offset:%d' % (2 * (64 + V4)))
    a('ds_read_u16 v30, v8 offset:%d' % (2 * (64 + V0N)))
    for rd in (2, 3):
        a('ds_read_u16 v%d, v8 offset:%d' % (27 + 2 * rd, 2 * (64 * rd)))
        a('ds_read_u16 v%d, v8 offset:%d' % (28 + 2 * rd, 2 * (64 * rd + 1)))
    a('''
    v_lshlrev_b32 v9, 4, v1
    v_and_b32 v11, 1, v1
    v_cmp_eq_u32 vcc, 0, v11
    v_mov_b32 v56, 0
    v_mov_b32 v57, 0
    v_mov_b32 v58, 0
    v_mov_b32 v59, 0
    s_mov_b32 s66, 0x10001
    s_waitcnt lgkmcnt(0)
    ''')
    for k in range(4):
        a('v_lshl_or_b32 v%d, v%d, 16, v%d' % (40 + k, 20 + 6 - 2 * k, 20 + 7 - 2 * k))
    a('v_mul_lo_u32 v44, v30, s66')
    a('v_mul_lo_u32 v45, v29, s66')
    a('v_lshl_or_b32 v46, v28, 16, v29')
    a('v_mul_lo_u32 v47, v28, s66')
    for rd in (2, 3):
        A, B, D = 27 + 2 * rd, 28 + 2 * rd, 40 + 4 * rd
        a('v_mul_lo_u32 v%d, v%d, s66' % (D, B))
        a('v_cndmask_b32 v11, v%d, v%d, vcc' % (B, A))
        a('v_mul_lo_u32 v%d, v%d, s66' % (D + 2, A))
        a('v_lshl_or_b32 v%d, v11, 16, v%d' % (D + 1, B))
        a('v_mov_b32 v%d, v%d' % (D + 3, D + 2))
    for rd in range(4):
        a('buffer_store_dwordx4 %s, v9, %s, s11 offen offset:%d' % (vr(40 + 4 * rd, 4), sr(S_SWS, 4), 480 + 1024 * rd))
    a('''
    s_mov_b64 exec, 0x3fffffff
    buffer_store_dwordx4 v[56:59], v9, %s, s11 offen
    s_nop 1
    v_mov_b32 v56, s64
    s_add_u32 s11, s11, 4576
    s_mov_b64 exec, 3
    buffer_store_dwordx4 v[56:59], v9, %s, s11 offen
    ''' % (sr(S_SWS, 4), sr(S_SWS, 4)))
    a.endpgm()


def gen_k1(a):
    a.lines.append('.globl k1_kernel\n.p2align 8\n.type k1_kernel,@function\nk1_kernel:')
    a('s_cmp_ge_u32 s2, %d' % K1_GRID)
    a('s_cbranch_scc1 K1_EXIT')
    a.kidx = 0
    a.stamp_init()
    load_kernargs(a)
    a('''
    v_lshrrev_b32 v2, 6, v0
    v_and_b32 v1, 63, v0
    s_nop 0
    v_readfirstlane_b32 s3, v2
    ''')
    a('''
    s_cmp_lt_u32 s2, %d
    s_cbranch_scc1 K1_PREP
    s_sub_u32 s97, s2, %d
    ''' % (N_PREP, N_PREP))
    gemm_part(a)
    prep_part(a)
    a.label('K1_EXIT')
    a('s_endpgm')
```

```python
from asmlib import *
from gen_k1 import *

N_CONV = 576
N_RED = 28
K2_GRID = N_CONV + N_RED
CSZ = 4160
UC = 0
KL = 4 * CSZ
K2_LDS = 32768
K2_VGPR = 160

S_SU, S_SWS2 = 48, 56


def conv_part(a):
    a('''
    v_and_b32 v10, 15, v1
    v_lshrrev_b32 v11, 4, v1
    s_lshl_b32 s4, s2, 12
    s_add_u32 s4, s4, 0x%x
    s_mul_i32 s5, s2, %d
    s_add_u32 s5, s5, 0x%x
    s_lshl_b32 s6, s2, 2
    s_add_u32 s6, s6, 0x%x
    s_lshr_b32 s7, s2, 1
    s_lshl_b32 s7, s7, 2
    v_lshlrev_b32 v2, 4, v1
    v_lshlrev_b32 v3, 4, v0
    s_waitcnt lgkmcnt(0)
    s_load_dword s8, s[46:47], s6
    s_load_dword s9, s[38:39], s7
    ''' % (WS_XT, KC_STRIDE, WS_KC, WS_KC + 576 * KC_STRIDE))
    srd(a, S_SU, P_WS, 4096, add='s4')
    srd(a, S_SWS2, P_WS, WS_END)
    M = 96
    for i in range(4):
        a('buffer_load_dwordx4 %s, v2, %s, 0 offen offset:%d' % (vr(M + 4 * i, 4), sr(S_SU, 4), 1024 * i))
    D = 16
    a('buffer_load_dwordx4 %s, v3, %s, 0 offen' % (vr(D, 4), sr(S_SU, 4)))
    a('buffer_load_dwordx2 %s, v3, %s, 0 offen offset:16' % (vr(D + 4, 2), sr(S_SU, 4)))
    V0, V0N, V4, V2, V6, V1, V3, V5, V7 = 0, 1, 288, 416, 480, 544, 576, 608, 640
    C = [[V0, V1, V2, V3, V4, V5, V6, V7],
         [V0, V0, V2, V4, V4, V4, V6, V0N],
         [V0, V0, V0, V4, V4, V4, V0N, V0N],
         [V0, V0, V0, V0, None, V0N, V0N, V0N]]
    a('''
    v_cmp_gt_u32 s[64:65], 32, v0
    v_cmp_gt_u32 s[66:67], 64, v0
    v_cmp_gt_u32 vcc, 128, v0
    s_mov_b64 s[68:69], vcc
    v_and_b32 v12, 1, v0
    v_lshlrev_b32 v13, 1, v0
    ''')
    KT = 24
    for e in range(8):
        c3 = C[3][e]
        if c3 is None:
            a('v_mov_b32 v14, v12')
        else:
            a('v_mov_b32 v14, %d' % c3)
        prev = c3
        for seg, mk in ((2, 's[68:69]'), (1, 's[66:67]'), (0, 's[64:65]')):
            if C[seg][e] != prev or (seg < 2 and C[seg][e] != C[seg + 1][e]):
                a('v_mov_b32 v15, %d' % C[seg][e])
                a('v_cndmask_b32 v14, v14, v15, %s' % mk)
            prev = C[seg][e]
        a('v_lshl_add_u32 v14, v14, 1, v13')
        slot = 7 - e
        a('buffer_load_ushort v%d, v14, %s, s5 offen' % (112 + slot, sr(S_SWS2, 4)))
    UE = 28
    a('''
    s_lshl_b32 s10, s3, 10
    v_lshlrev_b32 v4, 5, v10
    v_lshl_add_u32 v4, v11, 3, v4
    v_add_u32 v4, s10, v4
    buffer_load_dwordx2 v[28:29], v4, %s, 0 offen
    buffer_load_dwordx2 v[30:31], v4, %s, 0 offen offset:512
    ''' % (sr(S_SU, 4), sr(S_SU, 4)))
    FP = 32
    a('''
    v_mov_b32 v32, 0
    v_mov_b32 v33, 0
    v_mov_b32 v34, 0
    v_mov_b32 v35, 0
    v_lshlrev_b32 v5, 4, v1
    v_subrev_u32 v5, 16, v5
    buffer_load_dwordx2 v[36:37], v5, %s, 0 offen
    ''' % sr(S_SU, 4))
    a('''
    v_subrev_u32 v6, 64, v0
    v_cmp_gt_u32 vcc, 30, v6
    v_lshlrev_b32 v6, 4, v6
    s_and_saveexec_b64 s[70:71], vcc
    ds_write_b128 v6, v[32:35] offset:%d
    s_mov_b64 exec, s[70:71]
    ''' % KL)
    a.stamp(1)
    a('s_waitcnt vmcnt(13)')
    a('s_mov_b32 s11, 0x7fff7fff')
    for i in range(16):
        a('v_and_b32 v%d, s11, v%d' % (M + i, M + i))
    for st in (8, 4, 2, 1):
        for i in range(st):
            a('v_pk_max_u16 v%d, v%d, v%d' % (M + i, M + i, M + i + st))
    a('v_lshrrev_b32 v12, 16, v%d' % M)
    a('v_and_b32 v13, 0xffff, v%d' % M)
    a('v_max_u32 v12, v12, v13')
    for dpp in ('quad_perm:[1,0,3,2]', 'quad_perm:[2,3,0,1]', 'row_half_mirror', 'row_mirror'):
        a.nop(2)
        a('v_max_u32_dpp v12, v12, v12 %s row_mask:0xf bank_mask:0xf' % dpp)
    a.nop(2)
    a('''
    v_readlane_b32 s64, v12, 0
    v_readlane_b32 s65, v12, 16
    v_readlane_b32 s66, v12, 32
    v_readlane_b32 s67, v12, 48
    s_nop 3
    s_max_u32 s64, s64, s65
    s_max_u32 s66, s66, s67
    s_max_u32 s64, s64, s66
    s_lshr_b32 s64, s64, 7
    s_sub_u32 s64, 268, s64
    s_min_u32 s64, s64, 254
    s_lshl_b32 s66, s64, 23
    s_mov_b32 s67, s66
    s_waitcnt vmcnt(0) lgkmcnt(0)
    s_add_u32 s12, s64, s8
    s_sub_u32 s12, 254, s12
    ''')
    a.stamp(2)
    for k in range(4):
        a('v_lshl_or_b32 v%d, v%d, 16, v%d' % (KT + k, 112 + 2 * k + 1, 112 + 2 * k))
    a('ds_write_b128 v3, %s offset:%d' % (vr(KT, 4), KL + 480))

    def make_copies(src, vaddr, off):
        T = 40
        for k in range(6):
            a('v_lshlrev_b32 v%d, 16, v%d' % (T + 2 * k, src + k))
            a('v_and_b32 v%d, 0xffff0000, v%d' % (T + 2 * k + 1, src + k))
        for k in range(6):
            a('v_pk_mul_f32 %s, %s, s[66:67]' % (vr(T + 2 * k, 2), vr(T + 2 * k, 2)))
        F = 56
        for k in range(6):
            a('v_cvt_pk_f16_f32 v%d, v%d, v%d' % (F + k, T + 2 * k, T + 2 * k + 1))
        for k in range(4):
            a('v_alignbit_b32 v%d, v%d, v%d, 16' % (64 + k, F + k + 1, F + k))
            a('v_mov_b32 v%d, v%d' % (68 + k, F + k + 1))
            a('v_alignbit_b32 v%d, v%d, v%d, 16' % (72 + k, F + k + 2, F + k + 1))
        a('ds_write_b128 v%d, %s offset:%d' % (vaddr, vr(F, 4), UC + off))
        a('ds_write_b128 v%d, v[64:67] offset:%d' % (vaddr, UC + CSZ + off))
        a('ds_write_b128 v%d, v[68:71] offset:%d' % (vaddr, UC + 2 * CSZ + off))
        a('ds_write_b128 v%d, v[72:75] offset:%d' % (vaddr, UC + 3 * CSZ + off))
    make_copies(D, 3, 32)
    skip = a.newlabel('K2_NOFP')
    a('s_cmp_lg_u32 s3, 0')
    a('s_cbranch_scc1 %s' % skip)
    a('s_mov_b64 exec, 3')
    make_copies(FP, 2, 0)
    a('s_mov_b64 exec, -1')
    a.label(skip)
    a('''
    v_add_u32 v12, 1, v10
    v_and_b32 v13, 3, v12
    v_lshrrev_b32 v12, 2, v12
    v_mul_u32_u24 v13, %d, v13
    v_lshl_add_u32 v12, v12, 3, v13
    v_lshlrev_b32 v13, 4, v11
    v_sub_u32 v12, v12, v13
    s_lshl_b32 s10, s3, 6
    s_add_u32 s10, s10, %d
    v_add_u32 v5, s10, v12
    ''' % (CSZ, UC + 48))
    a('''
    v_lshlrev_b32 v12, 5, v10
    v_lshl_add_u32 v12, v11, 4, v12
    s_lshl_b32 s10, s3, 6
    s_sub_u32 s10, %d, s10
    v_add_u32 v6, s10, v12
    s_waitcnt lgkmcnt(0)
    s_barrier
    ''' % (KL + 192))
    a.stamp(3)
    lg = Cnt(a, 'lgkmcnt', 15)
    BF = 32
    AFR = 96
    ACC = 128
    def aread(t):
        r = AFR + 4 * (t % 8)
        a('ds_read_b64 %s, v5 offset:%d' % (vr(r, 2), 256 * t))
        lg.issue(('A', t))
        a('ds_read_b64 %s, v5 offset:%d' % (vr(r + 2, 2), 256 * t + 8))
        lg.issue(('A', t))
    def bread(s):
        a('ds_read_b128 %s, v6 offset:%d' % (vr(BF + 4 * s, 4), 256 * s))
        lg.issue(('B', s))
    aread(0)
    for n in range(8):
        bread(2 * n + 1)
    aread(1)
    for n in range(8):
        bread(2 * n)
    started = set()
    for t in range(16):
        for n in range(8):
            if 2 * n + 1 < t:
                continue
            s = 2 * n - t + 1
            lg.wait(('A', t))
            lg.wait(('B', s))
            cin = vr(ACC + 4 * n, 4) if n in started else '0'
            started.add(n)
            a('v_mfma_f32_16x16x32_f16 %s, %s, %s, %s' % (vr(ACC + 4 * n, 4), vr(AFR + 4 * (t % 8), 4), vr(BF + 4 * s, 4), cin))
        if t == 0:
            for tt in range(2, 5):
                aread(tt)
        elif t == 1:
            for tt in range(5, 8):
                aread(tt)
        if t + 8 < 16:
            aread(t + 8)
    a.stamp(4)
    a.nop(8)
    a('s_barrier')
    a.stamp(5)
    a('''
    s_lshl_b32 s10, s3, 10
    v_add_u32 v12, s10, v2
    ''')
    for n in range(8):
        a('ds_write_b128 v12, %s offset:%d' % (vr(ACC + 4 * n, 4), n * 4096))
    a('''
    s_lshl_b32 s10, s3, 13
    v_add_u32 v12, s10, v2
    s_waitcnt lgkmcnt(0)
    s_barrier
    ''')
    R = 32
    for t in range(2):
        for w in range(4):
            a('ds_read_b128 %s, v12 offset:%d' % (vr(R + 16 * t + 4 * w, 4), t * 4096 + w * 1024))
    a('''
    s_and_b32 s10, s2, 1
    s_lshl_b32 s10, s10, 4
    s_lshr_b32 s9, s9, s10
    s_lshl_b32 s68, s9, 16
    s_mov_b32 s69, s68
    ''')
    U = 64
    for k in range(4):
        a('v_lshlrev_b32 v%d, 16, v%d' % (U + 2 * k, UE + k))
        a('v_and_b32 v%d, 0xffff0000, v%d' % (U + 2 * k + 1, UE + k))
    for k in range(4):
        a('v_pk_mul_f32 %s, %s, s[68:69]' % (vr(U + 2 * k, 2), vr(U + 2 * k, 2)))
    for k in range(4):
        a('v_cvt_pk_bf16_f32 v%d, v%d, v%d' % (UE + k, U + 2 * k, U + 2 * k + 1))
    for k in range(4):
        a('v_lshlrev_b32 v%d, 16, v%d' % (U + 2 * k, UE + k))
        a('v_and_b32 v%d, 0xffff0000, v%d' % (U + 2 * k + 1, UE + k))
    a('s_waitcnt lgkmcnt(0)')
    for t in range(2):
        b = R + 16 * t
        for h in (0, 2):
            a('v_pk_add_f32 %s, %s, %s' % (vr(b + h, 2), vr(b + h, 2), vr(b + 4 + h, 2)))
            a('v_pk_add_f32 %s, %s, %s' % (vr(b + 8 + h, 2), vr(b + 8 + h, 2), vr(b + 12 + h, 2)))
    for t in range(2):
        b = R + 16 * t
        for h in (0, 2):
            a('v_pk_add_f32 %s, %s, %s' % (vr(b + h, 2), vr(b + h, 2), vr(b + 8 + h, 2)))
    for t in range(2):
        b = R + 16 * t
        for k in range(4):
            a('v_ldexp_f32 v%d, v%d, s12' % (b + k, b + k))
    Y = 72
    for t in range(2):
        b = R + 16 * t
        for h in range(2):
            a('v_cvt_pk_bf16_f32 v%d, v%d, v%d' % (Y + 2 * t + h, b + 2 * h, b + 2 * h + 1))
    for k in range(4):
        a('v_lshlrev_b32 v%d, 16, v%d' % (80 + 2 * k, Y + k))
        a('v_and_b32 v%d, 0xffff0000, v%d' % (81 + 2 * k, Y + k))
    for k in range(4):
        a('v_pk_add_f32 %s, %s, %s' % (vr(80 + 2 * k, 2), vr(80 + 2 * k, 2), vr(U + 2 * k, 2)))
    for k in range(4):
        a('v_cvt_pk_bf16_f32 v%d, v%d, v%d' % (Y + k, 80 + 2 * k, 81 + 2 * k))
    a('''
    s_lshl_b32 s10, s2, 12
    s_add_u32 s10, s10, 0x%x
    buffer_store_dwordx2 v[72:73], v4, %s, s10 offen
    buffer_store_dwordx2 v[74:75], v4, %s, s10 offen offset:512
    ''' % (WS_BT, sr(S_SWS2, 4), sr(S_SWS2, 4)))
    a.endpgm()


def red_part(a, first_wg, exit_label, pfx='K2'):
    ta_bits = sum(ta << (4 * p) for p, (ta, tb) in enumerate(PAIRS))
    tb_bits = sum(tb << (4 * p) for p, (ta, tb) in enumerate(PAIRS))
    a('''
    s_sub_u32 s4, s2, %d
    s_lshl_b32 s4, s4, 2
    s_add_u32 s4, s4, s3
    s_mul_i32 s5, s4, 147
    s_lshr_b32 s5, s5, 11
    s_mul_i32 s6, s5, 14
    s_sub_u32 s6, s4, s6
    v_and_b32 v10, 15, v1
    v_lshrrev_b32 v11, 4, v1
    s_mov_b32 s64, 0x%x
    s_mov_b32 s65, 0x%x
    s_mov_b32 s66, 0x%x
    s_mov_b32 s67, 0x%x
    s_lshl_b32 s7, s6, 2
    s_lshr_b64 s[70:71], s[64:65], s7
    s_and_b32 s70, s70, 15
    s_lshr_b64 s[72:73], s[66:67], s7
    s_and_b32 s72, s72, 15
    s_cmp_eq_u32 s6, 13
    s_cbranch_scc1 %s_RZ
    s_lshl_b32 s72, s72, 4
    s_sub_u32 s72, s72, 72
    v_add_u32 v4, s72, v10
    v_mul_i32_i24 v5, 57, v4
    v_ashrrev_i32 v5, 10, v5
    v_mul_i32_i24 v6, 18, v5
    v_sub_u32 v6, v4, v6
    v_sub_u32 v7, s70, v5
    v_lshlrev_b32 v7, 4, v7
    v_lshl_add_u32 v7, v11, 2, v7
    v_cmp_gt_u32 vcc, 72, v4
    s_mov_b64 s[74:75], vcc
    v_cmp_gt_u32 vcc, 21, v7
    s_and_b64 s[74:75], vcc, s[74:75]
    s_lshl_b32 s7, s6, 10
    v_lshl_add_u32 v3, v1, 4, s7
    s_branch %s_RC
    ''' % (first_wg, ta_bits & 0xffffffff, ta_bits >> 32, tb_bits & 0xffffffff, tb_bits >> 32, pfx, pfx))
    a.label('%s_RZ' % pfx)
    a('''
    v_mul_u32_u24 v5, 43, v1
    v_lshrrev_b32 v5, 8, v5
    v_mul_u32_u24 v7, 6, v5
    v_sub_u32 v7, v1, v7
    v_lshlrev_b32 v7, 2, v7
    v_mov_b32 v6, 18
    v_cmp_gt_u32 vcc, 24, v1
    s_mov_b64 s[74:75], vcc
    v_lshl_add_u32 v3, v5, 4, v7
    v_lshlrev_b32 v3, 2, v3
    v_add_u32 v3, 13312, v3
    ''')
    a.label('%s_RC' % pfx)
    a('s_mov_b64 exec, s[74:75]')
    a('s_cbranch_execz %s' % exit_label)
    a('s_waitcnt lgkmcnt(0)')
    srd(a, S_SWS2, P_WS, WS_END)
    a('s_mul_i32 s8, s5, %d' % KVP_REC)
    a('s_add_u32 s8, s8, 0x%x' % WS_KVP)
    for rb in range(16):
        a('buffer_load_dwordx4 %s, v3, %s, s8 offen' % (vr(16 + 4 * rb, 4), sr(S_SWS2, 4)))
        if rb < 15:
            a('s_add_u32 s8, s8, %d' % (8 * KVP_REC))
    a('''
    s_lshl_b32 s8, s5, 2
    v_add_u32 v8, s8, v5
    v_mul_u32_u24 v8, 19, v8
    v_add_u32 v8, v8, v6
    v_mul_u32_u24 v8, 24, v8
    v_add_u32 v8, v8, v7
    v_lshlrev_b32 v8, 1, v8
    v_lshlrev_b32 v5, 1, v5
    v_sub_u32 v7, v7, v5
    v_add_u32 v12, 1, v7
    v_add_u32 v13, 2, v7
    v_add_u32 v14, 3, v7
    v_cmp_gt_u32 s[60:61], 18, v7
    v_cmp_gt_u32 s[62:63], 18, v12
    v_cmp_gt_u32 s[64:65], 18, v13
    v_cmp_gt_u32 s[66:67], 18, v14
    s_waitcnt vmcnt(0)
    ''')
    for st in (8, 4, 2, 1):
        for i in range(st):
            for h in (0, 2):
                a('v_pk_add_f32 %s, %s, %s' % (vr(16 + 4 * i + h, 2), vr(16 + 4 * i + h, 2), vr(16 + 4 * (i + st) + h, 2)))
    for i in range(4):
        a('v_cndmask_b32 v%d, 0, v%d, s[%d:%d]' % (16 + i, 16 + i, 60 + 2 * i, 61 + 2 * i))
    a('''
    v_cvt_pk_bf16_f32 v20, v16, v17
    v_cvt_pk_bf16_f32 v21, v18, v19
    s_mov_b32 s5, 0x%x
    buffer_store_dwordx2 v[20:21], v8, %s, s5 offen
    ''' % (WS_KVT, sr(S_SWS2, 4)))


def gen_k2(a):
    a.lines.append('.globl k2_kernel\n.p2align 8\n.type k2_kernel,@function\nk2_kernel:')
    a('s_cmp_ge_u32 s2, %d' % K2_GRID)
    a('s_cbranch_scc1 K2_EXIT')
    a.kidx = 1
    a.stamp_init()
    load_kernargs(a)
    a('''
    v_lshrrev_b32 v2, 6, v0
    v_and_b32 v1, 63, v0
    s_nop 0
    v_readfirstlane_b32 s3, v2
    s_cmp_ge_u32 s2, %d
    s_cbranch_scc1 K2_RED
    ''' % N_CONV)
    conv_part(a)
    a.label('K2_RED')
    red_part(a, N_CONV, 'K2_EXIT')
    a.label('K2_EXIT')
    a('s_endpgm')
```

```python
from asmlib import *
from gen_k1 import *

K3_GRID = 256
WSLOT = 9216
NSL = 3
L_WO = 0
L_PQ = 4 * NSL * WSLOT
L_BT = L_PQ + 36864
K3_LDS = L_BT + 9216
K3_ACCUM = 256
K3_VGPR = 256 + 164

S_SWO, S_SWS3, S_SOUT = 48, 52, 56
STEPS = {0: [0], 1: [0, 1], 2: [0, 1], 3: [1, 2], 4: [1, 2], 5: [2, 3], 6: [2, 3], 7: [3, 4], 8: [3, 4]}

V_G, V_OMG = 8, 9
WD = 240
V_TRW, V_TRB = 6, 7
PQA = 249
HFLAG = ''


def k3_ids(a):
    a('''
    s_and_b32 s4, s2, 7
    s_lshr_b32 s5, s2, 3
    s_lshl_b32 s4, s4, 3
    s_and_b32 s6, s5, 7
    s_add_u32 s4, s4, s6
    s_lshl_b32 s4, s4, 5
    s_lshr_b32 s5, s5, 3
    s_mul_i32 s5, s5, 144
    v_and_b32 v10, 15, v1
    v_lshrrev_b32 v11, 4, v1
    s_mul_i32 s6, s3, 144
    s_mul_i32 s7, s3, %d
    s_add_u32 s7, s7, %d
    s_and_b32 s12, s3, 1
    s_lshr_b32 s13, s3, 1
    ''' % (NSL * WSLOT, L_WO))


def k3_srds(a):
    srd(a, S_SWO, P_WO, 576 * 576 * 2)
    srd(a, S_SWS3, P_WS, WS_END)
    srd(a, S_SOUT, P_OUT, 2048 * 576 * 2)


def k3_wo_addr(a):
    a('s_mul_i32 s8, s6, 1152')
    a('s_lshl_b32 s9, s5, 1')
    a('s_add_u32 s8, s8, s9')
    for i in range(9):
        a('''
        v_add_u32 v12, %d, v1
        v_mul_u32_u24 v13, 3641, v12
        v_lshrrev_b32 v13, 16, v13
        v_mul_u32_u24 v14, 18, v13
        v_sub_u32 v14, v12, v14
        v_mul_u32_u24 v13, 1152, v13
        v_lshl_add_u32 v13, v14, 4, v13
        v_add_u32 v%d, s8, v13
        ''' % (64 * i, WD + i))


def wo_dma_one(a, vm, k, i):
    slot = (k % NSL) * WSLOT
    a('s_mov_b32 s10, 0x%x' % (k * 32 * 1152))
    a('s_add_u32 m0, s7, 0x%x' % (slot + i * 1024))
    a('s_nop 0')
    a('buffer_load_dwordx4 v%d, %s, s10 offen lds' % (WD + i, sr(S_SWO, 4)))
    vm.issue(('W', k))


def wo_dma(a, vm, k):
    for i in range(9 if k < 4 else 5):
        wo_dma_one(a, vm, k, i)


WOF = lambda j, k: (k * 36 + 4 * j) if k < 4 else (144 + 2 * j)


def wo_drain(a, vm, lg, k):
    vm.wait(('W', k))
    for j in range(9):
        off = (k % NSL) * WSLOT + 32 * j
        a('ds_read_b64_tr_b16 %s, v%d offset:%d' % (ar(WOF(j, k), 2), V_TRW, off))
        lg.issue(('WO', k))
        if k < 4:
            a('ds_read_b64_tr_b16 %s, v%d offset:%d' % (ar(WOF(j, k) + 2, 2), V_TRW, off + 16 * 288))
            lg.issue(('WO', k))


def pq_dma(a, vm, lpq):
    a('s_mul_i32 s8, s4, 1152')
    a('s_mul_i32 s9, s3, 576')
    a('s_mul_i32 s11, s3, 9216')
    a('s_add_u32 s11, s11, %d' % lpq)
    for i in range(9):
        a('''
        v_add_u32 v12, s9, v1
        v_add_u32 v12, %d, v12
        v_mul_u32_u24 v13, 7282, v12
        v_lshrrev_b32 v13, 19, v13
        v_mul_u32_u24 v14, 72, v13
        v_sub_u32 v14, v12, v14
        v_and_b32 v15, 7, v13
        v_xor_b32 v14, v14, v15
        v_mul_u32_u24 v13, 1152, v13
        v_lshl_add_u32 v13, v14, 4, v13
        s_add_u32 m0, s11, %d
        s_nop 0
        buffer_load_dwordx4 v13, %s, s8 offen lds
        ''' % (64 * i, 1024 * i, sr(S_SWS3, 4)))
        vm.issue(('PQ',))


def k3_addr2(a, lpq, lbt):
    a('''
    v_lshrrev_b32 v12, 2, v10
    v_lshl_add_u32 v12, v11, 2, v12
    v_mul_u32_u24 v13, 288, v12
    v_and_b32 v14, 3, v1
    v_lshl_add_u32 v13, v14, 3, v13
    v_add_u32 v%d, s7, v13
    v_lshlrev_b32 v13, 6, v12
    v_lshl_add_u32 v13, v14, 3, v13
    s_lshl_b32 s9, s12, 5
    s_lshl_b32 s11, s13, 10
    s_add_u32 s9, s9, s11
    s_add_u32 s9, s9, %d
    v_add_u32 v%d, s9, v13
    v_mul_u32_u24 v12, 1152, v10
    v_add_u32 v12, %d, v12
    v_and_b32 v13, 7, v10
    s_mul_i32 s9, s3, 18
    ''' % (V_TRW, lbt, V_TRB, lpq))
    for k in range(5):
        if k < 4:
            a('v_add_u32 v14, %d, v11' % (4 * k))
        else:
            a('v_and_b32 v14, 1, v11')
            a('v_add_u32 v14, 16, v14')
        a('v_add_u32 v14, s9, v14')
        a('v_xor_b32 v14, v14, v13')
        a('v_lshl_add_u32 v%d, v14, 4, v12' % (PQA + k))


def kvt_load(a, vm, regs):
    a('s_mul_i32 s8, s3, 7296')
    a('s_add_u32 s8, s8, 0x%x' % WS_KVT)
    a('v_lshlrev_b32 v12, 4, v1')
    for i in range(8):
        if i % 4 == 0 and i:
            a('s_add_u32 s8, s8, 4096')
        a('buffer_load_dwordx4 %s, v12, %s, s8 offen offset:%d %s' % (vr(regs + 4 * i, 4), sr(S_SWS3, 4), 1024 * (i % 4), HFLAG))
        vm.issue(('KVT',))


def bt_load(a, vm, regs):
    a('''
    s_lshl_b32 s8, s5, 12
    s_lshl_b32 s9, s4, 1
    s_add_u32 s8, s8, s9
    s_add_u32 s8, s8, 0x%x
    v_lshrrev_b32 v12, 2, v1
    v_lshlrev_b32 v12, 12, v12
    v_and_b32 v13, 3, v1
    v_lshl_add_u32 v12, v13, 4, v12
    s_lshl_b32 s9, s3, 17
    s_add_u32 s9, s9, s8
    buffer_load_dwordx4 %s, v12, %s, s9 offen %s
    s_add_u32 s9, s9, 0x10000
    buffer_load_dwordx4 %s, v12, %s, s9 offen %s
    s_add_u32 s9, s8, 0x80000
    buffer_load_dwordx4 %s, v12, %s, s9 offen %s
    ''' % (WS_BT, vr(regs, 4), sr(S_SWS3, 4), HFLAG, vr(regs + 4, 4), sr(S_SWS3, 4), HFLAG, vr(regs + 8, 4), sr(S_SWS3, 4), HFLAG))
    for i in range(3):
        vm.issue(('BT',))


def bt_write(a, vm, regs, lbt):
    vm.wait(('BT',))
    a('''
    s_lshl_b32 s9, s3, 11
    v_lshlrev_b32 v12, 4, v1
    v_add_u32 v13, s9, v12
    v_add_u32 v13, %d, v13
    v_add_u32 v12, %d, v12
    ds_write_b128 v13, %s
    ds_write_b128 v13, %s offset:1024
    ds_write_b128 v12, %s
    ''' % (lbt, lbt + 8192, vr(regs, 4), vr(regs + 4, 4), vr(regs + 8, 4)))


def g_load(a, vm):
    a('''
    s_lshl_b32 s9, s12, 4
    s_add_u32 s9, s9, s4
    v_add_u32 v12, s9, v10
    v_lshlrev_b32 v12, 2, v12
    s_mov_b32 s9, 0x%x
    buffer_load_dword v%d, v12, %s, s9 offen
    ''' % (WS_G, V_G, sr(S_SWS3, 4)))
    vm.issue(('G',))


SELV = 224
FA = 144


def k3_frag_addrs(a, s_lkv, FAB):
    out = {}
    a('v_mov_b32 v9, 7296')
    def setup():
        a('''
        v_mul_u32_u24 v14, 19, v12
        v_add_u32 v14, v14, v13
        v_mul_u32_u24 v14, 48, v14
        v_lshrrev_b32 v15, 2, v12
        v_mul_u32_u24 v15, 72, v15
        v_and_b32 v4, 3, v12
        v_lshl_add_u32 v15, v4, 4, v15
        v_lshlrev_b32 v4, 3, v11
        v_sub_u32 v15, v4, v15
        ''')
    def one(dst, k, extra=None):
        a('v_add_u32 v4, %d, v15' % (32 * k))
        a('v_cmp_gt_u32 vcc, 24, v4')
        if extra:
            a('s_and_b64 vcc, vcc, %s' % extra)
        a('v_lshl_add_u32 v4, v4, 1, v14')
        a('s_nop 0')
        a('v_cndmask_b32 v4, v9, v4, vcc')
        a('v_add_u32 v%d, s%d, v4' % (dst, s_lkv))
    a('''
    v_lshrrev_b32 v12, 2, v10
    v_lshlrev_b32 v12, 1, v12
    v_and_b32 v13, 1, v10
    v_add_u32 v12, v12, v13
    v_and_b32 v13, 2, v10
    v_cmp_eq_u32 s[64:65], 0, v13
    v_mov_b32 v13, 18
    ''')
    setup()
    idx = 0
    for k in range(5):
        one(FAB + idx, k, 's[64:65]')
        out[('Z', k)] = FAB + idx
        idx += 1
    for c in range(9):
        a('''
        v_add_u32 v5, %d, v10
        v_mul_u32_u24 v12, 57, v5
        v_lshrrev_b32 v12, 10, v12
        v_mul_u32_u24 v13, 18, v12
        v_sub_u32 v13, v5, v13
        ''' % (16 * c))
        setup()
        for k in STEPS[c]:
            one(FAB + idx, k)
            out[(c, k)] = FAB + idx
            idx += 1
        a('''
        v_lshrrev_b32 v4, 1, v12
        v_cmp_eq_u32 vcc, v4, v11
        v_and_b32 v4, 1, v12
        v_lshlrev_b32 v4, 4, v4
        v_mov_b32 v5, 0x3f80
        v_lshlrev_b32 v4, v4, v5
        v_cndmask_b32 v%d, 0, v4, vcc
        ''' % (SELV + c))
    return out


def k3_compute(a, vm, lg, FADDR, s_lkv, kvregs, hooks=None):
    hooks = hooks or {}
    PQ = lambda k, st: 16 + (k * 2 + st) * 4
    ZF = lambda k: 124 + 4 * k
    KVF = {}
    idx = 0
    for c in range(9):
        for k in STEPS[c]:
            KVF[(c, k)] = 56 + 4 * idx
            idx += 1
    a('s_mov_b32 s66, 0x0000bf80')
    a('s_mov_b32 s67, 0xbf800000')
    a('s_mov_b32 s68, 0x%x' % f32bits(1e-6))
    for k in range(5):
        for st in range(2):
            a('ds_read_b128 %s, v%d offset:%d' % (vr(PQ(k, st), 4), PQA + k, st * 18432))
            lg.issue(('PQF', k))
    vm.wait(('KVT',))
    a('v_lshlrev_b32 v12, 4, v1')
    a('v_add_u32 v12, s%d, v12' % s_lkv)
    for i in range(7):
        a('ds_write_b128 v12, %s offset:%d' % (vr(kvregs + 4 * i, 4), 1024 * i))
        lg.issue(('KW',))
    a('v_cmp_gt_u32 vcc, 8, v1')
    a('s_nop 1')
    for q in range(4):
        a('v_cndmask_b32 v%d, 0, v%d, vcc' % (kvregs + 28 + q, kvregs + 28 + q))
    a('s_mov_b64 exec, 0x1ff')
    a('ds_write_b128 v12, %s offset:7168' % vr(kvregs + 28, 4))
    lg.issue(('KW',))
    a('s_mov_b64 exec, -1')
    for k in range(5):
        a('ds_read_b128 %s, v%d' % (vr(ZF(k), 4), FADDR[('Z', k)]))
        lg.issue(('ZF', k))
    for c in range(9):
        for k in STEPS[c]:
            a('ds_read_b128 %s, v%d' % (vr(KVF[(c, k)], 4), FADDR[(c, k)]))
            lg.issue(('KVF', c))
    DEN = lambda st: 216 + 4 * st
    for k in range(5):
        lg.wait(('ZF', k))
        for st in range(2):
            cin = '0' if k == 0 else vr(DEN(st), 4)
            a('v_mfma_f32_16x16x32_bf16 %s, %s, %s, %s' % (vr(DEN(st), 4), vr(ZF(k), 4), vr(PQ(k, st), 4), cin))
    lg.wait(('KVF', 8))
    NUM = lambda c, st: 144 + (c * 2 + st) * 4
    for c in range(9):
        for i, k in enumerate(STEPS[c]):
            for st in range(2):
                cin = '0' if i == 0 else vr(NUM(c, st), 4)
                a('v_mfma_f32_16x16x32_bf16 %s, %s, %s, %s' % (vr(NUM(c, st), 4), vr(KVF[(c, k)], 4), vr(PQ(k, st), 4), cin))
    a.stamp(2)
    if 'after_num' in hooks: hooks['after_num']()
    RT = lambda st: 124 + 4 * st
    T = lambda st: 132 + 6 * st
    for st in range(2):
        a('v_cvt_pk_bf16_f32 v%d, v%d, v%d' % (T(st), DEN(st), DEN(st) + 1))
    for st in range(2):
        a('v_lshlrev_b32 v%d, 16, v%d' % (T(st) + 2, T(st)))
        a('v_and_b32 v%d, 0xffff0000, v%d' % (T(st) + 3, T(st)))
    for st in range(2):
        a('v_add_f32 v%d, s68, v%d' % (T(st) + 2, T(st) + 2))
        a('v_add_f32 v%d, s68, v%d' % (T(st) + 3, T(st) + 3))
    for st in range(2):
        a('v_cvt_pk_bf16_f32 v%d, v%d, v%d' % (T(st), T(st) + 2, T(st) + 3))
    for st in range(2):
        a('v_lshlrev_b32 v%d, 16, v%d' % (T(st) + 2, T(st)))
        a('v_and_b32 v%d, 0xffff0000, v%d' % (T(st) + 3, T(st)))
    for st in range(2):
        a('v_rcp_f32 v%d, v%d' % (T(st) + 2, T(st) + 2))
        a('v_rcp_f32 v%d, v%d' % (T(st) + 3, T(st) + 3))
    a.nop(1)
    for term in range(3):
        for st in range(2):
            a('v_cvt_pk_bf16_f32 v%d, v%d, v%d' % (RT(st) + term, T(st) + 2, T(st) + 3))
        if term < 2:
            for st in range(2):
                a('v_dot2_f32_bf16 v%d, v%d, s66, v%d' % (T(st) + 2, RT(st) + term, T(st) + 2))
                a('v_dot2_f32_bf16 v%d, v%d, s67, v%d' % (T(st) + 3, RT(st) + term, T(st) + 3))
            a.nop(3)
    for st in range(2):
        a('v_mov_b32 v%d, 0' % (RT(st) + 3))
    a.stamp(3)
    OB = 56
    SF = lambda i: 92 + 4 * i
    RR = lambda i: 100 + 4 * i
    TT = 116
    def sel_expand(c):
        for i in range(4):
            a('v_mov_b32 v%d, v%d' % (SF(c % 2) + i, SELV + c))
    def proc(cc):
        for st in range(2):
            n = NUM(cc, st)
            a('v_cvt_pk_bf16_f32 v%d, v%d, v%d' % (n, n, n + 1))
            a('v_cvt_pk_bf16_f32 v%d, v%d, v%d' % (n + 2, n + 2, n + 3))
        for st in range(2):
            n = NUM(cc, st)
            t = TT + 4 * st
            a('v_lshlrev_b32 v%d, 16, v%d' % (t, n))
            a('v_and_b32 v%d, 0xffff0000, v%d' % (t + 1, n))
            a('v_lshlrev_b32 v%d, 16, v%d' % (t + 2, n + 2))
            a('v_and_b32 v%d, 0xffff0000, v%d' % (t + 3, n + 2))
        for st in range(2):
            t = TT + 4 * st
            r = RR((cc % 2) * 2 + st)
            a('v_pk_mul_f32 %s, %s, %s' % (vr(t, 2), vr(t, 2), vr(r, 2)))
            a('v_pk_mul_f32 %s, %s, %s' % (vr(t + 2, 2), vr(t + 2, 2), vr(r + 2, 2)))
        for st in range(2):
            t = TT + 4 * st
            o = OB + st * 18 + 2 * cc
            a('v_cvt_pk_bf16_f32 v%d, v%d, v%d' % (o, t, t + 1))
            a('v_cvt_pk_bf16_f32 v%d, v%d, v%d' % (o + 1, t + 2, t + 3))
    sel_expand(0)
    for c in range(9):
        if c + 1 < 9:
            sel_expand(c + 1)
        else:
            a.nop(2)
        for st in range(2):
            a('v_mfma_f32_16x16x32_bf16 %s, %s, %s, 0' % (vr(RR((c % 2) * 2 + st), 4), vr(SF(c % 2), 4), vr(RT(st), 4)))
        if c >= 1:
            proc(c - 1)
        if ('o', c) in hooks: hooks[('o', c)]()
    a.nop(4)
    proc(8)
    if 'after_o' in hooks: hooks['after_o']()
    a.nop(2)
    a.stamp(4)
    ACC = lambda j, st: 144 + (j * 2 + st) * 4
    for k in range(5):
        if ('g2', k) in hooks: hooks[('g2', k)]()
        lg.wait(('WO', k))
        for j in range(9):
            for st in range(2):
                cin = '0' if k == 0 else vr(ACC(j, st), 4)
                if k < 4:
                    a('v_mfma_f32_16x16x32_bf16 %s, %s, %s, %s' % (vr(ACC(j, st), 4), ar(WOF(j, k), 4), vr(OB + st * 18 + 4 * k, 4), cin))
                else:
                    a('v_mfma_f32_16x16x16_bf16 %s, %s, %s, %s' % (vr(ACC(j, st), 4), ar(WOF(j, k), 2), vr(OB + st * 18 + 16, 2), cin))
    a.stamp(5)


def k3_final(a, lred, lout, pre_barrier=None, mid=None):
    ACC = lambda j, st: 144 + (j * 2 + st) * 4
    a.nop(8)
    if pre_barrier: pre_barrier()
    a('s_barrier')
    a.stamp(6)
    a('''
    v_lshlrev_b32 v12, 4, v1
    s_lshl_b32 s9, s3, 10
    s_add_u32 s9, s9, %d
    v_add_u32 v13, s9, v12
    v_add_u32 v14, 0x9000, v13
    ''' % lred)
    for t in range(18):
        j, st = t >> 1, t & 1
        if t < 9:
            a('ds_write_b128 v13, %s offset:%d' % (vr(ACC(j, st), 4), t * 4096))
        else:
            a('ds_write_b128 v14, %s offset:%d' % (vr(ACC(j, st), 4), (t - 9) * 4096))
    if mid: mid()
    RS = 304
    a('''
    s_lshl_b32 s9, s3, 12
    s_add_u32 s9, s9, %d
    v_add_u32 v13, s9, v12
    v_add_u32 v14, 0x8000, v13
    s_lshl_b32 s9, s12, 4
    v_add_u32 v15, s9, v10
    v_mul_u32_u24 v15, %d, v15
    v_lshl_add_u32 v15, v11, 3, v15
    s_lshl_b32 s9, s13, 5
    s_add_u32 s9, s9, %d
    v_add_u32 v15, s9, v15
    v_sub_f32 v%d, 1.0, v%d
    v_cvt_pk_bf16_f32 v%d, v%d, v%d
    v_lshlrev_b32 v%d, 16, v%d
    s_waitcnt lgkmcnt(0)
    s_barrier
    ''' % (lred, RS, lout, V_OMG, V_G, V_OMG, V_OMG, V_OMG, V_OMG, V_OMG))
    def reads(it):
        R = 16 + 24 * it
        for w in range(4):
            if it < 2:
                a('ds_read_b128 %s, v13 offset:%d' % (vr(R + 4 * w, 4), it * 16384 + w * 1024))
            else:
                a('ds_read_b128 %s, v14 offset:%d' % (vr(R + 4 * w, 4), (it - 2) * 16384 + w * 1024))
        a('ds_read_b64_tr_b16 %s, v%d offset:%d' % (vr(R + 16, 2), V_TRB, it * 2048))
    def comp(its):
        for it in its:
            R = 16 + 24 * it
            for h in (0, 2):
                a('v_pk_add_f32 %s, %s, %s' % (vr(R + h, 2), vr(R + h, 2), vr(R + 4 + h, 2)))
                a('v_pk_add_f32 %s, %s, %s' % (vr(R + 8 + h, 2), vr(R + 8 + h, 2), vr(R + 12 + h, 2)))
        for it in its:
            R = 16 + 24 * it
            for h in (0, 2):
                a('v_pk_add_f32 %s, %s, %s' % (vr(R + h, 2), vr(R + h, 2), vr(R + 8 + h, 2)))
        for it in its:
            R = 16 + 24 * it
            a('v_cvt_pk_bf16_f32 v%d, v%d, v%d' % (R + 4, R, R + 1))
            a('v_cvt_pk_bf16_f32 v%d, v%d, v%d' % (R + 5, R + 2, R + 3))
        for it in its:
            R = 16 + 24 * it
            for k in range(2):
                a('v_lshlrev_b32 v%d, 16, v%d' % (R + 2 * k, R + 4 + k))
                a('v_and_b32 v%d, 0xffff0000, v%d' % (R + 2 * k + 1, R + 4 + k))
                a('v_lshlrev_b32 v%d, 16, v%d' % (R + 8 + 2 * k, R + 16 + k))
                a('v_and_b32 v%d, 0xffff0000, v%d' % (R + 8 + 2 * k + 1, R + 16 + k))
        for it in its:
            R = 16 + 24 * it
            for h in (0, 2):
                a('v_pk_mul_f32 %s, %s, %s op_sel_hi:[1,0]' % (vr(R + h, 2), vr(R + h, 2), vr(V_G, 2)))
                a('v_pk_mul_f32 %s, %s, %s op_sel:[0,1] op_sel_hi:[1,1]' % (vr(R + 8 + h, 2), vr(R + 8 + h, 2), vr(V_G, 2)))
        for it in its:
            R = 16 + 24 * it
            for k in range(2):
                a('v_cvt_pk_bf16_f32 v%d, v%d, v%d' % (R + 4 + k, R + 2 * k, R + 2 * k + 1))
                a('v_cvt_pk_bf16_f32 v%d, v%d, v%d' % (R + 6 + k, R + 8 + 2 * k, R + 8 + 2 * k + 1))
        for it in its:
            R = 16 + 24 * it
            for k in range(2):
                a('v_lshlrev_b32 v%d, 16, v%d' % (R + 2 * k, R + 4 + k))
                a('v_and_b32 v%d, 0xffff0000, v%d' % (R + 2 * k + 1, R + 4 + k))
                a('v_lshlrev_b32 v%d, 16, v%d' % (R + 8 + 2 * k, R + 6 + k))
                a('v_and_b32 v%d, 0xffff0000, v%d' % (R + 8 + 2 * k + 1, R + 6 + k))
        for it in its:
            R = 16 + 24 * it
            for h in (0, 2):
                a('v_pk_add_f32 %s, %s, %s' % (vr(R + h, 2), vr(R + h, 2), vr(R + 8 + h, 2)))
        for it in its:
            R = 16 + 24 * it
            a('v_cvt_pk_bf16_f32 v%d, v%d, v%d' % (R + 18, R, R + 1))
            a('v_cvt_pk_bf16_f32 v%d, v%d, v%d' % (R + 19, R + 2, R + 3))
        for it in its:
            R = 16 + 24 * it
            a('ds_write_b64 v15, %s offset:%d' % (vr(R + 18, 2), it * 64))
    for it in range(4):
        reads(it)
    skip = a.newlabel('K3_S4')
    a('s_waitcnt lgkmcnt(10)')
    comp([0, 1])
    a('s_waitcnt lgkmcnt(2)')
    comp([2, 3])
    a('s_cmp_ge_u32 s3, 2')
    a('s_cbranch_scc1 %s' % skip)
    reads(4)
    a('s_waitcnt lgkmcnt(0)')
    comp([4])
    a.label(skip)
    a('s_mul_i32 s8, s4, 1152')
    a('s_lshl_b32 s9, s5, 1')
    a('s_add_u32 s8, s8, s9')
    for i in range(3):
        a('''
        v_add_u32 v12, %d, v0
        v_mul_u32_u24 v13, 3641, v12
        v_lshrrev_b32 v13, 16, v13
        v_mul_u32_u24 v14, 18, v13
        v_sub_u32 v14, v12, v14
        v_lshlrev_b32 v14, 4, v14
        v_mul_u32_u24 v12, %d, v13
        v_add3_u32 v%d, v12, v14, %s
        v_mul_u32_u24 v13, 1152, v13
        v_add_u32 v%d, v13, v14
        ''' % (256 * i, RS, 140 + i, 's11', 144 + i))
        if i == 0:
            pass
    a('s_waitcnt lgkmcnt(0)')
    a('s_barrier')
    a('ds_read_b128 v[16:19], v140')
    a('ds_read_b128 v[20:23], v141')
    a('s_waitcnt lgkmcnt(1)')
    a('buffer_store_dwordx4 v[16:19], v144, %s, s8 offen' % sr(S_SOUT, 4))
    a('s_waitcnt lgkmcnt(0)')
    a('buffer_store_dwordx4 v[20:23], v145, %s, s8 offen' % sr(S_SOUT, 4))
    fin = a.newlabel('K3_F')
    a('s_cmp_lg_u32 s3, 0')
    a('s_cbranch_scc1 %s' % fin)
    a('ds_read_b128 v[24:27], v142')
    a('s_waitcnt lgkmcnt(0)')
    a('buffer_store_dwordx4 v[24:27], v146, %s, s8 offen' % sr(S_SOUT, 4))
    a.label(fin)


def gen_k3(a):
    a.lines.append('.globl k3_kernel\n.p2align 8\n.type k3_kernel,@function\nk3_kernel:')
    a('s_cmp_ge_u32 s2, %d' % K3_GRID)
    a('s_cbranch_scc1 K3_EXIT')
    a.kidx = 2
    a.stamp_init()
    load_kernargs(a)
    a('''
    v_lshrrev_b32 v2, 6, v0
    v_and_b32 v1, 63, v0
    s_nop 0
    v_readfirstlane_b32 s3, v2
    ''')
    k3_ids(a)
    vm = Cnt(a, 'vmcnt', 63)
    lg = Cnt(a, 'lgkmcnt', 15)
    k3_wo_addr(a)
    a('s_waitcnt lgkmcnt(0)')
    k3_srds(a)
    KVR = 176
    BTR = 208
    kvt_load(a, vm, KVR)
    pq_dma(a, vm, L_PQ)
    bt_load(a, vm, BTR)
    g_load(a, vm)
    wo_dma(a, vm, 0)
    wo_dma(a, vm, 1)
    k3_addr2(a, L_PQ, L_BT)
    a('s_add_u32 s14, s7, %d' % (2 * WSLOT))
    FADDR = k3_frag_addrs(a, 14, 150)
    a.stamp(1)
    bt_write(a, vm, BTR, L_BT)
    vm.wait(('PQ',))
    a('s_barrier')
    hooks = {
        'after_num': lambda: (wo_dma(a, vm, 2), wo_drain(a, vm, lg, 0), lg.wait(('WO', 0)), wo_dma(a, vm, 3)),
        ('o', 2): lambda: (wo_drain(a, vm, lg, 1), lg.wait(('WO', 1)), wo_dma(a, vm, 4)),
        ('g2', 1): lambda: wo_drain(a, vm, lg, 2),
        ('g2', 2): lambda: wo_drain(a, vm, lg, 3),
        ('g2', 3): lambda: wo_drain(a, vm, lg, 4),
    }
    k3_compute(a, vm, lg, FADDR, 14, KVR, hooks)
    a('s_mov_b32 s11, %d' % L_PQ)
    k3_final(a, 0, L_PQ, pre_barrier=lambda: vm.wait_all())
    a.endpgm()
    a.label('K3_EXIT')
    a('s_endpgm')
```

```python
from asmlib import *
from gen_k1 import *

KM_GRID = 256
CSZ = 4160
KLO = 4 * CSZ
UKSZ = KLO + 4608
L_UK = 0
L_RED = 2 * UKSZ
L_WO = L_RED + 32768
WSLOT = 9216
L_PQ = L_WO + 4 * WSLOT
KM_LDS = L_PQ + 36864
KM_ACCUM = 256
KM_VGPR = 256 + 256

S_SWO, S_SWS3, S_SOUT, S_SU = 48, 52, 56, 60
STEPS = {0: [0], 1: [0, 1], 2: [0, 1], 3: [1, 2], 4: [1, 2], 5: [2, 3], 6: [2, 3], 7: [3, 4], 8: [3, 4]}
FRAGS = [('Z', k) for k in range(5)] + [(c, k) for c in range(9) for k in STEPS[c]]

V_TID16 = 2
V_L16 = 3
V_TRW, V_TRB = 6, 7
V_G, V_OMG = 8, 9
V_UW0, V_UW2 = 236, 237
V_AA, V_BA = 238, 239
WD = 240
PQA = 249
PQB = 228
V_RW, V_RR = 254, 255
WOF = lambda j, k: (k * 36 + 4 * j) if k < 4 else (144 + 2 * j)
A_KVF = 164
A_ZF = 232


SK = lambda q: [76, 78, 100][q]


def poll(a, vaddr, soff, nlanes, tmpv, lbl):
    mask_lo = (1 << min(nlanes, 32)) - 1
    mask_hi = ((1 << (nlanes - 32)) - 1) if nlanes > 32 else 0
    a('s_mov_b32 s70, 0x%x' % mask_lo)
    a('s_mov_b32 s71, 0x%x' % mask_hi)
    a('s_mov_b32 s72, 0')
    a.label(lbl)
    a('buffer_load_dword v%d, v%d, %s, %s offen sc1' % (tmpv, vaddr, sr(S_SWS3, 4), soff))
    a('s_add_u32 s72, s72, 1')
    a('s_waitcnt vmcnt(0)')
    a('v_cmp_ne_u32 vcc, 0, v%d' % tmpv)
    a('s_and_b64 vcc, vcc, s[70:71]')
    a('s_cmp_eq_u64 vcc, s[70:71]')
    a('s_cbranch_scc1 %s_ok' % lbl)
    a('s_cmp_gt_u32 s72, 0x8000')
    a('s_cbranch_scc1 %s_ok' % lbl)
    a('s_sleep 2')
    a('s_branch %s' % lbl)
    a.label(lbl + '_ok')


def reduce_task(a):
    cb = sum(((15 if c == 'Z' else c) << (4 * f)) for f, (c, k) in enumerate(FRAGS))
    kb = sum((k << (4 * f)) for f, (c, k) in enumerate(FRAGS))
    a('''
    s_mul_i32 s64, s15, 94
    s_lshr_b32 s64, s64, 11
    s_mul_i32 s65, s64, 22
    s_sub_u32 s65, s15, s65
    s_mov_b32 s66, 0x%x
    s_mov_b32 s67, 0x%x
    s_mov_b32 s68, 0x%x
    s_mov_b32 s69, 0x%x
    s_cmp_ge_u32 s65, 16
    s_cselect_b32 s66, 0x%x, s66
    s_cselect_b32 s68, 0x%x, s68
    s_and_b32 s70, s65, 15
    s_lshl_b32 s70, s70, 2
    s_lshr_b64 s[66:67], s[66:67], s70
    s_lshr_b64 s[68:69], s[68:69], s70
    s_and_b32 s66, s66, 15
    s_and_b32 s68, s68, 15
    s_lshl_b32 s70, s68, 5
    v_lshl_add_u32 v16, v11, 3, s70
    s_cmp_eq_u32 s66, 15
    s_cbranch_scc1 KM_RZ
    s_lshl_b32 s70, s66, 4
    v_add_u32 v17, s70, v10
    v_mul_u32_u24 v18, 57, v17
    v_lshrrev_b32 v18, 10, v18
    v_lshrrev_b32 v19, 2, v18
    v_mul_u32_u24 v20, 72, v19
    v_sub_u32 v21, v17, v20
    v_add_u32 v21, 72, v21
    v_sub_u32 v22, v16, v20
    v_lshrrev_b32 v23, 4, v22
    v_lshrrev_b32 v24, 4, v21
    v_lshl_add_u32 v23, v23, 1, v24
    v_subrev_u32 v23, 4, v23
    v_and_b32 v24, 15, v21
    v_and_b32 v25, 12, v22
    v_lshl_add_u32 v24, v25, 2, v24
    v_lshlrev_b32 v24, 4, v24
    v_lshl_add_u32 v24, v23, 10, v24
    v_add_u32 v25, 256, v24
    s_mov_b64 s[74:75], -1
    s_branch KM_RC
    ''' % (cb & 0xffffffff, (cb >> 32) & 0xffffffff, kb & 0xffffffff, (kb >> 32) & 0xffffffff, cb >> 64, kb >> 64))
    a.label('KM_RZ')
    a('''
    v_lshrrev_b32 v18, 2, v10
    v_lshlrev_b32 v18, 1, v18
    v_and_b32 v19, 1, v10
    v_add_u32 v18, v18, v19
    v_and_b32 v19, 2, v10
    v_cmp_eq_u32 s[74:75], 0, v19
    v_lshrrev_b32 v19, 2, v18
    v_mul_u32_u24 v20, 72, v19
    v_sub_u32 v22, v16, v20
    v_lshlrev_b32 v24, 2, v22
    v_add_u32 v24, 13312, v24
    v_add_u32 v25, 16, v24
    ''')
    a.label('KM_RC')
    a('''
    v_mul_u32_u24 v26, 18, v18
    v_sub_u32 v26, v26, v16
    v_add_u32 v27, 17, v26
    v_cmp_gt_u32 vcc, 25, v27
    s_and_b64 s[74:75], s[74:75], vcc
    s_lshl_b32 s70, s64, 1
    v_add_u32 v19, s70, v19
    v_mul_u32_u24 v19, %d, v19
    v_add_u32 v24, v24, v19
    v_add_u32 v25, v25, v19
    v_mov_b32 v27, 0x40000000
    v_cndmask_b32 v24, v27, v24, s[74:75]
    v_cndmask_b32 v25, v27, v25, s[74:75]
    s_mov_b32 s70, 0x%x
    ''' % (KVP_REC, WS_KVP))
    R = 32
    for rb in range(16):
        a('buffer_load_dwordx4 %s, v24, %s, s70 offen' % (vr(R + 8 * rb, 4), sr(S_SWS3, 4)))
        a('buffer_load_dwordx4 %s, v25, %s, s70 offen' % (vr(R + 8 * rb + 4, 4), sr(S_SWS3, 4)))
        if rb < 15:
            a('s_add_u32 s70, s70, %d' % (8 * KVP_REC))
    a('''
    s_lshl_b32 s70, s15, 10
    s_add_u32 s70, s70, 0x%x
    s_lshl_b32 s71, s64, 7
    s_lshl_b32 s72, s65, 2
    s_add_u32 s71, s71, s72
    s_add_u32 s71, s71, 0x%x
    s_waitcnt vmcnt(0)
    ''' % (WS_KVF, WS_FLG))
    for st in (8, 4, 2, 1):
        for i in range(st):
            for h in range(0, 8, 2):
                a('v_pk_add_f32 %s, %s, %s' % (vr(R + 8 * i + h, 2), vr(R + 8 * i + h, 2), vr(R + 8 * (i + st) + h, 2)))
    for j in range(8):
        a('v_subrev_u32 v27, v26, %d' % j if False else 'v_sub_u32 v27, %d, v26' % j)
        a('v_cmp_gt_u32 vcc, 18, v27')
        a('s_and_b64 vcc, vcc, s[74:75]')
        a('s_nop 0')
        a('v_cndmask_b32 v%d, 0, v%d, vcc' % (R + j, R + j))
    for k in range(4):
        a('v_cvt_pk_bf16_f32 v%d, v%d, v%d' % (28 + k, R + 2 * k, R + 2 * k + 1))
    a('''
    buffer_store_dwordx4 v[28:31], v%d, %s, s70 offen sc1
    v_mov_b32 v27, 1
    v_mov_b32 v26, 0
    s_waitcnt vmcnt(0)
    s_mov_b64 exec, 1
    buffer_store_dword v27, v26, %s, s71 offen sc1
    s_mov_b64 exec, -1
    ''' % (V_L16, sr(S_SWS3, 4), sr(S_SWS3, 4)))


def gen_km(a):
    a.lines.append('.globl km_kernel\n.p2align 8\n.type km_kernel,@function\nkm_kernel:')
    a('s_cmp_ge_u32 s2, %d' % KM_GRID)
    a('s_cbranch_scc1 KM_EXIT')
    a.kidx = 1
    a.stamp_init()
    load_kernargs(a)
    a('''
    v_lshrrev_b32 v2, 6, v0
    v_and_b32 v1, 63, v0
    s_nop 0
    v_readfirstlane_b32 s3, v2
    s_and_b32 s4, s2, 7
    s_lshr_b32 s5, s2, 3
    s_lshl_b32 s4, s4, 3
    s_and_b32 s6, s5, 7
    s_add_u32 s4, s4, s6
    s_lshl_b32 s4, s4, 5
    s_lshr_b32 s14, s5, 3
    s_mul_i32 s5, s14, 144
    v_and_b32 v10, 15, v1
    v_lshrrev_b32 v11, 4, v1
    s_mul_i32 s6, s3, 144
    s_mul_i32 s7, s3, %d
    s_add_u32 s7, s7, %d
    s_and_b32 s12, s3, 1
    s_lshr_b32 s13, s3, 1
    s_lshr_b32 s97, s2, 6
    s_and_b32 s98, s2, 63
    s_mul_i32 s99, s97, 144
    s_add_u32 s99, s99, s98
    v_lshlrev_b32 v2, 4, v0
    v_lshlrev_b32 v3, 4, v1
    s_waitcnt lgkmcnt(0)
    ''' % (WSLOT, L_WO))
    srd(a, S_SWO, P_WO, 576 * 576 * 2)
    srd(a, S_SWS3, P_WS, WS_END)
    srd(a, S_SOUT, P_OUT, 2048 * 576 * 2)
    vm = Cnt(a, 'vmcnt', 63)
    lg = Cnt(a, 'lgkmcnt', 15)

    INB = lambda q: 200 + 8 * (q % 3)
    SC = lambda q: 64 + 4 * (q % 3)
    def conv_in(q):
        b = INB(q)
        a('''
        s_add_u32 s8, s99, %d
        s_min_u32 s8, s8, 575
        s_lshl_b32 s9, s8, 12
        s_add_u32 s9, s9, 0x%x
        s_add_u32 s60, s46, s9
        s_addc_u32 s61, s47, 0
        s_and_b32 s61, s61, 0xffff
        s_mov_b32 s62, 4096
        s_mov_b32 s63, 0x20000
        s_lshl_b32 s9, s8, 7
        s_add_u32 s9, s9, 0x%x
        buffer_load_dword v%d, v4, %s, s9 offen
        buffer_load_dword v%d, v5, s[60:63], 0 offen
        buffer_load_dwordx4 %s, v2, s[60:63], 0 offen
        s_mul_i32 s9, s8, %d
        s_add_u32 s9, s9, 0x%x
        s_add_u32 s10, s9, 4576
        s_load_dword s%d, s[46:47], s10
        s_lshr_b32 s10, s8, 1
        s_lshl_b32 s10, s10, 2
        s_load_dword s%d, s[38:39], s10
        s_lshl_b32 s10, s3, 10
        s_add_u32 m0, s10, %d
        s_add_u32 s10, s9, 4096
        buffer_load_dwordx4 v2, %s, s9 offen lds
        s_mov_b32 m0, %d
        s_mov_b32 exec_hi, 0
        buffer_load_dwordx4 v3, %s, s10 offen lds
        s_mov_b32 exec_hi, -1
        ''' % (64 * q, WS_XT, WS_PM, b, sr(S_SWS3, 4), b + 1, vr(b + 2, 4), KF_STRIDE, WS_KF, SK(q), SK(q) + 1,
               L_UK + (q % 2) * UKSZ + KLO, sr(S_SWS3, 4), L_UK + (q % 2) * UKSZ + KLO + 4096, sr(S_SWS3, 4)))
        for i in range(3): vm.issue(('IN', q))
        for i in range(2): vm.issue(('KD', q))

    a('''
    v_and_b32 v4, 31, v1
    v_lshlrev_b32 v4, 2, v4
    v_subrev_u32 v5, 4, v2
    ''')
    conv_in(0)
    conv_in(1)

    a('''
    s_sub_u32 s15, s98, 16
    s_cmp_ge_u32 s15, 6
    s_cbranch_scc1 KM_NORED
    s_mul_i32 s8, s97, 6
    s_add_u32 s15, s15, s8
    s_cmp_ge_u32 s15, 22
    s_cbranch_scc1 KM_NORED
    s_lshl_b32 s15, s15, 2
    s_add_u32 s15, s15, s3
    ''')
    reduce_task(a)
    a.label('KM_NORED')

    a('''
    s_mul_i32 s8, s6, 1152
    s_lshl_b32 s9, s5, 1
    s_add_u32 s8, s8, s9
    v_mul_u32_u24 v13, 57, v1
    v_lshrrev_b32 v13, 10, v13
    v_mul_u32_u24 v14, 18, v13
    v_sub_u32 v14, v1, v14
    v_mul_u32_u24 v13, 1152, v13
    v_lshl_add_u32 v13, v14, 4, v13
    v_add_u32 v%d, s8, v13
    v_mov_b32 v15, 864
    ''' % WD)
    for i in range(1, 9):
        a('''
        v_add_u32 v14, 10, v14
        v_cmp_le_u32 vcc, 18, v14
        v_add_u32 v%d, %d, v%d
        v_subrev_u32 v13, 18, v14
        v_cndmask_b32 v12, 0, v15, vcc
        v_cndmask_b32 v14, v14, v13, vcc
        v_add_u32 v%d, v%d, v12
        ''' % (WD + i, 3 * 1152 + 160, WD + i - 1, WD + i, WD + i))

    def wo_dma(k):
        a('s_mov_b32 s10, 0x%x' % (k * 32 * 1152))
        for i in range(9 if k < 4 else 5):
            a('s_add_u32 m0, s7, 0x%x' % (i * 1024))
            a('s_nop 0')
            a('buffer_load_dwordx4 v%d, %s, s10 offen lds' % (WD + i, sr(S_SWO, 4)))
            vm.issue(('W', k))
    def wo_drain(k, wait=True):
        vm.wait(('W', k))
        for j in range(9):
            a('ds_read_b64_tr_b16 %s, v%d offset:%d' % (ar(WOF(j, k), 2), V_TRW, 32 * j))
            lg.issue(('WO', k))
            if k < 4:
                a('ds_read_b64_tr_b16 %s, v%d offset:%d' % (ar(WOF(j, k) + 2, 2), V_TRW, 32 * j + 16 * 288))
                lg.issue(('WO', k))
        if wait:
            lg.wait(('WO', k))
    wo_dma(0)

    a('''
    s_lshl_b32 s9, s3, 3
    s_add_u32 s8, s9, s4
    s_mul_i32 s8, s8, 1152
    s_lshl_b32 s11, s3, 13
    s_add_u32 s11, s11, %d
    s_and_b32 s9, s9, 15
    v_xor_b32 v12, s9, v1
    ''' % L_PQ)
    for i in range(8):
        a('v_xor_b32 v13, %d, v12' % i)
        a('s_add_u32 m0, s11, %d' % (1024 * i))
        a('v_lshlrev_b32 v13, 4, v13')
        a('buffer_load_dwordx4 v13, %s, s8 offen lds' % sr(S_SWS3, 4))
        a('s_add_u32 s8, s8, 1152')
        vm.issue(('PQ',))
    a('''
    v_lshrrev_b32 v12, 3, v1
    v_and_b32 v13, 7, v1
    v_xor_b32 v13, v13, v12
    v_mul_u32_u24 v12, 1152, v12
    v_lshl_add_u32 v13, v13, 4, v12
    s_sub_u32 s8, s8, %d
    s_lshl_b32 s11, s3, 10
    s_add_u32 m0, s11, %d
    s_nop 0
    buffer_load_dwordx4 v13, %s, s8 offen lds
    ''' % (8 * 1152 - 1024, L_PQ + 32768, sr(S_SWS3, 4)))
    vm.issue(('PQ',))
    a('''
    s_lshl_b32 s9, s12, 4
    s_add_u32 s9, s9, s4
    v_add_u32 v12, s9, v10
    v_lshlrev_b32 v12, 2, v12
    s_mov_b32 s9, 0x%x
    buffer_load_dword v%d, v12, %s, s9 offen
    ''' % (WS_G, V_G, sr(S_SWS3, 4)))
    vm.issue(('G',))

    a('''
    v_lshrrev_b32 v12, 2, v10
    v_lshl_add_u32 v13, v11, 2, v12
    v_mul_u32_u24 v14, 288, v13
    v_and_b32 v15, 3, v1
    v_lshl_add_u32 v14, v15, 3, v14
    v_add_u32 v%d, s7, v14
    v_lshlrev_b32 v14, 6, v13
    v_lshl_add_u32 v14, v15, 3, v14
    s_lshl_b32 s9, s12, 5
    s_lshl_b32 s11, s13, 10
    s_add_u32 s9, s9, s11
    s_add_u32 s9, s9, %d
    v_add_u32 v%d, s9, v14
    v_add_u32 v%d, 32, v2
    v_add_u32 v%d, %d, v2
    v_not_b32 v13, v10
    v_and_b32 v13, 3, v13
    v_mul_u32_u24 v13, %d, v13
    v_lshl_add_u32 v13, v12, 3, v13
    v_lshlrev_b32 v14, 4, v11
    v_sub_u32 v13, v13, v14
    s_lshl_b32 s9, s3, 6
    s_add_u32 s10, s9, 56
    v_add_u32 v%d, s10, v13
    v_lshl_add_u32 v13, v10, 5, v14
    s_sub_u32 s10, %d, s9
    v_add_u32 v%d, s10, v13
    v_lshl_add_u32 v13, v10, 2, v11
    v_bfe_u32 v14, v10, 1, 2
    v_xor_b32 v13, v13, v14
    s_lshl_b32 s9, s3, 10
    s_add_u32 s9, s9, %d
    v_lshl_add_u32 v%d, v13, 4, s9
    v_and_b32 v13, 31, v1
    v_lshlrev_b32 v13, 1, v13
    v_bfe_u32 v14, v13, 3, 2
    v_xor_b32 v13, v13, v14
    v_lshlrev_b32 v13, 4, v13
    v_lshrrev_b32 v14, 5, v1
    v_lshl_add_u32 v13, v14, 12, v13
    s_lshl_b32 s9, s3, 13
    s_add_u32 s9, s9, %d
    v_add_u32 v%d, s9, v13
    v_lshlrev_b32 v12, 10, v10
    v_add_u32 v12, %d, v12
    v_lshlrev_b32 v15, 7, v10
    v_add_u32 v15, %d, v15
    v_and_b32 v13, 7, v10
    s_mul_i32 s9, s3, 18
    ''' % (V_TRW, L_WO, V_TRB, V_UW0, V_UW2, 2 * CSZ + 36, CSZ, V_AA, KLO + 192, V_BA, L_RED, V_RW, L_RED, V_RR, L_PQ, L_PQ + 32768))
    for k in range(5):
        if k < 4:
            a('v_add_u32 v14, %d, v11' % (4 * k))
        else:
            a('v_and_b32 v14, 1, v11')
            a('v_add_u32 v14, 16, v14')
        a('v_add_u32 v14, s9, v14')
        a('v_cmp_le_u32 vcc, 64, v14')
        a('v_xor_b32 v16, v14, v10')
        a('v_lshl_add_u32 v16, v16, 4, v12')
        a('v_add_u32 v17, 16384, v16')
        a('v_xor_b32 v14, v14, v13')
        a('v_and_b32 v14, 7, v14')
        a('v_lshl_add_u32 v14, v14, 4, v15')
        a('v_add_u32 v18, 2048, v14')
        a('v_cndmask_b32 v%d, v16, v14, vcc' % (PQA + k))
        a('v_cndmask_b32 v%d, v17, v18, vcc' % (PQB + k))
    a('''
    v_mul_u32_u24 v12, 86, v0
    v_lshrrev_b32 v12, 8, v12
    v_mul_u32_u24 v13, 3, v12
    v_sub_u32 v13, v0, v13
    v_and_b32 v14, 3, v12
    v_mul_u32_u24 v14, %d, v14
    v_lshl_add_u32 v14, v13, 4, v14
    v_lshrrev_b32 v12, 2, v12
    v_mul_u32_u24 v12, %d, v12
    v_add_u32 v14, v14, v12
    v_mov_b32 v16, 0
    v_mov_b32 v17, 0
    v_mov_b32 v18, 0
    v_mov_b32 v19, 0
    v_cmp_gt_u32 vcc, 24, v0
    s_and_saveexec_b64 s[70:71], vcc
    ds_write_b128 v14, v[16:19]
    s_mov_b64 exec, s[70:71]
    s_waitcnt lgkmcnt(0)
    s_barrier
    ''' % (CSZ, UKSZ))
    a.stamp(1)

    UD = lambda q: 176 + 8 * (q % 3)
    def stage(q):
        b = INB(q)
        ub = (q % 2) * UKSZ
        vm.wait(('IN', q))
        T = 16
        for dpp in ('quad_perm:[1,0,3,2]', 'quad_perm:[2,3,0,1]', 'row_half_mirror', 'row_mirror'):
            a('v_max_u32_dpp v%d, v%d, v%d %s row_mask:0xf bank_mask:0xf' % (b, b, b, dpp))
            k = ('quad_perm:[1,0,3,2]', 'quad_perm:[2,3,0,1]', 'row_half_mirror', 'row_mirror').index(dpp)
            a('v_lshlrev_b32 v%d, 16, v%d' % (T + 2 * k, b + 2 + k))
            a('v_and_b32 v%d, 0xffff0000, v%d' % (T + 2 * k + 1, b + 2 + k))
        a('''
        v_readlane_b32 s8, v%d, 0
        v_readlane_b32 s9, v%d, 16
        v_and_b32 v%d, 0xffff0000, v%d
        s_waitcnt lgkmcnt(0)
        s_and_b32 s10, s99, 1
        s_lshl_b32 s10, s10, 4
        s_lshr_b32 s10, s%d, s10
        s_lshl_b32 s10, s10, 16
        s_mov_b32 s11, s10
        s_max_u32 s8, s8, s9
        s_lshr_b32 s8, s8, 7
        s_sub_u32 s8, 268, s8
        s_min_u32 s8, s8, 254
        s_add_u32 s%d, s8, s%d
        s_sub_u32 s%d, 254, s%d
        s_lshl_b32 s8, s8, 23
        s_mov_b32 s9, s8
        ''' % (b, b, T + 8, b + 1, SK(q) + 1, SK(q), SK(q), SK(q), SK(q)))
        lg.ops = []
        u = UD(q)
        for k in range(4):
            a('v_pk_mul_f32 %s, %s, s[10:11]' % (vr(u + 2 * k, 2), vr(T + 2 * k, 2)))
        for k in range(4):
            a('v_pk_mul_f32 %s, %s, s[8:9]' % (vr(T + 2 * k, 2), vr(T + 2 * k, 2)))
        a('v_mul_f32 v%d, s8, v%d' % (T + 8, T + 8))
        F = 32
        for k in range(4):
            a('v_cvt_pk_f16_f32 v%d, v%d, v%d' % (F + k, T + 2 * k, T + 2 * k + 1))
        a('v_cvt_pk_f16_f32 v%d, v%d, v%d' % (F - 1, T + 8, T + 8))
        if ub:
            a('v_add_u32 v12, %d, v%d' % (ub, V_UW2))
            w2 = 12
        else:
            w2 = V_UW2
        a('ds_write_b128 v%d, %s offset:%d' % (V_UW0, vr(F, 4), ub))
        a('ds_write2_b32 v%d, v%d, v%d offset0:0 offset1:1' % (w2, F, F + 1))
        a('ds_write2_b32 v%d, v%d, v%d offset0:2 offset1:3' % (w2, F + 2, F + 3))
        for k in range(4):
            a('v_alignbit_b32 v%d, v%d, v%d, 16' % (36 + k, F + k, F + k - 1))
        a('v_add_u32 v13, %d, v%d' % (CSZ, w2))
        a('ds_write_b128 v%d, v[36:39] offset:%d' % (V_UW0, ub + CSZ))
        a('ds_write2_b32 v13, v36, v37 offset0:0 offset1:1')
        a('ds_write2_b32 v13, v38, v39 offset0:2 offset1:3')
        for i in range(6): lg.issue(('ST', q))
        for k in range(4):
            a('v_cvt_pk_bf16_f32 v%d, v%d, v%d' % (T + k, u + 2 * k, u + 2 * k + 1))
        for k in range(4):
            a('v_lshlrev_b32 v%d, 16, v%d' % (u + 2 * k, T + k))
            a('v_and_b32 v%d, 0xffff0000, v%d' % (u + 2 * k + 1, T + k))

    BF = 40
    AFR = 104
    ACC = 136
    def mfma_loop(q):
        ub = (q % 2) * UKSZ
        def aread(t):
            r = AFR + 4 * (t % 8)
            a('ds_read_b64 %s, v%d offset:%d' % (vr(r, 2), V_AA, ub + 256 * t))
            lg.issue(('A', t))
            a('ds_read_b64 %s, v%d offset:%d' % (vr(r + 2, 2), V_AA, ub + 256 * t + 8))
            lg.issue(('A', t))
        def bread(s):
            a('ds_read_b128 %s, v%d offset:%d' % (vr(BF + 4 * s, 4), V_BA, ub + 256 * s))
            lg.issue(('B', s))
        aread(0)
        for n in range(8):
            bread(2 * n + 1)
        aread(1)
        for n in range(8):
            bread(2 * n)
        started = set()
        for t in range(16):
            lg.wait(('A', t))
            for n in range(8):
                if 2 * n + 1 < t:
                    continue
                s = 2 * n - t + 1
                if t < 2 and n % 2 == 0:
                    lg.wait(('B', min(s + 2, 15 if t == 0 else 14)))
                cin = vr(ACC + 4 * n, 4) if n in started else '0'
                started.add(n)
                a('v_mfma_f32_16x16x32_f16 %s, %s, %s, %s' % (vr(ACC + 4 * n, 4), vr(AFR + 4 * (t % 8), 4), vr(BF + 4 * s, 4), cin))
            if t == 0:
                for tt in range(2, 5): aread(tt)
            elif t == 1:
                for tt in range(5, 8): aread(tt)
            if t + 8 < 16:
                aread(t + 8)

    def reduce_store(q, extra_wait=None):
        a('s_barrier')
        for n in range(8):
            a('ds_write_b128 v%d, %s offset:%d' % (V_RW, vr(ACC + 4 * n, 4), n * 4096))
        if extra_wait: extra_wait()
        a('v_xor_b32 v12, 16, v%d' % V_RR)
        a('s_waitcnt lgkmcnt(0)')
        lg.ops = []
        a('s_barrier')
        R = 40
        for w in range(4):
            a('ds_read_b128 %s, v%d offset:%d' % (vr(R + 8 * w, 4), V_RR, w * 1024))
            a('ds_read_b128 %s, v12 offset:%d' % (vr(R + 8 * w + 4, 4), w * 1024))
        a('s_waitcnt lgkmcnt(4)')
        for h in range(0, 8, 2):
            a('v_pk_add_f32 %s, %s, %s' % (vr(R + h, 2), vr(R + h, 2), vr(R + 8 + h, 2)))
        a('s_waitcnt lgkmcnt(0)')
        for h in range(0, 8, 2):
            a('v_pk_add_f32 %s, %s, %s' % (vr(R + 16 + h, 2), vr(R + 16 + h, 2), vr(R + 24 + h, 2)))
        for h in range(0, 8, 2):
            a('v_pk_add_f32 %s, %s, %s' % (vr(R + h, 2), vr(R + h, 2), vr(R + 16 + h, 2)))
        for k in range(8):
            a('v_ldexp_f32 v%d, v%d, s%d' % (R + k, R + k, SK(q)))
        for k in range(4):
            a('v_cvt_pk_bf16_f32 v%d, v%d, v%d' % (R + 8 + k, R + 2 * k, R + 2 * k + 1))
        for k in range(4):
            a('v_lshlrev_b32 v%d, 16, v%d' % (R + 2 * k, R + 8 + k))
            a('v_and_b32 v%d, 0xffff0000, v%d' % (R + 2 * k + 1, R + 8 + k))
        u = UD(q)
        for k in range(4):
            a('v_pk_add_f32 %s, %s, %s' % (vr(R + 2 * k, 2), vr(R + 2 * k, 2), vr(u + 2 * k, 2)))
        O = OUTB(q)
        for k in range(4):
            a('v_cvt_pk_bf16_f32 v%d, v%d, v%d' % (O + k, R + 2 * k, R + 2 * k + 1))

    OUTB = lambda q: [168, 172, 224][q]
    def bt_store(q):
        a('''
        s_add_u32 s8, s99, %d
        s_lshl_b32 s8, s8, 12
        s_add_u32 s8, s8, 0x%x
        buffer_store_dwordx4 %s, v2, %s, s8 offen sc1
        ''' % (64 * q, WS_BT, vr(OUTB(q), 4), sr(S_SWS3, 4)))
        vm.issue(('BST',))

    def kv_fetch():
        a('v_lshlrev_b32 v14, 2, v1')
        a('s_lshl_b32 s9, s3, 7')
        a('s_add_u32 s9, s9, 0x%x' % WS_FLG)
        poll(a, 14, 's9', 22, 15, 'KM_PKV')
        vm.ops = []
        a('s_mul_i32 s8, s3, %d' % (22 * 1024))
        a('s_add_u32 s8, s8, 0x%x' % WS_KVF)
        idx = 0
        for f, (c, k) in enumerate(FRAGS):
            if f % 4 == 0 and f:
                a('s_add_u32 s8, s8, 4096')
            if c == 'Z':
                dst = ar(A_ZF + 4 * k, 4)
            else:
                KVF[(c, k)] = A_KVF + 4 * idx
                idx += 1
                dst = ar(KVF[(c, k)], 4)
            a('buffer_load_dwordx4 %s, v3, %s, s8 offen offset:%d sc1' % (dst, sr(S_SWS3, 4), 1024 * (f % 4)))
            vm.issue(('F',))
    KVF = {}

    S2 = int(os.environ.get('S2', '0'))
    st2 = (lambda i: a.stamp(i)) if S2 else (lambda i: None)
    if S2:
        real_stamp = a.stamp
        a.stamp = lambda i: real_stamp(i) if i in (0, 7) else None
        st2 = real_stamp
    stage(0)
    vm.wait(('KD', 0))
    a('s_waitcnt lgkmcnt(0)')
    lg.ops = []
    a('s_barrier')
    a.stamp(2)
    st2(1)
    mfma_loop(0)
    st2(2)
    wo_drain(0)
    wo_dma(1)
    stage(1)
    st2(3)
    reduce_store(0, extra_wait=lambda: vm.wait(('KD', 1)))
    st2(4)
    conv_in(2)
    wo_drain(1)
    wo_dma(2)
    mfma_loop(1)
    wo_drain(2)
    wo_dma(3)
    stage(2)
    reduce_store(1, extra_wait=lambda: vm.wait(('KD', 2)))
    wo_drain(3)
    st2(5)
    kv_fetch()
    st2(6)
    wo_dma(4)
    bt_store(0)
    bt_store(1)
    a.stamp(3)
    a('s_cmp_ge_u32 s98, 16')
    a('s_cbranch_scc1 KM_NO3')
    mfma_loop(2)
    a.nop(8)
    reduce_store(2)
    bt_store(2)
    a.label('KM_NO3')
    a.stamp(4)
    SELR = 56
    a('s_mov_b32 s8, 0x%x' % WS_SEL)
    for c in range(9):
        if c == 4 or c == 8:
            a('s_add_u32 s8, s8, 4096')
        a('buffer_load_dwordx4 %s, v3, %s, s8 offen offset:%d' % (vr(SELR + 4 * c, 4), sr(S_SWS3, 4), 1024 * (c % 4)))
    vm.ops = []
    a('s_waitcnt vmcnt(11)')
    PQ = lambda k, st: 16 + (k * 2 + st) * 4
    a('s_barrier')
    for k in range(5):
        for st in range(2):
            a('ds_read_b128 %s, v%d' % (vr(PQ(k, st), 4), (PQA if st == 0 else PQB) + k))
            lg.issue(('PQF', k))
    wo_drain(4, wait=False)
    a('s_mov_b32 s66, 0x0000bf80')
    a('s_mov_b32 s67, 0xbf800000')
    a('s_mov_b32 s68, 0x%x' % f32bits(1e-6))
    DEN = lambda st: 216 + 4 * st
    lg.wait(('PQF', 4))
    for k in range(5):
        for st in range(2):
            cin = '0' if k == 0 else vr(DEN(st), 4)
            a('v_mfma_f32_16x16x32_bf16 %s, %s, %s, %s' % (vr(DEN(st), 4), ar(A_ZF + 4 * k, 4), vr(PQ(k, st), 4), cin))
    NUM = lambda c, st: 144 + (c * 2 + st) * 4
    RT = lambda st: 124 + 4 * st
    T = lambda st: 132 + 6 * st
    def rterms():
        for st in range(2):
            a('v_cvt_pk_bf16_f32 v%d, v%d, v%d' % (T(st), DEN(st), DEN(st) + 1))
        for st in range(2):
            a('v_lshlrev_b32 v%d, 16, v%d' % (T(st) + 2, T(st)))
            a('v_and_b32 v%d, 0xffff0000, v%d' % (T(st) + 3, T(st)))
        for st in range(2):
            a('v_add_f32 v%d, s68, v%d' % (T(st) + 2, T(st) + 2))
            a('v_add_f32 v%d, s68, v%d' % (T(st) + 3, T(st) + 3))
        for st in range(2):
            a('v_cvt_pk_bf16_f32 v%d, v%d, v%d' % (T(st), T(st) + 2, T(st) + 3))
        for st in range(2):
            a('v_lshlrev_b32 v%d, 16, v%d' % (T(st) + 2, T(st)))
            a('v_and_b32 v%d, 0xffff0000, v%d' % (T(st) + 3, T(st)))
        for st in range(2):
            a('v_rcp_f32 v%d, v%d' % (T(st) + 2, T(st) + 2))
            a('v_rcp_f32 v%d, v%d' % (T(st) + 3, T(st) + 3))
        a.nop(1)
        for term in range(3):
            for st in range(2):
                a('v_cvt_pk_bf16_f32 v%d, v%d, v%d' % (RT(st) + term, T(st) + 2, T(st) + 3))
            if term < 2:
                for st in range(2):
                    a('v_dot2_f32_bf16 v%d, v%d, s66, v%d' % (T(st) + 2, RT(st) + term, T(st) + 2))
                    a('v_dot2_f32_bf16 v%d, v%d, s67, v%d' % (T(st) + 3, RT(st) + term, T(st) + 3))
                a.nop(3)
        for st in range(2):
            a('v_mov_b32 v%d, 0' % (RT(st) + 3))
    f = 5
    for c in range(9):
        for i, k in enumerate(STEPS[c]):
            for st in range(2):
                cin = '0' if i == 0 else vr(NUM(c, st), 4)
                a('v_mfma_f32_16x16x32_bf16 %s, %s, %s, %s' % (vr(NUM(c, st), 4), ar(KVF[(c, k)], 4), vr(PQ(k, st), 4), cin))
        if c == 3:
            rterms()
    a('''
    s_lshl_b32 s8, s97, 2
    s_add_u32 s8, s8, s3
    s_lshl_b32 s8, s8, 6
    s_add_u32 s8, s8, s98
    s_lshl_b32 s8, s8, 2
    s_add_u32 s8, s8, 0x%x
    v_mov_b32 v12, 1
    v_mov_b32 v13, 0
    s_waitcnt vmcnt(0)
    s_mov_b64 exec, 1
    buffer_store_dword v12, v13, %s, s8 offen sc1
    s_mov_b64 exec, -1
    ''' % (WS_FLG + 512, sr(S_SWS3, 4)))
    OB = 16
    RR = lambda i: 100 + 4 * i
    TT = 116
    def proc(cc):
        for st in range(2):
            n = NUM(cc, st)
            a('v_cvt_pk_bf16_f32 v%d, v%d, v%d' % (n, n, n + 1))
            a('v_cvt_pk_bf16_f32 v%d, v%d, v%d' % (n + 2, n + 2, n + 3))
        for st in range(2):
            n = NUM(cc, st)
            t = TT + 4 * st
            a('v_lshlrev_b32 v%d, 16, v%d' % (t, n))
            a('v_and_b32 v%d, 0xffff0000, v%d' % (t + 1, n))
            a('v_lshlrev_b32 v%d, 16, v%d' % (t + 2, n + 2))
            a('v_and_b32 v%d, 0xffff0000, v%d' % (t + 3, n + 2))
        for st in range(2):
            t = TT + 4 * st
            r = RR((cc % 2) * 2 + st)
            a('v_pk_mul_f32 %s, %s, %s' % (vr(t, 2), vr(t, 2), vr(r, 2)))
            a('v_pk_mul_f32 %s, %s, %s' % (vr(t + 2, 2), vr(t + 2, 2), vr(r + 2, 2)))
        for st in range(2):
            t = TT + 4 * st
            o = OB + st * 18 + 2 * cc
            a('v_cvt_pk_bf16_f32 v%d, v%d, v%d' % (o, t, t + 1))
            a('v_cvt_pk_bf16_f32 v%d, v%d, v%d' % (o + 1, t + 2, t + 3))
    ACC2 = lambda j, st: 56 + (j * 2 + st) * 4 if False else 144 + (j * 2 + st) * 4
    for c in range(9):
        for st in range(2):
            a('v_mfma_f32_16x16x32_bf16 %s, %s, %s, 0' % (vr(RR((c % 2) * 2 + st), 4), vr(SELR + 4 * c, 4), vr(RT(st), 4)))
        if c >= 1:
            proc(c - 1)
    a.nop(4)
    proc(8)
    a.stamp(5)
    a('''
    s_lshl_b32 s9, s14, 2
    s_lshr_b32 s10, s4, 9
    s_add_u32 s9, s9, s10
    s_lshl_b32 s9, s9, 8
    s_add_u32 s9, s9, 0x%x
    ''' % (WS_FLG + 512))
    poll(a, 14, 's9', 64, 15, 'KM_PB')
    BTR = 56
    a('''
    s_lshl_b32 s8, s5, 12
    s_lshl_b32 s9, s4, 1
    s_add_u32 s8, s8, s9
    s_add_u32 s8, s8, 0x%x
    v_lshrrev_b32 v12, 2, v1
    v_lshlrev_b32 v12, 12, v12
    v_and_b32 v13, 3, v1
    v_lshl_add_u32 v12, v13, 4, v12
    s_lshl_b32 s9, s3, 17
    s_add_u32 s9, s9, s8
    buffer_load_dwordx4 %s, v12, %s, s9 offen sc1
    s_add_u32 s9, s9, 0x10000
    buffer_load_dwordx4 %s, v12, %s, s9 offen sc1
    s_add_u32 s9, s8, 0x80000
    buffer_load_dwordx4 %s, v12, %s, s9 offen sc1
    ''' % (WS_BT, vr(BTR, 4), sr(S_SWS3, 4), vr(BTR + 4, 4), sr(S_SWS3, 4), vr(BTR + 8, 4), sr(S_SWS3, 4)))
    lg.wait(('WO', 4))
    for k in range(5):
        for j in range(9):
            for st in range(2):
                cin = '0' if k == 0 else vr(ACC2(j, st), 4)
                if k < 4:
                    a('v_mfma_f32_16x16x32_bf16 %s, %s, %s, %s' % (vr(ACC2(j, st), 4), ar(WOF(j, k), 4), vr(OB + st * 18 + 4 * k, 4), cin))
                else:
                    a('v_mfma_f32_16x16x16_bf16 %s, %s, %s, %s' % (vr(ACC2(j, st), 4), ar(WOF(j, k), 2), vr(OB + st * 18 + 16, 2), cin))
    a.stamp(6)
    RS = 304
    a('''
    s_lshl_b32 s9, s3, 10
    v_add_u32 v13, s9, v3
    v_add_u32 v14, 0x9000, v13
    s_lshl_b32 s9, s3, 11
    s_add_u32 s9, s9, %d
    v_add_u32 v4, s9, v3
    v_add_u32 v5, %d, v3
    s_barrier
    ''' % (L_WO, L_WO + 8192))
    for t in range(18):
        j, st = t >> 1, t & 1
        if t < 9:
            a('ds_write_b128 v13, %s offset:%d' % (vr(ACC2(j, st), 4), t * 4096))
        else:
            a('ds_write_b128 v14, %s offset:%d' % (vr(ACC2(j, st), 4), (t - 9) * 4096))
    a('''
    s_waitcnt vmcnt(0)
    ds_write_b128 v4, %s
    ds_write_b128 v4, %s offset:1024
    ds_write_b128 v5, %s
    s_lshl_b32 s9, s3, 12
    v_add_u32 v13, s9, v3
    v_add_u32 v14, 0x8000, v13
    s_lshl_b32 s9, s12, 4
    v_add_u32 v15, s9, v10
    v_mul_u32_u24 v15, %d, v15
    v_lshl_add_u32 v15, v11, 3, v15
    s_lshl_b32 s9, s13, 5
    s_add_u32 s9, s9, %d
    v_add_u32 v15, s9, v15
    v_sub_f32 v%d, 1.0, v%d
    v_cvt_pk_bf16_f32 v%d, v%d, v%d
    v_lshlrev_b32 v%d, 16, v%d
    s_mul_i32 s8, s4, 1152
    s_lshl_b32 s9, s5, 1
    s_add_u32 s8, s8, s9
    s_mov_b32 s11, %d
    ''' % (vr(BTR, 4), vr(BTR + 4, 4), vr(BTR + 8, 4), RS, L_PQ, V_OMG, V_G, V_OMG, V_OMG, V_OMG, V_OMG, V_OMG, L_PQ))
    for i in range(3):
        a('''
        v_add_u32 v12, %d, v0
        v_mul_u32_u24 v4, 3641, v12
        v_lshrrev_b32 v4, 16, v4
        v_mul_u32_u24 v5, 18, v4
        v_sub_u32 v5, v12, v5
        v_lshlrev_b32 v5, 4, v5
        v_mul_u32_u24 v12, %d, v4
        v_add3_u32 v%d, v12, v5, s11
        v_mul_u32_u24 v4, 1152, v4
        v_add_u32 v%d, v4, v5
        ''' % (256 * i, RS, 228 + i, 232 + i))
    a('s_waitcnt lgkmcnt(0)')
    a('s_barrier')
    def reads(it):
        R = 16 + 24 * it
        for w in range(4):
            if it < 2:
                a('ds_read_b128 %s, v13 offset:%d' % (vr(R + 4 * w, 4), it * 16384 + w * 1024))
            else:
                a('ds_read_b128 %s, v14 offset:%d' % (vr(R + 4 * w, 4), (it - 2) * 16384 + w * 1024))
        a('ds_read_b64_tr_b16 %s, v%d offset:%d' % (vr(R + 16, 2), V_TRB, it * 2048))
    def comp(its):
        def each(fn):
            for it in its: fn(16 + 24 * it, it)
        each(lambda R, it: [a('v_pk_add_f32 %s, %s, %s' % (vr(R + o + h, 2), vr(R + o + h, 2), vr(R + o + 4 + h, 2))) for h in (0, 2) for o in (0, 8)])
        each(lambda R, it: [a('v_pk_add_f32 %s, %s, %s' % (vr(R + h, 2), vr(R + h, 2), vr(R + 8 + h, 2))) for h in (0, 2)])
        each(lambda R, it: [a('v_cvt_pk_bf16_f32 v%d, v%d, v%d' % (R + 4 + k, R + 2 * k, R + 2 * k + 1)) for k in range(2)])
        def unp(R, it):
            for k in range(2):
                a('v_lshlrev_b32 v%d, 16, v%d' % (R + 2 * k, R + 4 + k))
                a('v_and_b32 v%d, 0xffff0000, v%d' % (R + 2 * k + 1, R + 4 + k))
                a('v_lshlrev_b32 v%d, 16, v%d' % (R + 8 + 2 * k, R + 16 + k))
                a('v_and_b32 v%d, 0xffff0000, v%d' % (R + 8 + 2 * k + 1, R + 16 + k))
        each(unp)
        def mul(R, it):
            for h in (0, 2):
                a('v_pk_mul_f32 %s, %s, %s op_sel_hi:[1,0]' % (vr(R + h, 2), vr(R + h, 2), vr(V_G, 2)))
                a('v_pk_mul_f32 %s, %s, %s op_sel:[0,1] op_sel_hi:[1,1]' % (vr(R + 8 + h, 2), vr(R + 8 + h, 2), vr(V_G, 2)))
        each(mul)
        def cv(R, it):
            for k in range(2):
                a('v_cvt_pk_bf16_f32 v%d, v%d, v%d' % (R + 4 + k, R + 2 * k, R + 2 * k + 1))
                a('v_cvt_pk_bf16_f32 v%d, v%d, v%d' % (R + 6 + k, R + 8 + 2 * k, R + 8 + 2 * k + 1))
        each(cv)
        def unp2(R, it):
            for k in range(2):
                a('v_lshlrev_b32 v%d, 16, v%d' % (R + 2 * k, R + 4 + k))
                a('v_and_b32 v%d, 0xffff0000, v%d' % (R + 2 * k + 1, R + 4 + k))
                a('v_lshlrev_b32 v%d, 16, v%d' % (R + 8 + 2 * k, R + 6 + k))
                a('v_and_b32 v%d, 0xffff0000, v%d' % (R + 8 + 2 * k + 1, R + 6 + k))
        each(unp2)
        each(lambda R, it: [a('v_pk_add_f32 %s, %s, %s' % (vr(R + h, 2), vr(R + h, 2), vr(R + 8 + h, 2))) for h in (0, 2)])
        each(lambda R, it: [a('v_cvt_pk_bf16_f32 v%d, v%d, v%d' % (R + 18 + k, R + 2 * k, R + 2 * k + 1)) for k in range(2)])
        each(lambda R, it: a('ds_write_b64 v15, %s offset:%d' % (vr(R + 18, 2), it * 64)))
    for it in range(4):
        reads(it)
    a('s_waitcnt lgkmcnt(10)')
    comp([0, 1])
    a('s_waitcnt lgkmcnt(2)')
    comp([2, 3])
    a('s_cmp_ge_u32 s3, 2')
    a('s_cbranch_scc1 KM_S4')
    reads(4)
    a('s_waitcnt lgkmcnt(0)')
    comp([4])
    a.label('KM_S4')
    a('''
    s_waitcnt lgkmcnt(0)
    s_barrier
    ds_read_b128 v[16:19], v228
    ds_read_b128 v[20:23], v229
    s_waitcnt lgkmcnt(1)
    buffer_store_dwordx4 v[16:19], v232, %s, s8 offen
    s_waitcnt lgkmcnt(0)
    buffer_store_dwordx4 v[20:23], v233, %s, s8 offen
    s_cmp_lg_u32 s3, 0
    s_cbranch_scc1 KM_FIN
    ds_read_b128 v[24:27], v230
    s_waitcnt lgkmcnt(0)
    buffer_store_dwordx4 v[24:27], v234, %s, s8 offen
    ''' % ((sr(S_SOUT, 4),) * 3))
    a.label('KM_FIN')
    a.endpgm()
    a.label('KM_EXIT')
    a('s_endpgm')
```

```python
import sys
from asmlib import *
import gen_k1
HEADER = open('gated_mix__linear_attn_block__ssm_conv_s4__prompt.s.ref').read().split('; Override launch')[0]
def build(kernels, diag=False):
    a = Asm()
    a.diag = diag
    launches = []
    descs = []
    if 1 in kernels:
        gen_k1.gen_k1(a)
        launches.append('; @launch kernel=k1_kernel grid=(%d,1,1) block=(256,1,1) lds=%d' % (gen_k1.K1_GRID, gen_k1.K1_LDS))
        descs.append(kernel_desc('k1_kernel', 256, 100))
    if 2 in kernels:
        import gen_k2
        gen_k2.gen_k2(a)
        launches.append('; @launch kernel=k2_kernel grid=(%d,1,1) block=(256,1,1) lds=%d' % (gen_k2.K2_GRID, gen_k2.K2_LDS))
        descs.append(kernel_desc('k2_kernel', gen_k2.K2_VGPR, 100))
    if 3 in kernels:
        import gen_k3
        gen_k3.gen_k3(a)
        launches.append('; @launch kernel=k3_kernel grid=(%d,1,1) block=(256,1,1) lds=%d' % (gen_k3.K3_GRID, gen_k3.K3_LDS))
        descs.append(kernel_desc('k3_kernel', gen_k3.K3_VGPR, 100, gen_k3.K3_ACCUM))
    if 4 in kernels:
        import gen_km
        gen_km.gen_km(a)
        launches.append('; @launch kernel=km_kernel grid=(%d,1,1) block=(256,1,1) lds=%d' % (gen_km.KM_GRID, gen_km.KM_LDS))
        descs.append(kernel_desc('km_kernel', gen_km.KM_VGPR, 102, gen_km.KM_ACCUM))
    txt = HEADER + '\n'.join(launches) + '\n.amdgcn_target "amdgcn-amd-amdhsa--gfx950"\n.text\n' + a.text() + ''.join(descs)
    return txt
if __name__ == '__main__':
    ks = [int(c) for c in sys.argv[1]]
    out = sys.argv[2]
    open(out, 'w').write(build(ks, len(sys.argv) > 3))
```

```python
from asmlib import *
import math

WS_PQ = 0x000000
TS = 4352
WS_XT = 0x240000
WS_BT = 0x4B0000
WS_KF = 0x720000
KF_STRIDE = 4608
WS_KVP = 0x950000
KVP_REC = 13 * 1024 + 512
WS_KVF = 0xB00000
WS_SEL = 0xB18000
WS_G = 0xB1C000
WS_PM = 0xB20000
WS_FLG = 0xB34000
WS_GO1 = 0xB40000
WS_GO2 = 0xB50000
WS_GO3 = 0xB60000
WS_END = 0xB70000

N_GEMM = 192
N_PREP = 288
K1_GRID = N_GEMM + N_PREP
K1_LDS = 81920

import os
TOUCH = int(os.environ.get('TOUCH', '1'))
TOUCH_FLAGS = os.environ.get('TOUCH_FLAGS', '')
WFLAGS = os.environ.get('WFLAGS', '')
AFLAGS = os.environ.get('AFLAGS', '')
NOMEM = int(os.environ.get('NOMEM', '0'))
NOPREP = int(os.environ.get('NOPREP', '0'))
NOXS = int(os.environ.get('NOXS', '0'))
PRO = int(os.environ.get('PRO', '2'))
GPRIO = int(os.environ.get('GPRIO', '3'))
PPRIO = int(os.environ.get('PPRIO', '0'))
S3 = int(os.environ.get('S3', '0'))
NOX = int(os.environ.get('NOX', '0'))
NOW = int(os.environ.get('NOW', '0'))
CPRIO = int(os.environ.get('CPRIO', '0'))
LOG2E = 1.4426950408889634

P_X, P_W, P_WO, P_BU, P_ARE, P_AIM, P_BRE, P_BIM = 16, 18, 20, 22, 24, 26, 28, 30
P_CRE, P_CIM, P_LDT, P_DSK, P_GW, P_OUT, P_DBG, P_WS = 32, 34, 36, 38, 40, 42, 44, 46


class Cnt:
    def __init__(self, a, name, cap):
        self.a, self.name, self.cap = a, name, cap
        self.ops = []
    def issue(self, tag):
        self.ops.append(tag)
    def wait(self, tag):
        idx = max(i for i, t in enumerate(self.ops) if t == tag) if tag in self.ops else None
        if idx is None:
            return
        n = len(self.ops) - 1 - idx
        n = min(n, self.cap)
        self.a('s_waitcnt %s(%d)' % (self.name, n))
        self.ops = self.ops[len(self.ops) - n:] if n > 0 else []
    def wait_all(self):
        self.a('s_waitcnt %s(0)' % self.name)
        self.ops = []


def load_kernargs(a):
    a('s_load_dwordx16 s[16:31], s[0:1], 0')
    a('s_load_dwordx16 s[32:47], s[0:1], 64')


def phi_batch(a, pairs, tmp, s_l2e, s_eps, keep_raw=None):
    n = len(pairs)
    H = lambda i: (keep_raw[i] if keep_raw else tmp + 6 * i)
    T = lambda i: tmp + 6 * i + 2
    E = lambda i: tmp + 6 * i + 4
    for i, (a0, a1, d) in enumerate(pairs):
        a('v_cvt_pk_bf16_f32 v%d, v%d, v%d' % (H(i), a0, a1))
    for i in range(n):
        a('v_lshlrev_b32 v%d, 16, v%d' % (T(i), H(i)))
        a('v_and_b32 v%d, 0xffff0000, v%d' % (T(i) + 1, H(i)))
    for i in range(n):
        a('v_pk_mul_f32 %s, %s, %s' % (vr(E(i), 2), vr(T(i), 2), sr(s_l2e, 2)))
    for i in range(n):
        a('v_exp_f32_e64 v%d, v%d clamp' % (E(i), E(i)))
        a('v_exp_f32_e64 v%d, v%d clamp' % (E(i) + 1, E(i) + 1))
    for i in range(n):
        a('v_max_f32 v%d, 0, v%d' % (T(i), T(i)))
        a('v_max_f32 v%d, 0, v%d' % (T(i) + 1, T(i) + 1))
    for i in range(n):
        a('v_pk_add_f32 %s, %s, %s' % (vr(E(i), 2), vr(E(i), 2), vr(T(i), 2)))
    for i in range(n):
        a('v_cvt_pk_bf16_f32 v%d, v%d, v%d' % (E(i), E(i), E(i) + 1))
    for i in range(n):
        a('v_lshlrev_b32 v%d, 16, v%d' % (T(i), E(i)))
        a('v_and_b32 v%d, 0xffff0000, v%d' % (T(i) + 1, E(i)))
    for i in range(n):
        a('v_pk_add_f32 %s, %s, %s' % (vr(T(i), 2), vr(T(i), 2), sr(s_eps, 2)))
    for i, (a0, a1, d) in enumerate(pairs):
        a('v_cvt_pk_bf16_f32 v%d, v%d, v%d' % (d, T(i), T(i) + 1))


V_XOFF, V_SW, V_DMA, V_TR, V_TR2, V_SR0, V_SR1 = 2, 3, 4, 9, 240, 241, 242
V_XR, V_AF, V_B, V_ACC = 16, 96, 128, 168
V_A = 16
V_T = 96
SLOT = 18432
SCR = 4 * SLOT
S_SX, S_SW, S_SWS = 48, 52, 56
PAIRS = [(0, 4), (0, 5), (1, 4), (1, 5), (1, 6), (2, 5), (2, 6), (2, 7), (3, 6), (3, 7), (3, 8), (4, 7), (4, 8)]


STEPS = {0: [0], 1: [0, 1], 2: [0, 1], 3: [1, 2], 4: [1, 2], 5: [2, 3], 6: [2, 3], 7: [3, 4], 8: [3, 4]}
FRAGS = [('Z', k) for k in range(5)] + [(c, k) for c in range(9) for k in STEPS[c]]


def reduce_task(a):
    cb = sum(((15 if c == 'Z' else c) << (4 * f)) for f, (c, k) in enumerate(FRAGS))
    kb = sum((k << (4 * f)) for f, (c, k) in enumerate(FRAGS))
    a('''
    s_mul_i32 s64, s15, 94
    s_lshr_b32 s64, s64, 11
    s_mul_i32 s65, s64, 22
    s_sub_u32 s65, s15, s65
    s_mov_b32 s66, 0x%x
    s_mov_b32 s67, 0x%x
    s_mov_b32 s68, 0x%x
    s_mov_b32 s69, 0x%x
    s_cmp_ge_u32 s65, 16
    s_cselect_b32 s66, 0x%x, s66
    s_cselect_b32 s68, 0x%x, s68
    s_and_b32 s70, s65, 15
    s_lshl_b32 s70, s70, 2
    s_lshr_b64 s[66:67], s[66:67], s70
    s_lshr_b64 s[68:69], s[68:69], s70
    s_and_b32 s66, s66, 15
    s_and_b32 s68, s68, 15
    s_lshl_b32 s70, s68, 5
    v_lshl_add_u32 v16, v11, 3, s70
    s_cmp_eq_u32 s66, 15
    s_cbranch_scc1 K1_RZ
    s_lshl_b32 s70, s66, 4
    v_add_u32 v17, s70, v10
    v_mul_u32_u24 v18, 57, v17
    v_lshrrev_b32 v18, 10, v18
    v_lshrrev_b32 v19, 2, v18
    v_mul_u32_u24 v20, 72, v19
    v_sub_u32 v21, v17, v20
    v_add_u32 v21, 72, v21
    v_sub_u32 v22, v16, v20
    v_lshrrev_b32 v23, 4, v22
    v_lshrrev_b32 v24, 4, v21
    v_lshl_add_u32 v23, v23, 1, v24
    v_subrev_u32 v23, 4, v23
    v_and_b32 v24, 15, v21
    v_and_b32 v25, 12, v22
    v_lshl_add_u32 v24, v25, 2, v24
    v_lshlrev_b32 v24, 4, v24
    v_lshl_add_u32 v24, v23, 10, v24
    v_add_u32 v25, 256, v24
    s_mov_b64 s[74:75], -1
    s_branch K1_RC
    ''' % (cb & 0xffffffff, (cb >> 32) & 0xffffffff, kb & 0xffffffff, (kb >> 32) & 0xffffffff, cb >> 64, kb >> 64))
    a.label('K1_RZ')
    a('''
    v_lshrrev_b32 v18, 2, v10
    v_lshlrev_b32 v18, 1, v18
    v_and_b32 v19, 1, v10
    v_add_u32 v18, v18, v19
    v_and_b32 v19, 2, v10
    v_cmp_eq_u32 s[74:75], 0, v19
    v_lshrrev_b32 v19, 2, v18
    v_mul_u32_u24 v20, 72, v19
    v_sub_u32 v22, v16, v20
    v_lshlrev_b32 v24, 2, v22
    v_add_u32 v24, 13312, v24
    v_add_u32 v25, 16, v24
    ''')
    a.label('K1_RC')
    a('''
    v_mul_u32_u24 v26, 18, v18
    v_sub_u32 v26, v26, v16
    v_add_u32 v27, 17, v26
    v_cmp_gt_u32 vcc, 25, v27
    s_and_b64 s[74:75], s[74:75], vcc
    s_lshl_b32 s70, s64, 1
    v_add_u32 v19, s70, v19
    v_mul_u32_u24 v19, %d, v19
    v_add_u32 v24, v24, v19
    v_add_u32 v25, v25, v19
    v_mov_b32 v27, 0x40000000
    v_cndmask_b32 v24, v27, v24, s[74:75]
    v_cndmask_b32 v25, v27, v25, s[74:75]
    s_mul_i32 s70, s3, %d
    s_add_u32 s70, s70, 0x%x
    ''' % (KVP_REC, 32 * KVP_REC, WS_KVP))
    R = 32
    for rb in range(4):
        a('buffer_load_dwordx4 %s, v24, %s, s70 offen sc1' % (vr(R + 8 * rb, 4), sr(S_SWS, 4)))
        a('buffer_load_dwordx4 %s, v25, %s, s70 offen sc1' % (vr(R + 8 * rb + 4, 4), sr(S_SWS, 4)))
        if rb < 3:
            a('s_add_u32 s70, s70, %d' % (8 * KVP_REC))
    a('''
    s_lshl_b32 s70, s15, 10
    s_add_u32 s70, s70, 0x%x
    s_lshl_b32 s71, s3, 11
    s_add_u32 s71, s71, 1024
    v_add_u32 v2, s71, v3
    s_waitcnt vmcnt(0)
    ''' % WS_KVF)
    for st in (2, 1):
        for i in range(st):
            for h in range(0, 8, 2):
                a('v_pk_add_f32 %s, %s, %s' % (vr(R + 8 * i + h, 2), vr(R + 8 * i + h, 2), vr(R + 8 * (i + st) + h, 2)))
    a('ds_write_b128 v2, %s' % vr(R, 4))
    a('ds_write_b128 v2, %s offset:1024' % vr(R + 4, 4))
    a('s_waitcnt lgkmcnt(0)')
    a('s_barrier')
    a('s_cmp_lg_u32 s3, 0')
    a('s_cbranch_scc1 K1_KVEXIT')
    for w in range(1, 4):
        a('ds_read_b128 %s, v2 offset:%d' % (vr(R + 8 * w, 4), 2048 * w))
        a('ds_read_b128 %s, v2 offset:%d' % (vr(R + 8 * w + 4, 4), 2048 * w + 1024))
    a('s_waitcnt lgkmcnt(0)')
    for st in (2, 1):
        for i in range(st):
            for h in range(0, 8, 2):
                a('v_pk_add_f32 %s, %s, %s' % (vr(R + 8 * i + h, 2), vr(R + 8 * i + h, 2), vr(R + 8 * (i + st) + h, 2)))
    for j in range(8):
        a('v_subrev_u32 v27, v26, %d' % j if False else 'v_sub_u32 v27, %d, v26' % j)
        a('v_cmp_gt_u32 vcc, 18, v27')
        a('s_and_b64 vcc, vcc, s[74:75]')
        a('s_nop 0')
        a('v_cndmask_b32 v%d, 0, v%d, vcc' % (R + j, R + j))
    for k in range(4):
        a('v_cvt_pk_bf16_f32 v%d, v%d, v%d' % (28 + k, R + 2 * k, R + 2 * k + 1))
    a('buffer_store_dwordx4 v[28:31], v3, %s, s70 offen' % sr(S_SWS, 4))


def gemm_main(a, qtype):
    vm = Cnt(a, 'vmcnt', 63)
    lg = Cnt(a, 'lgkmcnt', 15)
    side = []
    wcount = {}
    xcount = {}

    def dma_ops(c):
        if NOMEM or NOW: return []
        slot = (c % 4) * SLOT
        ops = []
        def one(i):
            a('s_add_u32 m0, s8, 0x%x' % (slot + i * 1024))
            a('s_mov_b32 s10, 0x%x' % (c * 64 * 3456))
            a('buffer_load_dwordx4 v%d, %s, s10 offen lds' % (V_DMA + i, sr(S_SW, 4)))
            vm.issue(('W', c)); wcount[c] = wcount.get(c, 0) + 1
        def last():
            a('s_add_u32 m0, s9, 0x%x' % (slot + 16384))
            a('s_mov_b32 exec_hi, 0')
            a('buffer_load_dwordx4 v%d, %s, s10 offen lds' % (V_DMA + 4, sr(S_SW, 4)))
            a('s_mov_b32 exec_hi, -1')
            vm.issue(('W', c)); wcount[c] = wcount.get(c, 0) + 1
        for i in range(4):
            ops.append(lambda i=i: one(i))
        ops.append(last)
        return ops

    def x_ops(c):
        if NOMEM or NOX: return []
        r = V_XR + (c % 5) * 16
        def one(q):
            a('buffer_load_dwordx4 %s, v%d, %s, s%d offen offset:%d' % (vr(r + 4 * q, 4), V_XOFF, sr(S_SX, 4), 64 + q, c * 128))
            vm.issue(('X', c)); xcount[c] = xcount.get(c, 0) + 1
        return [lambda q=q: one(q) for q in range(4)]

    def flush(tagc=None):
        while side:
            side.pop(0)()

    def xstage(c):
        if NOXS: return
        while not NOMEM and not NOX and c >= 2 and xcount.get(c, 0) < 4:
            side.pop(0)()
        vm.wait(('X', c))
        r = V_XR + (c % 5) * 16
        for rt in range(2):
            for q in range(2):
                a('ds_write_b128 v%d, %s offset:%d' % (V_SW, vr(r + 4 * (2 * rt + q), 4), 1024 * q))
                lg.issue(('XW', c))
            for kk in range(2):
                a('ds_read_b128 %s, v%d' % (vr(V_AF + (c % 2) * 16 + (kk * 2 + rt) * 4, 4), V_SR0 + kk))
                lg.issue(('A', c))

    def bread(k, j):
        c, kk = k // 2, k % 2
        r = V_B + ((k * 9 + j) % 10) * 4
        for hh in range(2):
            off = (c % 2) * SLOT + (8 * hh + 32 * kk) * 288 + 32 * j
            a('ds_read_b64_tr_b16 %s, v%d offset:%d' % (vr(r + 2 * hh, 2), V_TR if (c % 4) < 2 else V_TR2, off))
            lg.issue(('B', k, j))

    for c in range(PRO):
        for op in dma_ops(c): op()
        if c >= 2:
            for op in x_ops(c): op()
    if not S3: a.stamp(1)
    vm.ops = [('X', 0)] * 4 + [('X', 1)] * 4 + vm.ops
    xstage(0)
    vm.wait(('W', 0))
    a('s_barrier')
    if not S3: a.stamp(2)
    for c in range(PRO, 4):
        side.extend(dma_ops(c)); side.extend(x_ops(c))
    side.extend(x_ops(4)); side.extend(x_ops(5))
    wq = set(range(4)); xq = set(range(6))
    for j in range(9):
        bread(0, j)
    for k in range(18):
        c, kk = k // 2, k % 2
        if kk == 1 and c + 1 <= 8:
            while not NOMEM and not NOW and wcount.get(c + 1, 0) < 5:
                side.pop(0)()
            vm.wait(('W', c + 1))
            a('s_barrier')
            if c >= 1 and c + 3 <= 8:
                side.extend(dma_ops(c + 3))
        if S3:
            if k % 3 == 0 and k: a.stamp(k // 3)
        else:
            if k == 6: a.stamp(3)
            if k == 12: a.stamp(4)
        lg.wait(('A', c))
        for j in range(9):
            if j % 3 == 0:
                lg.wait(('B', k, j + 2))
            rb = V_B + ((k * 9 + j) % 10) * 4
            for rt in range(2):
                ra = V_AF + (c % 2) * 16 + (kk * 2 + rt) * 4
                acc = V_ACC + (rt * 9 + j) * 4
                cin = '0' if k == 0 else vr(acc, 4)
                if qtype:
                    a('v_mfma_f32_16x16x32_bf16 %s, %s, %s, %s' % (vr(acc, 4), vr(rb, 4), vr(ra, 4), cin))
                else:
                    a('v_mfma_f32_16x16x32_bf16 %s, %s, %s, %s' % (vr(acc, 4), vr(ra, 4), vr(rb, 4), cin))
            if k + 1 < 18:
                bread(k + 1, j)
            if side:
                side.pop(0)()
            if kk == 0 and j == 4 and c + 1 <= 8:
                xstage(c + 1)
                if c + 6 <= 8:
                    side.extend(x_ops(c + 6))
    assert not side
    a.stamp(6 if S3 else 5)
    a.nop(10)


def gemm_part(a):
    a.label('K1_GEMM')
    a('s_setprio %d' % GPRIO)
    a('''
    s_and_b32 s4, s97, 7
    s_lshr_b32 s5, s97, 3
    s_and_b32 s6, s4, 3
    s_lshl_b32 s6, s6, 2
    s_and_b32 s7, s5, 3
    s_add_u32 s6, s6, s7
    s_lshr_b32 s4, s4, 2
    s_mul_i32 s4, s4, 6
    s_lshr_b32 s5, s5, 2
    s_add_u32 s7, s4, s5
    ''')
    a('''
    s_mul_i32 s4, s7, 11
    s_lshr_b32 s4, s4, 5
    s_mul_i32 s5, s4, 3
    s_sub_u32 s5, s7, s5
    s_sub_u32 s11, s7, s4
    s_sub_u32 s11, s11, 1
    ''')
    a('''
    s_mul_i32 s12, s4, 288
    s_mul_i32 s13, s11, 144
    s_add_u32 s13, s13, 1152
    s_cmp_eq_u32 s5, 0
    s_cselect_b32 s12, s12, s13
    s_cselect_b32 s13, 0, 1008
    s_lshl_b32 s8, s3, 12
    s_lshl_b32 s9, s3, 9
    ''')
    a('''
    v_and_b32 v10, 15, v1
    v_lshrrev_b32 v11, 4, v1
    ''')
    a('''
    s_lshl_b32 s14, s6, 7
    s_lshl_b32 s15, s3, 5
    s_add_u32 s14, s14, s15
    v_lshrrev_b32 v13, 3, v1
    v_and_b32 v14, 7, v1
    v_add_u32 v12, s14, v13
    v_mul_u32_u24 v12, 1152, v12
    v_lshl_add_u32 v2, v14, 4, v12
    s_mov_b32 s64, 0
    s_mov_b32 s65, 9216
    s_mov_b32 s66, 18432
    s_mov_b32 s67, 27648
    s_lshl_b32 s15, s3, 11
    s_add_u32 s15, s15, %d
    v_xor_b32 v14, v14, v13
    v_lshlrev_b32 v14, 4, v14
    v_lshl_add_u32 v14, v13, 7, v14
    v_add_u32 v3, s15, v14
    v_and_b32 v13, 7, v10
    v_xor_b32 v13, v13, v11
    v_lshlrev_b32 v14, 7, v10
    v_add_u32 v14, s15, v14
    v_lshl_add_u32 v241, v13, 4, v14
    v_xor_b32 v13, 4, v13
    v_lshl_add_u32 v242, v13, 4, v14
    ''' % SCR)
    a('s_waitcnt lgkmcnt(0)')
    srd(a, S_SX, P_X, 2048 * 576 * 2)
    if not NOMEM:
        for c in range(2):
            for q in range(4):
                a('buffer_load_dwordx4 %s, v%d, %s, s%d offen offset:%d' % (vr(V_XR + c * 16 + 4 * q, 4), V_XOFF, sr(S_SX, 4), 64 + q, c * 128))
    for i in range(5):
        if i < 4:
            a('s_lshl_b32 s15, s3, 8')
            a('s_add_u32 s15, s15, %d' % (64 * i))
        else:
            a('s_lshl_b32 s15, s3, 5')
            a('s_add_u32 s15, s15, 1024')
        a('''
        v_add_u32 v12, s15, v1
        v_mul_u32_u24 v13, 3641, v12
        v_lshrrev_b32 v13, 16, v13
        v_mul_u32_u24 v14, 18, v13
        v_sub_u32 v14, v12, v14
        v_and_b32 v12, 0x33, v13
        v_and_b32 v15, 4, v13
        v_lshl_or_b32 v12, v15, 1, v12
        v_and_b32 v15, 8, v13
        v_lshrrev_b32 v15, 1, v15
        v_or_b32 v12, v12, v15
        v_mul_u32_u24 v12, 3456, v12
        v_lshl_add_u32 v12, v14, 4, v12
        v_add_u32 v12, s12, v12
        v_cmp_le_u32 vcc, 9, v14
        v_mov_b32 v15, s13
        s_nop 0
        v_cndmask_b32 v15, 0, v15, vcc
        v_add_u32 v%d, v12, v15
        ''' % (V_DMA + i))
    a('''
    v_lshrrev_b32 v12, 2, v10
    v_and_b32 v13, 1, v11
    v_lshl_add_u32 v12, v13, 2, v12
    v_lshrrev_b32 v13, 1, v11
    v_lshl_add_u32 v12, v13, 4, v12
    v_mul_u32_u24 v12, 288, v12
    v_and_b32 v13, 3, v1
    v_lshl_add_u32 v9, v13, 3, v12
    v_add_u32 v240, 36864, v9
    ''')
    srd(a, S_SW, P_W, 576 * 1728 * 2)
    srd(a, S_SWS, P_WS, WS_END)
    a('s_mov_b32 s60, 0x%x' % f32bits(LOG2E))
    a('s_mov_b32 s61, 0x%x' % f32bits(LOG2E))
    a('s_mov_b32 s62, 0x%x' % f32bits(1e-6))
    a('s_mov_b32 s63, 0x%x' % f32bits(1e-6))
    a('s_cmp_eq_u32 s5, 0')
    a('s_cbranch_scc0 K1_GEMM_KV')

    gemm_main(a, True)
    P = lambda rt, j: V_A + (rt * 9 + j) * 2
    allp = []
    for rt in range(2):
        for j in range(9):
            acc = V_ACC + (rt * 9 + j) * 4
            allp.append((acc, acc + 1, P(rt, j)))
            allp.append((acc + 2, acc + 3, P(rt, j) + 1))
    RS = 304
    a('''
    s_mul_i32 s15, s3, 9728
    v_mul_u32_u24 v12, %d, v10
    v_lshl_add_u32 v12, v11, 3, v12
    v_add_u32 v12, s15, v12
    s_mul_i32 s64, s14, 1152
    s_add_u32 s64, s64, s12
    s_barrier
    ''' % RS)
    for b in range(0, 36, 6):
        phi_batch(a, allp[b:b + 6], V_T, 60, 62)
        for t in range(b // 2, b // 2 + 3):
            rt, j = t // 9, t % 9
            a('ds_write_b64 v12, %s offset:%d' % (vr(P(rt, j), 2), rt * 16 * RS + 32 * j))
    if not S3: a.stamp(6)
    for i in range(9):
        a('''
        v_add_u32 v13, %d, v1
        v_mul_u32_u24 v14, 3641, v13
        v_lshrrev_b32 v14, 16, v14
        v_mul_u32_u24 v15, 18, v14
        v_sub_u32 v15, v13, v15
        v_lshlrev_b32 v15, 4, v15
        v_mul_u32_u24 v13, %d, v14
        v_add3_u32 v13, v13, v15, s15
        v_mul_u32_u24 v14, 1152, v14
        v_add_u32 v%d, v14, v15
        ds_read_b128 %s, v13
        ''' % (64 * i, RS, V_T + i, vr(V_ACC + 4 * i, 4)))
    for i in range(9):
        a('s_waitcnt lgkmcnt(%d)' % (8 - i))
        a('buffer_store_dwordx4 %s, v%d, %s, s64 offen' % (vr(V_ACC + 4 * i, 4), V_T + i, sr(S_SWS, 4)))
    a.endpgm()

    a.label('K1_GEMM_KV')
    gemm_main(a, False)
    a('''
    s_lshl_b32 s98, s6, 1
    s_and_b32 s99, s11, 1
    s_add_u32 s98, s98, s99
    s_lshr_b32 s99, s11, 1
    s_lshl_b32 s99, s99, 5
    s_add_u32 s99, s99, s98
    s_lshl_b32 s99, s99, 7
    s_add_u32 s99, s99, 0x%x
    v_mov_b32 v12, 0
    s_mov_b64 exec, 1
    buffer_store_dword v12, v12, %s, s99 offen sc1
    s_mov_b64 exec, -1
    ''' % (WS_GO3, sr(S_SWS, 4)))
    O = lambda j: V_A + 4 * j
    pk = []
    for j in range(5):
        for rt in range(2):
            acc = V_ACC + (rt * 9 + j) * 4
            pk.append((acc, acc + 1, O(j) + 2 * rt))
            pk.append((acc + 2, acc + 3, O(j) + 2 * rt + 1))
    phi_batch(a, pk[0:8], V_T, 60, 62)
    phi_batch(a, pk[8:16], V_T, 60, 62)
    RAW = V_A + 40
    phi_batch(a, pk[16:20], V_T, 60, 62, keep_raw=[RAW + i for i in range(4)])
    a('v_cmp_gt_u32 vcc, 8, v10')
    for j in range(5, 9):
        for rt in range(2):
            acc = V_ACC + (rt * 9 + j) * 4
            a('v_cvt_pk_bf16_f32 v%d, v%d, v%d' % (O(j) + 2 * rt, acc, acc + 1))
            a('v_cvt_pk_bf16_f32 v%d, v%d, v%d' % (O(j) + 2 * rt + 1, acc + 2, acc + 3))
    for i in range(4):
        a('v_cndmask_b32 v%d, v%d, v%d, vcc' % (O(4) + i, RAW + i, O(4) + i))
    a.nop(2)
    pairs = PAIRS
    KV = lambda p: V_ACC + 4 * p
    for p, (ta, tb) in enumerate(pairs):
        a('v_mfma_f32_16x16x32_bf16 %s, %s, %s, 0' % (vr(KV(p), 4), vr(O(ta), 4), vr(O(tb), 4)))
    a('s_mov_b32 s64, 0x3f803f80')
    Z = V_T
    for t in range(5):
        a('v_dot2_f32_bf16 v%d, v%d, s64, 0' % (Z + t, O(t)))
    for i in range(1, 4):
        for t in range(5):
            a('v_dot2_f32_bf16 v%d, v%d, s64, v%d' % (Z + t, O(t) + i, Z + t))
    if not S3: a.stamp(6)
    a('s_barrier')
    a('''
    s_lshl_b32 s15, s3, 10
    v_lshlrev_b32 v12, 4, v1
    v_add_u32 v13, s15, v12
    ''')
    for p in range(13):
        a('ds_write_b128 v13, %s offset:%d' % (vr(KV(p), 4), p * 4096))
    a('''
    s_lshl_b32 s15, s3, 2
    v_add_u32 v14, s15, v11
    v_mul_u32_u24 v14, 320, v14
    v_lshl_add_u32 v14, v10, 2, v14
    ''')
    for t in range(5):
        a('ds_write_b32 v14, v%d offset:%d' % (Z + t, 53248 + 64 * t))
    a('s_waitcnt lgkmcnt(0)')
    a('s_barrier')
    a('s_lshl_b32 s68, s6, 3')
    a('s_add_u32 s68, s68, s11')
    a('s_mul_i32 s68, s68, %d' % KVP_REC)
    a('s_add_u32 s68, s68, 0x%x' % WS_KVP)
    a('s_lshl_b32 s15, s3, 12')
    a('v_add_u32 v13, s15, v12')
    a('s_lshl_b32 s15, s3, 10')
    a('v_add_u32 v14, s15, v12')
    done = a.newlabel('K1_KVZ')
    for it in range(3):
        R = V_A + 16 * it
        for w in range(4):
            a('ds_read_b128 %s, v13 offset:%d' % (vr(R + 4 * w, 4), it * 16384 + w * 1024))
    def red_store(it):
        R = V_A + 16 * it
        a('v_pk_add_f32 %s, %s, %s' % (vr(R, 2), vr(R, 2), vr(R + 4, 2)))
        a('v_pk_add_f32 %s, %s, %s' % (vr(R + 2, 2), vr(R + 2, 2), vr(R + 6, 2)))
        a('v_pk_add_f32 %s, %s, %s' % (vr(R + 8, 2), vr(R + 8, 2), vr(R + 12, 2)))
        a('v_pk_add_f32 %s, %s, %s' % (vr(R + 10, 2), vr(R + 10, 2), vr(R + 14, 2)))
        a('v_pk_add_f32 %s, %s, %s' % (vr(R, 2), vr(R, 2), vr(R + 8, 2)))
        a('v_pk_add_f32 %s, %s, %s' % (vr(R + 2, 2), vr(R + 2, 2), vr(R + 10, 2)))
        a('s_add_u32 s69, s68, %d' % (4096 * it))
        a('buffer_store_dwordx4 %s, v14, %s, s69 offen sc1' % (vr(R, 4), sr(S_SWS, 4)))
    for it in range(3):
        a('s_waitcnt lgkmcnt(%d)' % (8 - 4 * it))
        red_store(it)
    a('s_cmp_lg_u32 s3, 0')
    a('s_cbranch_scc1 %s' % done)
    for w in range(4):
        a('ds_read_b128 %s, v13 offset:%d' % (vr(V_A + 48 + 4 * w, 4), 3 * 16384 + w * 1024))
    a('s_waitcnt lgkmcnt(0)')
    red_store(3)
    a('s_branch K1_KVFIN')
    a.label(done)
    a('s_cmp_lt_u32 s3, 2')
    fin = a.newlabel('K1_KVEND')
    a('s_cbranch_scc1 %s' % fin)
    a('''
    v_subrev_u32 v14, 128, v0
    v_cmp_gt_u32 vcc, 80, v14
    s_and_saveexec_b64 s[74:75], vcc
    s_cbranch_execz %s
    v_lshlrev_b32 v15, 2, v14
    ''' % fin)
    for i in range(16):
        a('ds_read_b32 v%d, v15 offset:%d' % (V_T + i, 53248 + 320 * i))
    a('s_add_u32 s69, s68, 13312')
    a('s_waitcnt lgkmcnt(0)')
    for st in (8, 4, 2, 1):
        for i in range(st):
            a('v_add_f32 v%d, v%d, v%d' % (V_T + i, V_T + i, V_T + i + st))
    a('buffer_store_dword v%d, v15, %s, s69 offen sc1' % (V_T, sr(S_SWS, 4)))
    a.label(fin)
    a.label('K1_KVFIN')
    srd(a, 48, P_DBG, 256)
    a('''
    s_mov_b64 exec, -1
    s_waitcnt vmcnt(0)
    s_barrier
    v_mov_b32 v3, 0
    s_cmp_lg_u32 s3, 0
    s_cbranch_scc1 K1_KVW
    v_mov_b32 v2, 1
    s_lshr_b32 s12, s11, 1
    s_lshl_b32 s12, s12, 4
    s_add_u32 s12, s12, 160
    s_mov_b64 exec, 1
    buffer_atomic_add v2, v3, s[48:51], s12 offen sc0 sc1
    s_waitcnt vmcnt(0)
    v_readfirstlane_b32 s12, v2
    s_mov_b64 exec, -1
    s_cmp_lg_u32 s12, 31
    s_cbranch_scc1 K1_KVP
    v_mov_b32 v2, 1
    v_lshlrev_b32 v4, 7, v1
    s_lshr_b32 s12, s11, 1
    s_lshl_b32 s12, s12, 12
    s_add_u32 s12, s12, 0x%x
    s_mov_b32 exec_hi, 0
    buffer_store_dword v2, v4, %s, s12 offen sc1
    s_mov_b32 exec_hi, -1
    s_branch K1_KVW
    ''' % (WS_GO3, sr(S_SWS, 4)))
    a.label('K1_KVP')
    a('''
    s_cmp_ge_u32 s98, 22
    s_cbranch_scc1 K1_KVEXIT
    s_mov_b32 s72, 0
    s_mov_b64 exec, 1
    ''')
    a.label('K1_KVPL')
    a('''
    buffer_load_dword v2, v3, %s, s99 offen sc1
    s_add_u32 s72, s72, 1
    s_waitcnt vmcnt(0)
    v_readfirstlane_b32 s12, v2
    s_cmp_eq_u32 s12, 1
    s_cbranch_scc1 K1_KVW
    s_cmp_gt_u32 s72, 0x8000
    s_cbranch_scc1 K1_KVW
    s_sleep 2
    s_branch K1_KVPL
    ''' % sr(S_SWS, 4))
    a.label('K1_KVW')
    a('''
    s_mov_b64 exec, -1
    s_cmp_ge_u32 s98, 22
    s_cbranch_scc1 K1_KVEXIT
    s_barrier
    v_lshlrev_b32 v3, 4, v1
    s_lshr_b32 s12, s11, 1
    s_mul_i32 s12, s12, 22
    s_add_u32 s15, s12, s98
    ''')
    reduce_task(a)
    a.label('K1_KVEXIT')
    a.endpgm()


KG_ROW = 272
KG_LO = 32 * KG_ROW
KG_WAVE = KG_LO + 21 * KG_ROW + 16 * 0
KLB = lambda q: 4608 * q
RA = 9216
XTL = RA + 4 * KG_WAVE
CSZ = 4160
UCB = lambda q: RA + 4 * CSZ * q
L_RED = RA + 8 * CSZ


def cmul(a, d, x, y, t):
    a('v_pk_mul_f32 %s, %s, %s op_sel:[1,1] op_sel_hi:[1,0]' % (vr(t, 2), vr(x, 2), vr(y, 2)))
    a('v_pk_fma_f32 %s, %s, %s, %s op_sel:[0,0,0] op_sel_hi:[0,1,1] neg_lo:[0,0,1]' % (vr(d, 2), vr(x, 2), vr(y, 2), vr(t, 2)))


def split_write(a, rows, tmp, vaddr, s_c1, s_c2, base=0):
    for i, (r, p) in enumerate(rows):
        a('v_cvt_pk_f16_f32 v%d, v%d, v%d' % (tmp + i, p, p + 1))
    for i, (r, p) in enumerate(rows):
        a('ds_write_b32 v%d, v%d offset:%d' % (vaddr, tmp + i, base + r * KG_ROW))


def deval(a, items, L, tmp):
    for i, (A, d) in enumerate(items):
        a('v_mul_f32 v%d, 0x%x, v%d' % (tmp + 4 * i, f32bits(float(A)), L))
        a('v_mul_f32 v%d, 0x%x, v%d' % (tmp + 4 * i + 1, f32bits(float(A)), L + 1))
    for i, (A, d) in enumerate(items):
        a('v_fract_f32 v%d, v%d' % (tmp + 4 * i + 1, tmp + 4 * i + 1))
        a('v_exp_f32 v%d, v%d' % (tmp + 4 * i, tmp + 4 * i))
    for i, (A, d) in enumerate(items):
        a('v_cos_f32 v%d, v%d' % (tmp + 4 * i + 2, tmp + 4 * i + 1))
        a('v_sin_f32 v%d, v%d' % (tmp + 4 * i + 3, tmp + 4 * i + 1))
    a.nop(1)
    for i, (A, d) in enumerate(items):
        a('v_pk_mul_f32 %s, %s, %s op_sel:[0,0] op_sel_hi:[0,1]' % (vr(d, 2), vr(tmp + 4 * i, 2), vr(tmp + 4 * i + 2, 2)))


def prep_part(a):
    a.label('K1_PREP')
    if NOPREP: a('s_endpgm')
    a('s_setprio 3')
    if TOUCH:
        a('''
        s_and_b32 s64, s2, 7
        s_lshr_b32 s65, s2, 3
        s_lshl_b32 s65, s65, 2
        s_add_u32 s65, s65, s3
        s_lshl_b32 s67, s65, 6
        v_add_u32 v28, s67, v1
        v_mul_u32_u24 v29, 34953, v28
        v_lshrrev_b32 v29, 19, v29
        v_mul_u32_u24 v30, 15, v29
        v_sub_u32 v30, v28, v30
        v_mul_u32_u24 v31, 52, v30
        v_lshrrev_b32 v31, 8, v31
        v_mul_u32_u24 v32, 5, v31
        v_sub_u32 v32, v30, v32
        v_mul_u32_u24 v29, 3456, v29
        v_mul_u32_u24 v31, 1152, v31
        v_add_u32 v29, v29, v31
        v_lshl_add_u32 v29, v32, 7, v29
        s_lshr_b32 s66, s64, 2
        s_lshl_b32 s66, s66, 9
        s_and_b32 s67, s64, 3
        s_mul_i32 s67, s67, 589824
        s_lshl_b32 s65, s65, 12
        s_add_u32 s67, s67, s65
        v_lshlrev_b32 v28, 7, v1
        s_waitcnt lgkmcnt(0)
        ''')
        srd(a, 48, P_X, 2048 * 576 * 2)
        srd(a, 52, P_W, 576 * 1728 * 2)
    a('s_mov_b32 s4, s2')
    a('''
    s_mul_i32 s5, s4, 7282
    s_lshr_b32 s5, s5, 16
    s_mul_i32 s6, s5, 9
    s_sub_u32 s6, s4, s6
    s_lshr_b32 s7, s3, 1
    s_lshl_b32 s78, s6, 5
    s_add_u32 s78, s78, s5
    s_lshl_b32 s8, s78, 1
    s_add_u32 s8, s8, s7
    s_and_b32 s9, s3, 1
    s_mul_i32 s10, s3, %d
    s_add_u32 s10, s10, %d
    v_and_b32 v10, 15, v1
    v_lshrrev_b32 v11, 4, v1
    ''' % (KG_WAVE, RA))
    a('''
    s_lshl_b32 s11, s8, 8
    s_lshl_b32 s12, s9, 7
    s_add_u32 s11, s11, s12
    v_lshl_add_u32 v2, v1, 1, s11
    s_lshl_b32 s12, s78, 2
    s_waitcnt lgkmcnt(0)
    s_load_dword s13, s[36:37], s12
    s_load_dword s97, s[38:39], s12
    global_load_ushort v12, v2, s[24:25]
    global_load_ushort v13, v2, s[26:27]
    global_load_ushort v14, v2, s[28:29]
    global_load_ushort v15, v2, s[30:31]
    global_load_ushort v16, v2, s[32:33]
    global_load_ushort v17, v2, s[34:35]
    ''')
    a('''
    s_lshl_b32 s11, s5, 6
    s_lshl_b32 s12, s3, 4
    s_add_u32 s11, s11, s12
    v_lshrrev_b32 v3, 3, v1
    v_add_u32 v3, s11, v3
    v_mul_u32_u24 v3, 1152, v3
    v_and_b32 v4, 7, v1
    v_lshl_add_u32 v3, v4, 4, v3
    s_lshl_b32 s11, s6, 7
    v_add_u32 v3, s11, v3
    v_add_u32 v4, 9216, v3
    global_load_dwordx4 v[20:23], v3, s[16:17]
    global_load_dwordx4 v[24:27], v4, s[16:17]
    ''')
    GX, GW = 176, 212
    nog = a.newlabel('K1_NOG')
    a('''
    s_cmp_eq_u32 s3, 3
    s_cselect_b32 s14, 1, 0
    s_cmp_lt_u32 s4, 256
    s_cselect_b32 s14, s14, 0
    s_cmp_eq_u32 s14, 0
    s_cbranch_scc1 %s
    s_lshl_b32 s11, s4, 3
    v_lshrrev_b32 v4, 3, v1
    v_add_u32 v4, s11, v4
    v_mul_u32_u24 v5, 1152, v4
    v_and_b32 v6, 7, v1
    v_lshlrev_b32 v6, 4, v6
    v_add_u32 v5, v5, v6
    ''' % nog)
    for i in range(9):
        a('global_load_dwordx4 %s, v5, s[16:17] offset:%d' % (vr(GX + 4 * i, 4), 128 * i))
        a('global_load_dwordx4 %s, v6, s[40:41] offset:%d' % (vr(GW + 4 * i, 4), 128 * i))
    a.label(nog)
    if TOUCH:
        a('''
        buffer_load_dword v78, v29, s[52:55], s66 offen
        s_mov_b32 exec_hi, 0
        buffer_load_dword v79, v28, s[48:51], s67 offen
        s_mov_b32 exec_hi, -1
        ''')
    srd(a, S_SWS, P_WS, WS_END)
    a('s_mov_b32 s60, 0x0000bf80')
    a('s_mov_b32 s61, 0xbf800000')
    a.stamp(1)
    a('s_waitcnt vmcnt(%d) lgkmcnt(0)' % (2 if TOUCH else 0))
    a.stamp(2)
    a('''
    s_lshl_b32 s11, s3, 11
    s_add_u32 s11, s11, %d
    v_lshl_add_u32 v7, v1, 4, s11
    ds_write_b128 v7, v[20:23]
    ds_write_b128 v7, v[24:27] offset:1024
    v_lshrrev_b32 v8, 2, v10
    v_lshl_add_u32 v8, v11, 4, v8
    v_lshlrev_b32 v8, 7, v8
    v_and_b32 v9, 3, v1
    v_lshl_add_u32 v8, v9, 3, v8
    s_lshl_b32 s11, s3, 5
    s_add_u32 s11, s11, %d
    v_add_u32 v8, s11, v8
    s_waitcnt lgkmcnt(0)
    s_barrier
    ds_read_b64_tr_b16 v[20:21], v8
    ds_read_b64_tr_b16 v[22:23], v8 offset:512
    ds_read_b64_tr_b16 v[24:25], v8 offset:1024
    ds_read_b64_tr_b16 v[26:27], v8 offset:1536
    v_mul_u32_u24 v9, 144, v10
    v_lshl_add_u32 v9, v11, 5, v9
    v_add_u32 v9, s10, v9
    v_lshrrev_b32 v7, 3, v1
    v_mul_u32_u24 v8, 144, v7
    v_and_b32 v6, 7, v1
    v_lshl_add_u32 v8, v6, 4, v8
    v_add_u32 v8, s10, v8
    s_lshl_b32 s11, s6, 6
    s_lshl_b32 s12, s3, 4
    s_add_u32 s11, s11, s12
    v_add_u32 v7, s11, v7
    v_mul_u32_u24 v7, 4352, v7
    v_lshl_add_u32 v6, v6, 4, v7
    s_lshl_b32 s15, s5, 7
    s_add_u32 s15, s15, 0x%x
    s_add_u32 s98, s15, 34816
    s_waitcnt lgkmcnt(0)
    ds_write_b128 v9, v[20:23]
    ds_write_b128 v9, v[24:27] offset:16
    ds_read_b128 v[248:251], v8
    ds_read_b128 v[252:255], v8 offset:1152
    ''' % (XTL, XTL, WS_XT))
    a('s_waitcnt lgkmcnt(0)')
    a('buffer_store_dwordx4 v[248:251], v6, %s, s15 offen sc1' % sr(S_SWS, 4))
    a('buffer_store_dwordx4 v[252:255], v6, %s, s98 offen sc1' % sr(S_SWS, 4))
    a('''
    s_lshl_b32 s11, s78, 7
    s_add_u32 s11, s11, 0x%x
    s_lshl_b32 s12, s4, 7
    s_add_u32 s12, s12, 0x%x
    s_cmp_eq_u32 s3, 0
    s_cselect_b32 s11, s11, s12
    v_mov_b32 v2, 0
    s_mov_b64 exec, 1
    buffer_store_dword v2, v2, %s, s11 offen sc1
    s_mov_b64 exec, -1
    ''' % (WS_GO1, WS_GO2, sr(S_SWS, 4)))
    a('''
    s_lshl_b32 s12, s7, 4
    s_lshr_b32 s13, s13, s12
    s_lshl_b32 s13, s13, 16
    v_mov_b32 v18, s13
    v_mul_f32 v18, 0x%x, v18
    v_exp_f32 v18, v18
    v_lshlrev_b32 v12, 16, v12
    v_lshlrev_b32 v13, 16, v13
    v_cvt_pk_bf16_f32 v18, v18, v18
    v_lshlrev_b32 v14, 16, v14
    v_lshlrev_b32 v15, 16, v15
    v_lshlrev_b32 v18, 16, v18
    v_lshlrev_b32 v16, 16, v16
    v_lshlrev_b32 v17, 16, v17
    v_mul_f32 v12, v18, v12
    v_mul_f32 v13, v18, v13
    v_mul_f32 v14, v18, v14
    v_mul_f32 v15, v18, v15
    v_mul_f32 v28, 0x%x, v12
    v_mul_f32 v29, 0x%x, v13
    v_mov_b32 v30, v28
    v_sub_f32 v31, 0, v29
    ''' % (f32bits(LOG2E), f32bits(LOG2E), f32bits(1.0 / (2 * math.pi))))
    L, LC = 28, 30
    X0 = 32
    cmul(a, X0, 16, 14, 34)
    a('v_sub_f32 v%d, 0, v%d' % (X0 + 1, X0 + 1))
    a('v_max_f32_e64 v34, abs(v%d), abs(v%d)' % (X0, X0 + 1))
    for dpp in ('quad_perm:[1,0,3,2]', 'quad_perm:[2,3,0,1]', 'row_half_mirror', 'row_mirror'):
        a.nop(2)
        a('v_max_f32_dpp v34, v34, v34 %s row_mask:0xf bank_mask:0xf' % dpp)
    a.nop(1)
    a('''
    v_readlane_b32 s64, v34, 0
    v_readlane_b32 s65, v34, 16
    v_readlane_b32 s66, v34, 32
    v_readlane_b32 s67, v34, 48
    s_nop 3
    s_max_u32 s64, s64, s65
    s_max_u32 s66, s66, s67
    s_max_u32 s64, s64, s66
    s_lshr_b32 s64, s64, 23
    s_sub_u32 s64, 263, s64
    s_min_u32 s64, s64, 227
    s_max_u32 s64, s64, 27
    s_lshl_b32 s66, s64, 23
    s_mov_b32 s67, s66
    s_sub_u32 s99, 254, s64
    s_lshl_b32 s99, s99, 23
    v_pk_mul_f32 v[32:33], v[32:33], s[66:67]
    ''')
    a('v_lshl_add_u32 v7, v1, 2, s10')
    YB = 40
    Y = lambda b: YB + 2 * b
    TMP = 80
    T2 = 112
    OUT = 128
    deval(a, [(8, Y(1)), (16, Y(2)), (32, Y(4)), (64, Y(8)), (128, Y(16))], L, TMP)
    srd(a, 48, P_DBG, 256)
    nopub = a.newlabel('K1_NOPUB')
    a('''
    s_waitcnt vmcnt(0)
    s_barrier
    s_cmp_lg_u32 s3, 1
    s_cbranch_scc1 %s
    v_mov_b32 v2, 1
    v_mov_b32 v3, 0
    s_lshl_b32 s11, s6, 4
    s_mov_b64 exec, 1
    buffer_atomic_add v2, v3, s[48:51], s11 offen sc0 sc1
    s_waitcnt vmcnt(0)
    v_readfirstlane_b32 s11, v2
    s_mov_b64 exec, -1
    s_cmp_lg_u32 s11, 31
    s_cbranch_scc1 %s
    v_mov_b32 v2, 1
    v_lshlrev_b32 v3, 7, v1
    s_lshl_b32 s11, s6, 12
    s_add_u32 s11, s11, 0x%x
    s_mov_b32 exec_hi, 0
    buffer_store_dword v2, v3, %s, s11 offen sc1
    s_mov_b32 exec_hi, -1
    ''' % (nopub, nopub, WS_GO1, sr(S_SWS, 4)))
    a.label(nopub)
    a('s_setprio %d' % PPRIO)
    a('v_mov_b32 v%d, 0x3c00' % TMP)
    a('ds_write_b32 v7, v%d' % TMP)
    cmul(a, Y(3), Y(2), Y(1), T2)
    cmul(a, Y(5), Y(4), Y(1), T2 + 2)
    cmul(a, Y(6), Y(4), Y(2), T2 + 4)
    cmul(a, Y(9), Y(8), Y(1), T2 + 6)
    cmul(a, Y(10), Y(8), Y(2), T2 + 8)
    cmul(a, Y(12), Y(8), Y(4), T2 + 10)
    cmul(a, Y(7), Y(4), Y(3), T2)
    cmul(a, Y(11), Y(8), Y(3), T2 + 2)
    cmul(a, Y(13), Y(8), Y(5), T2 + 4)
    cmul(a, Y(14), Y(8), Y(6), T2 + 6)
    cmul(a, Y(15), Y(8), Y(7), T2 + 8)
    split_write(a, [(b, Y(b)) for b in range(1, 9)], TMP, 7, 60, 61)
    split_write(a, [(b, Y(b)) for b in range(9, 17)], TMP, 7, 60, 61)
    for b0 in (1, 9):
        bs = [b for b in range(b0, b0 + 8) if b <= 15]
        for i, b in enumerate(bs):
            cmul(a, OUT + 2 * i, Y(16), Y(b), T2 + 2 * i)
        split_write(a, [(16 + b, OUT + 2 * i) for i, b in enumerate(bs)], TMP, 7, 60, 61)
    a.stamp(3)
    a('''
    v_and_b32 v8, 31, v1
    v_mul_u32_u24 v8, %d, v8
    v_lshrrev_b32 v9, 5, v1
    v_lshl_add_u32 v8, v9, 4, v8
    v_add_u32 v8, s10, v8
    ''' % KG_ROW)
    BF = 112
    for k in range(8):
        a('ds_read_b128 %s, v8 offset:%d' % (vr(BF + 4 * k, 4), 32 * k))
    E = {1: 12, 2: 14, 4: 16, 256: 18, 512: 20, 1024: 22, 2048: 24}
    deval(a, [(A, r) for A, r in E.items()], LC, TMP)
    XR = lambda r: 36 + 2 * r
    def X(r): return X0 if r == 0 else XR(r)
    T3 = 2
    tp = [2, 4, 26, 34]
    seq = [(1, 0, 256), (2, 0, 512), (4, 0, 1024), (8, 0, 2048), (9, 0, 4), (13, 0, 2), (17, 0, 1),
           (3, 2, 256), (5, 1, 1024), (6, 2, 1024), (10, 1, 4), (11, 2, 4), (14, 1, 2), (15, 9, 2), (18, 13, 1), (19, 9, 1),
           (7, 3, 1024), (12, 3, 4), (16, 10, 2), (20, 15, 1)]
    for i, (r, src, A) in enumerate(seq):
        cmul(a, X(r), X(src), E[A], tp[i % 4])
    split_write(a, [(r, X(r)) for r in range(0, 21)], TMP, 7, 60, 61, base=KG_LO)
    a.stamp(4)
    AF = 144
    for k in range(8):
        a('ds_read_b128 %s, v8 offset:%d' % (vr(AF + 4 * k, 4), KG_LO + 32 * k))
    ACC = 80
    for k in range(8):
        a('s_waitcnt lgkmcnt(%d)' % (7 - k))
        cin = '0' if k == 0 else vr(ACC, 16)
        a('v_mfma_f32_32x32x16_f16 %s, %s, %s, %s' % (vr(ACC, 16), vr(AF + 4 * k, 4), vr(BF + 4 * k, 4), cin))
    a.nop(16)
    a.stamp(5)
    if TOUCH:
        srd(a, 52, P_WO, 576 * 576 * 2)
        a('''
        s_lshr_b32 s65, s2, 3
        s_lshl_b32 s65, s65, 2
        s_add_u32 s65, s65, s3
        s_mul_i32 s65, s65, 4608
        v_lshlrev_b32 v101, 7, v1
        s_mov_b32 exec_hi, 0xf
        buffer_load_dword v78, v101, s[52:55], s65 offen
        s_mov_b64 exec, -1
        ''')
    even = a.newlabel('K1_EVEN')
    a('s_mov_b32 s66, s99')
    a('s_mov_b32 s67, s99')
    for i in range(0, 12, 2):
        a('v_pk_mul_f32 %s, %s, s[66:67]' % (vr(ACC + i, 2), vr(ACC + i, 2)))
    a('v_lshlrev_b32 v9, 4, v1')
    a('s_cmp_eq_u32 s9, 0')
    a('s_cbranch_scc1 %s' % even)
    a('v_add_u32 v9, s10, v9')
    for i in range(3):
        a('ds_write_b128 v9, %s offset:%d' % (vr(ACC + 4 * i, 4), 1024 * i))
    a('s_waitcnt lgkmcnt(0)')
    a('s_barrier')
    endl = a.newlabel('K1_PEND')
    nosel = a.newlabel('K1_NOSEL')
    zf = a.newlabel('K1_ZF')
    a('''
    s_cmp_lg_u32 s3, 1
    s_cbranch_scc1 %s
    s_cmp_gt_u32 s4, 9
    s_cbranch_scc1 %s
    s_cmp_eq_u32 s4, 9
    s_cbranch_scc1 %s
    s_lshl_b32 s11, s4, 4
    v_add_u32 v12, s11, v10
    v_mul_u32_u24 v12, 57, v12
    v_lshrrev_b32 v12, 10, v12
    v_lshrrev_b32 v13, 1, v12
    v_cmp_eq_u32 vcc, v13, v11
    v_and_b32 v13, 1, v12
    v_lshlrev_b32 v13, 4, v13
    v_mov_b32 v14, 0x3f80
    v_lshlrev_b32 v13, v13, v14
    v_cndmask_b32 v16, 0, v13, vcc
    v_mov_b32 v17, v16
    v_mov_b32 v18, v16
    v_mov_b32 v19, v16
    v_lshlrev_b32 v12, 4, v1
    s_lshl_b32 s11, s4, 10
    s_add_u32 s11, s11, 0x%x
    buffer_store_dwordx4 v[16:19], v12, %s, s11 offen
    s_branch %s
    ''' % (nosel, endl, zf, WS_SEL, sr(S_SWS, 4), endl))
    a.label(zf)
    a('''
    v_mov_b32 v16, 0
    v_mov_b32 v17, 0
    v_mov_b32 v18, 0
    v_mov_b32 v19, 0
    v_lshlrev_b32 v12, 4, v1
    s_mov_b32 s11, 0x%x
    buffer_store_dwordx4 v[16:19], v12, %s, s11 offen
    buffer_store_dwordx4 v[16:19], v12, %s, s11 offen offset:1024
    buffer_store_dwordx4 v[16:19], v12, %s, s11 offen offset:2048
    buffer_store_dwordx4 v[16:19], v12, %s, s11 offen offset:3072
    s_add_u32 s11, s11, 4096
    buffer_store_dwordx4 v[16:19], v12, %s, s11 offen
    s_branch %s
    ''' % ((WS_FLG,) + (sr(S_SWS, 4),) * 5 + (endl,)))
    a.label(nosel)
    a('s_cmp_eq_u32 s14, 0')
    a('s_cbranch_scc1 %s' % endl)
    a('s_mov_b32 s62, 0x3f803f80')
    a('v_mov_b32 v12, 0')
    a('v_mov_b32 v13, 0')
    for i in range(0, 36, 4):
        for k in range(4):
            a('v_and_b32 v%d, 0xffff, v%d' % (20 + 2 * k, GW + i + k))
            a('v_and_b32 v%d, 0xffff0000, v%d' % (21 + 2 * k, GW + i + k))
        for k in range(4):
            a('v_dot2_f32_bf16 v%d, v%d, v%d, 0' % (30 + 2 * k, GX + i + k, 20 + 2 * k))
            a('v_dot2_f32_bf16 v%d, v%d, v%d, 0' % (31 + 2 * k, GX + i + k, 21 + 2 * k))
        a.nop(3)
        for k in range(4):
            a('v_cvt_pk_bf16_f32 v%d, v%d, v%d' % (40 + k, 30 + 2 * k, 31 + 2 * k))
        a('v_dot2_f32_bf16 v12, v40, s62, v12')
        a('v_dot2_f32_bf16 v13, v41, s62, v13')
        a('v_dot2_f32_bf16 v12, v42, s62, v12')
        a('v_dot2_f32_bf16 v13, v43, s62, v13')
    a.nop(3)
    a('v_add_f32 v12, v12, v13')
    a.nop(2)
    a('v_add_f32_dpp v12, v12, v12 quad_perm:[1,0,3,2] row_mask:0xf bank_mask:0xf')
    a.nop(2)
    a('v_add_f32_dpp v12, v12, v12 quad_perm:[2,3,0,1] row_mask:0xf bank_mask:0xf')
    a.nop(2)
    a('v_add_f32_dpp v12, v12, v12 row_half_mirror row_mask:0xf bank_mask:0xf')
    a('''
    v_cvt_pk_bf16_f32 v12, v12, v12
    v_lshlrev_b32 v12, 16, v12
    v_mul_f32 v12, 0x%x, v12
    v_exp_f32 v12, v12
    s_nop 0
    v_add_f32 v12, 1.0, v12
    v_rcp_f32 v12, v12
    s_nop 0
    v_cvt_pk_bf16_f32 v12, v12, v12
    v_lshlrev_b32 v12, 16, v12
    v_lshrrev_b32 v13, 3, v1
    v_lshlrev_b32 v13, 2, v13
    s_lshl_b32 s11, s4, 5
    s_add_u32 s11, s11, 0x%x
    v_and_b32 v14, 7, v1
    v_cmp_eq_u32 vcc, 0, v14
    s_and_saveexec_b64 s[74:75], vcc
    buffer_store_dword v12, v13, %s, s11 offen
    ''' % (f32bits(-LOG2E), WS_G, sr(S_SWS, 4)))
    a('s_mov_b64 exec, -1')
    a.label(endl)
    a('s_branch K1_CONV')
    a.label(even)
    a('s_add_u32 s11, s10, %d' % KG_WAVE)
    a('v_add_u32 v9, s11, v9')
    a('s_barrier')
    for i in range(3):
        a('ds_read_b128 %s, v9 offset:%d' % (vr(12 + 4 * i, 4), 1024 * i))
    pass
    a('''
    s_mov_b32 s64, 1
    s_mov_b32 s65, -1
    s_mov_b32 s66, -1
    s_mov_b32 s67, 0
    s_waitcnt lgkmcnt(0)
    ''')
    for i in range(0, 12, 2):
        a('v_pk_add_f32 %s, %s, %s' % (vr(ACC + i, 2), vr(ACC + i, 2), vr(12 + i, 2)))
    a('v_cndmask_b32 v%d, 0, v%d, s[64:65]' % (ACC + 4, ACC + 4))
    for i in (9, 10, 11):
        a('v_cndmask_b32 v%d, 0, v%d, s[66:67]' % (ACC + i, ACC + i))
    a('v_max3_f32 v12, abs(v%d), abs(v%d), abs(v%d)' % (ACC, ACC + 1, ACC + 2))
    a('v_max3_f32 v13, abs(v%d), abs(v%d), abs(v%d)' % (ACC + 3, ACC + 4, ACC + 5))
    a('v_max3_f32 v14, abs(v%d), abs(v%d), abs(v%d)' % (ACC + 6, ACC + 7, ACC + 8))
    a('v_max3_f32 v15, abs(v%d), abs(v%d), abs(v%d)' % (ACC + 9, ACC + 10, ACC + 11))
    a('v_max3_f32 v12, v12, v13, v14')
    a('v_max_f32 v12, v12, v15')
    for dpp in ('quad_perm:[1,0,3,2]', 'quad_perm:[2,3,0,1]', 'row_half_mirror', 'row_mirror'):
        a.nop(2)
        a('v_max_f32_dpp v12, v12, v12 %s row_mask:0xf bank_mask:0xf' % dpp)
    a.nop(2)
    a('''
    v_readlane_b32 s64, v12, 0
    v_readlane_b32 s65, v12, 16
    v_readlane_b32 s66, v12, 32
    v_readlane_b32 s67, v12, 48
    s_nop 3
    s_max_u32 s64, s64, s65
    s_max_u32 s66, s66, s67
    s_max_u32 s64, s64, s66
    s_lshr_b32 s64, s64, 23
    s_sub_u32 s64, 268, s64
    s_min_u32 s64, s64, 254
    s_lshl_b32 s66, s64, 23
    s_mov_b32 s67, s66
    ''')
    for i in range(0, 12, 2):
        a('v_pk_mul_f32 %s, %s, s[66:67]' % (vr(ACC + i, 2), vr(ACC + i, 2)))
    for i in range(0, 12, 2):
        a('v_cvt_pk_f16_f32 v%d, v%d, v%d' % (12 + i // 2, ACC + i, ACC + i + 1))
    a('''
    v_and_b32 v8, 31, v1
    v_lshlrev_b32 v8, 1, v8
    v_lshrrev_b32 v9, 5, v1
    v_lshl_add_u32 v8, v9, 8, v8
    v_add_u32 v8, s10, v8
    s_mul_i32 s11, s7, 4608
    ''')
    for r in range(12):
        off = (8 * (r >> 2) + (r & 3)) * 64
        if r % 2 == 0:
            a('ds_write_b16 v8, v%d offset:%d' % (12 + r // 2, off))
        else:
            a('ds_write_b16_d16_hi v8, v%d offset:%d' % (12 + r // 2, off))
    V0, V0N, V4, V2, V6, V1, V3, V5, V7 = 0, 1, 288, 416, 480, 544, 576, 608, 640
    C0 = [V0, V1, V2, V3, V4, V5, V6, V7]
    C1 = [V0, V0, V2, V4, V4, V4, V6, V0N]
    a('v_lshl_add_u32 v8, v1, 1, s10')
    a('s_mov_b32 s66, -1')
    a('s_mov_b32 s67, 0')
    for e in range(8):
        if C0[e] == C1[e]:
            a('ds_read_u16 v%d, v8 offset:%d' % (20 + e, 2 * C0[e]))
        else:
            a('v_mov_b32 v9, %d' % (2 * C1[e]))
            a('v_mov_b32 v11, %d' % (2 * C0[e]))
            a('v_cndmask_b32 v9, v9, v11, s[66:67]')
            a('v_add_u32 v9, v9, v8')
            a('ds_read_u16 v%d, v9' % (20 + e))
    a('ds_read_u16 v28, v8 offset:%d' % (2 * (64 + V0)))
    a('ds_read_u16 v29, v8 offset:%d' % (2 * (64 + V4)))
    a('ds_read_u16 v30, v8 offset:%d' % (2 * (64 + V0N)))
    for rd in (2, 3):
        a('ds_read_u16 v%d, v8 offset:%d' % (27 + 2 * rd, 2 * (64 * rd)))
        a('ds_read_u16 v%d, v8 offset:%d' % (28 + 2 * rd, 2 * (64 * rd + 1)))
    a('''
    v_lshl_add_u32 v9, v1, 4, s11
    v_and_b32 v11, 1, v1
    v_cmp_eq_u32 vcc, 0, v11
    v_mov_b32 v56, 0
    v_mov_b32 v57, 0
    v_mov_b32 v58, 0
    v_mov_b32 v59, 0
    s_mov_b32 s66, 0x10001
    s_waitcnt lgkmcnt(0)
    ''')
    for k in range(4):
        a('v_lshl_or_b32 v%d, v%d, 16, v%d' % (40 + k, 20 + 6 - 2 * k, 20 + 7 - 2 * k))
    a('v_mul_lo_u32 v44, v30, s66')
    a('v_mul_lo_u32 v45, v29, s66')
    a('v_lshl_or_b32 v46, v28, 16, v29')
    a('v_mul_lo_u32 v47, v28, s66')
    for rd in (2, 3):
        A, B, D = 27 + 2 * rd, 28 + 2 * rd, 40 + 4 * rd
        a('v_mul_lo_u32 v%d, v%d, s66' % (D, B))
        a('v_cndmask_b32 v11, v%d, v%d, vcc' % (B, A))
        a('v_mul_lo_u32 v%d, v%d, s66' % (D + 2, A))
        a('v_lshl_or_b32 v%d, v11, 16, v%d' % (D + 1, B))
        a('v_mov_b32 v%d, v%d' % (D + 3, D + 2))
    for rd in range(4):
        a('ds_write_b128 v9, %s offset:%d' % (vr(40 + 4 * rd, 4), 480 + 1024 * rd))
    a('''
    s_mov_b64 exec, 0x3fffffff
    ds_write_b128 v9, v[56:59]
    v_mov_b32 v60, s64
    s_mov_b64 exec, 1
    ds_write_b32 v9, v60 offset:4576
    s_mov_b64 exec, -1
    v_lshrrev_b32 v11, 4, v1
    ''')
    conv_inputs(a, 'O')
    a('s_mov_b64 exec, -1')
    conv_part(a)


C_IN = lambda q: 144 + 8 * q
C_UD = lambda q: 176 + 8 * q
C_OUT = lambda q: 168 + 4 * q
C_BF, C_AF, C_ACC = 40, 104, 216
V_UW0, V_UW2, V_AA, V_BA, V_RW, V_RR = 248, 249, 250, 251, 252, 253


def conv_inputs(a, tag):
    lbl = 'K1_PX' + tag
    if tag == 'O':
        a('''
        s_cmp_lg_u32 s3, 0
        s_cbranch_scc1 %s_ok
        s_lshl_b32 s11, s78, 7
        s_add_u32 s11, s11, 0xb40000
        v_mov_b32 v3, 0
        s_mov_b32 s72, 0
        s_mov_b64 exec, 1
        ''' % lbl)
        a.label(lbl)
        a('''
        buffer_load_dword v2, v3, s[56:59], s11 offen sc1
        s_add_u32 s72, s72, 1
        s_waitcnt vmcnt(0)
        v_readfirstlane_b32 s12, v2
        s_cmp_eq_u32 s12, 1
        s_cbranch_scc1 %s_ok
        s_cmp_gt_u32 s72, 0x8000
        s_cbranch_scc1 %s_ok
        s_sleep 4
        s_branch %s
        ''' % (lbl, lbl, lbl))
    a.label(lbl + '_ok')
    return


def conv_loads(a):
    a('''
    v_lshlrev_b32 v2, 4, v0
    v_subrev_u32 v5, 4, v2
    v_and_b32 v4, 31, v1
    v_lshlrev_b32 v4, 2, v4
    s_mul_i32 s11, s78, 8704
    s_add_u32 s11, s11, 0x%x
    s_add_u32 s52, s46, s11
    s_addc_u32 s53, s47, 0
    s_and_b32 s53, s53, 0xffff
    s_mov_b32 s54, 4096
    s_mov_b32 s55, 0x20000
    s_add_u32 s68, s52, 4352
    s_addc_u32 s69, s53, 0
    s_mov_b32 s70, 4096
    s_mov_b32 s71, 0x20000
    s_lshl_b32 s11, s4, 8
    s_add_u32 s11, s11, 0x%x
    ''' % (WS_XT, WS_PM))
    for q in range(2):
        b = C_IN(q)
        S = 's[52:55]' if q == 0 else 's[68:71]'
        a('buffer_load_dword v%d, v5, %s, 0 offen sc1' % (b + 1, S))
        a('buffer_load_dwordx4 %s, v2, %s, 0 offen sc1' % (vr(b + 2, 4), S))


def conv_part(a):
    a.label('K1_CONV')
    a('s_setprio %d' % CPRIO)
    lg = Cnt(a, 'lgkmcnt', 15)
    a('s_waitcnt lgkmcnt(0)')
    a('s_barrier')
    conv_loads(a)
    a('''
    v_lshlrev_b32 v3, 4, v1
    v_lshrrev_b32 v12, 2, v10
    v_add_u32 v%d, %d, v2
    v_add_u32 v%d, %d, v2
    v_not_b32 v13, v10
    v_and_b32 v13, 3, v13
    v_mul_u32_u24 v13, %d, v13
    v_lshl_add_u32 v13, v12, 3, v13
    v_lshlrev_b32 v14, 4, v11
    v_sub_u32 v13, v13, v14
    s_lshl_b32 s9, s3, 6
    s_add_u32 s11, s9, %d
    v_add_u32 v%d, s11, v13
    v_lshl_add_u32 v13, v10, 5, v14
    s_sub_u32 s11, 192, s9
    v_add_u32 v%d, s11, v13
    v_lshl_add_u32 v13, v10, 2, v11
    v_bfe_u32 v14, v10, 1, 2
    v_xor_b32 v13, v13, v14
    s_lshl_b32 s9, s3, 10
    s_add_u32 s9, s9, %d
    v_lshl_add_u32 v%d, v13, 4, s9
    v_and_b32 v13, 31, v1
    v_lshlrev_b32 v13, 1, v13
    v_bfe_u32 v14, v13, 3, 2
    v_xor_b32 v13, v13, v14
    v_lshlrev_b32 v13, 4, v13
    v_lshrrev_b32 v14, 5, v1
    v_lshl_add_u32 v13, v14, 12, v13
    s_lshl_b32 s9, s3, 13
    s_add_u32 s9, s9, %d
    v_add_u32 v%d, s9, v13
    v_lshrrev_b32 v12, 1, v1
    v_mul_u32_u24 v12, %d, v12
    v_and_b32 v13, 1, v1
    v_lshl_add_u32 v12, v13, 4, v12
    v_add_u32 v12, %d, v12
    v_and_b32 v13, 1, v1
    v_bfe_u32 v14, v1, 1, 1
    v_lshl_add_u32 v13, v14, 2, v13
    v_add_u32 v13, 2, v13
    v_mul_u32_u24 v13, %d, v13
    v_add_u32 v13, %d, v13
    v_mov_b32 v16, 0
    v_mov_b32 v17, 0
    v_mov_b32 v18, 0
    v_mov_b32 v19, 0
    v_mov_b32 v15, 4576
    ds_read_b32 v20, v15
    ds_read_b32 v21, v15 offset:4608
    s_mov_b64 exec, 0xffff
    ds_write_b128 v12, v[16:19]
    s_mov_b64 exec, 15
    ds_write_b32 v13, v16
    s_mov_b64 exec, -1
    s_waitcnt vmcnt(0) lgkmcnt(0)
    v_readfirstlane_b32 s76, v20
    v_readfirstlane_b32 s77, v21
    ''' % (V_UW0, RA + 32, V_UW2, RA + 2 * CSZ + 36, CSZ, RA + 56, V_AA, V_BA, L_RED, V_RW, L_RED, V_RR, CSZ, RA, CSZ, RA + 32))
    a.stamp(6)
    DPPS = ('quad_perm:[1,0,3,2]', 'quad_perm:[2,3,0,1]', 'row_half_mirror', 'row_mirror')
    a('s_mov_b32 s8, 0x7fff7fff')
    for q in range(2):
        for k in range(4):
            a('v_and_b32 v%d, s8, v%d' % (16 + 4 * q + k, C_IN(q) + 2 + k))
    for q in range(2):
        a('v_pk_max_u16 v%d, v%d, v%d' % (16 + 4 * q, 16 + 4 * q, 17 + 4 * q))
        a('v_pk_max_u16 v%d, v%d, v%d' % (18 + 4 * q, 18 + 4 * q, 19 + 4 * q))
    for q in range(2):
        a('v_pk_max_u16 v%d, v%d, v%d' % (16 + 4 * q, 16 + 4 * q, 18 + 4 * q))
    a('v_and_b32 v17, 0xffff, v16')
    a('v_lshl_or_b32 v17, v20, 16, v17')
    a('v_lshrrev_b32 v18, 16, v16')
    a('v_and_b32 v19, 0xffff0000, v20')
    a('v_or_b32 v18, v18, v19')
    a('v_pk_max_u16 v16, v17, v18')
    for dpp in DPPS:
        a.nop(2)
        a('v_mov_b32_dpp v17, v16 %s row_mask:0xf bank_mask:0xf' % dpp)
        a('v_pk_max_u16 v16, v16, v17')
    a('''
    v_lshrrev_b32 v17, 4, v0
    v_lshlrev_b32 v17, 2, v17
    v_add_u32 v17, %d, v17
    v_cmp_eq_u32 vcc, 0, v10
    v_lshlrev_b32 v18, 2, v10
    v_add_u32 v18, %d, v18
    s_and_saveexec_b64 s[74:75], vcc
    ds_write_b32 v17, v16
    s_mov_b64 exec, s[74:75]
    s_waitcnt lgkmcnt(0)
    s_barrier
    ds_read_b32 v16, v18
    s_waitcnt lgkmcnt(0)
    ''' % (L_RED, L_RED))
    for dpp in DPPS:
        a.nop(2)
        a('v_mov_b32_dpp v17, v16 %s row_mask:0xf bank_mask:0xf' % dpp)
        a('v_pk_max_u16 v16, v16, v17')
    a.nop(1)
    a('v_readfirstlane_b32 s15, v16')
    def stage(q):
        b = C_IN(q)
        ub = 4 * CSZ * q
        T = 16
        for k in range(4):
            a('v_lshlrev_b32 v%d, 16, v%d' % (T + 2 * k, b + 2 + k))
            a('v_and_b32 v%d, 0xffff0000, v%d' % (T + 2 * k + 1, b + 2 + k))
        a('''
        v_and_b32 v%d, 0xffff0000, v%d
        %s
        s_mov_b32 s13, s12
        %s
        s_lshr_b32 s8, s8, 7
        s_sub_u32 s8, 268, s8
        s_min_u32 s8, s8, 254
        s_add_u32 s%d, s8, s%d
        s_sub_u32 s%d, 254, s%d
        s_lshl_b32 s8, s8, 23
        s_mov_b32 s9, s8
        ''' % (T + 8, b + 1, 's_lshl_b32 s12, s97, 16' if q == 0 else 's_and_b32 s12, s97, 0xffff0000',
               's_and_b32 s8, s15, 0xffff' if q == 0 else 's_lshr_b32 s8, s15, 16', 76 + q, 76 + q, 76 + q, 76 + q))
        u = C_UD(q)
        for k in range(4):
            a('v_pk_mul_f32 %s, %s, s[12:13]' % (vr(u + 2 * k, 2), vr(T + 2 * k, 2)))
        for k in range(4):
            a('v_pk_mul_f32 %s, %s, s[8:9]' % (vr(T + 2 * k, 2), vr(T + 2 * k, 2)))
        a('v_mul_f32 v%d, s8, v%d' % (T + 8, T + 8))
        F = 32
        for k in range(4):
            a('v_cvt_pk_f16_f32 v%d, v%d, v%d' % (F + k, T + 2 * k, T + 2 * k + 1))
        a('v_cvt_pk_f16_f32 v%d, v%d, v%d' % (F - 1, T + 8, T + 8))
        if ub:
            a('v_add_u32 v12, %d, v%d' % (ub, V_UW2))
            w2 = 12
        else:
            w2 = V_UW2
        a('ds_write_b128 v%d, %s offset:%d' % (V_UW0, vr(F, 4), ub))
        a('ds_write2_b32 v%d, v%d, v%d offset0:0 offset1:1' % (w2, F, F + 1))
        a('ds_write2_b32 v%d, v%d, v%d offset0:2 offset1:3' % (w2, F + 2, F + 3))
        for k in range(4):
            a('v_alignbit_b32 v%d, v%d, v%d, 16' % (36 + k, F + k, F + k - 1))
        a('v_add_u32 v13, %d, v%d' % (CSZ, w2))
        a('ds_write_b128 v%d, v[36:39] offset:%d' % (V_UW0, ub + CSZ))
        a('ds_write2_b32 v13, v36, v37 offset0:0 offset1:1')
        a('ds_write2_b32 v13, v38, v39 offset0:2 offset1:3')
        for k in range(4):
            a('v_cvt_pk_bf16_f32 v%d, v%d, v%d' % (T + k, u + 2 * k, u + 2 * k + 1))
        for k in range(4):
            a('v_lshlrev_b32 v%d, 16, v%d' % (u + 2 * k, T + k))
            a('v_and_b32 v%d, 0xffff0000, v%d' % (u + 2 * k + 1, T + k))
    BF, AFR, ACC = C_BF, C_AF, C_ACC
    def mfma_loop(q):
        ub = 4 * CSZ * q
        kb = KLB(q)
        def aread(t):
            r = AFR + 4 * (t % 8)
            a('ds_read_b64 %s, v%d offset:%d' % (vr(r, 2), V_AA, ub + 256 * t))
            lg.issue(('A', t))
            a('ds_read_b64 %s, v%d offset:%d' % (vr(r + 2, 2), V_AA, ub + 256 * t + 8))
            lg.issue(('A', t))
        def bread(s_):
            a('ds_read_b128 %s, v%d offset:%d' % (vr(BF + 4 * s_, 4), V_BA, kb + 256 * s_))
            lg.issue(('B', s_))
        aread(0)
        for n in range(8): bread(2 * n + 1)
        aread(1)
        for n in range(8): bread(2 * n)
        started = set()
        for t in range(16):
            lg.wait(('A', t))
            for n in range(8):
                if 2 * n + 1 < t: continue
                s_ = 2 * n - t + 1
                if t < 2 and n % 2 == 0:
                    lg.wait(('B', min(s_ + 2, 15 if t == 0 else 14)))
                cin = vr(ACC + 4 * n, 4) if n in started else '0'
                started.add(n)
                a('v_mfma_f32_16x16x32_f16 %s, %s, %s, %s' % (vr(ACC + 4 * n, 4), vr(AFR + 4 * (t % 8), 4), vr(BF + 4 * s_, 4), cin))
            if t == 0:
                for tt in range(2, 5): aread(tt)
            elif t == 1:
                for tt in range(5, 8): aread(tt)
            if t + 8 < 16: aread(t + 8)
        a.nop(8)
    def reduce_store(q):
        if q: a('s_barrier')
        for n in range(8):
            a('ds_write_b128 v%d, %s offset:%d' % (V_RW, vr(ACC + 4 * n, 4), n * 4096))
        a('v_xor_b32 v12, 16, v%d' % V_RR)
        a('s_waitcnt lgkmcnt(0)')
        lg.ops = []
        a('s_barrier')
        R = 40
        for w in range(4):
            a('ds_read_b128 %s, v%d offset:%d' % (vr(R + 8 * w, 4), V_RR, w * 1024))
            a('ds_read_b128 %s, v12 offset:%d' % (vr(R + 8 * w + 4, 4), w * 1024))
        a('s_mul_i32 s8, s78, %d' % (2 * TS))
        a('s_add_u32 s8, s8, 0x%x' % (WS_BT + TS * q))
        a('s_waitcnt lgkmcnt(4)')
        for h in range(0, 8, 2):
            a('v_pk_add_f32 %s, %s, %s' % (vr(R + h, 2), vr(R + h, 2), vr(R + 8 + h, 2)))
        a('s_waitcnt lgkmcnt(0)')
        for h in range(0, 8, 2):
            a('v_pk_add_f32 %s, %s, %s' % (vr(R + 16 + h, 2), vr(R + 16 + h, 2), vr(R + 24 + h, 2)))
        for h in range(0, 8, 2):
            a('v_pk_add_f32 %s, %s, %s' % (vr(R + h, 2), vr(R + h, 2), vr(R + 16 + h, 2)))
        for k in range(8):
            a('v_ldexp_f32 v%d, v%d, s%d' % (R + k, R + k, 76 + q))
        for k in range(4):
            a('v_cvt_pk_bf16_f32 v%d, v%d, v%d' % (R + 8 + k, R + 2 * k, R + 2 * k + 1))
        for k in range(4):
            a('v_lshlrev_b32 v%d, 16, v%d' % (R + 2 * k, R + 8 + k))
            a('v_and_b32 v%d, 0xffff0000, v%d' % (R + 2 * k + 1, R + 8 + k))
        u = C_UD(q)
        for k in range(4):
            a('v_pk_add_f32 %s, %s, %s' % (vr(R + 2 * k, 2), vr(R + 2 * k, 2), vr(u + 2 * k, 2)))
        O = C_OUT(q)
        for k in range(4):
            a('v_cvt_pk_bf16_f32 v%d, v%d, v%d' % (O + k, R + 2 * k, R + 2 * k + 1))
        a('buffer_store_dwordx4 %s, v2, %s, s8 offen' % (vr(O, 4), sr(S_SWS, 4)))
    stage(0)
    stage(1)
    a('s_waitcnt lgkmcnt(0)')
    a('s_barrier')
    mfma_loop(0)
    reduce_store(0)
    mfma_loop(1)
    reduce_store(1)
    a.endpgm()


def gen_k1(a):
    a.lines.append('.globl k1_kernel\n.p2align 8\n.type k1_kernel,@function\nk1_kernel:')
    a('s_cmp_ge_u32 s2, %d' % K1_GRID)
    a('s_cbranch_scc1 K1_EXIT')
    a.kidx = 0
    a.stamp_init()
    load_kernargs(a)
    a('''
    v_lshrrev_b32 v2, 6, v0
    v_and_b32 v1, 63, v0
    s_nop 0
    v_readfirstlane_b32 s3, v2
    ''')
    a('''
    s_cmp_lt_u32 s2, %d
    s_cbranch_scc1 K1_PREP
    s_sub_u32 s97, s2, %d
    ''' % (N_PREP, N_PREP))
    gemm_part(a)
    prep_part(a)
    a.label('K1_EXIT')
    a('s_endpgm')
```

```python
from asmlib import *
from gen_k1 import *

KM_GRID = 256
WSLOT = 9216
NSL = 3
L_WO = 0
L_PQ = 4 * NSL * WSLOT
L_BT = L_PQ + 36864
KM_LDS = L_BT + 9216
KM_ACCUM = 256
KM_VGPR = 256 + 256

S_SWO, S_SWS3, S_SOUT, S_SU = 48, 52, 56, 60
STEPS = {0: [0], 1: [0, 1], 2: [0, 1], 3: [1, 2], 4: [1, 2], 5: [2, 3], 6: [2, 3], 7: [3, 4], 8: [3, 4]}
FRAGS = [('Z', k) for k in range(5)] + [(c, k) for c in range(9) for k in STEPS[c]]

V_TID16 = 2
V_L16 = 3
V_TRW, V_TRB = 6, 7
V_G, V_OMG = 8, 9
V_UW0, V_UW2 = 236, 237
V_AA, V_BA = 238, 239
WD = 240
PQA = 249
PQB = 228
V_RW, V_RR = 254, 255
WOF = lambda j, k: (k * 36 + 4 * j) if k < 4 else (144 + 2 * j)
A_KVF = 164
A_ZF = 232


SK = lambda q: [76, 78, 100][q]


def poll(a, vaddr, soff, nlanes, tmpv, lbl):
    mask_lo = (1 << min(nlanes, 32)) - 1
    mask_hi = ((1 << (nlanes - 32)) - 1) if nlanes > 32 else 0
    a('s_mov_b32 s70, 0x%x' % mask_lo)
    a('s_mov_b32 s71, 0x%x' % mask_hi)
    a('s_mov_b32 s72, 0')
    a.label(lbl)
    a('buffer_load_dword v%d, v%d, %s, %s offen sc1' % (tmpv, vaddr, sr(S_SWS3, 4), soff))
    a('s_add_u32 s72, s72, 1')
    a('s_waitcnt vmcnt(0)')
    a('v_cmp_ne_u32 vcc, 0, v%d' % tmpv)
    a('s_and_b64 vcc, vcc, s[70:71]')
    a('s_cmp_eq_u64 vcc, s[70:71]')
    a('s_cbranch_scc1 %s_ok' % lbl)
    a('s_cmp_gt_u32 s72, 0x8000')
    a('s_cbranch_scc1 %s_ok' % lbl)
    a('s_sleep 2')
    a('s_branch %s' % lbl)
    a.label(lbl + '_ok')


def reduce_task(a):
    cb = sum(((15 if c == 'Z' else c) << (4 * f)) for f, (c, k) in enumerate(FRAGS))
    kb = sum((k << (4 * f)) for f, (c, k) in enumerate(FRAGS))
    a('''
    s_mul_i32 s64, s15, 94
    s_lshr_b32 s64, s64, 11
    s_mul_i32 s65, s64, 22
    s_sub_u32 s65, s15, s65
    s_mov_b32 s66, 0x%x
    s_mov_b32 s67, 0x%x
    s_mov_b32 s68, 0x%x
    s_mov_b32 s69, 0x%x
    s_cmp_ge_u32 s65, 16
    s_cselect_b32 s66, 0x%x, s66
    s_cselect_b32 s68, 0x%x, s68
    s_and_b32 s70, s65, 15
    s_lshl_b32 s70, s70, 2
    s_lshr_b64 s[66:67], s[66:67], s70
    s_lshr_b64 s[68:69], s[68:69], s70
    s_and_b32 s66, s66, 15
    s_and_b32 s68, s68, 15
    s_lshl_b32 s70, s68, 5
    v_lshl_add_u32 v16, v11, 3, s70
    s_cmp_eq_u32 s66, 15
    s_cbranch_scc1 KM_RZ
    s_lshl_b32 s70, s66, 4
    v_add_u32 v17, s70, v10
    v_mul_u32_u24 v18, 57, v17
    v_lshrrev_b32 v18, 10, v18
    v_lshrrev_b32 v19, 2, v18
    v_mul_u32_u24 v20, 72, v19
    v_sub_u32 v21, v17, v20
    v_add_u32 v21, 72, v21
    v_sub_u32 v22, v16, v20
    v_lshrrev_b32 v23, 4, v22
    v_lshrrev_b32 v24, 4, v21
    v_lshl_add_u32 v23, v23, 1, v24
    v_subrev_u32 v23, 4, v23
    v_and_b32 v24, 15, v21
    v_and_b32 v25, 12, v22
    v_lshl_add_u32 v24, v25, 2, v24
    v_lshlrev_b32 v24, 4, v24
    v_lshl_add_u32 v24, v23, 10, v24
    v_add_u32 v25, 256, v24
    s_mov_b64 s[74:75], -1
    s_branch KM_RC
    ''' % (cb & 0xffffffff, (cb >> 32) & 0xffffffff, kb & 0xffffffff, (kb >> 32) & 0xffffffff, cb >> 64, kb >> 64))
    a.label('KM_RZ')
    a('''
    v_lshrrev_b32 v18, 2, v10
    v_lshlrev_b32 v18, 1, v18
    v_and_b32 v19, 1, v10
    v_add_u32 v18, v18, v19
    v_and_b32 v19, 2, v10
    v_cmp_eq_u32 s[74:75], 0, v19
    v_lshrrev_b32 v19, 2, v18
    v_mul_u32_u24 v20, 72, v19
    v_sub_u32 v22, v16, v20
    v_lshlrev_b32 v24, 2, v22
    v_add_u32 v24, 13312, v24
    v_add_u32 v25, 16, v24
    ''')
    a.label('KM_RC')
    a('''
    v_mul_u32_u24 v26, 18, v18
    v_sub_u32 v26, v26, v16
    v_add_u32 v27, 17, v26
    v_cmp_gt_u32 vcc, 25, v27
    s_and_b64 s[74:75], s[74:75], vcc
    s_lshl_b32 s70, s64, 1
    v_add_u32 v19, s70, v19
    v_mul_u32_u24 v19, %d, v19
    v_add_u32 v24, v24, v19
    v_add_u32 v25, v25, v19
    v_mov_b32 v27, 0x40000000
    v_cndmask_b32 v24, v27, v24, s[74:75]
    v_cndmask_b32 v25, v27, v25, s[74:75]
    s_mov_b32 s70, 0x%x
    ''' % (KVP_REC, WS_KVP))
    R = 32
    for rb in range(16):
        a('buffer_load_dwordx4 %s, v24, %s, s70 offen' % (vr(R + 8 * rb, 4), sr(S_SWS3, 4)))
        a('buffer_load_dwordx4 %s, v25, %s, s70 offen' % (vr(R + 8 * rb + 4, 4), sr(S_SWS3, 4)))
        if rb < 15:
            a('s_add_u32 s70, s70, %d' % (8 * KVP_REC))
    a('''
    s_lshl_b32 s70, s15, 10
    s_add_u32 s70, s70, 0x%x
    s_lshl_b32 s71, s64, 7
    s_lshl_b32 s72, s65, 2
    s_add_u32 s71, s71, s72
    s_add_u32 s71, s71, 0x%x
    s_waitcnt vmcnt(0)
    ''' % (WS_KVF, WS_FLG))
    for st in (8, 4, 2, 1):
        for i in range(st):
            for h in range(0, 8, 2):
                a('v_pk_add_f32 %s, %s, %s' % (vr(R + 8 * i + h, 2), vr(R + 8 * i + h, 2), vr(R + 8 * (i + st) + h, 2)))
    for j in range(8):
        a('v_subrev_u32 v27, v26, %d' % j if False else 'v_sub_u32 v27, %d, v26' % j)
        a('v_cmp_gt_u32 vcc, 18, v27')
        a('s_and_b64 vcc, vcc, s[74:75]')
        a('s_nop 0')
        a('v_cndmask_b32 v%d, 0, v%d, vcc' % (R + j, R + j))
    for k in range(4):
        a('v_cvt_pk_bf16_f32 v%d, v%d, v%d' % (28 + k, R + 2 * k, R + 2 * k + 1))
    a('''
    buffer_store_dwordx4 v[28:31], v%d, %s, s70 offen sc1
    v_mov_b32 v27, 1
    v_mov_b32 v26, 0
    s_mov_b32 s64, s44
    s_and_b32 s65, s45, 0xffff
    s_mov_b32 s66, 256
    s_mov_b32 s67, 0x20000
    s_waitcnt vmcnt(0)
    s_mov_b64 exec, 1
    buffer_atomic_add v27, v26, s[64:67], 0 offen sc0 sc1
    s_waitcnt vmcnt(0)
    v_readfirstlane_b32 s70, v27
    s_mov_b64 exec, -1
    s_cmp_lg_u32 s70, 87
    s_cbranch_scc1 KM_NORED
    v_mov_b32 v27, 1
    v_lshlrev_b32 v26, 7, v1
    s_mov_b32 s70, 0x%x
    buffer_store_dword v27, v26, %s, s70 offen sc1
    s_add_u32 s70, s70, 8192
    buffer_store_dword v27, v26, %s, s70 offen sc1
    s_add_u32 s70, s70, 8192
    buffer_store_dword v27, v26, %s, s70 offen sc1
    s_add_u32 s70, s70, 8192
    buffer_store_dword v27, v26, %s, s70 offen sc1
    ''' % ((V_L16, sr(S_SWS3, 4), WS_GO2) + (sr(S_SWS3, 4),) * 4))


class Proxy:
    def __init__(self, a):
        self._a = a
        self.rec = None
    def __call__(self, txt):
        if self.rec is None:
            self._a(txt)
        else:
            for ln in txt.strip('\n').split('\n'):
                if ln.strip():
                    self.rec.append((True, lambda ln=ln: self._a(ln)))
    def __getattr__(self, n):
        return getattr(self._a, n)
    def __setattr__(self, n, v):
        if n in ('_a', 'rec'):
            object.__setattr__(self, n, v)
        else:
            setattr(self._a, n, v)


class PCnt:
    def __init__(self, px, cnt):
        self.px, self.c = px, cnt
    def issue(self, tag):
        if self.px.rec is None: self.c.issue(tag)
        else: self.px.rec.append((False, lambda: self.c.issue(tag)))
    def wait(self, tag):
        if self.px.rec is None: self.c.wait(tag)
        else: self.px.rec.append((True, lambda: self.c.wait(tag)))
    def reset(self):
        self.c.ops = []


def gen_km(a0):
    a = Proxy(a0)
    def record(*fns):
        a.rec = []
        for f in fns: f()
        r = a.rec
        a.rec = None
        return r
    def pump(side, n):
        while side and n > 0:
            isins, f = side.pop(0)
            f()
            if isins: n -= 1
        while side and not side[0][0]:
            side.pop(0)[1]()
    a.lines.append('.globl km_kernel\n.p2align 8\n.type km_kernel,@function\nkm_kernel:')
    a('s_cmp_ge_u32 s2, %d' % KM_GRID)
    a('s_cbranch_scc1 KM_EXIT')
    a.kidx = 1
    a.stamp_init()
    load_kernargs(a)
    a('''
    v_lshrrev_b32 v2, 6, v0
    v_and_b32 v1, 63, v0
    s_nop 0
    v_readfirstlane_b32 s3, v2
    s_and_b32 s4, s2, 7
    s_lshr_b32 s5, s2, 3
    s_lshl_b32 s4, s4, 3
    s_and_b32 s6, s5, 7
    s_add_u32 s4, s4, s6
    s_lshl_b32 s4, s4, 5
    s_lshr_b32 s14, s5, 3
    s_mul_i32 s5, s14, 144
    v_and_b32 v10, 15, v1
    v_lshrrev_b32 v11, 4, v1
    s_mul_i32 s6, s3, 144
    s_mul_i32 s7, s3, %d
    s_add_u32 s7, s7, %d
    s_and_b32 s12, s3, 1
    s_lshr_b32 s13, s3, 1
    s_lshr_b32 s97, s2, 6
    s_and_b32 s98, s2, 63
    s_mul_i32 s99, s97, 144
    s_add_u32 s99, s99, s98
    v_lshlrev_b32 v2, 4, v0
    v_lshlrev_b32 v3, 4, v1
    s_waitcnt lgkmcnt(0)
    ''' % (NSL * WSLOT, L_WO))
    srd(a, S_SWO, P_WO, 576 * 576 * 2)
    srd(a, S_SWS3, P_WS, WS_END)
    srd(a, S_SOUT, P_OUT, 2048 * 576 * 2)
    vm = PCnt(a, Cnt(a0, 'vmcnt', 63))
    lg = PCnt(a, Cnt(a0, 'lgkmcnt', 15))

    a('''
    s_mul_i32 s8, s6, 1152
    s_lshl_b32 s9, s5, 1
    s_add_u32 s8, s8, s9
    v_mul_u32_u24 v13, 57, v1
    v_lshrrev_b32 v13, 10, v13
    v_mul_u32_u24 v14, 18, v13
    v_sub_u32 v14, v1, v14
    v_mul_u32_u24 v13, 1152, v13
    v_lshl_add_u32 v13, v14, 4, v13
    v_add_u32 v%d, s8, v13
    v_mov_b32 v15, 864
    ''' % WD)
    for i in range(1, 9):
        a('''
        v_add_u32 v14, 10, v14
        v_cmp_le_u32 vcc, 18, v14
        v_add_u32 v%d, %d, v%d
        v_subrev_u32 v13, 18, v14
        v_cndmask_b32 v12, 0, v15, vcc
        v_cndmask_b32 v14, v14, v13, vcc
        v_add_u32 v%d, v%d, v12
        ''' % (WD + i, 3 * 1152 + 160, WD + i - 1, WD + i, WD + i))

    def wo_dma(k):
        a('s_mov_b32 s73, 0x%x' % (k * 32 * 1152))
        for i in range(9 if k < 4 else 5):
            a('s_add_u32 m0, s7, 0x%x' % ((k % NSL) * WSLOT + i * 1024))
            a('s_nop 0')
            a('buffer_load_dwordx4 v%d, %s, s73 offen lds' % (WD + i, sr(S_SWO, 4)))
            vm.issue(('W', k))
    def wo_drain(k, wait=True):
        vm.wait(('W', k))
        for j in range(9):
            a('ds_read_b64_tr_b16 %s, v%d offset:%d' % (ar(WOF(j, k), 2), V_TRW, (k % NSL) * WSLOT + 32 * j))
            lg.issue(('WO', k))
            if k < 4:
                a('ds_read_b64_tr_b16 %s, v%d offset:%d' % (ar(WOF(j, k) + 2, 2), V_TRW, (k % NSL) * WSLOT + 32 * j + 16 * 288))
                lg.issue(('WO', k))
        if wait:
            lg.wait(('WO', k))
    a('''
    s_lshl_b32 s9, s3, 3
    s_add_u32 s8, s9, s4
    s_mul_i32 s8, s8, 1152
    s_lshl_b32 s11, s3, 13
    s_add_u32 s11, s11, %d
    s_and_b32 s9, s9, 15
    v_xor_b32 v12, s9, v1
    ''' % L_PQ)
    for i in range(8):
        a('v_xor_b32 v13, %d, v12' % i)
        a('s_add_u32 m0, s11, %d' % (1024 * i))
        a('v_lshlrev_b32 v13, 4, v13')
        a('buffer_load_dwordx4 v13, %s, s8 offen lds' % sr(S_SWS3, 4))
        a('s_add_u32 s8, s8, 1152')
        vm.issue(('PQ',))
    a('''
    v_lshrrev_b32 v12, 3, v1
    v_and_b32 v13, 7, v1
    v_xor_b32 v13, v13, v12
    v_mul_u32_u24 v12, 1152, v12
    v_lshl_add_u32 v13, v13, 4, v12
    s_sub_u32 s8, s8, %d
    s_lshl_b32 s11, s3, 10
    s_add_u32 m0, s11, %d
    s_nop 0
    buffer_load_dwordx4 v13, %s, s8 offen lds
    ''' % (8 * 1152 - 1024, L_PQ + 32768, sr(S_SWS3, 4)))
    vm.issue(('PQ',))
    a('''
    s_lshl_b32 s9, s12, 4
    s_add_u32 s9, s9, s4
    v_add_u32 v12, s9, v10
    v_lshlrev_b32 v12, 2, v12
    s_mov_b32 s9, 0x%x
    buffer_load_dword v%d, v12, %s, s9 offen
    ''' % (WS_G, V_G, sr(S_SWS3, 4)))
    vm.issue(('G',))
    KVF = {}
    a('s_mul_i32 s8, s3, %d' % (22 * 1024))
    a('s_add_u32 s8, s8, 0x%x' % WS_KVF)
    idx = 0
    for f, (c, k) in enumerate(FRAGS):
        if f % 4 == 0 and f:
            a('s_add_u32 s8, s8, 4096')
        if c == 'Z':
            dst = ar(A_ZF + 4 * k, 4)
        else:
            KVF[(c, k)] = A_KVF + 4 * idx
            idx += 1
            dst = ar(KVF[(c, k)], 4)
        a('buffer_load_dwordx4 %s, v3, %s, s8 offen offset:%d' % (dst, sr(S_SWS3, 4), 1024 * (f % 4)))
        vm.issue(('F', f))
    a('''
    v_lshrrev_b32 v12, 2, v10
    v_lshl_add_u32 v13, v11, 2, v12
    v_mul_u32_u24 v14, 288, v13
    v_and_b32 v15, 3, v1
    v_lshl_add_u32 v14, v15, 3, v14
    v_add_u32 v%d, s7, v14
    v_lshlrev_b32 v14, 6, v13
    v_lshl_add_u32 v14, v15, 3, v14
    s_lshl_b32 s9, s12, 5
    s_lshl_b32 s11, s13, 10
    s_add_u32 s9, s9, s11
    s_add_u32 s9, s9, %d
    v_add_u32 v%d, s9, v14
    v_lshlrev_b32 v12, 10, v10
    v_add_u32 v12, %d, v12
    v_lshlrev_b32 v15, 7, v10
    v_add_u32 v15, %d, v15
    v_and_b32 v13, 7, v10
    s_mul_i32 s9, s3, 18
    ''' % (V_TRW, L_BT, V_TRB, L_PQ, L_PQ + 32768))
    for k in range(5):
        if k < 4:
            a('v_add_u32 v14, %d, v11' % (4 * k))
        else:
            a('v_and_b32 v14, 1, v11')
            a('v_add_u32 v14, 16, v14')
        a('v_add_u32 v14, s9, v14')
        a('v_cmp_le_u32 vcc, 64, v14')
        a('v_xor_b32 v16, v14, v10')
        a('v_lshl_add_u32 v16, v16, 4, v12')
        a('v_add_u32 v17, 16384, v16')
        a('v_xor_b32 v14, v14, v13')
        a('v_and_b32 v14, 7, v14')
        a('v_lshl_add_u32 v14, v14, 4, v15')
        a('v_add_u32 v18, 2048, v14')
        a('v_cndmask_b32 v%d, v16, v14, vcc' % (PQA + k))
        a('v_cndmask_b32 v%d, v17, v18, vcc' % (PQB + k))
    def sel_loads():
        a('s_mov_b32 s76, 0x%x' % WS_SEL)
        for c in range(9):
            if c == 4 or c == 8:
                a('s_add_u32 s76, s76, 4096')
            a('buffer_load_dwordx4 %s, v3, %s, s76 offen offset:%d' % (vr(56 + 4 * c, 4), sr(S_SWS3, 4), 1024 * (c % 4)))
            vm.issue(('SEL',))
    def bt_dma():
        a('''
        s_mul_i32 s76, s5, 4352
        s_lshl_b32 s77, s4, 1
        s_add_u32 s76, s76, s77
        s_add_u32 s76, s76, 0x%x
        v_lshrrev_b32 v234, 2, v1
        v_mul_u32_u24 v234, 4352, v234
        v_and_b32 v235, 3, v1
        v_lshl_add_u32 v234, v235, 4, v234
        s_mul_i32 s77, s3, 139264
        s_add_u32 s77, s77, s76
        s_lshl_b32 s78, s3, 11
        s_add_u32 m0, s78, %d
        s_nop 0
        buffer_load_dwordx4 v234, %s, s77 offen lds
        s_add_u32 s77, s77, 69632
        s_add_u32 m0, s78, %d
        s_nop 0
        buffer_load_dwordx4 v234, %s, s77 offen lds
        s_add_u32 s77, s76, 557056
        s_mov_b32 m0, %d
        s_nop 0
        buffer_load_dwordx4 v234, %s, s77 offen lds
        ''' % (WS_BT, L_BT, sr(S_SWS3, 4), L_BT + 1024, sr(S_SWS3, 4), L_BT + 8192, sr(S_SWS3, 4)))
        for i in range(3): vm.issue(('BT',))

    st4 = lambda i: None
    side = record(sel_loads, lambda: wo_dma(0), lambda: wo_dma(1), lambda: wo_dma(2), bt_dma)
    pump(side, 45)
    SELR = 56
    a.stamp(1)
    vm.wait(('PQ',))
    PQ = lambda k, st: 16 + (k * 2 + st) * 4
    a('s_barrier')
    for k in range(5):
        for st in range(2):
            a('ds_read_b128 %s, v%d' % (vr(PQ(k, st), 4), (PQA if st == 0 else PQB) + k))
            lg.issue(('PQF', k))
    a('s_mov_b32 s66, 0x0000bf80')
    a('s_mov_b32 s67, 0xbf800000')
    a('s_mov_b32 s68, 0x%x' % f32bits(1e-6))
    DEN = lambda st: 216 + 4 * st
    lg.wait(('PQF', 4))
    for k in range(5):
        vm.wait(('F', k))
        for st in range(2):
            cin = '0' if k == 0 else vr(DEN(st), 4)
            a('v_mfma_f32_16x16x32_bf16 %s, %s, %s, %s' % (vr(DEN(st), 4), ar(A_ZF + 4 * k, 4), vr(PQ(k, st), 4), cin))
            pump(side, 2)
    NUM = lambda c, st: 144 + (c * 2 + st) * 4
    RT = lambda st: 124 + 4 * st
    T = lambda st: 132 + 6 * st
    def rterms():
        for st in range(2):
            a('v_cvt_pk_bf16_f32 v%d, v%d, v%d' % (T(st), DEN(st), DEN(st) + 1))
        for st in range(2):
            a('v_lshlrev_b32 v%d, 16, v%d' % (T(st) + 2, T(st)))
            a('v_and_b32 v%d, 0xffff0000, v%d' % (T(st) + 3, T(st)))
        for st in range(2):
            a('v_add_f32 v%d, s68, v%d' % (T(st) + 2, T(st) + 2))
            a('v_add_f32 v%d, s68, v%d' % (T(st) + 3, T(st) + 3))
        for st in range(2):
            a('v_cvt_pk_bf16_f32 v%d, v%d, v%d' % (T(st), T(st) + 2, T(st) + 3))
        for st in range(2):
            a('v_lshlrev_b32 v%d, 16, v%d' % (T(st) + 2, T(st)))
            a('v_and_b32 v%d, 0xffff0000, v%d' % (T(st) + 3, T(st)))
        for st in range(2):
            a('v_rcp_f32 v%d, v%d' % (T(st) + 2, T(st) + 2))
            a('v_rcp_f32 v%d, v%d' % (T(st) + 3, T(st) + 3))
        a.nop(1)
        for term in range(3):
            for st in range(2):
                a('v_cvt_pk_bf16_f32 v%d, v%d, v%d' % (RT(st) + term, T(st) + 2, T(st) + 3))
            if term < 2:
                for st in range(2):
                    a('v_dot2_f32_bf16 v%d, v%d, s66, v%d' % (T(st) + 2, RT(st) + term, T(st) + 2))
                    a('v_dot2_f32_bf16 v%d, v%d, s67, v%d' % (T(st) + 3, RT(st) + term, T(st) + 3))
                a.nop(3)
        for st in range(2):
            a('v_mov_b32 v%d, 0' % (RT(st) + 3))
    f = 5
    for c in range(9):
        for i, k in enumerate(STEPS[c]):
            vm.wait(('F', f)); f += 1
            for st in range(2):
                cin = '0' if i == 0 else vr(NUM(c, st), 4)
                a('v_mfma_f32_16x16x32_bf16 %s, %s, %s, %s' % (vr(NUM(c, st), 4), ar(KVF[(c, k)], 4), vr(PQ(k, st), 4), cin))
                pump(side, 2)
        if c == 3:
            rterms()
    a.stamp(4)
    pump(side, 10 ** 6)
    vm.wait(('SEL',))
    side = record(lambda: wo_drain(0), lambda: wo_dma(3), lambda: wo_drain(1), lambda: wo_dma(4))
    OB = 16
    RR = lambda i: 100 + 4 * i
    TT = 116
    def proc(cc):
        for st in range(2):
            n = NUM(cc, st)
            a('v_cvt_pk_bf16_f32 v%d, v%d, v%d' % (n, n, n + 1))
            a('v_cvt_pk_bf16_f32 v%d, v%d, v%d' % (n + 2, n + 2, n + 3))
        for st in range(2):
            n = NUM(cc, st)
            t = TT + 4 * st
            a('v_lshlrev_b32 v%d, 16, v%d' % (t, n))
            a('v_and_b32 v%d, 0xffff0000, v%d' % (t + 1, n))
            a('v_lshlrev_b32 v%d, 16, v%d' % (t + 2, n + 2))
            a('v_and_b32 v%d, 0xffff0000, v%d' % (t + 3, n + 2))
        for st in range(2):
            t = TT + 4 * st
            r = RR((cc % 2) * 2 + st)
            a('v_pk_mul_f32 %s, %s, %s' % (vr(t, 2), vr(t, 2), vr(r, 2)))
            a('v_pk_mul_f32 %s, %s, %s' % (vr(t + 2, 2), vr(t + 2, 2), vr(r + 2, 2)))
        for st in range(2):
            t = TT + 4 * st
            o = OB + st * 18 + 2 * cc
            a('v_cvt_pk_bf16_f32 v%d, v%d, v%d' % (o, t, t + 1))
            a('v_cvt_pk_bf16_f32 v%d, v%d, v%d' % (o + 1, t + 2, t + 3))
    ACC2 = lambda j, st: 56 + (j * 2 + st) * 4 if False else 144 + (j * 2 + st) * 4
    for c in range(9):
        for st in range(2):
            a('v_mfma_f32_16x16x32_bf16 %s, %s, %s, 0' % (vr(RR((c % 2) * 2 + st), 4), vr(SELR + 4 * c, 4), vr(RT(st), 4)))
        if c >= 1:
            proc(c - 1)
        if c >= 2: pump(side, 12)
    a.nop(4)
    proc(8)
    pump(side, 10 ** 6)
    a.stamp(5)
    st4(4)
    wo_drain(2, wait=False)
    for k in range(5):
        if k == 1: wo_drain(3, wait=False)
        if k == 2: wo_drain(4, wait=False)
        lg.wait(('WO', k))
        for j in range(9):
            for st in range(2):
                cin = '0' if k == 0 else vr(ACC2(j, st), 4)
                if k < 4:
                    a('v_mfma_f32_16x16x32_bf16 %s, %s, %s, %s' % (vr(ACC2(j, st), 4), ar(WOF(j, k), 4), vr(OB + st * 18 + 4 * k, 4), cin))
                else:
                    a('v_mfma_f32_16x16x16_bf16 %s, %s, %s, %s' % (vr(ACC2(j, st), 4), ar(WOF(j, k), 2), vr(OB + st * 18 + 16, 2), cin))
    a.stamp(6)
    st4(6)
    RS = 304
    a('''
    s_lshl_b32 s9, s3, 10
    v_add_u32 v13, s9, v3
    v_add_u32 v14, 0x9000, v13
    s_waitcnt vmcnt(0)
    s_nop 4
    s_barrier
    ''')
    for t in range(18):
        j, st = t >> 1, t & 1
        if t < 9:
            a('ds_write_b128 v13, %s offset:%d' % (vr(ACC2(j, st), 4), t * 4096))
        else:
            a('ds_write_b128 v14, %s offset:%d' % (vr(ACC2(j, st), 4), (t - 9) * 4096))
    a('''
    s_lshl_b32 s9, s3, 12
    v_add_u32 v13, s9, v3
    v_add_u32 v14, 0x8000, v13
    s_lshl_b32 s9, s12, 4
    v_add_u32 v15, s9, v10
    v_mul_u32_u24 v15, %d, v15
    v_lshl_add_u32 v15, v11, 3, v15
    s_lshl_b32 s9, s13, 5
    s_add_u32 s9, s9, %d
    v_add_u32 v15, s9, v15
    v_sub_f32 v%d, 1.0, v%d
    v_cvt_pk_bf16_f32 v%d, v%d, v%d
    v_lshlrev_b32 v%d, 16, v%d
    s_mul_i32 s8, s4, 1152
    s_lshl_b32 s9, s5, 1
    s_add_u32 s8, s8, s9
    s_mov_b32 s11, %d
    ''' % (RS, L_PQ, V_OMG, V_G, V_OMG, V_OMG, V_OMG, V_OMG, V_OMG, L_PQ))
    for i in range(3):
        a('''
        v_add_u32 v12, %d, v0
        v_mul_u32_u24 v4, 3641, v12
        v_lshrrev_b32 v4, 16, v4
        v_mul_u32_u24 v5, 18, v4
        v_sub_u32 v5, v12, v5
        v_lshlrev_b32 v5, 4, v5
        v_mul_u32_u24 v12, %d, v4
        v_add3_u32 v%d, v12, v5, s11
        v_mul_u32_u24 v4, 1152, v4
        v_add_u32 v%d, v4, v5
        ''' % (256 * i, RS, 228 + i, 232 + i))
    a('s_waitcnt lgkmcnt(0)')
    a('s_barrier')
    def reads(it):
        R = 16 + 24 * it
        for w in range(4):
            if it < 2:
                a('ds_read_b128 %s, v13 offset:%d' % (vr(R + 4 * w, 4), it * 16384 + w * 1024))
            else:
                a('ds_read_b128 %s, v14 offset:%d' % (vr(R + 4 * w, 4), (it - 2) * 16384 + w * 1024))
        a('ds_read_b64_tr_b16 %s, v%d offset:%d' % (vr(R + 16, 2), V_TRB, it * 2048))
    def comp(its):
        def each(fn):
            for it in its: fn(16 + 24 * it, it)
        each(lambda R, it: [a('v_pk_add_f32 %s, %s, %s' % (vr(R + o + h, 2), vr(R + o + h, 2), vr(R + o + 4 + h, 2))) for h in (0, 2) for o in (0, 8)])
        each(lambda R, it: [a('v_pk_add_f32 %s, %s, %s' % (vr(R + h, 2), vr(R + h, 2), vr(R + 8 + h, 2))) for h in (0, 2)])
        each(lambda R, it: [a('v_cvt_pk_bf16_f32 v%d, v%d, v%d' % (R + 4 + k, R + 2 * k, R + 2 * k + 1)) for k in range(2)])
        def unp(R, it):
            for k in range(2):
                a('v_lshlrev_b32 v%d, 16, v%d' % (R + 2 * k, R + 4 + k))
                a('v_and_b32 v%d, 0xffff0000, v%d' % (R + 2 * k + 1, R + 4 + k))
                a('v_lshlrev_b32 v%d, 16, v%d' % (R + 8 + 2 * k, R + 16 + k))
                a('v_and_b32 v%d, 0xffff0000, v%d' % (R + 8 + 2 * k + 1, R + 16 + k))
        each(unp)
        def mul(R, it):
            for h in (0, 2):
                a('v_pk_mul_f32 %s, %s, %s op_sel_hi:[1,0]' % (vr(R + h, 2), vr(R + h, 2), vr(V_G, 2)))
                a('v_pk_mul_f32 %s, %s, %s op_sel:[0,1] op_sel_hi:[1,1]' % (vr(R + 8 + h, 2), vr(R + 8 + h, 2), vr(V_G, 2)))
        each(mul)
        def cv(R, it):
            for k in range(2):
                a('v_cvt_pk_bf16_f32 v%d, v%d, v%d' % (R + 4 + k, R + 2 * k, R + 2 * k + 1))
                a('v_cvt_pk_bf16_f32 v%d, v%d, v%d' % (R + 6 + k, R + 8 + 2 * k, R + 8 + 2 * k + 1))
        each(cv)
        def unp2(R, it):
            for k in range(2):
                a('v_lshlrev_b32 v%d, 16, v%d' % (R + 2 * k, R + 4 + k))
                a('v_and_b32 v%d, 0xffff0000, v%d' % (R + 2 * k + 1, R + 4 + k))
                a('v_lshlrev_b32 v%d, 16, v%d' % (R + 8 + 2 * k, R + 6 + k))
                a('v_and_b32 v%d, 0xffff0000, v%d' % (R + 8 + 2 * k + 1, R + 6 + k))
        each(unp2)
        each(lambda R, it: [a('v_pk_add_f32 %s, %s, %s' % (vr(R + h, 2), vr(R + h, 2), vr(R + 8 + h, 2))) for h in (0, 2)])
        each(lambda R, it: [a('v_cvt_pk_bf16_f32 v%d, v%d, v%d' % (R + 18 + k, R + 2 * k, R + 2 * k + 1)) for k in range(2)])
        each(lambda R, it: a('ds_write_b64 v15, %s offset:%d' % (vr(R + 18, 2), it * 64)))
    for it in range(4):
        reads(it)
    a('s_waitcnt lgkmcnt(10)')
    comp([0, 1])
    a('s_waitcnt lgkmcnt(2)')
    comp([2, 3])
    a('s_cmp_ge_u32 s3, 2')
    a('s_cbranch_scc1 KM_S4')
    reads(4)
    a('s_waitcnt lgkmcnt(0)')
    comp([4])
    a.label('KM_S4')
    a('''
    s_waitcnt lgkmcnt(0)
    s_barrier
    ds_read_b128 v[16:19], v228
    ds_read_b128 v[20:23], v229
    s_waitcnt lgkmcnt(1)
    buffer_store_dwordx4 v[16:19], v232, %s, s8 offen
    s_waitcnt lgkmcnt(0)
    buffer_store_dwordx4 v[20:23], v233, %s, s8 offen
    s_cmp_lg_u32 s3, 0
    s_cbranch_scc1 KM_FIN
    ds_read_b128 v[24:27], v230
    s_waitcnt lgkmcnt(0)
    buffer_store_dwordx4 v[24:27], v234, %s, s8 offen
    ''' % ((sr(S_SOUT, 4),) * 3))
    a.label('KM_FIN')
    a.endpgm()
    a.label('KM_EXIT')
    a('s_endpgm')
```

```python
from asmlib import *
from gen_k1 import *

KM_GRID = 256
CSZ = 4160
KLO = 4 * CSZ
UKSZ = KLO + 4608
L_UK = 0
L_RED = 2 * UKSZ
L_WO = L_RED + 32768
WSLOT = 9216
L_PQ = L_WO + 4 * WSLOT
KM_LDS = L_PQ + 36864
KM_ACCUM = 256
KM_VGPR = 256 + 256

S_SWO, S_SWS3, S_SOUT, S_SU = 48, 52, 56, 60
STEPS = {0: [0], 1: [0, 1], 2: [0, 1], 3: [1, 2], 4: [1, 2], 5: [2, 3], 6: [2, 3], 7: [3, 4], 8: [3, 4]}
FRAGS = [('Z', k) for k in range(5)] + [(c, k) for c in range(9) for k in STEPS[c]]

V_TID16 = 2
V_L16 = 3
V_TRW, V_TRB = 6, 7
V_G, V_OMG = 8, 9
V_UW0, V_UW2 = 236, 237
V_AA, V_BA = 238, 239
WD = 240
PQA = 249
PQB = 228
V_RW, V_RR = 254, 255
WOF = lambda j, k: (k * 36 + 4 * j) if k < 4 else (144 + 2 * j)
A_KVF = 164
A_ZF = 232


SK = lambda q: [76, 78, 100][q]


def poll(a, vaddr, soff, nlanes, tmpv, lbl):
    mask_lo = (1 << min(nlanes, 32)) - 1
    mask_hi = ((1 << (nlanes - 32)) - 1) if nlanes > 32 else 0
    a('s_mov_b32 s70, 0x%x' % mask_lo)
    a('s_mov_b32 s71, 0x%x' % mask_hi)
    a('s_mov_b32 s72, 0')
    a.label(lbl)
    a('buffer_load_dword v%d, v%d, %s, %s offen sc1' % (tmpv, vaddr, sr(S_SWS3, 4), soff))
    a('s_add_u32 s72, s72, 1')
    a('s_waitcnt vmcnt(0)')
    a('v_cmp_ne_u32 vcc, 0, v%d' % tmpv)
    a('s_and_b64 vcc, vcc, s[70:71]')
    a('s_cmp_eq_u64 vcc, s[70:71]')
    a('s_cbranch_scc1 %s_ok' % lbl)
    a('s_cmp_gt_u32 s72, 0x8000')
    a('s_cbranch_scc1 %s_ok' % lbl)
    a('s_sleep 2')
    a('s_branch %s' % lbl)
    a.label(lbl + '_ok')


def reduce_task(a):
    cb = sum(((15 if c == 'Z' else c) << (4 * f)) for f, (c, k) in enumerate(FRAGS))
    kb = sum((k << (4 * f)) for f, (c, k) in enumerate(FRAGS))
    a('''
    s_mul_i32 s64, s15, 94
    s_lshr_b32 s64, s64, 11
    s_mul_i32 s65, s64, 22
    s_sub_u32 s65, s15, s65
    s_mov_b32 s66, 0x%x
    s_mov_b32 s67, 0x%x
    s_mov_b32 s68, 0x%x
    s_mov_b32 s69, 0x%x
    s_cmp_ge_u32 s65, 16
    s_cselect_b32 s66, 0x%x, s66
    s_cselect_b32 s68, 0x%x, s68
    s_and_b32 s70, s65, 15
    s_lshl_b32 s70, s70, 2
    s_lshr_b64 s[66:67], s[66:67], s70
    s_lshr_b64 s[68:69], s[68:69], s70
    s_and_b32 s66, s66, 15
    s_and_b32 s68, s68, 15
    s_lshl_b32 s70, s68, 5
    v_lshl_add_u32 v16, v11, 3, s70
    s_cmp_eq_u32 s66, 15
    s_cbranch_scc1 KM_RZ
    s_lshl_b32 s70, s66, 4
    v_add_u32 v17, s70, v10
    v_mul_u32_u24 v18, 57, v17
    v_lshrrev_b32 v18, 10, v18
    v_lshrrev_b32 v19, 2, v18
    v_mul_u32_u24 v20, 72, v19
    v_sub_u32 v21, v17, v20
    v_add_u32 v21, 72, v21
    v_sub_u32 v22, v16, v20
    v_lshrrev_b32 v23, 4, v22
    v_lshrrev_b32 v24, 4, v21
    v_lshl_add_u32 v23, v23, 1, v24
    v_subrev_u32 v23, 4, v23
    v_and_b32 v24, 15, v21
    v_and_b32 v25, 12, v22
    v_lshl_add_u32 v24, v25, 2, v24
    v_lshlrev_b32 v24, 4, v24
    v_lshl_add_u32 v24, v23, 10, v24
    v_add_u32 v25, 256, v24
    s_mov_b64 s[74:75], -1
    s_branch KM_RC
    ''' % (cb & 0xffffffff, (cb >> 32) & 0xffffffff, kb & 0xffffffff, (kb >> 32) & 0xffffffff, cb >> 64, kb >> 64))
    a.label('KM_RZ')
    a('''
    v_lshrrev_b32 v18, 2, v10
    v_lshlrev_b32 v18, 1, v18
    v_and_b32 v19, 1, v10
    v_add_u32 v18, v18, v19
    v_and_b32 v19, 2, v10
    v_cmp_eq_u32 s[74:75], 0, v19
    v_lshrrev_b32 v19, 2, v18
    v_mul_u32_u24 v20, 72, v19
    v_sub_u32 v22, v16, v20
    v_lshlrev_b32 v24, 2, v22
    v_add_u32 v24, 13312, v24
    v_add_u32 v25, 16, v24
    ''')
    a.label('KM_RC')
    a('''
    v_mul_u32_u24 v26, 18, v18
    v_sub_u32 v26, v26, v16
    v_add_u32 v27, 17, v26
    v_cmp_gt_u32 vcc, 25, v27
    s_and_b64 s[74:75], s[74:75], vcc
    s_lshl_b32 s70, s64, 1
    v_add_u32 v19, s70, v19
    v_mul_u32_u24 v19, %d, v19
    v_add_u32 v24, v24, v19
    v_add_u32 v25, v25, v19
    v_mov_b32 v27, 0x40000000
    v_cndmask_b32 v24, v27, v24, s[74:75]
    v_cndmask_b32 v25, v27, v25, s[74:75]
    s_mov_b32 s70, 0x%x
    ''' % (KVP_REC, WS_KVP))
    R = 32
    for rb in range(16):
        a('buffer_load_dwordx4 %s, v24, %s, s70 offen' % (vr(R + 8 * rb, 4), sr(S_SWS3, 4)))
        a('buffer_load_dwordx4 %s, v25, %s, s70 offen' % (vr(R + 8 * rb + 4, 4), sr(S_SWS3, 4)))
        if rb < 15:
            a('s_add_u32 s70, s70, %d' % (8 * KVP_REC))
    a('''
    s_lshl_b32 s70, s15, 10
    s_add_u32 s70, s70, 0x%x
    s_lshl_b32 s71, s64, 7
    s_lshl_b32 s72, s65, 2
    s_add_u32 s71, s71, s72
    s_add_u32 s71, s71, 0x%x
    s_waitcnt vmcnt(0)
    ''' % (WS_KVF, WS_FLG))
    for st in (8, 4, 2, 1):
        for i in range(st):
            for h in range(0, 8, 2):
                a('v_pk_add_f32 %s, %s, %s' % (vr(R + 8 * i + h, 2), vr(R + 8 * i + h, 2), vr(R + 8 * (i + st) + h, 2)))
    for j in range(8):
        a('v_subrev_u32 v27, v26, %d' % j if False else 'v_sub_u32 v27, %d, v26' % j)
        a('v_cmp_gt_u32 vcc, 18, v27')
        a('s_and_b64 vcc, vcc, s[74:75]')
        a('s_nop 0')
        a('v_cndmask_b32 v%d, 0, v%d, vcc' % (R + j, R + j))
    for k in range(4):
        a('v_cvt_pk_bf16_f32 v%d, v%d, v%d' % (28 + k, R + 2 * k, R + 2 * k + 1))
    a('''
    buffer_store_dwordx4 v[28:31], v%d, %s, s70 offen sc1
    v_mov_b32 v27, 1
    v_mov_b32 v26, 0
    s_waitcnt vmcnt(0)
    s_mov_b64 exec, 1
    buffer_store_dword v27, v26, %s, s71 offen sc1
    s_mov_b64 exec, -1
    ''' % (V_L16, sr(S_SWS3, 4), sr(S_SWS3, 4)))


class Proxy:
    def __init__(self, a):
        self._a = a
        self.rec = None
    def __call__(self, txt):
        if self.rec is None:
            self._a(txt)
        else:
            for ln in txt.strip('\n').split('\n'):
                if ln.strip():
                    self.rec.append((True, lambda ln=ln: self._a(ln)))
    def __getattr__(self, n):
        return getattr(self._a, n)
    def __setattr__(self, n, v):
        if n in ('_a', 'rec'):
            object.__setattr__(self, n, v)
        else:
            setattr(self._a, n, v)


class PCnt:
    def __init__(self, px, cnt):
        self.px, self.c = px, cnt
    def issue(self, tag):
        if self.px.rec is None: self.c.issue(tag)
        else: self.px.rec.append((False, lambda: self.c.issue(tag)))
    def wait(self, tag):
        if self.px.rec is None: self.c.wait(tag)
        else: self.px.rec.append((True, lambda: self.c.wait(tag)))
    def reset(self):
        self.c.ops = []


def gen_km(a0):
    a = Proxy(a0)
    def record(*fns):
        a.rec = []
        for f in fns: f()
        r = a.rec
        a.rec = None
        return r
    def pump(side, n):
        while side and n > 0:
            isins, f = side.pop(0)
            f()
            if isins: n -= 1
        while side and not side[0][0]:
            side.pop(0)[1]()
    a.lines.append('.globl km_kernel\n.p2align 8\n.type km_kernel,@function\nkm_kernel:')
    a('s_cmp_ge_u32 s2, %d' % KM_GRID)
    a('s_cbranch_scc1 KM_EXIT')
    a.kidx = 1
    a.stamp_init()
    load_kernargs(a)
    a('''
    v_lshrrev_b32 v2, 6, v0
    v_and_b32 v1, 63, v0
    s_nop 0
    v_readfirstlane_b32 s3, v2
    s_and_b32 s4, s2, 7
    s_lshr_b32 s5, s2, 3
    s_lshl_b32 s4, s4, 3
    s_and_b32 s6, s5, 7
    s_add_u32 s4, s4, s6
    s_lshl_b32 s4, s4, 5
    s_lshr_b32 s14, s5, 3
    s_mul_i32 s5, s14, 144
    v_and_b32 v10, 15, v1
    v_lshrrev_b32 v11, 4, v1
    s_mul_i32 s6, s3, 144
    s_mul_i32 s7, s3, %d
    s_add_u32 s7, s7, %d
    s_and_b32 s12, s3, 1
    s_lshr_b32 s13, s3, 1
    s_lshr_b32 s97, s2, 6
    s_and_b32 s98, s2, 63
    s_mul_i32 s99, s97, 144
    s_add_u32 s99, s99, s98
    v_lshlrev_b32 v2, 4, v0
    v_lshlrev_b32 v3, 4, v1
    s_waitcnt lgkmcnt(0)
    ''' % (WSLOT, L_WO))
    srd(a, S_SWO, P_WO, 576 * 576 * 2)
    srd(a, S_SWS3, P_WS, WS_END)
    srd(a, S_SOUT, P_OUT, 2048 * 576 * 2)
    vm = PCnt(a, Cnt(a0, 'vmcnt', 63))
    lg = PCnt(a, Cnt(a0, 'lgkmcnt', 15))

    INB = lambda q: 200 + 8 * (q % 3)
    SC = lambda q: 64 + 4 * (q % 3)
    def conv_in(q):
        b = INB(q)
        a('''
        s_add_u32 s8, s99, %d
        s_min_u32 s8, s8, 575
        s_lshl_b32 s9, s8, 12
        s_add_u32 s9, s9, 0x%x
        s_add_u32 s60, s46, s9
        s_addc_u32 s61, s47, 0
        s_and_b32 s61, s61, 0xffff
        s_mov_b32 s62, 4096
        s_mov_b32 s63, 0x20000
        s_lshl_b32 s9, s8, 7
        s_add_u32 s9, s9, 0x%x
        buffer_load_dword v%d, v4, %s, s9 offen
        buffer_load_dword v%d, v5, s[60:63], 0 offen
        buffer_load_dwordx4 %s, v2, s[60:63], 0 offen
        s_mul_i32 s9, s8, %d
        s_add_u32 s9, s9, 0x%x
        s_add_u32 s10, s9, 4576
        s_load_dword s%d, s[46:47], s10
        s_lshr_b32 s10, s8, 1
        s_lshl_b32 s10, s10, 2
        s_load_dword s%d, s[38:39], s10
        s_lshl_b32 s10, s3, 10
        s_add_u32 m0, s10, %d
        s_add_u32 s10, s9, 4096
        buffer_load_dwordx4 v2, %s, s9 offen lds
        s_mov_b32 m0, %d
        s_mov_b32 exec_hi, 0
        buffer_load_dwordx4 v3, %s, s10 offen lds
        s_mov_b32 exec_hi, -1
        ''' % (64 * q, WS_XT, WS_PM, b, sr(S_SWS3, 4), b + 1, vr(b + 2, 4), KF_STRIDE, WS_KF, SK(q), SK(q) + 1,
               L_UK + (q % 2) * UKSZ + KLO, sr(S_SWS3, 4), L_UK + (q % 2) * UKSZ + KLO + 4096, sr(S_SWS3, 4)))
        for i in range(3): vm.issue(('IN', q))
        for i in range(2): vm.issue(('KD', q))

    a('''
    v_and_b32 v4, 31, v1
    v_lshlrev_b32 v4, 2, v4
    v_subrev_u32 v5, 4, v2
    ''')
    conv_in(0)
    conv_in(1)

    a('''
    s_sub_u32 s15, s98, 16
    s_cmp_ge_u32 s15, 6
    s_cbranch_scc1 KM_NORED
    s_mul_i32 s8, s97, 6
    s_add_u32 s15, s15, s8
    s_cmp_ge_u32 s15, 22
    s_cbranch_scc1 KM_NORED
    s_lshl_b32 s15, s15, 2
    s_add_u32 s15, s15, s3
    ''')
    reduce_task(a)
    a.label('KM_NORED')

    a('''
    s_mul_i32 s8, s6, 1152
    s_lshl_b32 s9, s5, 1
    s_add_u32 s8, s8, s9
    v_mul_u32_u24 v13, 57, v1
    v_lshrrev_b32 v13, 10, v13
    v_mul_u32_u24 v14, 18, v13
    v_sub_u32 v14, v1, v14
    v_mul_u32_u24 v13, 1152, v13
    v_lshl_add_u32 v13, v14, 4, v13
    v_add_u32 v%d, s8, v13
    v_mov_b32 v15, 864
    ''' % WD)
    for i in range(1, 9):
        a('''
        v_add_u32 v14, 10, v14
        v_cmp_le_u32 vcc, 18, v14
        v_add_u32 v%d, %d, v%d
        v_subrev_u32 v13, 18, v14
        v_cndmask_b32 v12, 0, v15, vcc
        v_cndmask_b32 v14, v14, v13, vcc
        v_add_u32 v%d, v%d, v12
        ''' % (WD + i, 3 * 1152 + 160, WD + i - 1, WD + i, WD + i))

    def wo_dma(k):
        a('s_mov_b32 s73, 0x%x' % (k * 32 * 1152))
        for i in range(9 if k < 4 else 5):
            a('s_add_u32 m0, s7, 0x%x' % (i * 1024))
            a('s_nop 0')
            a('buffer_load_dwordx4 v%d, %s, s73 offen lds' % (WD + i, sr(S_SWO, 4)))
            vm.issue(('W', k))
    def wo_drain(k, wait=True):
        vm.wait(('W', k))
        for j in range(9):
            a('ds_read_b64_tr_b16 %s, v%d offset:%d' % (ar(WOF(j, k), 2), V_TRW, 32 * j))
            lg.issue(('WO', k))
            if k < 4:
                a('ds_read_b64_tr_b16 %s, v%d offset:%d' % (ar(WOF(j, k) + 2, 2), V_TRW, 32 * j + 16 * 288))
                lg.issue(('WO', k))
        if wait:
            lg.wait(('WO', k))
    wo_dma(0)

    a('''
    s_lshl_b32 s9, s3, 3
    s_add_u32 s8, s9, s4
    s_mul_i32 s8, s8, 1152
    s_lshl_b32 s11, s3, 13
    s_add_u32 s11, s11, %d
    s_and_b32 s9, s9, 15
    v_xor_b32 v12, s9, v1
    ''' % L_PQ)
    for i in range(8):
        a('v_xor_b32 v13, %d, v12' % i)
        a('s_add_u32 m0, s11, %d' % (1024 * i))
        a('v_lshlrev_b32 v13, 4, v13')
        a('buffer_load_dwordx4 v13, %s, s8 offen lds' % sr(S_SWS3, 4))
        a('s_add_u32 s8, s8, 1152')
        vm.issue(('PQ',))
    a('''
    v_lshrrev_b32 v12, 3, v1
    v_and_b32 v13, 7, v1
    v_xor_b32 v13, v13, v12
    v_mul_u32_u24 v12, 1152, v12
    v_lshl_add_u32 v13, v13, 4, v12
    s_sub_u32 s8, s8, %d
    s_lshl_b32 s11, s3, 10
    s_add_u32 m0, s11, %d
    s_nop 0
    buffer_load_dwordx4 v13, %s, s8 offen lds
    ''' % (8 * 1152 - 1024, L_PQ + 32768, sr(S_SWS3, 4)))
    vm.issue(('PQ',))
    a('''
    s_lshl_b32 s9, s12, 4
    s_add_u32 s9, s9, s4
    v_add_u32 v12, s9, v10
    v_lshlrev_b32 v12, 2, v12
    s_mov_b32 s9, 0x%x
    buffer_load_dword v%d, v12, %s, s9 offen
    ''' % (WS_G, V_G, sr(S_SWS3, 4)))
    vm.issue(('G',))

    a('''
    v_lshrrev_b32 v12, 2, v10
    v_lshl_add_u32 v13, v11, 2, v12
    v_mul_u32_u24 v14, 288, v13
    v_and_b32 v15, 3, v1
    v_lshl_add_u32 v14, v15, 3, v14
    v_add_u32 v%d, s7, v14
    v_lshlrev_b32 v14, 6, v13
    v_lshl_add_u32 v14, v15, 3, v14
    s_lshl_b32 s9, s12, 5
    s_lshl_b32 s11, s13, 10
    s_add_u32 s9, s9, s11
    s_add_u32 s9, s9, %d
    v_add_u32 v%d, s9, v14
    v_add_u32 v%d, 32, v2
    v_add_u32 v%d, %d, v2
    v_not_b32 v13, v10
    v_and_b32 v13, 3, v13
    v_mul_u32_u24 v13, %d, v13
    v_lshl_add_u32 v13, v12, 3, v13
    v_lshlrev_b32 v14, 4, v11
    v_sub_u32 v13, v13, v14
    s_lshl_b32 s9, s3, 6
    s_add_u32 s10, s9, 56
    v_add_u32 v%d, s10, v13
    v_lshl_add_u32 v13, v10, 5, v14
    s_sub_u32 s10, %d, s9
    v_add_u32 v%d, s10, v13
    v_lshl_add_u32 v13, v10, 2, v11
    v_bfe_u32 v14, v10, 1, 2
    v_xor_b32 v13, v13, v14
    s_lshl_b32 s9, s3, 10
    s_add_u32 s9, s9, %d
    v_lshl_add_u32 v%d, v13, 4, s9
    v_and_b32 v13, 31, v1
    v_lshlrev_b32 v13, 1, v13
    v_bfe_u32 v14, v13, 3, 2
    v_xor_b32 v13, v13, v14
    v_lshlrev_b32 v13, 4, v13
    v_lshrrev_b32 v14, 5, v1
    v_lshl_add_u32 v13, v14, 12, v13
    s_lshl_b32 s9, s3, 13
    s_add_u32 s9, s9, %d
    v_add_u32 v%d, s9, v13
    v_lshlrev_b32 v12, 10, v10
    v_add_u32 v12, %d, v12
    v_lshlrev_b32 v15, 7, v10
    v_add_u32 v15, %d, v15
    v_and_b32 v13, 7, v10
    s_mul_i32 s9, s3, 18
    ''' % (V_TRW, L_WO, V_TRB, V_UW0, V_UW2, 2 * CSZ + 36, CSZ, V_AA, KLO + 192, V_BA, L_RED, V_RW, L_RED, V_RR, L_PQ, L_PQ + 32768))
    for k in range(5):
        if k < 4:
            a('v_add_u32 v14, %d, v11' % (4 * k))
        else:
            a('v_and_b32 v14, 1, v11')
            a('v_add_u32 v14, 16, v14')
        a('v_add_u32 v14, s9, v14')
        a('v_cmp_le_u32 vcc, 64, v14')
        a('v_xor_b32 v16, v14, v10')
        a('v_lshl_add_u32 v16, v16, 4, v12')
        a('v_add_u32 v17, 16384, v16')
        a('v_xor_b32 v14, v14, v13')
        a('v_and_b32 v14, 7, v14')
        a('v_lshl_add_u32 v14, v14, 4, v15')
        a('v_add_u32 v18, 2048, v14')
        a('v_cndmask_b32 v%d, v16, v14, vcc' % (PQA + k))
        a('v_cndmask_b32 v%d, v17, v18, vcc' % (PQB + k))
    a('''
    v_mul_u32_u24 v12, 86, v0
    v_lshrrev_b32 v12, 8, v12
    v_mul_u32_u24 v13, 3, v12
    v_sub_u32 v13, v0, v13
    v_and_b32 v14, 3, v12
    v_mul_u32_u24 v14, %d, v14
    v_lshl_add_u32 v14, v13, 4, v14
    v_lshrrev_b32 v12, 2, v12
    v_mul_u32_u24 v12, %d, v12
    v_add_u32 v14, v14, v12
    v_mov_b32 v16, 0
    v_mov_b32 v17, 0
    v_mov_b32 v18, 0
    v_mov_b32 v19, 0
    v_cmp_gt_u32 vcc, 24, v0
    s_and_saveexec_b64 s[70:71], vcc
    ds_write_b128 v14, v[16:19]
    s_mov_b64 exec, s[70:71]
    s_waitcnt lgkmcnt(0)
    s_barrier
    ''' % (CSZ, UKSZ))
    a.stamp(1)

    UD = lambda q: 176 + 8 * (q % 3)
    def stage(q, first=False):
        b = INB(q)
        ub = (q % 2) * UKSZ
        vm.wait(('IN', q))
        T = 16
        for dpp in ('quad_perm:[1,0,3,2]', 'quad_perm:[2,3,0,1]', 'row_half_mirror', 'row_mirror'):
            a('v_max_u32_dpp v%d, v%d, v%d %s row_mask:0xf bank_mask:0xf' % (b, b, b, dpp))
            k = ('quad_perm:[1,0,3,2]', 'quad_perm:[2,3,0,1]', 'row_half_mirror', 'row_mirror').index(dpp)
            a('v_lshlrev_b32 v%d, 16, v%d' % (T + 2 * k, b + 2 + k))
            a('v_and_b32 v%d, 0xffff0000, v%d' % (T + 2 * k + 1, b + 2 + k))
        a('''
        v_readlane_b32 s8, v%d, 0
        v_readlane_b32 s9, v%d, 16
        v_and_b32 v%d, 0xffff0000, v%d
        s_and_b32 s10, s99, 1
        s_lshl_b32 s10, s10, 4
        s_lshr_b32 s10, s%d, s10
        s_lshl_b32 s10, s10, 16
        s_mov_b32 s11, s10
        s_max_u32 s8, s8, s9
        s_lshr_b32 s8, s8, 7
        s_sub_u32 s8, 268, s8
        s_min_u32 s8, s8, 254
        s_add_u32 s%d, s8, s%d
        s_sub_u32 s%d, 254, s%d
        s_lshl_b32 s8, s8, 23
        s_mov_b32 s9, s8
        ''' % (b, b, T + 8, b + 1, SK(q) + 1, SK(q), SK(q), SK(q), SK(q)))
        u = UD(q)
        for k in range(4):
            a('v_pk_mul_f32 %s, %s, s[10:11]' % (vr(u + 2 * k, 2), vr(T + 2 * k, 2)))
        for k in range(4):
            a('v_pk_mul_f32 %s, %s, s[8:9]' % (vr(T + 2 * k, 2), vr(T + 2 * k, 2)))
        a('v_mul_f32 v%d, s8, v%d' % (T + 8, T + 8))
        F = 32
        for k in range(4):
            a('v_cvt_pk_f16_f32 v%d, v%d, v%d' % (F + k, T + 2 * k, T + 2 * k + 1))
        a('v_cvt_pk_f16_f32 v%d, v%d, v%d' % (F - 1, T + 8, T + 8))
        if ub:
            a('v_add_u32 v12, %d, v%d' % (ub, V_UW2))
            w2 = 12
        else:
            w2 = V_UW2
        a('ds_write_b128 v%d, %s offset:%d' % (V_UW0, vr(F, 4), ub)); lg.issue(('ST', q))
        a('ds_write2_b32 v%d, v%d, v%d offset0:0 offset1:1' % (w2, F, F + 1)); lg.issue(('ST', q))
        a('ds_write2_b32 v%d, v%d, v%d offset0:2 offset1:3' % (w2, F + 2, F + 3)); lg.issue(('ST', q))
        for k in range(4):
            a('v_alignbit_b32 v%d, v%d, v%d, 16' % (36 + k, F + k, F + k - 1))
        a('v_add_u32 v13, %d, v%d' % (CSZ, w2))
        a('ds_write_b128 v%d, v[36:39] offset:%d' % (V_UW0, ub + CSZ)); lg.issue(('ST', q))
        a('ds_write2_b32 v13, v36, v37 offset0:0 offset1:1'); lg.issue(('ST', q))
        a('ds_write2_b32 v13, v38, v39 offset0:2 offset1:3'); lg.issue(('ST', q))
        for k in range(4):
            a('v_cvt_pk_bf16_f32 v%d, v%d, v%d' % (T + k, u + 2 * k, u + 2 * k + 1))
        for k in range(4):
            a('v_lshlrev_b32 v%d, 16, v%d' % (u + 2 * k, T + k))
            a('v_and_b32 v%d, 0xffff0000, v%d' % (u + 2 * k + 1, T + k))

    BF = 40
    AFR = 104
    ACC = 136
    def mfma_loop(q, side=None):
        side = side or []
        per = (sum(1 for x in side if x[0]) + 63) // 64
        ub = (q % 2) * UKSZ
        def aread(t):
            r = AFR + 4 * (t % 8)
            a('ds_read_b64 %s, v%d offset:%d' % (vr(r, 2), V_AA, ub + 256 * t))
            lg.issue(('A', t))
            a('ds_read_b64 %s, v%d offset:%d' % (vr(r + 2, 2), V_AA, ub + 256 * t + 8))
            lg.issue(('A', t))
        def bread(s):
            a('ds_read_b128 %s, v%d offset:%d' % (vr(BF + 4 * s, 4), V_BA, ub + 256 * s))
            lg.issue(('B', s))
        aread(0)
        for n in range(8):
            bread(2 * n + 1)
        aread(1)
        for n in range(8):
            bread(2 * n)
        started = set()
        for t in range(16):
            lg.wait(('A', t))
            for n in range(8):
                if 2 * n + 1 < t:
                    continue
                s = 2 * n - t + 1
                if t < 2 and n % 2 == 0:
                    lg.wait(('B', min(s + 2, 15 if t == 0 else 14)))
                cin = vr(ACC + 4 * n, 4) if n in started else '0'
                started.add(n)
                a('v_mfma_f32_16x16x32_f16 %s, %s, %s, %s' % (vr(ACC + 4 * n, 4), vr(AFR + 4 * (t % 8), 4), vr(BF + 4 * s, 4), cin))
                if t >= 1: pump(side, per)
            if t == 0:
                for tt in range(2, 5): aread(tt)
            elif t == 1:
                for tt in range(5, 8): aread(tt)
            if t + 8 < 16:
                aread(t + 8)
        pump(side, 10 ** 6)

    def reduce_store(q, extra_wait=None):
        a('s_barrier')
        for n in range(8):
            a('ds_write_b128 v%d, %s offset:%d' % (V_RW, vr(ACC + 4 * n, 4), n * 4096))
        if extra_wait: extra_wait()
        a('v_xor_b32 v12, 16, v%d' % V_RR)
        a('s_waitcnt lgkmcnt(0)')
        lg.reset()
        a('s_barrier')
        R = 40
        for w in range(4):
            a('ds_read_b128 %s, v%d offset:%d' % (vr(R + 8 * w, 4), V_RR, w * 1024))
            a('ds_read_b128 %s, v12 offset:%d' % (vr(R + 8 * w + 4, 4), w * 1024))
        a('s_waitcnt lgkmcnt(4)')
        for h in range(0, 8, 2):
            a('v_pk_add_f32 %s, %s, %s' % (vr(R + h, 2), vr(R + h, 2), vr(R + 8 + h, 2)))
        a('s_waitcnt lgkmcnt(0)')
        for h in range(0, 8, 2):
            a('v_pk_add_f32 %s, %s, %s' % (vr(R + 16 + h, 2), vr(R + 16 + h, 2), vr(R + 24 + h, 2)))
        for h in range(0, 8, 2):
            a('v_pk_add_f32 %s, %s, %s' % (vr(R + h, 2), vr(R + h, 2), vr(R + 16 + h, 2)))
        for k in range(8):
            a('v_ldexp_f32 v%d, v%d, s%d' % (R + k, R + k, SK(q)))
        for k in range(4):
            a('v_cvt_pk_bf16_f32 v%d, v%d, v%d' % (R + 8 + k, R + 2 * k, R + 2 * k + 1))
        for k in range(4):
            a('v_lshlrev_b32 v%d, 16, v%d' % (R + 2 * k, R + 8 + k))
            a('v_and_b32 v%d, 0xffff0000, v%d' % (R + 2 * k + 1, R + 8 + k))
        u = UD(q)
        for k in range(4):
            a('v_pk_add_f32 %s, %s, %s' % (vr(R + 2 * k, 2), vr(R + 2 * k, 2), vr(u + 2 * k, 2)))
        O = OUTB(q)
        for k in range(4):
            a('v_cvt_pk_bf16_f32 v%d, v%d, v%d' % (O + k, R + 2 * k, R + 2 * k + 1))

    OUTB = lambda q: [168, 172, 224][q]
    def bt_store(q):
        a('''
        s_add_u32 s8, s99, %d
        s_lshl_b32 s8, s8, 12
        s_add_u32 s8, s8, 0x%x
        buffer_store_dwordx4 %s, v2, %s, s8 offen sc1
        ''' % (64 * q, WS_BT, vr(OUTB(q), 4), sr(S_SWS3, 4)))
        vm.issue(('BST',))

    def kv_flag_load():
        a('v_lshlrev_b32 v14, 2, v1')
        a('s_lshl_b32 s74, s3, 7')
        a('s_add_u32 s74, s74, 0x%x' % WS_FLG)
        a('buffer_load_dword v233, v14, %s, s74 offen sc1' % sr(S_SWS3, 4))
        vm.issue(('KFL',))
    def kv_fetch():
        vm.wait(('KFL',))
        a('v_cmp_ne_u32 vcc, 0, v233')
        a('s_and_b32 s70, vcc_lo, 0x3fffff')
        a('s_cmp_eq_u32 s70, 0x3fffff')
        a('s_cbranch_scc1 KM_PKV_ok')
        poll(a, 14, 's74', 22, 15, 'KM_PKV')
        a('s_mul_i32 s8, s3, %d' % (22 * 1024))
        a('s_add_u32 s8, s8, 0x%x' % WS_KVF)
        idx = 0
        for f, (c, k) in enumerate(FRAGS):
            if f % 4 == 0 and f:
                a('s_add_u32 s8, s8, 4096')
            if c == 'Z':
                dst = ar(A_ZF + 4 * k, 4)
            else:
                KVF[(c, k)] = A_KVF + 4 * idx
                idx += 1
                dst = ar(KVF[(c, k)], 4)
            a('buffer_load_dwordx4 %s, v3, %s, s8 offen offset:%d sc1' % (dst, sr(S_SWS3, 4), 1024 * (f % 4)))
            vm.issue(('F',))
    KVF = {}

    S2 = int(os.environ.get('S2', '0'))
    S4 = int(os.environ.get('S4', '0'))
    st4 = lambda i: None
    if S4:
        rs4 = a.stamp
        a.stamp = lambda i: rs4(i) if i in (0, 7) else None
        st4 = rs4
    st2 = (lambda i: a.stamp(i)) if S2 else (lambda i: None)
    if S2:
        real_stamp = a.stamp
        a.stamp = lambda i: real_stamp(i) if i in (0, 7) else None
        st2 = real_stamp
    a('s_waitcnt lgkmcnt(0)')
    stage(0)
    vm.wait(('KD', 0))
    a('s_waitcnt lgkmcnt(0)')
    lg.reset()
    a('s_barrier')
    a.stamp(2)
    st2(1)
    mfma_loop(0, record(lambda: stage(1), lambda: wo_drain(0), lambda: wo_dma(1)))
    st2(2)
    a.nop(8)
    reduce_store(0, extra_wait=lambda: (conv_in(2), vm.wait(('KD', 1))))
    st2(3)
    mfma_loop(1, record(lambda: wo_drain(1), lambda: wo_dma(2), lambda: stage(2), kv_flag_load))
    st2(4)
    a.nop(8)
    reduce_store(1, extra_wait=lambda: vm.wait(('KD', 2)))
    st2(5)
    kv_fetch()
    wo_drain(2)
    wo_dma(3)
    bt_store(0)
    bt_store(1)
    st2(6)
    a.stamp(3)
    a('s_cmp_ge_u32 s98, 16')
    a('s_cbranch_scc1 KM_NO3')
    mfma_loop(2)
    a.nop(8)
    reduce_store(2)
    bt_store(2)
    a.label('KM_NO3')
    a.stamp(4)
    st4(1)
    SELR = 56
    a('s_mov_b32 s8, 0x%x' % WS_SEL)
    for c in range(9):
        if c == 4 or c == 8:
            a('s_add_u32 s8, s8, 4096')
        a('buffer_load_dwordx4 %s, v3, %s, s8 offen offset:%d' % (vr(SELR + 4 * c, 4), sr(S_SWS3, 4), 1024 * (c % 4)))
    vm.reset()
    a('s_waitcnt vmcnt(11)')
    wo_drain(3)
    wo_dma(4)
    st4(2)
    PQ = lambda k, st: 16 + (k * 2 + st) * 4
    a('s_barrier')
    for k in range(5):
        for st in range(2):
            a('ds_read_b128 %s, v%d' % (vr(PQ(k, st), 4), (PQA if st == 0 else PQB) + k))
            lg.issue(('PQF', k))
    a('s_mov_b32 s66, 0x0000bf80')
    a('s_mov_b32 s67, 0xbf800000')
    a('s_mov_b32 s68, 0x%x' % f32bits(1e-6))
    DEN = lambda st: 216 + 4 * st
    lg.wait(('PQF', 4))
    for k in range(5):
        for st in range(2):
            cin = '0' if k == 0 else vr(DEN(st), 4)
            a('v_mfma_f32_16x16x32_bf16 %s, %s, %s, %s' % (vr(DEN(st), 4), ar(A_ZF + 4 * k, 4), vr(PQ(k, st), 4), cin))
    NUM = lambda c, st: 144 + (c * 2 + st) * 4
    RT = lambda st: 124 + 4 * st
    T = lambda st: 132 + 6 * st
    def rterms():
        for st in range(2):
            a('v_cvt_pk_bf16_f32 v%d, v%d, v%d' % (T(st), DEN(st), DEN(st) + 1))
        for st in range(2):
            a('v_lshlrev_b32 v%d, 16, v%d' % (T(st) + 2, T(st)))
            a('v_and_b32 v%d, 0xffff0000, v%d' % (T(st) + 3, T(st)))
        for st in range(2):
            a('v_add_f32 v%d, s68, v%d' % (T(st) + 2, T(st) + 2))
            a('v_add_f32 v%d, s68, v%d' % (T(st) + 3, T(st) + 3))
        for st in range(2):
            a('v_cvt_pk_bf16_f32 v%d, v%d, v%d' % (T(st), T(st) + 2, T(st) + 3))
        for st in range(2):
            a('v_lshlrev_b32 v%d, 16, v%d' % (T(st) + 2, T(st)))
            a('v_and_b32 v%d, 0xffff0000, v%d' % (T(st) + 3, T(st)))
        for st in range(2):
            a('v_rcp_f32 v%d, v%d' % (T(st) + 2, T(st) + 2))
            a('v_rcp_f32 v%d, v%d' % (T(st) + 3, T(st) + 3))
        a.nop(1)
        for term in range(3):
            for st in range(2):
                a('v_cvt_pk_bf16_f32 v%d, v%d, v%d' % (RT(st) + term, T(st) + 2, T(st) + 3))
            if term < 2:
                for st in range(2):
                    a('v_dot2_f32_bf16 v%d, v%d, s66, v%d' % (T(st) + 2, RT(st) + term, T(st) + 2))
                    a('v_dot2_f32_bf16 v%d, v%d, s67, v%d' % (T(st) + 3, RT(st) + term, T(st) + 3))
                a.nop(3)
        for st in range(2):
            a('v_mov_b32 v%d, 0' % (RT(st) + 3))
    f = 5
    for c in range(9):
        for i, k in enumerate(STEPS[c]):
            for st in range(2):
                cin = '0' if i == 0 else vr(NUM(c, st), 4)
                a('v_mfma_f32_16x16x32_bf16 %s, %s, %s, %s' % (vr(NUM(c, st), 4), ar(KVF[(c, k)], 4), vr(PQ(k, st), 4), cin))
        if c == 3:
            rterms()
    a('''
    s_lshl_b32 s8, s97, 2
    s_add_u32 s8, s8, s3
    s_lshl_b32 s8, s8, 6
    s_add_u32 s8, s8, s98
    s_lshl_b32 s8, s8, 2
    s_add_u32 s8, s8, 0x%x
    v_mov_b32 v12, 1
    v_mov_b32 v13, 0
    s_waitcnt vmcnt(0)
    s_mov_b64 exec, 1
    buffer_store_dword v12, v13, %s, s8 offen sc1
    s_mov_b64 exec, -1
    ''' % (WS_FLG + 512, sr(S_SWS3, 4)))
    st4(3)
    vm.reset()
    wo_drain(4, wait=False)
    OB = 16
    RR = lambda i: 100 + 4 * i
    TT = 116
    def proc(cc):
        for st in range(2):
            n = NUM(cc, st)
            a('v_cvt_pk_bf16_f32 v%d, v%d, v%d' % (n, n, n + 1))
            a('v_cvt_pk_bf16_f32 v%d, v%d, v%d' % (n + 2, n + 2, n + 3))
        for st in range(2):
            n = NUM(cc, st)
            t = TT + 4 * st
            a('v_lshlrev_b32 v%d, 16, v%d' % (t, n))
            a('v_and_b32 v%d, 0xffff0000, v%d' % (t + 1, n))
            a('v_lshlrev_b32 v%d, 16, v%d' % (t + 2, n + 2))
            a('v_and_b32 v%d, 0xffff0000, v%d' % (t + 3, n + 2))
        for st in range(2):
            t = TT + 4 * st
            r = RR((cc % 2) * 2 + st)
            a('v_pk_mul_f32 %s, %s, %s' % (vr(t, 2), vr(t, 2), vr(r, 2)))
            a('v_pk_mul_f32 %s, %s, %s' % (vr(t + 2, 2), vr(t + 2, 2), vr(r + 2, 2)))
        for st in range(2):
            t = TT + 4 * st
            o = OB + st * 18 + 2 * cc
            a('v_cvt_pk_bf16_f32 v%d, v%d, v%d' % (o, t, t + 1))
            a('v_cvt_pk_bf16_f32 v%d, v%d, v%d' % (o + 1, t + 2, t + 3))
    ACC2 = lambda j, st: 56 + (j * 2 + st) * 4 if False else 144 + (j * 2 + st) * 4
    for c in range(9):
        for st in range(2):
            a('v_mfma_f32_16x16x32_bf16 %s, %s, %s, 0' % (vr(RR((c % 2) * 2 + st), 4), vr(SELR + 4 * c, 4), vr(RT(st), 4)))
        if c >= 1:
            proc(c - 1)
    a.nop(4)
    proc(8)
    a.stamp(5)
    st4(4)
    a('''
    s_lshl_b32 s9, s14, 2
    s_lshr_b32 s10, s4, 9
    s_add_u32 s9, s9, s10
    s_lshl_b32 s9, s9, 8
    s_add_u32 s9, s9, 0x%x
    ''' % (WS_FLG + 512))
    poll(a, 14, 's9', 64, 15, 'KM_PB')
    st4(5)
    BTR = 56
    a('''
    s_lshl_b32 s8, s5, 12
    s_lshl_b32 s9, s4, 1
    s_add_u32 s8, s8, s9
    s_add_u32 s8, s8, 0x%x
    v_lshrrev_b32 v12, 2, v1
    v_lshlrev_b32 v12, 12, v12
    v_and_b32 v13, 3, v1
    v_lshl_add_u32 v12, v13, 4, v12
    s_lshl_b32 s9, s3, 17
    s_add_u32 s9, s9, s8
    buffer_load_dwordx4 %s, v12, %s, s9 offen sc1
    s_add_u32 s9, s9, 0x10000
    buffer_load_dwordx4 %s, v12, %s, s9 offen sc1
    s_add_u32 s9, s8, 0x80000
    buffer_load_dwordx4 %s, v12, %s, s9 offen sc1
    ''' % (WS_BT, vr(BTR, 4), sr(S_SWS3, 4), vr(BTR + 4, 4), sr(S_SWS3, 4), vr(BTR + 8, 4), sr(S_SWS3, 4)))
    lg.wait(('WO', 4))
    for k in range(5):
        for j in range(9):
            for st in range(2):
                cin = '0' if k == 0 else vr(ACC2(j, st), 4)
                if k < 4:
                    a('v_mfma_f32_16x16x32_bf16 %s, %s, %s, %s' % (vr(ACC2(j, st), 4), ar(WOF(j, k), 4), vr(OB + st * 18 + 4 * k, 4), cin))
                else:
                    a('v_mfma_f32_16x16x16_bf16 %s, %s, %s, %s' % (vr(ACC2(j, st), 4), ar(WOF(j, k), 2), vr(OB + st * 18 + 16, 2), cin))
    a.stamp(6)
    st4(6)
    RS = 304
    a('''
    s_lshl_b32 s9, s3, 10
    v_add_u32 v13, s9, v3
    v_add_u32 v14, 0x9000, v13
    s_lshl_b32 s9, s3, 11
    s_add_u32 s9, s9, %d
    v_add_u32 v4, s9, v3
    v_add_u32 v5, %d, v3
    s_barrier
    ''' % (L_WO, L_WO + 8192))
    for t in range(18):
        j, st = t >> 1, t & 1
        if t < 9:
            a('ds_write_b128 v13, %s offset:%d' % (vr(ACC2(j, st), 4), t * 4096))
        else:
            a('ds_write_b128 v14, %s offset:%d' % (vr(ACC2(j, st), 4), (t - 9) * 4096))
    a('''
    s_waitcnt vmcnt(0)
    ds_write_b128 v4, %s
    ds_write_b128 v4, %s offset:1024
    ds_write_b128 v5, %s
    s_lshl_b32 s9, s3, 12
    v_add_u32 v13, s9, v3
    v_add_u32 v14, 0x8000, v13
    s_lshl_b32 s9, s12, 4
    v_add_u32 v15, s9, v10
    v_mul_u32_u24 v15, %d, v15
    v_lshl_add_u32 v15, v11, 3, v15
    s_lshl_b32 s9, s13, 5
    s_add_u32 s9, s9, %d
    v_add_u32 v15, s9, v15
    v_sub_f32 v%d, 1.0, v%d
    v_cvt_pk_bf16_f32 v%d, v%d, v%d
    v_lshlrev_b32 v%d, 16, v%d
    s_mul_i32 s8, s4, 1152
    s_lshl_b32 s9, s5, 1
    s_add_u32 s8, s8, s9
    s_mov_b32 s11, %d
    ''' % (vr(BTR, 4), vr(BTR + 4, 4), vr(BTR + 8, 4), RS, L_PQ, V_OMG, V_G, V_OMG, V_OMG, V_OMG, V_OMG, V_OMG, L_PQ))
    for i in range(3):
        a('''
        v_add_u32 v12, %d, v0
        v_mul_u32_u24 v4, 3641, v12
        v_lshrrev_b32 v4, 16, v4
        v_mul_u32_u24 v5, 18, v4
        v_sub_u32 v5, v12, v5
        v_lshlrev_b32 v5, 4, v5
        v_mul_u32_u24 v12, %d, v4
        v_add3_u32 v%d, v12, v5, s11
        v_mul_u32_u24 v4, 1152, v4
        v_add_u32 v%d, v4, v5
        ''' % (256 * i, RS, 228 + i, 232 + i))
    a('s_waitcnt lgkmcnt(0)')
    a('s_barrier')
    def reads(it):
        R = 16 + 24 * it
        for w in range(4):
            if it < 2:
                a('ds_read_b128 %s, v13 offset:%d' % (vr(R + 4 * w, 4), it * 16384 + w * 1024))
            else:
                a('ds_read_b128 %s, v14 offset:%d' % (vr(R + 4 * w, 4), (it - 2) * 16384 + w * 1024))
        a('ds_read_b64_tr_b16 %s, v%d offset:%d' % (vr(R + 16, 2), V_TRB, it * 2048))
    def comp(its):
        def each(fn):
            for it in its: fn(16 + 24 * it, it)
        each(lambda R, it: [a('v_pk_add_f32 %s, %s, %s' % (vr(R + o + h, 2), vr(R + o + h, 2), vr(R + o + 4 + h, 2))) for h in (0, 2) for o in (0, 8)])
        each(lambda R, it: [a('v_pk_add_f32 %s, %s, %s' % (vr(R + h, 2), vr(R + h, 2), vr(R + 8 + h, 2))) for h in (0, 2)])
        each(lambda R, it: [a('v_cvt_pk_bf16_f32 v%d, v%d, v%d' % (R + 4 + k, R + 2 * k, R + 2 * k + 1)) for k in range(2)])
        def unp(R, it):
            for k in range(2):
                a('v_lshlrev_b32 v%d, 16, v%d' % (R + 2 * k, R + 4 + k))
                a('v_and_b32 v%d, 0xffff0000, v%d' % (R + 2 * k + 1, R + 4 + k))
                a('v_lshlrev_b32 v%d, 16, v%d' % (R + 8 + 2 * k, R + 16 + k))
                a('v_and_b32 v%d, 0xffff0000, v%d' % (R + 8 + 2 * k + 1, R + 16 + k))
        each(unp)
        def mul(R, it):
            for h in (0, 2):
                a('v_pk_mul_f32 %s, %s, %s op_sel_hi:[1,0]' % (vr(R + h, 2), vr(R + h, 2), vr(V_G, 2)))
                a('v_pk_mul_f32 %s, %s, %s op_sel:[0,1] op_sel_hi:[1,1]' % (vr(R + 8 + h, 2), vr(R + 8 + h, 2), vr(V_G, 2)))
        each(mul)
        def cv(R, it):
            for k in range(2):
                a('v_cvt_pk_bf16_f32 v%d, v%d, v%d' % (R + 4 + k, R + 2 * k, R + 2 * k + 1))
                a('v_cvt_pk_bf16_f32 v%d, v%d, v%d' % (R + 6 + k, R + 8 + 2 * k, R + 8 + 2 * k + 1))
        each(cv)
        def unp2(R, it):
            for k in range(2):
                a('v_lshlrev_b32 v%d, 16, v%d' % (R + 2 * k, R + 4 + k))
                a('v_and_b32 v%d, 0xffff0000, v%d' % (R + 2 * k + 1, R + 4 + k))
                a('v_lshlrev_b32 v%d, 16, v%d' % (R + 8 + 2 * k, R + 6 + k))
                a('v_and_b32 v%d, 0xffff0000, v%d' % (R + 8 + 2 * k + 1, R + 6 + k))
        each(unp2)
        each(lambda R, it: [a('v_pk_add_f32 %s, %s, %s' % (vr(R + h, 2), vr(R + h, 2), vr(R + 8 + h, 2))) for h in (0, 2)])
        each(lambda R, it: [a('v_cvt_pk_bf16_f32 v%d, v%d, v%d' % (R + 18 + k, R + 2 * k, R + 2 * k + 1)) for k in range(2)])
        each(lambda R, it: a('ds_write_b64 v15, %s offset:%d' % (vr(R + 18, 2), it * 64)))
    for it in range(4):
        reads(it)
    a('s_waitcnt lgkmcnt(10)')
    comp([0, 1])
    a('s_waitcnt lgkmcnt(2)')
    comp([2, 3])
    a('s_cmp_ge_u32 s3, 2')
    a('s_cbranch_scc1 KM_S4')
    reads(4)
    a('s_waitcnt lgkmcnt(0)')
    comp([4])
    a.label('KM_S4')
    a('''
    s_waitcnt lgkmcnt(0)
    s_barrier
    ds_read_b128 v[16:19], v228
    ds_read_b128 v[20:23], v229
    s_waitcnt lgkmcnt(1)
    buffer_store_dwordx4 v[16:19], v232, %s, s8 offen
    s_waitcnt lgkmcnt(0)
    buffer_store_dwordx4 v[20:23], v233, %s, s8 offen
    s_cmp_lg_u32 s3, 0
    s_cbranch_scc1 KM_FIN
    ds_read_b128 v[24:27], v230
    s_waitcnt lgkmcnt(0)
    buffer_store_dwordx4 v[24:27], v234, %s, s8 offen
    ''' % ((sr(S_SOUT, 4),) * 3))
    a.label('KM_FIN')
    a.endpgm()
    a.label('KM_EXIT')
    a('s_endpgm')
```

```python
import sys
from asmlib import *
import gen_k1
HEADER = open('gated_mix__linear_attn_block__ssm_conv_s4__prompt.s.ref').read().split('; Override launch')[0]
def build(kernels, diag=False):
    a = Asm()
    a.diag = diag
    launches = []
    descs = []
    if 1 in kernels:
        gen_k1.gen_k1(a)
        launches.append('; @launch kernel=k1_kernel grid=(%d,1,1) block=(256,1,1) lds=%d' % (gen_k1.K1_GRID, gen_k1.K1_LDS))
        descs.append(kernel_desc('k1_kernel', 256, 100))
    if 2 in kernels:
        import gen_k2
        gen_k2.gen_k2(a)
        launches.append('; @launch kernel=k2_kernel grid=(%d,1,1) block=(256,1,1) lds=%d' % (gen_k2.K2_GRID, gen_k2.K2_LDS))
        descs.append(kernel_desc('k2_kernel', gen_k2.K2_VGPR, 100))
    if 3 in kernels:
        import gen_k3
        gen_k3.gen_k3(a)
        launches.append('; @launch kernel=k3_kernel grid=(%d,1,1) block=(256,1,1) lds=%d' % (gen_k3.K3_GRID, gen_k3.K3_LDS))
        descs.append(kernel_desc('k3_kernel', gen_k3.K3_VGPR, 100, gen_k3.K3_ACCUM))
    if 4 in kernels:
        import gen_km
        gen_km.gen_km(a)
        launches.append('; @launch kernel=km_kernel grid=(%d,1,1) block=(256,1,1) lds=%d' % (gen_km.KM_GRID, gen_km.KM_LDS))
        descs.append(kernel_desc('km_kernel', gen_km.KM_VGPR, 102, gen_km.KM_ACCUM))
    if 5 in kernels:
        import gen_kf
        gen_kf.gen_km(a)
        launches.append('; @launch kernel=km_kernel grid=(%d,1,1) block=(256,1,1) lds=%d' % (gen_kf.KM_GRID, gen_kf.KM_LDS))
        descs.append(kernel_desc('km_kernel', gen_kf.KM_VGPR, 102, gen_kf.KM_ACCUM))
    txt = HEADER + '\n'.join(launches) + '\n.amdgcn_target "amdgcn-amd-amdhsa--gfx950"\n.text\n' + a.text() + ''.join(descs)
    return txt
if __name__ == '__main__':
    ks = [int(c) for c in sys.argv[1]]
    out = sys.argv[2]
    open(out, 'w').write(build(ks, len(sys.argv) > 3))
```

```python
from asmlib import *
import math

WS_PQ = 0x000000
TS = 4352
WS_XT = 0x240000
WS_BT = 0x4B0000
WS_KF = 0x720000
KF_STRIDE = 4608
WS_KVP = 0x950000
KVP_REC = 13 * 1024 + 512
WS_KVF = 0xB00000
WS_SEL = 0xB18000
WS_G = 0xB1C000
WS_PM = 0xB20000
WS_FLG = 0xB34000
WS_GO1 = 0xB40000
WS_GO2 = 0xB50000
WS_GO3 = 0xB60000
WS_END = 0xB70000

N_GEMM = 192
N_PREP = 288
K1_GRID = N_GEMM + N_PREP
K1_LDS = 81920

import os
TOUCH = int(os.environ.get('TOUCH', '1'))
TOUCH_FLAGS = os.environ.get('TOUCH_FLAGS', '')
WFLAGS = os.environ.get('WFLAGS', '')
AFLAGS = os.environ.get('AFLAGS', '')
NOMEM = int(os.environ.get('NOMEM', '0'))
NOPREP = int(os.environ.get('NOPREP', '0'))
NOXS = int(os.environ.get('NOXS', '0'))
PRO = int(os.environ.get('PRO', '2'))
GPRIO = int(os.environ.get('GPRIO', '3'))
PPRIO = int(os.environ.get('PPRIO', '0'))
S3 = int(os.environ.get('S3', '0'))
NOX = int(os.environ.get('NOX', '0'))
NOW = int(os.environ.get('NOW', '0'))
CPRIO = int(os.environ.get('CPRIO', '0'))
IPRIO = int(os.environ.get('IPRIO', '0'))
LOG2E = 1.4426950408889634

P_X, P_W, P_WO, P_BU, P_ARE, P_AIM, P_BRE, P_BIM = 16, 18, 20, 22, 24, 26, 28, 30
P_CRE, P_CIM, P_LDT, P_DSK, P_GW, P_OUT, P_DBG, P_WS = 32, 34, 36, 38, 40, 42, 44, 46


class Cnt:
    def __init__(self, a, name, cap):
        self.a, self.name, self.cap = a, name, cap
        self.ops = []
    def issue(self, tag):
        self.ops.append(tag)
    def wait(self, tag):
        idx = max(i for i, t in enumerate(self.ops) if t == tag) if tag in self.ops else None
        if idx is None:
            return
        n = len(self.ops) - 1 - idx
        n = min(n, self.cap)
        self.a('s_waitcnt %s(%d)' % (self.name, n))
        self.ops = self.ops[len(self.ops) - n:] if n > 0 else []
    def wait_all(self):
        self.a('s_waitcnt %s(0)' % self.name)
        self.ops = []


def load_kernargs(a):
    a('s_load_dwordx16 s[16:31], s[0:1], 0')
    a('s_load_dwordx16 s[32:47], s[0:1], 64')


def phi_batch(a, pairs, tmp, s_l2e, s_eps, keep_raw=None):
    n = len(pairs)
    H = lambda i: (keep_raw[i] if keep_raw else tmp + 6 * i)
    T = lambda i: tmp + 6 * i + 2
    E = lambda i: tmp + 6 * i + 4
    for i, (a0, a1, d) in enumerate(pairs):
        a('v_cvt_pk_bf16_f32 v%d, v%d, v%d' % (H(i), a0, a1))
    for i in range(n):
        a('v_lshlrev_b32 v%d, 16, v%d' % (T(i), H(i)))
        a('v_and_b32 v%d, 0xffff0000, v%d' % (T(i) + 1, H(i)))
    for i in range(n):
        a('v_pk_mul_f32 %s, %s, %s' % (vr(E(i), 2), vr(T(i), 2), sr(s_l2e, 2)))
    for i in range(n):
        a('v_exp_f32_e64 v%d, v%d clamp' % (E(i), E(i)))
        a('v_exp_f32_e64 v%d, v%d clamp' % (E(i) + 1, E(i) + 1))
    for i in range(n):
        a('v_max_f32 v%d, 0, v%d' % (T(i), T(i)))
        a('v_max_f32 v%d, 0, v%d' % (T(i) + 1, T(i) + 1))
    for i in range(n):
        a('v_pk_add_f32 %s, %s, %s' % (vr(E(i), 2), vr(E(i), 2), vr(T(i), 2)))
    for i, (a0, a1, d) in enumerate(pairs):
        a('v_cvt_pk_bf16_f32 v%d, v%d, v%d' % (d, E(i), E(i) + 1))
    for i, (a0, a1, d) in enumerate(pairs):
        a('v_pk_min_u16 v%d, v%d, v%d' % (V_PMIN, V_PMIN, d))


V_PMIN = 243


def phi_fix(a, regs, tmp, s_eps, lbl):
    a('''
    v_lshrrev_b32 v%d, 16, v%d
    v_and_b32 v%d, 0xffff, v%d
    v_min_u32 v%d, v%d, v%d
    v_cmp_gt_u32 vcc, 0x3a00, v%d
    s_cbranch_vccz %s
    ''' % (tmp, V_PMIN, tmp + 1, V_PMIN, tmp, tmp, tmp + 1, tmp, lbl))
    for r in regs:
        a('v_lshlrev_b32 v%d, 16, v%d' % (tmp, r))
        a('v_and_b32 v%d, 0xffff0000, v%d' % (tmp + 1, r))
        a('v_pk_add_f32 %s, %s, %s' % (vr(tmp, 2), vr(tmp, 2), sr(s_eps, 2)))
        a('v_cvt_pk_bf16_f32 v%d, v%d, v%d' % (r, tmp, tmp + 1))
    a.label(lbl)


V_XOFF, V_SW, V_DMA, V_TR, V_TR2, V_SR0, V_SR1 = 2, 3, 4, 9, 240, 241, 242
V_XR, V_AF, V_B, V_ACC = 16, 96, 128, 168
V_A = 16
V_T = 96
SLOT = 18432
SCR = 4 * SLOT
S_SX, S_SW, S_SWS = 48, 52, 56
PAIRS = [(0, 4), (0, 5), (1, 4), (1, 5), (1, 6), (2, 5), (2, 6), (2, 7), (3, 6), (3, 7), (3, 8), (4, 7), (4, 8)]


STEPS = {0: [0], 1: [0, 1], 2: [0, 1], 3: [1, 2], 4: [1, 2], 5: [2, 3], 6: [2, 3], 7: [3, 4], 8: [3, 4]}
FRAGS = [('Z', k) for k in range(5)] + [(c, k) for c in range(9) for k in STEPS[c]]


def reduce_task(a):
    cb = sum(((15 if c == 'Z' else c) << (4 * f)) for f, (c, k) in enumerate(FRAGS))
    kb = sum((k << (4 * f)) for f, (c, k) in enumerate(FRAGS))
    a('''
    s_mul_i32 s64, s15, 94
    s_lshr_b32 s64, s64, 11
    s_mul_i32 s65, s64, 22
    s_sub_u32 s65, s15, s65
    s_mov_b32 s66, 0x%x
    s_mov_b32 s67, 0x%x
    s_mov_b32 s68, 0x%x
    s_mov_b32 s69, 0x%x
    s_cmp_ge_u32 s65, 16
    s_cselect_b32 s66, 0x%x, s66
    s_cselect_b32 s68, 0x%x, s68
    s_and_b32 s70, s65, 15
    s_lshl_b32 s70, s70, 2
    s_lshr_b64 s[66:67], s[66:67], s70
    s_lshr_b64 s[68:69], s[68:69], s70
    s_and_b32 s66, s66, 15
    s_and_b32 s68, s68, 15
    s_lshl_b32 s70, s68, 5
    v_lshl_add_u32 v16, v11, 3, s70
    s_cmp_eq_u32 s66, 15
    s_cbranch_scc1 K1_RZ
    s_lshl_b32 s70, s66, 4
    v_add_u32 v17, s70, v10
    v_mul_u32_u24 v18, 57, v17
    v_lshrrev_b32 v18, 10, v18
    v_lshrrev_b32 v19, 2, v18
    v_mul_u32_u24 v20, 72, v19
    v_sub_u32 v21, v17, v20
    v_add_u32 v21, 72, v21
    v_sub_u32 v22, v16, v20
    v_lshrrev_b32 v23, 4, v22
    v_lshrrev_b32 v24, 4, v21
    v_lshl_add_u32 v23, v23, 1, v24
    v_subrev_u32 v23, 4, v23
    v_and_b32 v24, 15, v21
    v_and_b32 v25, 12, v22
    v_lshl_add_u32 v24, v25, 2, v24
    v_lshlrev_b32 v24, 4, v24
    v_lshl_add_u32 v24, v23, 10, v24
    v_add_u32 v25, 256, v24
    s_mov_b64 s[74:75], -1
    s_branch K1_RC
    ''' % (cb & 0xffffffff, (cb >> 32) & 0xffffffff, kb & 0xffffffff, (kb >> 32) & 0xffffffff, cb >> 64, kb >> 64))
    a.label('K1_RZ')
    a('''
    v_lshrrev_b32 v18, 2, v10
    v_lshlrev_b32 v18, 1, v18
    v_and_b32 v19, 1, v10
    v_add_u32 v18, v18, v19
    v_and_b32 v19, 2, v10
    v_cmp_eq_u32 s[74:75], 0, v19
    v_lshrrev_b32 v19, 2, v18
    v_mul_u32_u24 v20, 72, v19
    v_sub_u32 v22, v16, v20
    v_lshlrev_b32 v24, 2, v22
    v_add_u32 v24, 13312, v24
    v_add_u32 v25, 16, v24
    ''')
    a.label('K1_RC')
    a('''
    v_mul_u32_u24 v26, 18, v18
    v_sub_u32 v26, v26, v16
    v_add_u32 v27, 17, v26
    v_cmp_gt_u32 vcc, 25, v27
    s_and_b64 s[74:75], s[74:75], vcc
    s_lshl_b32 s70, s64, 1
    v_add_u32 v19, s70, v19
    v_mul_u32_u24 v19, %d, v19
    v_add_u32 v24, v24, v19
    v_add_u32 v25, v25, v19
    v_mov_b32 v27, 0x40000000
    v_cndmask_b32 v24, v27, v24, s[74:75]
    v_cndmask_b32 v25, v27, v25, s[74:75]
    s_mul_i32 s70, s3, %d
    s_add_u32 s70, s70, 0x%x
    ''' % (KVP_REC, 32 * KVP_REC, WS_KVP))
    R = 32
    for rb in range(4):
        a('buffer_load_dwordx4 %s, v24, %s, s70 offen sc1' % (vr(R + 8 * rb, 4), sr(S_SWS, 4)))
        a('buffer_load_dwordx4 %s, v25, %s, s70 offen sc1' % (vr(R + 8 * rb + 4, 4), sr(S_SWS, 4)))
        if rb < 3:
            a('s_add_u32 s70, s70, %d' % (8 * KVP_REC))
    a('''
    s_lshl_b32 s70, s15, 10
    s_add_u32 s70, s70, 0x%x
    s_lshl_b32 s71, s3, 11
    s_add_u32 s71, s71, 1024
    v_add_u32 v2, s71, v3
    s_waitcnt vmcnt(0)
    ''' % WS_KVF)
    for st in (2, 1):
        for i in range(st):
            for h in range(0, 8, 2):
                a('v_pk_add_f32 %s, %s, %s' % (vr(R + 8 * i + h, 2), vr(R + 8 * i + h, 2), vr(R + 8 * (i + st) + h, 2)))
    a('ds_write_b128 v2, %s' % vr(R, 4))
    a('ds_write_b128 v2, %s offset:1024' % vr(R + 4, 4))
    a('s_waitcnt lgkmcnt(0)')
    a('s_barrier')
    a('s_cmp_lg_u32 s3, 0')
    a('s_cbranch_scc1 K1_KVEXIT')
    for w in range(1, 4):
        a('ds_read_b128 %s, v2 offset:%d' % (vr(R + 8 * w, 4), 2048 * w))
        a('ds_read_b128 %s, v2 offset:%d' % (vr(R + 8 * w + 4, 4), 2048 * w + 1024))
    a('s_waitcnt lgkmcnt(0)')
    for st in (2, 1):
        for i in range(st):
            for h in range(0, 8, 2):
                a('v_pk_add_f32 %s, %s, %s' % (vr(R + 8 * i + h, 2), vr(R + 8 * i + h, 2), vr(R + 8 * (i + st) + h, 2)))
    for j in range(8):
        a('v_subrev_u32 v27, v26, %d' % j if False else 'v_sub_u32 v27, %d, v26' % j)
        a('v_cmp_gt_u32 vcc, 18, v27')
        a('s_and_b64 vcc, vcc, s[74:75]')
        a('s_nop 0')
        a('v_cndmask_b32 v%d, 0, v%d, vcc' % (R + j, R + j))
    for k in range(4):
        a('v_cvt_pk_bf16_f32 v%d, v%d, v%d' % (28 + k, R + 2 * k, R + 2 * k + 1))
    a('buffer_store_dwordx4 v[28:31], v3, %s, s70 offen' % sr(S_SWS, 4))


def gemm_main(a, qtype):
    vm = Cnt(a, 'vmcnt', 63)
    lg = Cnt(a, 'lgkmcnt', 15)
    side = []
    wcount = {}
    xcount = {}

    def dma_ops(c):
        if NOMEM or NOW: return []
        slot = (c % 4) * SLOT
        ops = []
        def one(i):
            a('s_add_u32 m0, s8, 0x%x' % (slot + i * 1024))
            a('s_mov_b32 s10, 0x%x' % (c * 64 * 3456))
            a('buffer_load_dwordx4 v%d, %s, s10 offen lds' % (V_DMA + i, sr(S_SW, 4)))
            vm.issue(('W', c)); wcount[c] = wcount.get(c, 0) + 1
        def last():
            a('s_add_u32 m0, s9, 0x%x' % (slot + 16384))
            a('s_mov_b32 exec_hi, 0')
            a('buffer_load_dwordx4 v%d, %s, s10 offen lds' % (V_DMA + 4, sr(S_SW, 4)))
            a('s_mov_b32 exec_hi, -1')
            vm.issue(('W', c)); wcount[c] = wcount.get(c, 0) + 1
        for i in range(4):
            ops.append(lambda i=i: one(i))
        ops.append(last)
        return ops

    def x_ops(c):
        if NOMEM or NOX: return []
        r = V_XR + (c % 5) * 16
        def one(q):
            a('buffer_load_dwordx4 %s, v%d, %s, s%d offen offset:%d' % (vr(r + 4 * q, 4), V_XOFF, sr(S_SX, 4), 64 + q, c * 128))
            vm.issue(('X', c)); xcount[c] = xcount.get(c, 0) + 1
        return [lambda q=q: one(q) for q in range(4)]

    def flush(tagc=None):
        while side:
            side.pop(0)()

    def xstage(c):
        if NOXS: return
        while not NOMEM and not NOX and c >= 2 and xcount.get(c, 0) < 4:
            side.pop(0)()
        vm.wait(('X', c))
        r = V_XR + (c % 5) * 16
        for rt in range(2):
            for q in range(2):
                a('ds_write_b128 v%d, %s offset:%d' % (V_SW, vr(r + 4 * (2 * rt + q), 4), 1024 * q))
                lg.issue(('XW', c))
            for kk in range(2):
                a('ds_read_b128 %s, v%d' % (vr(V_AF + (c % 2) * 16 + (kk * 2 + rt) * 4, 4), V_SR0 + kk))
                lg.issue(('A', c))

    def bread(k, j):
        c, kk = k // 2, k % 2
        r = V_B + ((k * 9 + j) % 10) * 4
        for hh in range(2):
            off = (c % 2) * SLOT + (8 * hh + 32 * kk) * 288 + 32 * j
            a('ds_read_b64_tr_b16 %s, v%d offset:%d' % (vr(r + 2 * hh, 2), V_TR if (c % 4) < 2 else V_TR2, off))
            lg.issue(('B', k, j))

    for c in range(PRO):
        for op in dma_ops(c): op()
        if c >= 2:
            for op in x_ops(c): op()
    if not S3: a.stamp(1)
    vm.ops = [('X', 0)] * 4 + [('X', 1)] * 4 + vm.ops
    xstage(0)
    vm.wait(('W', 0))
    a('s_barrier')
    if not S3: a.stamp(2)
    for c in range(PRO, 4):
        side.extend(dma_ops(c)); side.extend(x_ops(c))
    side.extend(x_ops(4)); side.extend(x_ops(5))
    wq = set(range(4)); xq = set(range(6))
    for j in range(9):
        bread(0, j)
    for k in range(18):
        c, kk = k // 2, k % 2
        if kk == 1 and c + 1 <= 8:
            while not NOMEM and not NOW and wcount.get(c + 1, 0) < 5:
                side.pop(0)()
            vm.wait(('W', c + 1))
            a('s_barrier')
            if c >= 1 and c + 3 <= 8:
                side.extend(dma_ops(c + 3))
        if S3:
            if k % 3 == 0 and k: a.stamp(k // 3)
        else:
            if k == 6: a.stamp(3)
            if k == 12: a.stamp(4)
        lg.wait(('A', c))
        for j in range(9):
            if j % 3 == 0:
                lg.wait(('B', k, j + 2))
            rb = V_B + ((k * 9 + j) % 10) * 4
            for rt in range(2):
                ra = V_AF + (c % 2) * 16 + (kk * 2 + rt) * 4
                acc = V_ACC + (rt * 9 + j) * 4
                cin = '0' if k == 0 else vr(acc, 4)
                if qtype:
                    a('v_mfma_f32_16x16x32_bf16 %s, %s, %s, %s' % (vr(acc, 4), vr(rb, 4), vr(ra, 4), cin))
                else:
                    a('v_mfma_f32_16x16x32_bf16 %s, %s, %s, %s' % (vr(acc, 4), vr(ra, 4), vr(rb, 4), cin))
            if k + 1 < 18:
                bread(k + 1, j)
            if side:
                side.pop(0)()
            if kk == 0 and j == 4 and c + 1 <= 8:
                xstage(c + 1)
                if c + 6 <= 8:
                    side.extend(x_ops(c + 6))
    assert not side
    a.stamp(6 if S3 else 5)
    a.nop(10)


def gemm_part(a):
    a.label('K1_GEMM')
    a('s_setprio %d' % GPRIO)
    a('''
    s_and_b32 s4, s97, 7
    s_lshr_b32 s5, s97, 3
    s_and_b32 s6, s4, 3
    s_lshl_b32 s6, s6, 2
    s_and_b32 s7, s5, 3
    s_add_u32 s6, s6, s7
    s_lshr_b32 s4, s4, 2
    s_mul_i32 s4, s4, 6
    s_lshr_b32 s5, s5, 2
    s_add_u32 s7, s4, s5
    ''')
    a('''
    s_mul_i32 s4, s7, 11
    s_lshr_b32 s4, s4, 5
    s_mul_i32 s5, s4, 3
    s_sub_u32 s5, s7, s5
    s_sub_u32 s11, s7, s4
    s_sub_u32 s11, s11, 1
    ''')
    a('''
    s_mul_i32 s12, s4, 288
    s_mul_i32 s13, s11, 144
    s_add_u32 s13, s13, 1152
    s_cmp_eq_u32 s5, 0
    s_cselect_b32 s12, s12, s13
    s_cselect_b32 s13, 0, 1008
    s_lshl_b32 s8, s3, 12
    s_lshl_b32 s9, s3, 9
    ''')
    a('''
    v_and_b32 v10, 15, v1
    v_lshrrev_b32 v11, 4, v1
    ''')
    a('''
    s_lshl_b32 s14, s6, 7
    s_lshl_b32 s15, s3, 5
    s_add_u32 s14, s14, s15
    v_lshrrev_b32 v13, 3, v1
    v_and_b32 v14, 7, v1
    v_add_u32 v12, s14, v13
    v_mul_u32_u24 v12, 1152, v12
    v_lshl_add_u32 v2, v14, 4, v12
    s_mov_b32 s64, 0
    s_mov_b32 s65, 9216
    s_mov_b32 s66, 18432
    s_mov_b32 s67, 27648
    s_lshl_b32 s15, s3, 11
    s_add_u32 s15, s15, %d
    v_xor_b32 v14, v14, v13
    v_lshlrev_b32 v14, 4, v14
    v_lshl_add_u32 v14, v13, 7, v14
    v_add_u32 v3, s15, v14
    v_and_b32 v13, 7, v10
    v_xor_b32 v13, v13, v11
    v_lshlrev_b32 v14, 7, v10
    v_add_u32 v14, s15, v14
    v_lshl_add_u32 v241, v13, 4, v14
    v_xor_b32 v13, 4, v13
    v_lshl_add_u32 v242, v13, 4, v14
    ''' % SCR)
    a('s_waitcnt lgkmcnt(0)')
    srd(a, S_SX, P_X, 2048 * 576 * 2)
    if not NOMEM:
        for c in range(2):
            for q in range(4):
                a('buffer_load_dwordx4 %s, v%d, %s, s%d offen offset:%d' % (vr(V_XR + c * 16 + 4 * q, 4), V_XOFF, sr(S_SX, 4), 64 + q, c * 128))
    def dma_addr(dst):
        a('''
        v_and_b32 v12, 0x33, v13
        v_and_b32 v15, 4, v13
        v_lshl_or_b32 v12, v15, 1, v12
        v_bfe_u32 v15, v13, 3, 1
        v_lshl_or_b32 v12, v15, 2, v12
        v_cmp_le_u32 vcc, 9, v14
        v_mul_u32_u24 v12, 3456, v12
        v_lshl_add_u32 v12, v14, 4, v12
        v_cndmask_b32 v15, v244, v245, vcc
        v_add_u32 v%d, v12, v15
        ''' % dst)
    a('''
    v_mov_b32 v244, s12
    s_add_u32 s15, s12, s13
    v_mov_b32 v245, s15
    s_lshl_b32 s15, s3, 8
    v_add_u32 v12, s15, v1
    v_mul_u32_u24 v13, 3641, v12
    v_lshrrev_b32 v13, 16, v13
    v_mul_u32_u24 v14, 18, v13
    v_sub_u32 v14, v12, v14
    ''')
    for i in range(4):
        dma_addr(V_DMA + i)
        if i < 3:
            a('''
            v_add_u32 v14, 10, v14
            v_cmp_le_u32 vcc, 18, v14
            v_subrev_u32 v15, 18, v14
            v_add_u32 v13, 3, v13
            v_cndmask_b32 v14, v14, v15, vcc
            v_addc_co_u32 v13, vcc, 0, v13, vcc
            ''')
    a('''
    s_lshl_b32 s15, s3, 5
    s_add_u32 s15, s15, 1024
    v_add_u32 v12, s15, v1
    v_mul_u32_u24 v13, 3641, v12
    v_lshrrev_b32 v13, 16, v13
    v_mul_u32_u24 v14, 18, v13
    v_sub_u32 v14, v12, v14
    ''')
    dma_addr(V_DMA + 4)
    a('''
    v_lshrrev_b32 v12, 2, v10
    v_and_b32 v13, 1, v11
    v_lshl_add_u32 v12, v13, 2, v12
    v_lshrrev_b32 v13, 1, v11
    v_lshl_add_u32 v12, v13, 4, v12
    v_mul_u32_u24 v12, 288, v12
    v_and_b32 v13, 3, v1
    v_lshl_add_u32 v9, v13, 3, v12
    v_add_u32 v240, 36864, v9
    ''')
    srd(a, S_SW, P_W, 576 * 1728 * 2)
    srd(a, S_SWS, P_WS, WS_END)
    a('s_mov_b32 s60, 0x%x' % f32bits(LOG2E))
    a('s_mov_b32 s61, 0x%x' % f32bits(LOG2E))
    a('s_mov_b32 s62, 0x%x' % f32bits(1e-6))
    a('s_mov_b32 s63, 0x%x' % f32bits(1e-6))
    a('s_cmp_eq_u32 s5, 0')
    a('s_cbranch_scc0 K1_GEMM_KV')

    gemm_main(a, True)
    P = lambda rt, j: V_A + (rt * 9 + j) * 2
    allp = []
    for rt in range(2):
        for j in range(9):
            acc = V_ACC + (rt * 9 + j) * 4
            allp.append((acc, acc + 1, P(rt, j)))
            allp.append((acc + 2, acc + 3, P(rt, j) + 1))
    RS = 304
    a('''
    s_mul_i32 s15, s3, 9728
    v_mul_u32_u24 v12, %d, v10
    v_lshl_add_u32 v12, v11, 3, v12
    v_add_u32 v12, s15, v12
    s_mul_i32 s64, s14, 1152
    s_add_u32 s64, s64, s12
    s_barrier
    ''' % RS)
    a('v_mov_b32 v%d, -1' % V_PMIN)
    for b in range(0, 36, 6):
        phi_batch(a, allp[b:b + 6], V_T, 60, 62)
    phi_fix(a, [d for (x, y, d) in allp], V_T, 62, 'K1_QFIX')
    for t in range(18):
        rt, j = t // 9, t % 9
        a('ds_write_b64 v12, %s offset:%d' % (vr(P(rt, j), 2), rt * 16 * RS + 32 * j))
    if not S3: a.stamp(6)
    for i in range(9):
        a('''
        v_add_u32 v13, %d, v1
        v_mul_u32_u24 v14, 3641, v13
        v_lshrrev_b32 v14, 16, v14
        v_mul_u32_u24 v15, 18, v14
        v_sub_u32 v15, v13, v15
        v_lshlrev_b32 v15, 4, v15
        v_mul_u32_u24 v13, %d, v14
        v_add3_u32 v13, v13, v15, s15
        v_mul_u32_u24 v14, 1152, v14
        v_add_u32 v%d, v14, v15
        ds_read_b128 %s, v13
        ''' % (64 * i, RS, V_T + i, vr(V_ACC + 4 * i, 4)))
    for i in range(9):
        a('s_waitcnt lgkmcnt(%d)' % (8 - i))
        a('buffer_store_dwordx4 %s, v%d, %s, s64 offen' % (vr(V_ACC + 4 * i, 4), V_T + i, sr(S_SWS, 4)))
    a.endpgm()

    a.label('K1_GEMM_KV')
    gemm_main(a, False)
    a('''
    s_lshl_b32 s98, s6, 1
    s_and_b32 s99, s11, 1
    s_add_u32 s98, s98, s99
    s_lshr_b32 s99, s11, 1
    s_lshl_b32 s99, s99, 5
    s_add_u32 s99, s99, s98
    s_lshl_b32 s99, s99, 7
    s_add_u32 s99, s99, 0x%x
    v_mov_b32 v12, 0
    s_mov_b64 exec, 1
    buffer_store_dword v12, v12, %s, s99 offen sc1
    s_mov_b64 exec, -1
    ''' % (WS_GO3, sr(S_SWS, 4)))
    O = lambda j: V_A + 4 * j
    pk = []
    for j in range(5):
        for rt in range(2):
            acc = V_ACC + (rt * 9 + j) * 4
            pk.append((acc, acc + 1, O(j) + 2 * rt))
            pk.append((acc + 2, acc + 3, O(j) + 2 * rt + 1))
    a('v_mov_b32 v%d, -1' % V_PMIN)
    phi_batch(a, pk[0:8], V_T, 60, 62)
    phi_batch(a, pk[8:16], V_T, 60, 62)
    RAW = V_A + 40
    phi_batch(a, pk[16:20], V_T, 60, 62, keep_raw=[RAW + i for i in range(4)])
    phi_fix(a, [d for (x, y, d) in pk], V_T, 62, 'K1_KFIX')
    a('v_cmp_gt_u32 vcc, 8, v10')
    for j in range(5, 9):
        for rt in range(2):
            acc = V_ACC + (rt * 9 + j) * 4
            a('v_cvt_pk_bf16_f32 v%d, v%d, v%d' % (O(j) + 2 * rt, acc, acc + 1))
            a('v_cvt_pk_bf16_f32 v%d, v%d, v%d' % (O(j) + 2 * rt + 1, acc + 2, acc + 3))
    for i in range(4):
        a('v_cndmask_b32 v%d, v%d, v%d, vcc' % (O(4) + i, RAW + i, O(4) + i))
    a.nop(2)
    pairs = PAIRS
    KV = lambda p: V_ACC + 4 * p
    for p, (ta, tb) in enumerate(pairs):
        a('v_mfma_f32_16x16x32_bf16 %s, %s, %s, 0' % (vr(KV(p), 4), vr(O(ta), 4), vr(O(tb), 4)))
    a('s_mov_b32 s64, 0x3f803f80')
    Z = V_T
    for t in range(5):
        a('v_dot2_f32_bf16 v%d, v%d, s64, 0' % (Z + t, O(t)))
    for i in range(1, 4):
        for t in range(5):
            a('v_dot2_f32_bf16 v%d, v%d, s64, v%d' % (Z + t, O(t) + i, Z + t))
    if not S3: a.stamp(6)
    a('s_barrier')
    a('''
    s_lshl_b32 s15, s3, 10
    v_lshlrev_b32 v12, 4, v1
    v_add_u32 v13, s15, v12
    ''')
    for p in range(13):
        a('ds_write_b128 v13, %s offset:%d' % (vr(KV(p), 4), p * 4096))
    a('''
    s_lshl_b32 s15, s3, 2
    v_add_u32 v14, s15, v11
    v_mul_u32_u24 v14, 320, v14
    v_lshl_add_u32 v14, v10, 2, v14
    ''')
    for t in range(5):
        a('ds_write_b32 v14, v%d offset:%d' % (Z + t, 53248 + 64 * t))
    a('s_waitcnt lgkmcnt(0)')
    a('s_barrier')
    a('s_lshl_b32 s68, s6, 3')
    a('s_add_u32 s68, s68, s11')
    a('s_mul_i32 s68, s68, %d' % KVP_REC)
    a('s_add_u32 s68, s68, 0x%x' % WS_KVP)
    a('s_lshl_b32 s15, s3, 12')
    a('v_add_u32 v13, s15, v12')
    a('s_lshl_b32 s15, s3, 10')
    a('v_add_u32 v14, s15, v12')
    done = a.newlabel('K1_KVZ')
    for it in range(3):
        R = V_A + 16 * it
        for w in range(4):
            a('ds_read_b128 %s, v13 offset:%d' % (vr(R + 4 * w, 4), it * 16384 + w * 1024))
    def red_store(it):
        R = V_A + 16 * it
        a('v_pk_add_f32 %s, %s, %s' % (vr(R, 2), vr(R, 2), vr(R + 4, 2)))
        a('v_pk_add_f32 %s, %s, %s' % (vr(R + 2, 2), vr(R + 2, 2), vr(R + 6, 2)))
        a('v_pk_add_f32 %s, %s, %s' % (vr(R + 8, 2), vr(R + 8, 2), vr(R + 12, 2)))
        a('v_pk_add_f32 %s, %s, %s' % (vr(R + 10, 2), vr(R + 10, 2), vr(R + 14, 2)))
        a('v_pk_add_f32 %s, %s, %s' % (vr(R, 2), vr(R, 2), vr(R + 8, 2)))
        a('v_pk_add_f32 %s, %s, %s' % (vr(R + 2, 2), vr(R + 2, 2), vr(R + 10, 2)))
        a('s_add_u32 s69, s68, %d' % (4096 * it))
        a('buffer_store_dwordx4 %s, v14, %s, s69 offen sc1' % (vr(R, 4), sr(S_SWS, 4)))
    for it in range(3):
        a('s_waitcnt lgkmcnt(%d)' % (8 - 4 * it))
        red_store(it)
    a('s_cmp_lg_u32 s3, 0')
    a('s_cbranch_scc1 %s' % done)
    for w in range(4):
        a('ds_read_b128 %s, v13 offset:%d' % (vr(V_A + 48 + 4 * w, 4), 3 * 16384 + w * 1024))
    a('s_waitcnt lgkmcnt(0)')
    red_store(3)
    a('s_branch K1_KVFIN')
    a.label(done)
    a('s_cmp_lt_u32 s3, 2')
    fin = a.newlabel('K1_KVEND')
    a('s_cbranch_scc1 %s' % fin)
    a('''
    v_subrev_u32 v14, 128, v0
    v_cmp_gt_u32 vcc, 80, v14
    s_and_saveexec_b64 s[74:75], vcc
    s_cbranch_execz %s
    v_lshlrev_b32 v15, 2, v14
    ''' % fin)
    for i in range(16):
        a('ds_read_b32 v%d, v15 offset:%d' % (V_T + i, 53248 + 320 * i))
    a('s_add_u32 s69, s68, 13312')
    a('s_waitcnt lgkmcnt(0)')
    for st in (8, 4, 2, 1):
        for i in range(st):
            a('v_add_f32 v%d, v%d, v%d' % (V_T + i, V_T + i, V_T + i + st))
    a('buffer_store_dword v%d, v15, %s, s69 offen sc1' % (V_T, sr(S_SWS, 4)))
    a.label(fin)
    a.label('K1_KVFIN')
    srd(a, 48, P_DBG, 256)
    a('''
    s_mov_b64 exec, -1
    s_waitcnt vmcnt(0)
    s_barrier
    v_mov_b32 v3, 0
    s_cmp_lg_u32 s3, 0
    s_cbranch_scc1 K1_KVW
    v_mov_b32 v2, 1
    s_lshr_b32 s12, s11, 1
    s_lshl_b32 s12, s12, 4
    s_add_u32 s12, s12, 160
    s_mov_b64 exec, 1
    buffer_atomic_add v2, v3, s[48:51], s12 offen sc0 sc1
    s_waitcnt vmcnt(0)
    v_readfirstlane_b32 s12, v2
    s_mov_b64 exec, -1
    s_cmp_lg_u32 s12, 31
    s_cbranch_scc1 K1_KVP
    v_mov_b32 v2, 1
    v_lshlrev_b32 v4, 7, v1
    s_lshr_b32 s12, s11, 1
    s_lshl_b32 s12, s12, 12
    s_add_u32 s12, s12, 0x%x
    s_mov_b32 exec_hi, 0
    buffer_store_dword v2, v4, %s, s12 offen sc1
    s_mov_b32 exec_hi, -1
    s_branch K1_KVW
    ''' % (WS_GO3, sr(S_SWS, 4)))
    a.label('K1_KVP')
    a('''
    s_cmp_ge_u32 s98, 22
    s_cbranch_scc1 K1_KVEXIT
    s_mov_b32 s72, 0
    s_mov_b64 exec, 1
    ''')
    a.label('K1_KVPL')
    a('''
    buffer_load_dword v2, v3, %s, s99 offen sc1
    s_add_u32 s72, s72, 1
    s_waitcnt vmcnt(0)
    v_readfirstlane_b32 s12, v2
    s_cmp_eq_u32 s12, 1
    s_cbranch_scc1 K1_KVW
    s_cmp_gt_u32 s72, 0x8000
    s_cbranch_scc1 K1_KVW
    s_sleep 2
    s_branch K1_KVPL
    ''' % sr(S_SWS, 4))
    a.label('K1_KVW')
    a('''
    s_mov_b64 exec, -1
    s_cmp_ge_u32 s98, 22
    s_cbranch_scc1 K1_KVEXIT
    s_barrier
    v_lshlrev_b32 v3, 4, v1
    s_lshr_b32 s12, s11, 1
    s_mul_i32 s12, s12, 22
    s_add_u32 s15, s12, s98
    ''')
    reduce_task(a)
    a.label('K1_KVEXIT')
    a.endpgm()


KG_ROW = 272
KG_LO = 32 * KG_ROW
KG_WAVE = KG_LO + 21 * KG_ROW + 16 * 0
KLB = lambda q: 4608 * q
RA = 9216
XTL = RA + 4 * KG_WAVE
CSZ = 4160
UCB = lambda q: RA + 4 * CSZ * q
L_RED = RA + 8 * CSZ


def cmul(a, d, x, y, t):
    a('v_pk_mul_f32 %s, %s, %s op_sel:[1,1] op_sel_hi:[1,0]' % (vr(t, 2), vr(x, 2), vr(y, 2)))
    a('v_pk_fma_f32 %s, %s, %s, %s op_sel:[0,0,0] op_sel_hi:[0,1,1] neg_lo:[0,0,1]' % (vr(d, 2), vr(x, 2), vr(y, 2), vr(t, 2)))


def split_write(a, rows, tmp, vaddr, s_c1, s_c2, base=0):
    for i, (r, p) in enumerate(rows):
        a('v_cvt_pk_f16_f32 v%d, v%d, v%d' % (tmp + i, p, p + 1))
    for i, (r, p) in enumerate(rows):
        a('ds_write_b32 v%d, v%d offset:%d' % (vaddr, tmp + i, base + r * KG_ROW))


def deval(a, items, L, tmp):
    for i, (A, d) in enumerate(items):
        a('v_mul_f32 v%d, 0x%x, v%d' % (tmp + 4 * i, f32bits(float(A)), L))
        a('v_mul_f32 v%d, 0x%x, v%d' % (tmp + 4 * i + 1, f32bits(float(A)), L + 1))
    for i, (A, d) in enumerate(items):
        a('v_fract_f32 v%d, v%d' % (tmp + 4 * i + 1, tmp + 4 * i + 1))
        a('v_exp_f32 v%d, v%d' % (tmp + 4 * i, tmp + 4 * i))
    for i, (A, d) in enumerate(items):
        a('v_cos_f32 v%d, v%d' % (tmp + 4 * i + 2, tmp + 4 * i + 1))
        a('v_sin_f32 v%d, v%d' % (tmp + 4 * i + 3, tmp + 4 * i + 1))
    a.nop(1)
    for i, (A, d) in enumerate(items):
        a('v_pk_mul_f32 %s, %s, %s op_sel:[0,0] op_sel_hi:[0,1]' % (vr(d, 2), vr(tmp + 4 * i, 2), vr(tmp + 4 * i + 2, 2)))


def prep_part(a):
    a.label('K1_PREP')
    if NOPREP: a('s_endpgm')
    a('s_setprio %d' % IPRIO)
    if TOUCH:
        a('''
        s_and_b32 s64, s2, 7
        s_lshr_b32 s65, s2, 3
        s_lshl_b32 s65, s65, 2
        s_add_u32 s65, s65, s3
        s_lshl_b32 s67, s65, 6
        v_add_u32 v28, s67, v1
        v_mul_u32_u24 v29, 34953, v28
        v_lshrrev_b32 v29, 19, v29
        v_mul_u32_u24 v30, 15, v29
        v_sub_u32 v30, v28, v30
        v_mul_u32_u24 v31, 52, v30
        v_lshrrev_b32 v31, 8, v31
        v_mul_u32_u24 v32, 5, v31
        v_sub_u32 v32, v30, v32
        v_mul_u32_u24 v29, 3456, v29
        v_mul_u32_u24 v31, 1152, v31
        v_add_u32 v29, v29, v31
        v_lshl_add_u32 v29, v32, 7, v29
        s_lshr_b32 s66, s64, 2
        s_lshl_b32 s66, s66, 9
        s_and_b32 s67, s64, 3
        s_mul_i32 s67, s67, 589824
        s_lshl_b32 s65, s65, 12
        s_add_u32 s67, s67, s65
        v_lshlrev_b32 v28, 7, v1
        s_waitcnt lgkmcnt(0)
        ''')
        srd(a, 48, P_X, 2048 * 576 * 2)
        srd(a, 52, P_W, 576 * 1728 * 2)
    a('s_mov_b32 s4, s2')
    a('''
    s_mul_i32 s5, s4, 7282
    s_lshr_b32 s5, s5, 16
    s_mul_i32 s6, s5, 9
    s_sub_u32 s6, s4, s6
    s_lshr_b32 s7, s3, 1
    s_lshl_b32 s78, s6, 5
    s_add_u32 s78, s78, s5
    s_lshl_b32 s8, s78, 1
    s_add_u32 s8, s8, s7
    s_and_b32 s9, s3, 1
    s_mul_i32 s10, s3, %d
    s_add_u32 s10, s10, %d
    v_and_b32 v10, 15, v1
    v_lshrrev_b32 v11, 4, v1
    ''' % (KG_WAVE, RA))
    a('''
    s_lshl_b32 s11, s8, 8
    s_lshl_b32 s12, s9, 7
    s_add_u32 s11, s11, s12
    v_lshl_add_u32 v2, v1, 1, s11
    s_lshl_b32 s12, s78, 2
    s_waitcnt lgkmcnt(0)
    s_load_dword s13, s[36:37], s12
    s_load_dword s97, s[38:39], s12
    global_load_ushort v12, v2, s[24:25]
    global_load_ushort v13, v2, s[26:27]
    global_load_ushort v14, v2, s[28:29]
    global_load_ushort v15, v2, s[30:31]
    global_load_ushort v16, v2, s[32:33]
    global_load_ushort v17, v2, s[34:35]
    ''')
    a('''
    s_lshl_b32 s11, s5, 6
    s_lshl_b32 s12, s3, 4
    s_add_u32 s11, s11, s12
    v_lshrrev_b32 v3, 3, v1
    v_add_u32 v3, s11, v3
    v_mul_u32_u24 v3, 1152, v3
    v_and_b32 v4, 7, v1
    v_lshl_add_u32 v3, v4, 4, v3
    s_lshl_b32 s11, s6, 7
    v_add_u32 v3, s11, v3
    v_add_u32 v4, 9216, v3
    global_load_dwordx4 v[20:23], v3, s[16:17]
    global_load_dwordx4 v[24:27], v4, s[16:17]
    ''')
    GX, GW = 176, 212
    nog = a.newlabel('K1_NOG')
    a('''
    s_cmp_eq_u32 s3, 3
    s_cselect_b32 s14, 1, 0
    s_cmp_lt_u32 s4, 256
    s_cselect_b32 s14, s14, 0
    s_cmp_eq_u32 s14, 0
    s_cbranch_scc1 %s
    s_lshl_b32 s11, s4, 3
    v_lshrrev_b32 v4, 3, v1
    v_add_u32 v4, s11, v4
    v_mul_u32_u24 v5, 1152, v4
    v_and_b32 v6, 7, v1
    v_lshlrev_b32 v6, 4, v6
    v_add_u32 v5, v5, v6
    ''' % nog)
    for i in range(9):
        a('global_load_dwordx4 %s, v5, s[16:17] offset:%d' % (vr(GX + 4 * i, 4), 128 * i))
        a('global_load_dwordx4 %s, v6, s[40:41] offset:%d' % (vr(GW + 4 * i, 4), 128 * i))
    a.label(nog)
    if TOUCH:
        a('''
        buffer_load_dword v78, v29, s[52:55], s66 offen
        s_mov_b32 exec_hi, 0
        buffer_load_dword v79, v28, s[48:51], s67 offen
        s_mov_b32 exec_hi, -1
        ''')
    srd(a, S_SWS, P_WS, WS_END)
    a('s_mov_b32 s60, 0x0000bf80')
    a('s_mov_b32 s61, 0xbf800000')
    a.stamp(1)
    a('s_waitcnt vmcnt(%d) lgkmcnt(0)' % (2 if TOUCH else 0))
    a.stamp(2)
    a('''
    s_lshl_b32 s11, s3, 11
    s_add_u32 s11, s11, %d
    v_lshl_add_u32 v7, v1, 4, s11
    ds_write_b128 v7, v[20:23]
    ds_write_b128 v7, v[24:27] offset:1024
    v_lshrrev_b32 v8, 2, v10
    v_lshl_add_u32 v8, v11, 4, v8
    v_lshlrev_b32 v8, 7, v8
    v_and_b32 v9, 3, v1
    v_lshl_add_u32 v8, v9, 3, v8
    s_lshl_b32 s11, s3, 5
    s_add_u32 s11, s11, %d
    v_add_u32 v8, s11, v8
    s_waitcnt lgkmcnt(0)
    s_barrier
    ds_read_b64_tr_b16 v[20:21], v8
    ds_read_b64_tr_b16 v[22:23], v8 offset:512
    ds_read_b64_tr_b16 v[24:25], v8 offset:1024
    ds_read_b64_tr_b16 v[26:27], v8 offset:1536
    v_mul_u32_u24 v9, 144, v10
    v_lshl_add_u32 v9, v11, 5, v9
    v_add_u32 v9, s10, v9
    v_lshrrev_b32 v7, 3, v1
    v_mul_u32_u24 v8, 144, v7
    v_and_b32 v6, 7, v1
    v_lshl_add_u32 v8, v6, 4, v8
    v_add_u32 v8, s10, v8
    s_lshl_b32 s11, s6, 6
    s_lshl_b32 s12, s3, 4
    s_add_u32 s11, s11, s12
    v_add_u32 v7, s11, v7
    v_mul_u32_u24 v7, 4352, v7
    v_lshl_add_u32 v6, v6, 4, v7
    s_lshl_b32 s15, s5, 7
    s_add_u32 s15, s15, 0x%x
    s_add_u32 s98, s15, 34816
    s_waitcnt lgkmcnt(0)
    ds_write_b128 v9, v[20:23]
    ds_write_b128 v9, v[24:27] offset:16
    ds_read_b128 v[248:251], v8
    ds_read_b128 v[252:255], v8 offset:1152
    ''' % (XTL, XTL, WS_XT))
    a('s_waitcnt lgkmcnt(0)')
    a('buffer_store_dwordx4 v[248:251], v6, %s, s15 offen sc1' % sr(S_SWS, 4))
    a('buffer_store_dwordx4 v[252:255], v6, %s, s98 offen sc1' % sr(S_SWS, 4))
    a('''
    s_lshl_b32 s11, s78, 7
    s_add_u32 s11, s11, 0x%x
    s_lshl_b32 s12, s4, 7
    s_add_u32 s12, s12, 0x%x
    s_cmp_eq_u32 s3, 0
    s_cselect_b32 s11, s11, s12
    v_mov_b32 v2, 0
    s_mov_b64 exec, 1
    buffer_store_dword v2, v2, %s, s11 offen sc1
    s_mov_b64 exec, -1
    ''' % (WS_GO1, WS_GO2, sr(S_SWS, 4)))
    a('s_setprio %d' % PPRIO)
    a('''
    s_lshl_b32 s12, s7, 4
    s_lshr_b32 s13, s13, s12
    s_lshl_b32 s13, s13, 16
    v_mov_b32 v18, s13
    v_mul_f32 v18, 0x%x, v18
    v_exp_f32 v18, v18
    v_lshlrev_b32 v12, 16, v12
    v_lshlrev_b32 v13, 16, v13
    v_cvt_pk_bf16_f32 v18, v18, v18
    v_lshlrev_b32 v14, 16, v14
    v_lshlrev_b32 v15, 16, v15
    v_lshlrev_b32 v18, 16, v18
    v_lshlrev_b32 v16, 16, v16
    v_lshlrev_b32 v17, 16, v17
    v_mul_f32 v12, v18, v12
    v_mul_f32 v13, v18, v13
    v_mul_f32 v14, v18, v14
    v_mul_f32 v15, v18, v15
    v_mul_f32 v28, 0x%x, v12
    v_mul_f32 v29, 0x%x, v13
    v_mov_b32 v30, v28
    v_sub_f32 v31, 0, v29
    ''' % (f32bits(LOG2E), f32bits(LOG2E), f32bits(1.0 / (2 * math.pi))))
    L, LC = 28, 30
    X0 = 32
    cmul(a, X0, 16, 14, 34)
    a('v_sub_f32 v%d, 0, v%d' % (X0 + 1, X0 + 1))
    a('v_max_f32_e64 v34, abs(v%d), abs(v%d)' % (X0, X0 + 1))
    for dpp in ('quad_perm:[1,0,3,2]', 'quad_perm:[2,3,0,1]', 'row_half_mirror', 'row_mirror'):
        a.nop(2)
        a('v_max_f32_dpp v34, v34, v34 %s row_mask:0xf bank_mask:0xf' % dpp)
    a.nop(1)
    a('''
    v_readlane_b32 s64, v34, 0
    v_readlane_b32 s65, v34, 16
    v_readlane_b32 s66, v34, 32
    v_readlane_b32 s67, v34, 48
    s_nop 3
    s_max_u32 s64, s64, s65
    s_max_u32 s66, s66, s67
    s_max_u32 s64, s64, s66
    s_lshr_b32 s64, s64, 23
    s_sub_u32 s64, 263, s64
    s_min_u32 s64, s64, 227
    s_max_u32 s64, s64, 27
    s_lshl_b32 s66, s64, 23
    s_mov_b32 s67, s66
    s_sub_u32 s99, 254, s64
    s_lshl_b32 s99, s99, 23
    v_pk_mul_f32 v[32:33], v[32:33], s[66:67]
    ''')
    a('v_lshl_add_u32 v7, v1, 2, s10')
    YB = 40
    Y = lambda b: YB + 2 * b
    TMP = 80
    T2 = 112
    OUT = 128
    deval(a, [(8, Y(1)), (16, Y(2)), (32, Y(4)), (64, Y(8)), (128, Y(16))], L, TMP)
    srd(a, 48, P_DBG, 256)
    nopub = a.newlabel('K1_NOPUB')
    a('''
    s_waitcnt vmcnt(0)
    s_barrier
    s_cmp_lg_u32 s3, 1
    s_cbranch_scc1 %s
    v_mov_b32 v2, 1
    v_mov_b32 v3, 0
    s_lshl_b32 s11, s6, 4
    s_mov_b64 exec, 1
    buffer_atomic_add v2, v3, s[48:51], s11 offen sc0 sc1
    s_waitcnt vmcnt(0)
    v_readfirstlane_b32 s11, v2
    s_mov_b64 exec, -1
    s_cmp_lg_u32 s11, 31
    s_cbranch_scc1 %s
    v_mov_b32 v2, 1
    v_lshlrev_b32 v3, 7, v1
    s_lshl_b32 s11, s6, 12
    s_add_u32 s11, s11, 0x%x
    s_mov_b32 exec_hi, 0
    buffer_store_dword v2, v3, %s, s11 offen sc1
    s_mov_b32 exec_hi, -1
    ''' % (nopub, nopub, WS_GO1, sr(S_SWS, 4)))
    a.label(nopub)
    a('s_setprio %d' % PPRIO)
    a('v_mov_b32 v%d, 0x3c00' % TMP)
    a('ds_write_b32 v7, v%d' % TMP)
    cmul(a, Y(3), Y(2), Y(1), T2)
    cmul(a, Y(5), Y(4), Y(1), T2 + 2)
    cmul(a, Y(6), Y(4), Y(2), T2 + 4)
    cmul(a, Y(9), Y(8), Y(1), T2 + 6)
    cmul(a, Y(10), Y(8), Y(2), T2 + 8)
    cmul(a, Y(12), Y(8), Y(4), T2 + 10)
    cmul(a, Y(7), Y(4), Y(3), T2)
    cmul(a, Y(11), Y(8), Y(3), T2 + 2)
    cmul(a, Y(13), Y(8), Y(5), T2 + 4)
    cmul(a, Y(14), Y(8), Y(6), T2 + 6)
    cmul(a, Y(15), Y(8), Y(7), T2 + 8)
    split_write(a, [(b, Y(b)) for b in range(1, 9)], TMP, 7, 60, 61)
    split_write(a, [(b, Y(b)) for b in range(9, 17)], TMP, 7, 60, 61)
    for b0 in (1, 9):
        bs = [b for b in range(b0, b0 + 8) if b <= 15]
        for i, b in enumerate(bs):
            cmul(a, OUT + 2 * i, Y(16), Y(b), T2 + 2 * i)
        split_write(a, [(16 + b, OUT + 2 * i) for i, b in enumerate(bs)], TMP, 7, 60, 61)
    a.stamp(3)
    a('''
    v_and_b32 v8, 31, v1
    v_mul_u32_u24 v8, %d, v8
    v_lshrrev_b32 v9, 5, v1
    v_lshl_add_u32 v8, v9, 4, v8
    v_add_u32 v8, s10, v8
    ''' % KG_ROW)
    BF = 112
    for k in range(8):
        a('ds_read_b128 %s, v8 offset:%d' % (vr(BF + 4 * k, 4), 32 * k))
    E = {1: 12, 2: 14, 4: 16, 256: 18, 512: 20, 1024: 22, 2048: 24}
    deval(a, [(A, r) for A, r in E.items()], LC, TMP)
    XR = lambda r: 36 + 2 * r
    def X(r): return X0 if r == 0 else XR(r)
    T3 = 2
    tp = [2, 4, 26, 34]
    seq = [(1, 0, 256), (2, 0, 512), (4, 0, 1024), (8, 0, 2048), (9, 0, 4), (13, 0, 2), (17, 0, 1),
           (3, 2, 256), (5, 1, 1024), (6, 2, 1024), (10, 1, 4), (11, 2, 4), (14, 1, 2), (15, 9, 2), (18, 13, 1), (19, 9, 1),
           (7, 3, 1024), (12, 3, 4), (16, 10, 2), (20, 15, 1)]
    for i, (r, src, A) in enumerate(seq):
        cmul(a, X(r), X(src), E[A], tp[i % 4])
    split_write(a, [(r, X(r)) for r in range(0, 21)], TMP, 7, 60, 61, base=KG_LO)
    a.stamp(4)
    AF = 144
    for k in range(8):
        a('ds_read_b128 %s, v8 offset:%d' % (vr(AF + 4 * k, 4), KG_LO + 32 * k))
    ACC = 80
    for k in range(8):
        a('s_waitcnt lgkmcnt(%d)' % (7 - k))
        cin = '0' if k == 0 else vr(ACC, 16)
        a('v_mfma_f32_32x32x16_f16 %s, %s, %s, %s' % (vr(ACC, 16), vr(AF + 4 * k, 4), vr(BF + 4 * k, 4), cin))
    a.nop(16)
    a.stamp(5)
    if TOUCH:
        srd(a, 52, P_WO, 576 * 576 * 2)
        a('''
        s_lshr_b32 s65, s2, 3
        s_lshl_b32 s65, s65, 2
        s_add_u32 s65, s65, s3
        s_mul_i32 s65, s65, 4608
        v_lshlrev_b32 v101, 7, v1
        s_mov_b32 exec_hi, 0xf
        buffer_load_dword v78, v101, s[52:55], s65 offen
        s_mov_b64 exec, -1
        ''')
    even = a.newlabel('K1_EVEN')
    a('s_mov_b32 s66, s99')
    a('s_mov_b32 s67, s99')
    for i in range(0, 12, 2):
        a('v_pk_mul_f32 %s, %s, s[66:67]' % (vr(ACC + i, 2), vr(ACC + i, 2)))
    a('v_lshlrev_b32 v9, 4, v1')
    a('s_cmp_eq_u32 s9, 0')
    a('s_cbranch_scc1 %s' % even)
    a('v_add_u32 v9, s10, v9')
    for i in range(3):
        a('ds_write_b128 v9, %s offset:%d' % (vr(ACC + 4 * i, 4), 1024 * i))
    conv_inputs(a, 'O')
    a('s_mov_b64 exec, -1')
    a('s_waitcnt lgkmcnt(0)')
    a('s_barrier')
    conv_loads(a)
    endl = a.newlabel('K1_PEND')
    nosel = a.newlabel('K1_NOSEL')
    zf = a.newlabel('K1_ZF')
    a('''
    s_cmp_lg_u32 s3, 1
    s_cbranch_scc1 %s
    s_cmp_gt_u32 s4, 9
    s_cbranch_scc1 %s
    s_cmp_eq_u32 s4, 9
    s_cbranch_scc1 %s
    s_lshl_b32 s11, s4, 4
    v_add_u32 v12, s11, v10
    v_mul_u32_u24 v12, 57, v12
    v_lshrrev_b32 v12, 10, v12
    v_lshrrev_b32 v13, 1, v12
    v_cmp_eq_u32 vcc, v13, v11
    v_and_b32 v13, 1, v12
    v_lshlrev_b32 v13, 4, v13
    v_mov_b32 v14, 0x3f80
    v_lshlrev_b32 v13, v13, v14
    v_cndmask_b32 v16, 0, v13, vcc
    v_mov_b32 v17, v16
    v_mov_b32 v18, v16
    v_mov_b32 v19, v16
    v_lshlrev_b32 v12, 4, v1
    s_lshl_b32 s11, s4, 10
    s_add_u32 s11, s11, 0x%x
    buffer_store_dwordx4 v[16:19], v12, %s, s11 offen
    s_branch %s
    ''' % (nosel, endl, zf, WS_SEL, sr(S_SWS, 4), endl))
    a.label(zf)
    a('''
    v_mov_b32 v16, 0
    v_mov_b32 v17, 0
    v_mov_b32 v18, 0
    v_mov_b32 v19, 0
    v_lshlrev_b32 v12, 4, v1
    s_mov_b32 s11, 0x%x
    buffer_store_dwordx4 v[16:19], v12, %s, s11 offen
    buffer_store_dwordx4 v[16:19], v12, %s, s11 offen offset:1024
    buffer_store_dwordx4 v[16:19], v12, %s, s11 offen offset:2048
    buffer_store_dwordx4 v[16:19], v12, %s, s11 offen offset:3072
    s_add_u32 s11, s11, 4096
    buffer_store_dwordx4 v[16:19], v12, %s, s11 offen
    s_branch %s
    ''' % ((WS_FLG,) + (sr(S_SWS, 4),) * 5 + (endl,)))
    a.label(nosel)
    a('s_cmp_eq_u32 s14, 0')
    a('s_cbranch_scc1 %s' % endl)
    a('s_mov_b32 s62, 0x3f803f80')
    a('v_mov_b32 v12, 0')
    a('v_mov_b32 v13, 0')
    for i in range(0, 36, 4):
        for k in range(4):
            a('v_and_b32 v%d, 0xffff, v%d' % (20 + 2 * k, GW + i + k))
            a('v_and_b32 v%d, 0xffff0000, v%d' % (21 + 2 * k, GW + i + k))
        for k in range(4):
            a('v_dot2_f32_bf16 v%d, v%d, v%d, 0' % (30 + 2 * k, GX + i + k, 20 + 2 * k))
            a('v_dot2_f32_bf16 v%d, v%d, v%d, 0' % (31 + 2 * k, GX + i + k, 21 + 2 * k))
        a.nop(3)
        for k in range(4):
            a('v_cvt_pk_bf16_f32 v%d, v%d, v%d' % (40 + k, 30 + 2 * k, 31 + 2 * k))
        a('v_dot2_f32_bf16 v12, v40, s62, v12')
        a('v_dot2_f32_bf16 v13, v41, s62, v13')
        a('v_dot2_f32_bf16 v12, v42, s62, v12')
        a('v_dot2_f32_bf16 v13, v43, s62, v13')
    a.nop(3)
    a('v_add_f32 v12, v12, v13')
    a.nop(2)
    a('v_add_f32_dpp v12, v12, v12 quad_perm:[1,0,3,2] row_mask:0xf bank_mask:0xf')
    a.nop(2)
    a('v_add_f32_dpp v12, v12, v12 quad_perm:[2,3,0,1] row_mask:0xf bank_mask:0xf')
    a.nop(2)
    a('v_add_f32_dpp v12, v12, v12 row_half_mirror row_mask:0xf bank_mask:0xf')
    a('''
    v_cvt_pk_bf16_f32 v12, v12, v12
    v_lshlrev_b32 v12, 16, v12
    v_mul_f32 v12, 0x%x, v12
    v_exp_f32 v12, v12
    s_nop 0
    v_add_f32 v12, 1.0, v12
    v_rcp_f32 v12, v12
    s_nop 0
    v_cvt_pk_bf16_f32 v12, v12, v12
    v_lshlrev_b32 v12, 16, v12
    v_lshrrev_b32 v13, 3, v1
    v_lshlrev_b32 v13, 2, v13
    s_lshl_b32 s11, s4, 5
    s_add_u32 s11, s11, 0x%x
    v_and_b32 v14, 7, v1
    v_cmp_eq_u32 vcc, 0, v14
    s_and_saveexec_b64 s[74:75], vcc
    buffer_store_dword v12, v13, %s, s11 offen
    ''' % (f32bits(-LOG2E), WS_G, sr(S_SWS, 4)))
    a('s_mov_b64 exec, -1')
    a.label(endl)
    a('s_branch K1_CONV')
    a.label(even)
    a('s_add_u32 s11, s10, %d' % KG_WAVE)
    a('v_add_u32 v9, s11, v9')
    a('s_barrier')
    for i in range(3):
        a('ds_read_b128 %s, v9 offset:%d' % (vr(12 + 4 * i, 4), 1024 * i))
    conv_loads(a)
    a('''
    s_mov_b32 s64, 1
    s_mov_b32 s65, -1
    s_mov_b32 s66, -1
    s_mov_b32 s67, 0
    s_waitcnt lgkmcnt(0)
    ''')
    for i in range(0, 12, 2):
        a('v_pk_add_f32 %s, %s, %s' % (vr(ACC + i, 2), vr(ACC + i, 2), vr(12 + i, 2)))
    a('v_cndmask_b32 v%d, 0, v%d, s[64:65]' % (ACC + 4, ACC + 4))
    for i in (9, 10, 11):
        a('v_cndmask_b32 v%d, 0, v%d, s[66:67]' % (ACC + i, ACC + i))
    a('v_max3_f32 v12, abs(v%d), abs(v%d), abs(v%d)' % (ACC, ACC + 1, ACC + 2))
    a('v_max3_f32 v13, abs(v%d), abs(v%d), abs(v%d)' % (ACC + 3, ACC + 4, ACC + 5))
    a('v_max3_f32 v14, abs(v%d), abs(v%d), abs(v%d)' % (ACC + 6, ACC + 7, ACC + 8))
    a('v_max3_f32 v15, abs(v%d), abs(v%d), abs(v%d)' % (ACC + 9, ACC + 10, ACC + 11))
    a('v_max3_f32 v12, v12, v13, v14')
    a('v_max_f32 v12, v12, v15')
    for dpp in ('quad_perm:[1,0,3,2]', 'quad_perm:[2,3,0,1]', 'row_half_mirror', 'row_mirror'):
        a.nop(2)
        a('v_max_f32_dpp v12, v12, v12 %s row_mask:0xf bank_mask:0xf' % dpp)
    a.nop(2)
    a('''
    v_readlane_b32 s64, v12, 0
    v_readlane_b32 s65, v12, 16
    v_readlane_b32 s66, v12, 32
    v_readlane_b32 s67, v12, 48
    s_nop 3
    s_max_u32 s64, s64, s65
    s_max_u32 s66, s66, s67
    s_max_u32 s64, s64, s66
    s_lshr_b32 s64, s64, 23
    s_sub_u32 s64, 268, s64
    s_min_u32 s64, s64, 254
    s_lshl_b32 s66, s64, 23
    s_mov_b32 s67, s66
    ''')
    for i in range(0, 12, 2):
        a('v_pk_mul_f32 %s, %s, s[66:67]' % (vr(ACC + i, 2), vr(ACC + i, 2)))
    for i in range(0, 12, 2):
        a('v_cvt_pk_f16_f32 v%d, v%d, v%d' % (12 + i // 2, ACC + i, ACC + i + 1))
    a('''
    v_and_b32 v8, 31, v1
    v_lshlrev_b32 v8, 1, v8
    v_lshrrev_b32 v9, 5, v1
    v_lshl_add_u32 v8, v9, 8, v8
    v_add_u32 v8, s10, v8
    s_mul_i32 s11, s7, 4608
    ''')
    for r in range(12):
        off = (8 * (r >> 2) + (r & 3)) * 64
        if r % 2 == 0:
            a('ds_write_b16 v8, v%d offset:%d' % (12 + r // 2, off))
        else:
            a('ds_write_b16_d16_hi v8, v%d offset:%d' % (12 + r // 2, off))
    V0, V0N, V4, V2, V6, V1, V3, V5, V7 = 0, 1, 288, 416, 480, 544, 576, 608, 640
    C0 = [V0, V1, V2, V3, V4, V5, V6, V7]
    C1 = [V0, V0, V2, V4, V4, V4, V6, V0N]
    a('v_lshl_add_u32 v8, v1, 1, s10')
    a('s_mov_b32 s66, -1')
    a('s_mov_b32 s67, 0')
    for e in range(8):
        if C0[e] == C1[e]:
            a('ds_read_u16 v%d, v8 offset:%d' % (20 + e, 2 * C0[e]))
        else:
            a('v_mov_b32 v9, %d' % (2 * C1[e]))
            a('v_mov_b32 v11, %d' % (2 * C0[e]))
            a('v_cndmask_b32 v9, v9, v11, s[66:67]')
            a('v_add_u32 v9, v9, v8')
            a('ds_read_u16 v%d, v9' % (20 + e))
    a('ds_read_u16 v28, v8 offset:%d' % (2 * (64 + V0)))
    a('ds_read_u16 v29, v8 offset:%d' % (2 * (64 + V4)))
    a('ds_read_u16 v30, v8 offset:%d' % (2 * (64 + V0N)))
    for rd in (2, 3):
        a('ds_read_u16 v%d, v8 offset:%d' % (27 + 2 * rd, 2 * (64 * rd)))
        a('ds_read_u16 v%d, v8 offset:%d' % (28 + 2 * rd, 2 * (64 * rd + 1)))
    a('''
    v_lshl_add_u32 v9, v1, 4, s11
    v_and_b32 v11, 1, v1
    v_cmp_eq_u32 vcc, 0, v11
    v_mov_b32 v56, 0
    v_mov_b32 v57, 0
    v_mov_b32 v58, 0
    v_mov_b32 v59, 0
    s_mov_b32 s66, 0x10001
    s_waitcnt lgkmcnt(0)
    ''')
    for k in range(4):
        a('v_lshl_or_b32 v%d, v%d, 16, v%d' % (40 + k, 20 + 6 - 2 * k, 20 + 7 - 2 * k))
    a('v_mul_lo_u32 v44, v30, s66')
    a('v_mul_lo_u32 v45, v29, s66')
    a('v_lshl_or_b32 v46, v28, 16, v29')
    a('v_mul_lo_u32 v47, v28, s66')
    for rd in (2, 3):
        A, B, D = 27 + 2 * rd, 28 + 2 * rd, 40 + 4 * rd
        a('v_mul_lo_u32 v%d, v%d, s66' % (D, B))
        a('v_cndmask_b32 v11, v%d, v%d, vcc' % (B, A))
        a('v_mul_lo_u32 v%d, v%d, s66' % (D + 2, A))
        a('v_lshl_or_b32 v%d, v11, 16, v%d' % (D + 1, B))
        a('v_mov_b32 v%d, v%d' % (D + 3, D + 2))
    for rd in range(4):
        a('ds_write_b128 v9, %s offset:%d' % (vr(40 + 4 * rd, 4), 480 + 1024 * rd))
    a('''
    s_mov_b64 exec, 0x3fffffff
    ds_write_b128 v9, v[56:59]
    v_mov_b32 v60, s64
    s_mov_b64 exec, 1
    ds_write_b32 v9, v60 offset:4576
    s_mov_b64 exec, -1
    v_lshrrev_b32 v11, 4, v1
    ''')
    conv_part(a)


C_IN = lambda q: 144 + 8 * q
C_UD = lambda q: 176 + 8 * q
C_OUT = lambda q: 168 + 4 * q
C_BF, C_AF, C_ACC = 40, 104, 216
V_UW0, V_UW2, V_AA, V_BA, V_RW, V_RR = 248, 249, 250, 251, 252, 253


def conv_inputs(a, tag):
    lbl = 'K1_PX' + tag
    if tag == 'O':
        a('''
        s_cmp_lg_u32 s3, 1
        s_cbranch_scc1 %s_ok
        s_lshl_b32 s11, s78, 7
        s_add_u32 s11, s11, 0xb40000
        v_mov_b32 v3, 0
        s_mov_b32 s72, 0
        s_mov_b64 exec, 1
        ''' % lbl)
        a.label(lbl)
        a('''
        buffer_load_dword v2, v3, s[56:59], s11 offen sc1
        s_add_u32 s72, s72, 1
        s_waitcnt vmcnt(0)
        v_readfirstlane_b32 s12, v2
        s_cmp_eq_u32 s12, 1
        s_cbranch_scc1 %s_ok
        s_cmp_gt_u32 s72, 0x8000
        s_cbranch_scc1 %s_ok
        s_sleep 4
        s_branch %s
        ''' % (lbl, lbl, lbl))
    a.label(lbl + '_ok')
    return


def conv_loads(a):
    a('''
    v_lshlrev_b32 v2, 4, v0
    v_subrev_u32 v5, 4, v2
    v_and_b32 v4, 31, v1
    v_lshlrev_b32 v4, 2, v4
    s_mul_i32 s11, s78, 8704
    s_add_u32 s11, s11, 0x%x
    s_add_u32 s52, s46, s11
    s_addc_u32 s53, s47, 0
    s_and_b32 s53, s53, 0xffff
    s_mov_b32 s54, 4096
    s_mov_b32 s55, 0x20000
    s_add_u32 s68, s52, 4352
    s_addc_u32 s69, s53, 0
    s_mov_b32 s70, 4096
    s_mov_b32 s71, 0x20000
    s_lshl_b32 s11, s4, 8
    s_add_u32 s11, s11, 0x%x
    ''' % (WS_XT, WS_PM))
    for q in range(2):
        b = C_IN(q)
        S = 's[52:55]' if q == 0 else 's[68:71]'
        a('buffer_load_dword v%d, v5, %s, 0 offen sc1' % (b + 1, S))
        a('buffer_load_dwordx4 %s, v2, %s, 0 offen sc1' % (vr(b + 2, 4), S))


def conv_part(a):
    a.label('K1_CONV')
    a('s_setprio %d' % CPRIO)
    lg = Cnt(a, 'lgkmcnt', 15)
    a('s_waitcnt lgkmcnt(0)')
    a('s_barrier')
    a('''
    v_lshlrev_b32 v3, 4, v1
    v_lshrrev_b32 v12, 2, v10
    v_add_u32 v%d, %d, v2
    v_add_u32 v%d, %d, v2
    v_not_b32 v13, v10
    v_and_b32 v13, 3, v13
    v_mul_u32_u24 v13, %d, v13
    v_lshl_add_u32 v13, v12, 3, v13
    v_lshlrev_b32 v14, 4, v11
    v_sub_u32 v13, v13, v14
    s_lshl_b32 s9, s3, 6
    s_add_u32 s11, s9, %d
    v_add_u32 v%d, s11, v13
    v_lshl_add_u32 v13, v10, 5, v14
    s_sub_u32 s11, 192, s9
    v_add_u32 v%d, s11, v13
    v_lshl_add_u32 v13, v10, 2, v11
    v_bfe_u32 v14, v10, 1, 2
    v_xor_b32 v13, v13, v14
    s_lshl_b32 s9, s3, 10
    s_add_u32 s9, s9, %d
    v_lshl_add_u32 v%d, v13, 4, s9
    v_and_b32 v13, 31, v1
    v_lshlrev_b32 v13, 1, v13
    v_bfe_u32 v14, v13, 3, 2
    v_xor_b32 v13, v13, v14
    v_lshlrev_b32 v13, 4, v13
    v_lshrrev_b32 v14, 5, v1
    v_lshl_add_u32 v13, v14, 12, v13
    s_lshl_b32 s9, s3, 13
    s_add_u32 s9, s9, %d
    v_add_u32 v%d, s9, v13
    v_lshrrev_b32 v12, 1, v1
    v_mul_u32_u24 v12, %d, v12
    v_and_b32 v13, 1, v1
    v_lshl_add_u32 v12, v13, 4, v12
    v_add_u32 v12, %d, v12
    v_and_b32 v13, 1, v1
    v_bfe_u32 v14, v1, 1, 1
    v_lshl_add_u32 v13, v14, 2, v13
    v_add_u32 v13, 2, v13
    v_mul_u32_u24 v13, %d, v13
    v_add_u32 v13, %d, v13
    v_mov_b32 v16, 0
    v_mov_b32 v17, 0
    v_mov_b32 v18, 0
    v_mov_b32 v19, 0
    v_mov_b32 v15, 4576
    ds_read_b32 v20, v15
    ds_read_b32 v21, v15 offset:4608
    s_mov_b64 exec, 0xffff
    ds_write_b128 v12, v[16:19]
    s_mov_b64 exec, 15
    ds_write_b32 v13, v16
    s_mov_b64 exec, -1
    s_waitcnt vmcnt(0) lgkmcnt(0)
    v_readfirstlane_b32 s76, v20
    v_readfirstlane_b32 s77, v21
    ''' % (V_UW0, RA + 32, V_UW2, RA + 2 * CSZ + 36, CSZ, RA + 56, V_AA, V_BA, L_RED, V_RW, L_RED, V_RR, CSZ, RA, CSZ, RA + 32))
    a.stamp(6)
    DPPS = ('quad_perm:[1,0,3,2]', 'quad_perm:[2,3,0,1]', 'row_half_mirror', 'row_mirror')
    a('s_mov_b32 s8, 0x7fff7fff')
    for q in range(2):
        for k in range(4):
            a('v_and_b32 v%d, s8, v%d' % (16 + 4 * q + k, C_IN(q) + 2 + k))
    for q in range(2):
        a('v_pk_max_u16 v%d, v%d, v%d' % (16 + 4 * q, 16 + 4 * q, 17 + 4 * q))
        a('v_pk_max_u16 v%d, v%d, v%d' % (18 + 4 * q, 18 + 4 * q, 19 + 4 * q))
    for q in range(2):
        a('v_pk_max_u16 v%d, v%d, v%d' % (16 + 4 * q, 16 + 4 * q, 18 + 4 * q))
    a('v_and_b32 v17, 0xffff, v16')
    a('v_lshl_or_b32 v17, v20, 16, v17')
    a('v_lshrrev_b32 v18, 16, v16')
    a('v_and_b32 v19, 0xffff0000, v20')
    a('v_or_b32 v18, v18, v19')
    a('v_pk_max_u16 v16, v17, v18')
    for dpp in DPPS:
        a.nop(2)
        a('v_mov_b32_dpp v17, v16 %s row_mask:0xf bank_mask:0xf' % dpp)
        a('v_pk_max_u16 v16, v16, v17')
    a('''
    v_lshrrev_b32 v17, 4, v0
    v_lshlrev_b32 v17, 2, v17
    v_add_u32 v17, %d, v17
    v_cmp_eq_u32 vcc, 0, v10
    v_lshlrev_b32 v18, 2, v10
    v_add_u32 v18, %d, v18
    s_and_saveexec_b64 s[74:75], vcc
    ds_write_b32 v17, v16
    s_mov_b64 exec, s[74:75]
    s_waitcnt lgkmcnt(0)
    s_barrier
    ds_read_b32 v16, v18
    s_waitcnt lgkmcnt(0)
    ''' % (L_RED, L_RED))
    for dpp in DPPS:
        a.nop(2)
        a('v_mov_b32_dpp v17, v16 %s row_mask:0xf bank_mask:0xf' % dpp)
        a('v_pk_max_u16 v16, v16, v17')
    a.nop(1)
    a('v_readfirstlane_b32 s15, v16')
    def stage(q):
        b = C_IN(q)
        ub = 4 * CSZ * q
        T = 16
        for k in range(4):
            a('v_lshlrev_b32 v%d, 16, v%d' % (T + 2 * k, b + 2 + k))
            a('v_and_b32 v%d, 0xffff0000, v%d' % (T + 2 * k + 1, b + 2 + k))
        a('''
        v_and_b32 v%d, 0xffff0000, v%d
        %s
        s_mov_b32 s13, s12
        %s
        s_lshr_b32 s8, s8, 7
        s_sub_u32 s8, 268, s8
        s_min_u32 s8, s8, 254
        s_add_u32 s%d, s8, s%d
        s_sub_u32 s%d, 254, s%d
        s_lshl_b32 s8, s8, 23
        s_mov_b32 s9, s8
        ''' % (T + 8, b + 1, 's_lshl_b32 s12, s97, 16' if q == 0 else 's_and_b32 s12, s97, 0xffff0000',
               's_and_b32 s8, s15, 0xffff' if q == 0 else 's_lshr_b32 s8, s15, 16', 76 + q, 76 + q, 76 + q, 76 + q))
        u = C_UD(q)
        for k in range(4):
            a('v_pk_mul_f32 %s, %s, s[12:13]' % (vr(u + 2 * k, 2), vr(T + 2 * k, 2)))
        for k in range(4):
            a('v_pk_mul_f32 %s, %s, s[8:9]' % (vr(T + 2 * k, 2), vr(T + 2 * k, 2)))
        a('v_mul_f32 v%d, s8, v%d' % (T + 8, T + 8))
        F = 32
        for k in range(4):
            a('v_cvt_pk_f16_f32 v%d, v%d, v%d' % (F + k, T + 2 * k, T + 2 * k + 1))
        a('v_cvt_pk_f16_f32 v%d, v%d, v%d' % (F - 1, T + 8, T + 8))
        if ub:
            a('v_add_u32 v12, %d, v%d' % (ub, V_UW2))
            w2 = 12
        else:
            w2 = V_UW2
        a('ds_write_b128 v%d, %s offset:%d' % (V_UW0, vr(F, 4), ub))
        a('ds_write2_b32 v%d, v%d, v%d offset0:0 offset1:1' % (w2, F, F + 1))
        a('ds_write2_b32 v%d, v%d, v%d offset0:2 offset1:3' % (w2, F + 2, F + 3))
        for k in range(4):
            a('v_alignbit_b32 v%d, v%d, v%d, 16' % (36 + k, F + k, F + k - 1))
        a('v_add_u32 v13, %d, v%d' % (CSZ, w2))
        a('ds_write_b128 v%d, v[36:39] offset:%d' % (V_UW0, ub + CSZ))
        a('ds_write2_b32 v13, v36, v37 offset0:0 offset1:1')
        a('ds_write2_b32 v13, v38, v39 offset0:2 offset1:3')
        for k in range(4):
            a('v_cvt_pk_bf16_f32 v%d, v%d, v%d' % (T + k, u + 2 * k, u + 2 * k + 1))
        for k in range(4):
            a('v_lshlrev_b32 v%d, 16, v%d' % (u + 2 * k, T + k))
            a('v_and_b32 v%d, 0xffff0000, v%d' % (u + 2 * k + 1, T + k))
    BF, AFR, ACC = C_BF, C_AF, C_ACC
    def mfma_loop(q):
        ub = 4 * CSZ * q
        kb = KLB(q)
        def aread(t):
            r = AFR + 4 * (t % 8)
            a('ds_read_b64 %s, v%d offset:%d' % (vr(r, 2), V_AA, ub + 256 * t))
            lg.issue(('A', t))
            a('ds_read_b64 %s, v%d offset:%d' % (vr(r + 2, 2), V_AA, ub + 256 * t + 8))
            lg.issue(('A', t))
        def bread(s_):
            a('ds_read_b128 %s, v%d offset:%d' % (vr(BF + 4 * s_, 4), V_BA, kb + 256 * s_))
            lg.issue(('B', s_))
        aread(0)
        for n in range(8): bread(2 * n + 1)
        aread(1)
        for n in range(8): bread(2 * n)
        started = set()
        for t in range(16):
            lg.wait(('A', t))
            for n in range(8):
                if 2 * n + 1 < t: continue
                s_ = 2 * n - t + 1
                if t < 2 and n % 2 == 0:
                    lg.wait(('B', min(s_ + 2, 15 if t == 0 else 14)))
                cin = vr(ACC + 4 * n, 4) if n in started else '0'
                started.add(n)
                a('v_mfma_f32_16x16x32_f16 %s, %s, %s, %s' % (vr(ACC + 4 * n, 4), vr(AFR + 4 * (t % 8), 4), vr(BF + 4 * s_, 4), cin))
            if t == 0:
                for tt in range(2, 5): aread(tt)
            elif t == 1:
                for tt in range(5, 8): aread(tt)
            if t + 8 < 16: aread(t + 8)
        a.nop(8)
    def reduce_store(q):
        if q: a('s_barrier')
        for n in range(8):
            a('ds_write_b128 v%d, %s offset:%d' % (V_RW, vr(ACC + 4 * n, 4), n * 4096))
        a('v_xor_b32 v12, 16, v%d' % V_RR)
        a('s_waitcnt lgkmcnt(0)')
        lg.ops = []
        a('s_barrier')
        R = 40
        for w in range(4):
            a('ds_read_b128 %s, v%d offset:%d' % (vr(R + 8 * w, 4), V_RR, w * 1024))
            a('ds_read_b128 %s, v12 offset:%d' % (vr(R + 8 * w + 4, 4), w * 1024))
        a('s_mul_i32 s8, s78, %d' % (2 * TS))
        a('s_add_u32 s8, s8, 0x%x' % (WS_BT + TS * q))
        a('s_waitcnt lgkmcnt(4)')
        for h in range(0, 8, 2):
            a('v_pk_add_f32 %s, %s, %s' % (vr(R + h, 2), vr(R + h, 2), vr(R + 8 + h, 2)))
        a('s_waitcnt lgkmcnt(0)')
        for h in range(0, 8, 2):
            a('v_pk_add_f32 %s, %s, %s' % (vr(R + 16 + h, 2), vr(R + 16 + h, 2), vr(R + 24 + h, 2)))
        for h in range(0, 8, 2):
            a('v_pk_add_f32 %s, %s, %s' % (vr(R + h, 2), vr(R + h, 2), vr(R + 16 + h, 2)))
        for k in range(8):
            a('v_ldexp_f32 v%d, v%d, s%d' % (R + k, R + k, 76 + q))
        for k in range(4):
            a('v_cvt_pk_bf16_f32 v%d, v%d, v%d' % (R + 8 + k, R + 2 * k, R + 2 * k + 1))
        for k in range(4):
            a('v_lshlrev_b32 v%d, 16, v%d' % (R + 2 * k, R + 8 + k))
            a('v_and_b32 v%d, 0xffff0000, v%d' % (R + 2 * k + 1, R + 8 + k))
        u = C_UD(q)
        for k in range(4):
            a('v_pk_add_f32 %s, %s, %s' % (vr(R + 2 * k, 2), vr(R + 2 * k, 2), vr(u + 2 * k, 2)))
        O = C_OUT(q)
        for k in range(4):
            a('v_cvt_pk_bf16_f32 v%d, v%d, v%d' % (O + k, R + 2 * k, R + 2 * k + 1))
        a('buffer_store_dwordx4 %s, v2, %s, s8 offen' % (vr(O, 4), sr(S_SWS, 4)))
    stage(0)
    stage(1)
    a('s_waitcnt lgkmcnt(0)')
    a('s_barrier')
    mfma_loop(0)
    reduce_store(0)
    mfma_loop(1)
    reduce_store(1)
    a.endpgm()


def gen_k1(a):
    a.lines.append('.globl k1_kernel\n.p2align 8\n.type k1_kernel,@function\nk1_kernel:')
    a('s_cmp_ge_u32 s2, %d' % K1_GRID)
    a('s_cbranch_scc1 K1_EXIT')
    a.kidx = 0
    a.stamp_init()
    load_kernargs(a)
    a('''
    v_lshrrev_b32 v2, 6, v0
    v_and_b32 v1, 63, v0
    s_nop 0
    v_readfirstlane_b32 s3, v2
    ''')
    a('''
    s_cmp_lt_u32 s2, %d
    s_cbranch_scc1 K1_PREP
    s_sub_u32 s97, s2, %d
    ''' % (N_PREP, N_PREP))
    gemm_part(a)
    prep_part(a)
    a.label('K1_EXIT')
    a('s_endpgm')
```

```python
from asmlib import *
import math

WS_PQ = 0x000000
TS = 4352
WS_XT = 0x240000
WS_BT = 0x4B0000
WS_KF = 0x720000
KF_STRIDE = 4608
WS_KVP = 0x950000
KVP_REC = 13 * 1024 + 512
WS_KVF = 0xB00000
WS_SEL = 0xB18000
WS_G = 0xB1C000
WS_PM = 0xB20000
WS_FLG = 0xB34000
WS_GO1 = 0xB40000
WS_GO2 = 0xB50000
WS_GO3 = 0xB60000
WS_END = 0xB70000

N_GEMM = 192
N_PREP = 288
K1_GRID = N_GEMM + N_PREP
K1_LDS = 81920

import os
TOUCH = int(os.environ.get('TOUCH', '1'))
TOUCH_FLAGS = os.environ.get('TOUCH_FLAGS', '')
WFLAGS = os.environ.get('WFLAGS', '')
AFLAGS = os.environ.get('AFLAGS', '')
NOMEM = int(os.environ.get('NOMEM', '0'))
NOPREP = int(os.environ.get('NOPREP', '0'))
NOXS = int(os.environ.get('NOXS', '0'))
PRO = int(os.environ.get('PRO', '2'))
GPRIO = int(os.environ.get('GPRIO', '3'))
PPRIO = int(os.environ.get('PPRIO', '0'))
S3 = int(os.environ.get('S3', '0'))
NOX = int(os.environ.get('NOX', '0'))
NOW = int(os.environ.get('NOW', '0'))
CPRIO = int(os.environ.get('CPRIO', '2'))
QPRIO = int(os.environ.get('QPRIO', '-1'))
IPRIO = int(os.environ.get('IPRIO', '0'))
NOBAR = int(os.environ.get('NOBAR', '0'))
LOG2E = 1.4426950408889634

P_X, P_W, P_WO, P_BU, P_ARE, P_AIM, P_BRE, P_BIM = 16, 18, 20, 22, 24, 26, 28, 30
P_CRE, P_CIM, P_LDT, P_DSK, P_GW, P_OUT, P_DBG, P_WS = 32, 34, 36, 38, 40, 42, 44, 46


class Cnt:
    def __init__(self, a, name, cap):
        self.a, self.name, self.cap = a, name, cap
        self.ops = []
    def issue(self, tag):
        self.ops.append(tag)
    def wait(self, tag):
        idx = max(i for i, t in enumerate(self.ops) if t == tag) if tag in self.ops else None
        if idx is None:
            return
        n = len(self.ops) - 1 - idx
        n = min(n, self.cap)
        self.a('s_waitcnt %s(%d)' % (self.name, n))
        self.ops = self.ops[len(self.ops) - n:] if n > 0 else []
    def wait_all(self):
        self.a('s_waitcnt %s(0)' % self.name)
        self.ops = []


def load_kernargs(a):
    a('s_load_dwordx16 s[16:31], s[0:1], 0')
    a('s_load_dwordx16 s[32:47], s[0:1], 64')


def phi_batch(a, pairs, tmp, s_l2e, s_eps, keep_raw=None):
    n = len(pairs)
    H = lambda i: (keep_raw[i] if keep_raw else tmp + 6 * i)
    T = lambda i: tmp + 6 * i + 2
    E = lambda i: tmp + 6 * i + 4
    for i, (a0, a1, d) in enumerate(pairs):
        a('v_cvt_pk_bf16_f32 v%d, v%d, v%d' % (H(i), a0, a1))
    for i in range(n):
        a('v_lshlrev_b32 v%d, 16, v%d' % (T(i), H(i)))
        a('v_and_b32 v%d, 0xffff0000, v%d' % (T(i) + 1, H(i)))
    for i in range(n):
        a('v_pk_mul_f32 %s, %s, %s' % (vr(E(i), 2), vr(T(i), 2), sr(s_l2e, 2)))
    for i in range(n):
        a('v_exp_f32_e64 v%d, v%d clamp' % (E(i), E(i)))
        a('v_exp_f32_e64 v%d, v%d clamp' % (E(i) + 1, E(i) + 1))
    for i in range(n):
        a('v_max_f32 v%d, 0, v%d' % (T(i), T(i)))
        a('v_max_f32 v%d, 0, v%d' % (T(i) + 1, T(i) + 1))
    for i in range(n):
        a('v_pk_add_f32 %s, %s, %s' % (vr(E(i), 2), vr(E(i), 2), vr(T(i), 2)))
    for i, (a0, a1, d) in enumerate(pairs):
        a('v_cvt_pk_bf16_f32 v%d, v%d, v%d' % (d, E(i), E(i) + 1))
    for i, (a0, a1, d) in enumerate(pairs):
        a('v_pk_min_u16 v%d, v%d, v%d' % (V_PMIN, V_PMIN, d))


V_PMIN = 243


def phi_fix(a, regs, tmp, s_eps, lbl):
    a('''
    v_lshrrev_b32 v%d, 16, v%d
    v_and_b32 v%d, 0xffff, v%d
    v_min_u32 v%d, v%d, v%d
    v_cmp_gt_u32 vcc, 0x3a00, v%d
    s_cbranch_vccz %s
    ''' % (tmp, V_PMIN, tmp + 1, V_PMIN, tmp, tmp, tmp + 1, tmp, lbl))
    for r in regs:
        a('v_lshlrev_b32 v%d, 16, v%d' % (tmp, r))
        a('v_and_b32 v%d, 0xffff0000, v%d' % (tmp + 1, r))
        a('v_pk_add_f32 %s, %s, %s' % (vr(tmp, 2), vr(tmp, 2), sr(s_eps, 2)))
        a('v_cvt_pk_bf16_f32 v%d, v%d, v%d' % (r, tmp, tmp + 1))
    a.label(lbl)


V_XOFF, V_SW, V_DMA, V_TR, V_TR2, V_SR0, V_SR1 = 2, 3, 4, 9, 240, 241, 242
V_XR, V_AF, V_B, V_ACC = 16, 96, 128, 168
V_A = 16
V_T = 96
SLOT = 18432
SCR = 4 * SLOT
S_SX, S_SW, S_SWS = 48, 52, 56
PAIRS = [(0, 4), (0, 5), (1, 4), (1, 5), (1, 6), (2, 5), (2, 6), (2, 7), (3, 6), (3, 7), (3, 8), (4, 7), (4, 8)]


STEPS = {0: [0], 1: [0, 1], 2: [0, 1], 3: [1, 2], 4: [1, 2], 5: [2, 3], 6: [2, 3], 7: [3, 4], 8: [3, 4]}
FRAGS = [('Z', k) for k in range(5)] + [(c, k) for c in range(9) for k in STEPS[c]]


def reduce_task(a):
    cb = sum(((15 if c == 'Z' else c) << (4 * f)) for f, (c, k) in enumerate(FRAGS))
    kb = sum((k << (4 * f)) for f, (c, k) in enumerate(FRAGS))
    a('''
    s_mul_i32 s64, s15, 94
    s_lshr_b32 s64, s64, 11
    s_mul_i32 s65, s64, 22
    s_sub_u32 s65, s15, s65
    s_mov_b32 s66, 0x%x
    s_mov_b32 s67, 0x%x
    s_mov_b32 s68, 0x%x
    s_mov_b32 s69, 0x%x
    s_cmp_ge_u32 s65, 16
    s_cselect_b32 s66, 0x%x, s66
    s_cselect_b32 s68, 0x%x, s68
    s_and_b32 s70, s65, 15
    s_lshl_b32 s70, s70, 2
    s_lshr_b64 s[66:67], s[66:67], s70
    s_lshr_b64 s[68:69], s[68:69], s70
    s_and_b32 s66, s66, 15
    s_and_b32 s68, s68, 15
    s_lshl_b32 s70, s68, 5
    v_lshl_add_u32 v16, v11, 3, s70
    s_cmp_eq_u32 s66, 15
    s_cbranch_scc1 K1_RZ
    s_lshl_b32 s70, s66, 4
    v_add_u32 v17, s70, v10
    v_mul_u32_u24 v18, 57, v17
    v_lshrrev_b32 v18, 10, v18
    v_lshrrev_b32 v19, 2, v18
    v_mul_u32_u24 v20, 72, v19
    v_sub_u32 v21, v17, v20
    v_add_u32 v21, 72, v21
    v_sub_u32 v22, v16, v20
    v_lshrrev_b32 v23, 4, v22
    v_lshrrev_b32 v24, 4, v21
    v_lshl_add_u32 v23, v23, 1, v24
    v_subrev_u32 v23, 4, v23
    v_and_b32 v24, 15, v21
    v_and_b32 v25, 12, v22
    v_lshl_add_u32 v24, v25, 2, v24
    v_lshlrev_b32 v24, 4, v24
    v_lshl_add_u32 v24, v23, 10, v24
    v_add_u32 v25, 256, v24
    s_mov_b64 s[74:75], -1
    s_branch K1_RC
    ''' % (cb & 0xffffffff, (cb >> 32) & 0xffffffff, kb & 0xffffffff, (kb >> 32) & 0xffffffff, cb >> 64, kb >> 64))
    a.label('K1_RZ')
    a('''
    v_lshrrev_b32 v18, 2, v10
    v_lshlrev_b32 v18, 1, v18
    v_and_b32 v19, 1, v10
    v_add_u32 v18, v18, v19
    v_and_b32 v19, 2, v10
    v_cmp_eq_u32 s[74:75], 0, v19
    v_lshrrev_b32 v19, 2, v18
    v_mul_u32_u24 v20, 72, v19
    v_sub_u32 v22, v16, v20
    v_lshlrev_b32 v24, 2, v22
    v_add_u32 v24, 13312, v24
    v_add_u32 v25, 16, v24
    ''')
    a.label('K1_RC')
    a('''
    v_mul_u32_u24 v26, 18, v18
    v_sub_u32 v26, v26, v16
    v_add_u32 v27, 17, v26
    v_cmp_gt_u32 vcc, 25, v27
    s_and_b64 s[74:75], s[74:75], vcc
    s_lshl_b32 s70, s64, 1
    v_add_u32 v19, s70, v19
    v_mul_u32_u24 v19, %d, v19
    v_add_u32 v24, v24, v19
    v_add_u32 v25, v25, v19
    v_mov_b32 v27, 0x40000000
    v_cndmask_b32 v24, v27, v24, s[74:75]
    v_cndmask_b32 v25, v27, v25, s[74:75]
    s_mul_i32 s70, s3, %d
    s_add_u32 s70, s70, 0x%x
    ''' % (KVP_REC, 32 * KVP_REC, WS_KVP))
    R = 32
    for rb in range(4):
        a('buffer_load_dwordx4 %s, v24, %s, s70 offen sc1' % (vr(R + 8 * rb, 4), sr(S_SWS, 4)))
        a('buffer_load_dwordx4 %s, v25, %s, s70 offen sc1' % (vr(R + 8 * rb + 4, 4), sr(S_SWS, 4)))
        if rb < 3:
            a('s_add_u32 s70, s70, %d' % (8 * KVP_REC))
    a('''
    s_lshl_b32 s70, s15, 10
    s_add_u32 s70, s70, 0x%x
    s_lshl_b32 s71, s3, 11
    s_add_u32 s71, s71, 1024
    v_add_u32 v2, s71, v3
    s_waitcnt vmcnt(0)
    ''' % WS_KVF)
    for st in (2, 1):
        for i in range(st):
            for h in range(0, 8, 2):
                a('v_pk_add_f32 %s, %s, %s' % (vr(R + 8 * i + h, 2), vr(R + 8 * i + h, 2), vr(R + 8 * (i + st) + h, 2)))
    a('ds_write_b128 v2, %s' % vr(R, 4))
    a('ds_write_b128 v2, %s offset:1024' % vr(R + 4, 4))
    a('s_waitcnt lgkmcnt(0)')
    a('s_barrier')
    a('s_cmp_lg_u32 s3, 0')
    a('s_cbranch_scc1 K1_KVEXIT')
    for w in range(1, 4):
        a('ds_read_b128 %s, v2 offset:%d' % (vr(R + 8 * w, 4), 2048 * w))
        a('ds_read_b128 %s, v2 offset:%d' % (vr(R + 8 * w + 4, 4), 2048 * w + 1024))
    a('s_waitcnt lgkmcnt(0)')
    for st in (2, 1):
        for i in range(st):
            for h in range(0, 8, 2):
                a('v_pk_add_f32 %s, %s, %s' % (vr(R + 8 * i + h, 2), vr(R + 8 * i + h, 2), vr(R + 8 * (i + st) + h, 2)))
    for j in range(8):
        a('v_subrev_u32 v27, v26, %d' % j if False else 'v_sub_u32 v27, %d, v26' % j)
        a('v_cmp_gt_u32 vcc, 18, v27')
        a('s_and_b64 vcc, vcc, s[74:75]')
        a('s_nop 0')
        a('v_cndmask_b32 v%d, 0, v%d, vcc' % (R + j, R + j))
    for k in range(4):
        a('v_cvt_pk_bf16_f32 v%d, v%d, v%d' % (28 + k, R + 2 * k, R + 2 * k + 1))
    a('buffer_store_dwordx4 v[28:31], v3, %s, s70 offen' % sr(S_SWS, 4))


def gemm_main(a, qtype):
    vm = Cnt(a, 'vmcnt', 63)
    lg = Cnt(a, 'lgkmcnt', 15)
    side = []
    wcount = {}
    xcount = {}

    def dma_ops(c):
        if NOMEM or NOW: return []
        slot = (c % 4) * SLOT
        ops = []
        def one(i):
            a('s_add_u32 m0, s8, 0x%x' % (slot + i * 1024))
            a('s_mov_b32 s10, 0x%x' % (c * 64 * 3456))
            a('buffer_load_dwordx4 v%d, %s, s10 offen lds' % (V_DMA + i, sr(S_SW, 4)))
            vm.issue(('W', c)); wcount[c] = wcount.get(c, 0) + 1
        def last():
            a('s_add_u32 m0, s9, 0x%x' % (slot + 16384))
            a('s_mov_b32 exec_hi, 0')
            a('buffer_load_dwordx4 v%d, %s, s10 offen lds' % (V_DMA + 4, sr(S_SW, 4)))
            a('s_mov_b32 exec_hi, -1')
            vm.issue(('W', c)); wcount[c] = wcount.get(c, 0) + 1
        for i in range(4):
            ops.append(lambda i=i: one(i))
        ops.append(last)
        return ops

    def x_ops(c):
        if NOMEM or NOX: return []
        r = V_XR + (c % 5) * 16
        def one(q):
            a('buffer_load_dwordx4 %s, v%d, %s, s%d offen offset:%d' % (vr(r + 4 * q, 4), V_XOFF, sr(S_SX, 4), 64 + q, c * 128))
            vm.issue(('X', c)); xcount[c] = xcount.get(c, 0) + 1
        return [lambda q=q: one(q) for q in range(4)]

    def flush(tagc=None):
        while side:
            side.pop(0)()

    def xstage(c):
        if NOXS: return
        while not NOMEM and not NOX and c >= 2 and xcount.get(c, 0) < 4:
            side.pop(0)()
        vm.wait(('X', c))
        r = V_XR + (c % 5) * 16
        for rt in range(2):
            for q in range(2):
                a('ds_write_b128 v%d, %s offset:%d' % (V_SW, vr(r + 4 * (2 * rt + q), 4), 1024 * q))
                lg.issue(('XW', c))
            for kk in range(2):
                a('ds_read_b128 %s, v%d' % (vr(V_AF + (c % 2) * 16 + (kk * 2 + rt) * 4, 4), V_SR0 + kk))
                lg.issue(('A', c))

    def bread(k, j):
        c, kk = k // 2, k % 2
        r = V_B + ((k * 9 + j) % 10) * 4
        for hh in range(2):
            off = (c % 2) * SLOT + (8 * hh + 32 * kk) * 288 + 32 * j
            a('ds_read_b64_tr_b16 %s, v%d offset:%d' % (vr(r + 2 * hh, 2), V_TR if (c % 4) < 2 else V_TR2, off))
            lg.issue(('B', k, j))

    for c in range(PRO):
        for op in dma_ops(c): op()
        if c >= 2:
            for op in x_ops(c): op()
    if not S3: a.stamp(1)
    vm.ops = [('X', 0)] * 4 + [('X', 1)] * 4 + vm.ops
    xstage(0)
    vm.wait(('W', 0))
    a('s_barrier')
    if not S3: a.stamp(2)
    for c in range(PRO, 4):
        side.extend(dma_ops(c)); side.extend(x_ops(c))
    side.extend(x_ops(4)); side.extend(x_ops(5))
    wq = set(range(4)); xq = set(range(6))
    for j in range(9):
        bread(0, j)
    for k in range(18):
        c, kk = k // 2, k % 2
        if kk == 1 and c + 1 <= 8:
            while not NOMEM and not NOW and wcount.get(c + 1, 0) < 5:
                side.pop(0)()
            vm.wait(('W', c + 1))
            if not NOBAR: a('s_barrier')
            if c >= 1 and c + 3 <= 8:
                side.extend(dma_ops(c + 3))
        if S3:
            if k % 3 == 0 and k: a.stamp(k // 3)
        else:
            if k == 6: a.stamp(3)
            if k == 12: a.stamp(4)
        lg.wait(('A', c))
        for j in range(9):
            if j % 3 == 0:
                lg.wait(('B', k, j + 2))
            rb = V_B + ((k * 9 + j) % 10) * 4
            for rt in range(2):
                ra = V_AF + (c % 2) * 16 + (kk * 2 + rt) * 4
                acc = V_ACC + (rt * 9 + j) * 4
                cin = '0' if k == 0 else vr(acc, 4)
                if qtype:
                    a('v_mfma_f32_16x16x32_bf16 %s, %s, %s, %s' % (vr(acc, 4), vr(rb, 4), vr(ra, 4), cin))
                else:
                    a('v_mfma_f32_16x16x32_bf16 %s, %s, %s, %s' % (vr(acc, 4), vr(ra, 4), vr(rb, 4), cin))
            if k + 1 < 18:
                bread(k + 1, j)
            if side:
                side.pop(0)()
            if kk == 0 and j == 4 and c + 1 <= 8:
                xstage(c + 1)
                if c + 6 <= 8:
                    side.extend(x_ops(c + 6))
    assert not side
    a.stamp(6 if S3 else 5)
    a.nop(10)


def gemm_part(a):
    a.label('K1_GEMM')
    a('s_setprio %d' % GPRIO)
    a('''
    s_and_b32 s4, s97, 7
    s_lshr_b32 s5, s97, 3
    s_and_b32 s6, s4, 3
    s_lshl_b32 s6, s6, 2
    s_and_b32 s7, s5, 3
    s_add_u32 s6, s6, s7
    s_lshr_b32 s4, s4, 2
    s_mul_i32 s4, s4, 6
    s_lshr_b32 s5, s5, 2
    s_add_u32 s7, s4, s5
    ''')
    a('''
    s_mul_i32 s4, s7, 11
    s_lshr_b32 s4, s4, 5
    s_mul_i32 s5, s4, 3
    s_sub_u32 s5, s7, s5
    s_sub_u32 s11, s7, s4
    s_sub_u32 s11, s11, 1
    ''')
    a('''
    s_mul_i32 s12, s4, 288
    s_mul_i32 s13, s11, 144
    s_add_u32 s13, s13, 1152
    s_cmp_eq_u32 s5, 0
    s_cselect_b32 s12, s12, s13
    s_cselect_b32 s13, 0, 1008
    s_lshl_b32 s8, s3, 12
    s_lshl_b32 s9, s3, 9
    ''')
    a('''
    v_and_b32 v10, 15, v1
    v_lshrrev_b32 v11, 4, v1
    ''')
    a('''
    s_lshl_b32 s14, s6, 7
    s_lshl_b32 s15, s3, 5
    s_add_u32 s14, s14, s15
    v_lshrrev_b32 v13, 3, v1
    v_and_b32 v14, 7, v1
    v_add_u32 v12, s14, v13
    v_mul_u32_u24 v12, 1152, v12
    v_lshl_add_u32 v2, v14, 4, v12
    s_mov_b32 s64, 0
    s_mov_b32 s65, 9216
    s_mov_b32 s66, 18432
    s_mov_b32 s67, 27648
    s_lshl_b32 s15, s3, 11
    s_add_u32 s15, s15, %d
    v_xor_b32 v14, v14, v13
    v_lshlrev_b32 v14, 4, v14
    v_lshl_add_u32 v14, v13, 7, v14
    v_add_u32 v3, s15, v14
    v_and_b32 v13, 7, v10
    v_xor_b32 v13, v13, v11
    v_lshlrev_b32 v14, 7, v10
    v_add_u32 v14, s15, v14
    v_lshl_add_u32 v241, v13, 4, v14
    v_xor_b32 v13, 4, v13
    v_lshl_add_u32 v242, v13, 4, v14
    ''' % SCR)
    a('s_waitcnt lgkmcnt(0)')
    srd(a, S_SX, P_X, 2048 * 576 * 2)
    if not NOMEM:
        for c in range(2):
            for q in range(4):
                a('buffer_load_dwordx4 %s, v%d, %s, s%d offen offset:%d' % (vr(V_XR + c * 16 + 4 * q, 4), V_XOFF, sr(S_SX, 4), 64 + q, c * 128))
    def dma_addr(dst):
        a('''
        v_and_b32 v12, 0x33, v13
        v_and_b32 v15, 4, v13
        v_lshl_or_b32 v12, v15, 1, v12
        v_bfe_u32 v15, v13, 3, 1
        v_lshl_or_b32 v12, v15, 2, v12
        v_cmp_le_u32 vcc, 9, v14
        v_mul_u32_u24 v12, 3456, v12
        v_lshl_add_u32 v12, v14, 4, v12
        v_cndmask_b32 v15, v244, v245, vcc
        v_add_u32 v%d, v12, v15
        ''' % dst)
    a('''
    v_mov_b32 v244, s12
    s_add_u32 s15, s12, s13
    v_mov_b32 v245, s15
    s_lshl_b32 s15, s3, 8
    v_add_u32 v12, s15, v1
    v_mul_u32_u24 v13, 3641, v12
    v_lshrrev_b32 v13, 16, v13
    v_mul_u32_u24 v14, 18, v13
    v_sub_u32 v14, v12, v14
    ''')
    for i in range(4):
        dma_addr(V_DMA + i)
        if i < 3:
            a('''
            v_add_u32 v14, 10, v14
            v_cmp_le_u32 vcc, 18, v14
            v_subrev_u32 v15, 18, v14
            v_add_u32 v13, 3, v13
            v_cndmask_b32 v14, v14, v15, vcc
            v_addc_co_u32 v13, vcc, 0, v13, vcc
            ''')
    a('''
    s_lshl_b32 s15, s3, 5
    s_add_u32 s15, s15, 1024
    v_add_u32 v12, s15, v1
    v_mul_u32_u24 v13, 3641, v12
    v_lshrrev_b32 v13, 16, v13
    v_mul_u32_u24 v14, 18, v13
    v_sub_u32 v14, v12, v14
    ''')
    dma_addr(V_DMA + 4)
    a('''
    v_lshrrev_b32 v12, 2, v10
    v_and_b32 v13, 1, v11
    v_lshl_add_u32 v12, v13, 2, v12
    v_lshrrev_b32 v13, 1, v11
    v_lshl_add_u32 v12, v13, 4, v12
    v_mul_u32_u24 v12, 288, v12
    v_and_b32 v13, 3, v1
    v_lshl_add_u32 v9, v13, 3, v12
    v_add_u32 v240, 36864, v9
    ''')
    srd(a, S_SW, P_W, 576 * 1728 * 2)
    srd(a, S_SWS, P_WS, WS_END)
    a('s_mov_b32 s60, 0x%x' % f32bits(LOG2E))
    a('s_mov_b32 s61, 0x%x' % f32bits(LOG2E))
    a('s_mov_b32 s62, 0x%x' % f32bits(1e-6))
    a('s_mov_b32 s63, 0x%x' % f32bits(1e-6))
    a('s_cmp_eq_u32 s5, 0')
    a('s_cbranch_scc0 K1_GEMM_KV')

    if QPRIO >= 0: a('s_setprio %d' % QPRIO)
    gemm_main(a, True)
    a('s_setprio 0')
    P = lambda rt, j: V_A + (rt * 9 + j) * 2
    allp = []
    for rt in range(2):
        for j in range(9):
            acc = V_ACC + (rt * 9 + j) * 4
            allp.append((acc, acc + 1, P(rt, j)))
            allp.append((acc + 2, acc + 3, P(rt, j) + 1))
    RS = 304
    a('''
    s_mul_i32 s15, s3, 9728
    v_mul_u32_u24 v12, %d, v10
    v_lshl_add_u32 v12, v11, 3, v12
    v_add_u32 v12, s15, v12
    s_mul_i32 s64, s14, 1152
    s_add_u32 s64, s64, s12
    s_barrier
    ''' % RS)
    a('v_mov_b32 v%d, -1' % V_PMIN)
    for b in range(0, 36, 6):
        phi_batch(a, allp[b:b + 6], V_T, 60, 62)
    phi_fix(a, [d for (x, y, d) in allp], V_T, 62, 'K1_QFIX')
    for t in range(18):
        rt, j = t // 9, t % 9
        a('ds_write_b64 v12, %s offset:%d' % (vr(P(rt, j), 2), rt * 16 * RS + 32 * j))
    if not S3: a.stamp(6)
    for i in range(9):
        a('''
        v_add_u32 v13, %d, v1
        v_mul_u32_u24 v14, 3641, v13
        v_lshrrev_b32 v14, 16, v14
        v_mul_u32_u24 v15, 18, v14
        v_sub_u32 v15, v13, v15
        v_lshlrev_b32 v15, 4, v15
        v_mul_u32_u24 v13, %d, v14
        v_add3_u32 v13, v13, v15, s15
        v_mul_u32_u24 v14, 1152, v14
        v_add_u32 v%d, v14, v15
        ds_read_b128 %s, v13
        ''' % (64 * i, RS, V_T + i, vr(V_ACC + 4 * i, 4)))
    for i in range(9):
        a('s_waitcnt lgkmcnt(%d)' % (8 - i))
        a('buffer_store_dwordx4 %s, v%d, %s, s64 offen' % (vr(V_ACC + 4 * i, 4), V_T + i, sr(S_SWS, 4)))
    a.endpgm()

    a.label('K1_GEMM_KV')
    gemm_main(a, False)
    a('''
    s_lshl_b32 s98, s6, 1
    s_and_b32 s99, s11, 1
    s_add_u32 s98, s98, s99
    s_lshr_b32 s99, s11, 1
    s_lshl_b32 s99, s99, 5
    s_add_u32 s99, s99, s98
    s_lshl_b32 s99, s99, 7
    s_add_u32 s99, s99, 0x%x
    v_mov_b32 v12, 0
    s_mov_b64 exec, 1
    buffer_store_dword v12, v12, %s, s99 offen sc1
    s_mov_b64 exec, -1
    ''' % (WS_GO3, sr(S_SWS, 4)))
    O = lambda j: V_A + 4 * j
    pk = []
    for j in range(5):
        for rt in range(2):
            acc = V_ACC + (rt * 9 + j) * 4
            pk.append((acc, acc + 1, O(j) + 2 * rt))
            pk.append((acc + 2, acc + 3, O(j) + 2 * rt + 1))
    a('v_mov_b32 v%d, -1' % V_PMIN)
    phi_batch(a, pk[0:8], V_T, 60, 62)
    phi_batch(a, pk[8:16], V_T, 60, 62)
    RAW = V_A + 40
    phi_batch(a, pk[16:20], V_T, 60, 62, keep_raw=[RAW + i for i in range(4)])
    phi_fix(a, [d for (x, y, d) in pk], V_T, 62, 'K1_KFIX')
    a('v_cmp_gt_u32 vcc, 8, v10')
    for j in range(5, 9):
        for rt in range(2):
            acc = V_ACC + (rt * 9 + j) * 4
            a('v_cvt_pk_bf16_f32 v%d, v%d, v%d' % (O(j) + 2 * rt, acc, acc + 1))
            a('v_cvt_pk_bf16_f32 v%d, v%d, v%d' % (O(j) + 2 * rt + 1, acc + 2, acc + 3))
    for i in range(4):
        a('v_cndmask_b32 v%d, v%d, v%d, vcc' % (O(4) + i, RAW + i, O(4) + i))
    a.nop(2)
    pairs = PAIRS
    KV = lambda p: V_ACC + 4 * p
    for p, (ta, tb) in enumerate(pairs):
        a('v_mfma_f32_16x16x32_bf16 %s, %s, %s, 0' % (vr(KV(p), 4), vr(O(ta), 4), vr(O(tb), 4)))
    a('s_mov_b32 s64, 0x3f803f80')
    Z = V_T
    for t in range(5):
        a('v_dot2_f32_bf16 v%d, v%d, s64, 0' % (Z + t, O(t)))
    for i in range(1, 4):
        for t in range(5):
            a('v_dot2_f32_bf16 v%d, v%d, s64, v%d' % (Z + t, O(t) + i, Z + t))
    if not S3: a.stamp(6)
    a('s_barrier')
    a('''
    s_lshl_b32 s15, s3, 10
    v_lshlrev_b32 v12, 4, v1
    v_add_u32 v13, s15, v12
    ''')
    for p in range(13):
        a('ds_write_b128 v13, %s offset:%d' % (vr(KV(p), 4), p * 4096))
    a('''
    s_lshl_b32 s15, s3, 2
    v_add_u32 v14, s15, v11
    v_mul_u32_u24 v14, 320, v14
    v_lshl_add_u32 v14, v10, 2, v14
    ''')
    for t in range(5):
        a('ds_write_b32 v14, v%d offset:%d' % (Z + t, 53248 + 64 * t))
    a('s_waitcnt lgkmcnt(0)')
    a('s_barrier')
    a('s_lshl_b32 s68, s6, 3')
    a('s_add_u32 s68, s68, s11')
    a('s_mul_i32 s68, s68, %d' % KVP_REC)
    a('s_add_u32 s68, s68, 0x%x' % WS_KVP)
    a('s_lshl_b32 s15, s3, 12')
    a('v_add_u32 v13, s15, v12')
    a('s_lshl_b32 s15, s3, 10')
    a('v_add_u32 v14, s15, v12')
    done = a.newlabel('K1_KVZ')
    for it in range(3):
        R = V_A + 16 * it
        for w in range(4):
            a('ds_read_b128 %s, v13 offset:%d' % (vr(R + 4 * w, 4), it * 16384 + w * 1024))
    def red_store(it):
        R = V_A + 16 * it
        a('v_pk_add_f32 %s, %s, %s' % (vr(R, 2), vr(R, 2), vr(R + 4, 2)))
        a('v_pk_add_f32 %s, %s, %s' % (vr(R + 2, 2), vr(R + 2, 2), vr(R + 6, 2)))
        a('v_pk_add_f32 %s, %s, %s' % (vr(R + 8, 2), vr(R + 8, 2), vr(R + 12, 2)))
        a('v_pk_add_f32 %s, %s, %s' % (vr(R + 10, 2), vr(R + 10, 2), vr(R + 14, 2)))
        a('v_pk_add_f32 %s, %s, %s' % (vr(R, 2), vr(R, 2), vr(R + 8, 2)))
        a('v_pk_add_f32 %s, %s, %s' % (vr(R + 2, 2), vr(R + 2, 2), vr(R + 10, 2)))
        a('s_add_u32 s69, s68, %d' % (4096 * it))
        a('buffer_store_dwordx4 %s, v14, %s, s69 offen sc1' % (vr(R, 4), sr(S_SWS, 4)))
    for it in range(3):
        a('s_waitcnt lgkmcnt(%d)' % (8 - 4 * it))
        red_store(it)
    a('s_cmp_lg_u32 s3, 0')
    a('s_cbranch_scc1 %s' % done)
    for w in range(4):
        a('ds_read_b128 %s, v13 offset:%d' % (vr(V_A + 48 + 4 * w, 4), 3 * 16384 + w * 1024))
    a('s_waitcnt lgkmcnt(0)')
    red_store(3)
    a('s_branch K1_KVFIN')
    a.label(done)
    a('s_cmp_lt_u32 s3, 2')
    fin = a.newlabel('K1_KVEND')
    a('s_cbranch_scc1 %s' % fin)
    a('''
    v_subrev_u32 v14, 128, v0
    v_cmp_gt_u32 vcc, 80, v14
    s_and_saveexec_b64 s[74:75], vcc
    s_cbranch_execz %s
    v_lshlrev_b32 v15, 2, v14
    ''' % fin)
    for i in range(16):
        a('ds_read_b32 v%d, v15 offset:%d' % (V_T + i, 53248 + 320 * i))
    a('s_add_u32 s69, s68, 13312')
    a('s_waitcnt lgkmcnt(0)')
    for st in (8, 4, 2, 1):
        for i in range(st):
            a('v_add_f32 v%d, v%d, v%d' % (V_T + i, V_T + i, V_T + i + st))
    a('buffer_store_dword v%d, v15, %s, s69 offen sc1' % (V_T, sr(S_SWS, 4)))
    a.label(fin)
    a.label('K1_KVFIN')
    srd(a, 48, P_DBG, 256)
    a('''
    s_mov_b64 exec, -1
    s_waitcnt vmcnt(0)
    s_barrier
    v_mov_b32 v3, 0
    s_cmp_lg_u32 s3, 0
    s_cbranch_scc1 K1_KVW
    v_mov_b32 v2, 1
    s_lshr_b32 s12, s11, 1
    s_lshl_b32 s12, s12, 4
    s_add_u32 s12, s12, 160
    s_mov_b64 exec, 1
    buffer_atomic_add v2, v3, s[48:51], s12 offen sc0 sc1
    s_waitcnt vmcnt(0)
    v_readfirstlane_b32 s12, v2
    s_mov_b64 exec, -1
    s_cmp_lg_u32 s12, 31
    s_cbranch_scc1 K1_KVP
    v_mov_b32 v2, 1
    v_lshlrev_b32 v4, 7, v1
    s_lshr_b32 s12, s11, 1
    s_lshl_b32 s12, s12, 12
    s_add_u32 s12, s12, 0x%x
    s_mov_b32 exec_hi, 0
    buffer_store_dword v2, v4, %s, s12 offen sc1
    s_mov_b32 exec_hi, -1
    s_branch K1_KVW
    ''' % (WS_GO3, sr(S_SWS, 4)))
    a.label('K1_KVP')
    a('''
    s_cmp_ge_u32 s98, 22
    s_cbranch_scc1 K1_KVEXIT
    s_mov_b32 s72, 0
    s_mov_b64 exec, 1
    ''')
    a.label('K1_KVPL')
    a('''
    buffer_load_dword v2, v3, %s, s99 offen sc1
    s_add_u32 s72, s72, 1
    s_waitcnt vmcnt(0)
    v_readfirstlane_b32 s12, v2
    s_cmp_eq_u32 s12, 1
    s_cbranch_scc1 K1_KVW
    s_cmp_gt_u32 s72, 0x8000
    s_cbranch_scc1 K1_KVW
    s_sleep 2
    s_branch K1_KVPL
    ''' % sr(S_SWS, 4))
    a.label('K1_KVW')
    a('''
    s_mov_b64 exec, -1
    s_cmp_ge_u32 s98, 22
    s_cbranch_scc1 K1_KVEXIT
    s_barrier
    v_lshlrev_b32 v3, 4, v1
    s_lshr_b32 s12, s11, 1
    s_mul_i32 s12, s12, 22
    s_add_u32 s15, s12, s98
    ''')
    reduce_task(a)
    a.label('K1_KVEXIT')
    a.endpgm()


KG_ROW = 272
KG_LO = 32 * KG_ROW
KG_WAVE = KG_LO + 21 * KG_ROW + 16 * 0
KLB = lambda q: 4608 * q
RA = 9216
XTL = RA + 4 * KG_WAVE
CSZ = 4160
UCB = lambda q: RA + 4 * CSZ * q
L_RED = RA + 8 * CSZ


def cmul(a, d, x, y, t):
    a('v_pk_mul_f32 %s, %s, %s op_sel:[1,1] op_sel_hi:[1,0]' % (vr(t, 2), vr(x, 2), vr(y, 2)))
    a('v_pk_fma_f32 %s, %s, %s, %s op_sel:[0,0,0] op_sel_hi:[0,1,1] neg_lo:[0,0,1]' % (vr(d, 2), vr(x, 2), vr(y, 2), vr(t, 2)))


def split_write(a, rows, tmp, vaddr, s_c1, s_c2, base=0):
    for i, (r, p) in enumerate(rows):
        a('v_cvt_pk_f16_f32 v%d, v%d, v%d' % (tmp + i, p, p + 1))
    for i, (r, p) in enumerate(rows):
        a('ds_write_b32 v%d, v%d offset:%d' % (vaddr, tmp + i, base + r * KG_ROW))


def deval(a, items, L, tmp):
    for i, (A, d) in enumerate(items):
        a('v_mul_f32 v%d, 0x%x, v%d' % (tmp + 4 * i, f32bits(float(A)), L))
        a('v_mul_f32 v%d, 0x%x, v%d' % (tmp + 4 * i + 1, f32bits(float(A)), L + 1))
    for i, (A, d) in enumerate(items):
        a('v_fract_f32 v%d, v%d' % (tmp + 4 * i + 1, tmp + 4 * i + 1))
        a('v_exp_f32 v%d, v%d' % (tmp + 4 * i, tmp + 4 * i))
    for i, (A, d) in enumerate(items):
        a('v_cos_f32 v%d, v%d' % (tmp + 4 * i + 2, tmp + 4 * i + 1))
        a('v_sin_f32 v%d, v%d' % (tmp + 4 * i + 3, tmp + 4 * i + 1))
    a.nop(1)
    for i, (A, d) in enumerate(items):
        a('v_pk_mul_f32 %s, %s, %s op_sel:[0,0] op_sel_hi:[0,1]' % (vr(d, 2), vr(tmp + 4 * i, 2), vr(tmp + 4 * i + 2, 2)))


def prep_part(a):
    a.label('K1_PREP')
    if NOPREP: a('s_endpgm')
    a('s_setprio %d' % IPRIO)
    if TOUCH:
        a('''
        s_and_b32 s64, s2, 7
        s_lshr_b32 s65, s2, 3
        s_lshl_b32 s65, s65, 2
        s_add_u32 s65, s65, s3
        s_lshl_b32 s67, s65, 6
        v_add_u32 v28, s67, v1
        v_mul_u32_u24 v29, 34953, v28
        v_lshrrev_b32 v29, 19, v29
        v_mul_u32_u24 v30, 15, v29
        v_sub_u32 v30, v28, v30
        v_mul_u32_u24 v31, 52, v30
        v_lshrrev_b32 v31, 8, v31
        v_mul_u32_u24 v32, 5, v31
        v_sub_u32 v32, v30, v32
        v_mul_u32_u24 v29, 3456, v29
        v_mul_u32_u24 v31, 1152, v31
        v_add_u32 v29, v29, v31
        v_lshl_add_u32 v29, v32, 7, v29
        s_lshr_b32 s66, s64, 2
        s_lshl_b32 s66, s66, 9
        s_and_b32 s67, s64, 3
        s_mul_i32 s67, s67, 589824
        s_lshl_b32 s65, s65, 12
        s_add_u32 s67, s67, s65
        v_lshlrev_b32 v28, 7, v1
        s_waitcnt lgkmcnt(0)
        ''')
        srd(a, 48, P_X, 2048 * 576 * 2)
        srd(a, 52, P_W, 576 * 1728 * 2)
    a('s_mov_b32 s4, s2')
    a('''
    s_mul_i32 s5, s4, 7282
    s_lshr_b32 s5, s5, 16
    s_mul_i32 s6, s5, 9
    s_sub_u32 s6, s4, s6
    s_lshr_b32 s7, s3, 1
    s_lshl_b32 s78, s6, 5
    s_add_u32 s78, s78, s5
    s_lshl_b32 s8, s78, 1
    s_add_u32 s8, s8, s7
    s_and_b32 s9, s3, 1
    s_mul_i32 s10, s3, %d
    s_add_u32 s10, s10, %d
    v_and_b32 v10, 15, v1
    v_lshrrev_b32 v11, 4, v1
    ''' % (KG_WAVE, RA))
    a('''
    s_lshl_b32 s11, s8, 8
    s_lshl_b32 s12, s9, 7
    s_add_u32 s11, s11, s12
    v_lshl_add_u32 v2, v1, 1, s11
    s_lshl_b32 s12, s78, 2
    s_waitcnt lgkmcnt(0)
    s_load_dword s13, s[36:37], s12
    s_load_dword s97, s[38:39], s12
    global_load_ushort v12, v2, s[24:25]
    global_load_ushort v13, v2, s[26:27]
    global_load_ushort v14, v2, s[28:29]
    global_load_ushort v15, v2, s[30:31]
    global_load_ushort v16, v2, s[32:33]
    global_load_ushort v17, v2, s[34:35]
    ''')
    a('''
    s_lshl_b32 s11, s5, 6
    s_lshl_b32 s12, s3, 4
    s_add_u32 s11, s11, s12
    v_lshrrev_b32 v3, 3, v1
    v_add_u32 v3, s11, v3
    v_mul_u32_u24 v3, 1152, v3
    v_and_b32 v4, 7, v1
    v_lshl_add_u32 v3, v4, 4, v3
    s_lshl_b32 s11, s6, 7
    v_add_u32 v3, s11, v3
    v_add_u32 v4, 9216, v3
    global_load_dwordx4 v[20:23], v3, s[16:17]
    global_load_dwordx4 v[24:27], v4, s[16:17]
    ''')
    GX, GW = 176, 212
    nog = a.newlabel('K1_NOG')
    a('''
    s_cmp_eq_u32 s3, 3
    s_cselect_b32 s14, 1, 0
    s_cmp_lt_u32 s4, 256
    s_cselect_b32 s14, s14, 0
    s_cmp_eq_u32 s14, 0
    s_cbranch_scc1 %s
    s_lshl_b32 s11, s4, 3
    v_lshrrev_b32 v4, 3, v1
    v_add_u32 v4, s11, v4
    v_mul_u32_u24 v5, 1152, v4
    v_and_b32 v6, 7, v1
    v_lshlrev_b32 v6, 4, v6
    v_add_u32 v5, v5, v6
    ''' % nog)
    for i in range(9):
        a('global_load_dwordx4 %s, v5, s[16:17] offset:%d' % (vr(GX + 4 * i, 4), 128 * i))
        a('global_load_dwordx4 %s, v6, s[40:41] offset:%d' % (vr(GW + 4 * i, 4), 128 * i))
    a.label(nog)
    if TOUCH:
        a('''
        buffer_load_dword v78, v29, s[52:55], s66 offen
        s_mov_b32 exec_hi, 0
        buffer_load_dword v79, v28, s[48:51], s67 offen
        s_mov_b32 exec_hi, -1
        ''')
    srd(a, S_SWS, P_WS, WS_END)
    a('s_mov_b32 s60, 0x0000bf80')
    a('s_mov_b32 s61, 0xbf800000')
    a.stamp(1)
    a('s_waitcnt vmcnt(%d) lgkmcnt(0)' % (2 if TOUCH else 0))
    a.stamp(2)
    a('''
    s_lshl_b32 s11, s3, 11
    s_add_u32 s11, s11, %d
    v_lshl_add_u32 v7, v1, 4, s11
    ds_write_b128 v7, v[20:23]
    ds_write_b128 v7, v[24:27] offset:1024
    v_lshrrev_b32 v8, 2, v10
    v_lshl_add_u32 v8, v11, 4, v8
    v_lshlrev_b32 v8, 7, v8
    v_and_b32 v9, 3, v1
    v_lshl_add_u32 v8, v9, 3, v8
    s_lshl_b32 s11, s3, 5
    s_add_u32 s11, s11, %d
    v_add_u32 v8, s11, v8
    s_waitcnt lgkmcnt(0)
    s_barrier
    ds_read_b64_tr_b16 v[20:21], v8
    ds_read_b64_tr_b16 v[22:23], v8 offset:512
    ds_read_b64_tr_b16 v[24:25], v8 offset:1024
    ds_read_b64_tr_b16 v[26:27], v8 offset:1536
    v_mul_u32_u24 v9, 144, v10
    v_lshl_add_u32 v9, v11, 5, v9
    v_add_u32 v9, s10, v9
    v_lshrrev_b32 v7, 3, v1
    v_mul_u32_u24 v8, 144, v7
    v_and_b32 v6, 7, v1
    v_lshl_add_u32 v8, v6, 4, v8
    v_add_u32 v8, s10, v8
    s_lshl_b32 s11, s6, 6
    s_lshl_b32 s12, s3, 4
    s_add_u32 s11, s11, s12
    v_add_u32 v7, s11, v7
    v_mul_u32_u24 v7, 4352, v7
    v_lshl_add_u32 v6, v6, 4, v7
    s_lshl_b32 s15, s5, 7
    s_add_u32 s15, s15, 0x%x
    s_add_u32 s98, s15, 34816
    s_waitcnt lgkmcnt(0)
    ds_write_b128 v9, v[20:23]
    ds_write_b128 v9, v[24:27] offset:16
    ds_read_b128 v[248:251], v8
    ds_read_b128 v[252:255], v8 offset:1152
    ''' % (XTL, XTL, WS_XT))
    a('s_waitcnt lgkmcnt(0)')
    a('buffer_store_dwordx4 v[248:251], v6, %s, s15 offen sc1' % sr(S_SWS, 4))
    a('buffer_store_dwordx4 v[252:255], v6, %s, s98 offen sc1' % sr(S_SWS, 4))
    a('''
    s_lshl_b32 s11, s78, 7
    s_add_u32 s11, s11, 0x%x
    s_lshl_b32 s12, s4, 7
    s_add_u32 s12, s12, 0x%x
    s_cmp_eq_u32 s3, 0
    s_cselect_b32 s11, s11, s12
    v_mov_b32 v2, 0
    s_mov_b64 exec, 1
    buffer_store_dword v2, v2, %s, s11 offen sc1
    s_mov_b64 exec, -1
    ''' % (WS_GO1, WS_GO2, sr(S_SWS, 4)))
    a('s_setprio %d' % PPRIO)
    a('''
    s_lshl_b32 s12, s7, 4
    s_lshr_b32 s13, s13, s12
    s_lshl_b32 s13, s13, 16
    v_mov_b32 v18, s13
    v_mul_f32 v18, 0x%x, v18
    v_exp_f32 v18, v18
    v_lshlrev_b32 v12, 16, v12
    v_lshlrev_b32 v13, 16, v13
    v_cvt_pk_bf16_f32 v18, v18, v18
    v_lshlrev_b32 v14, 16, v14
    v_lshlrev_b32 v15, 16, v15
    v_lshlrev_b32 v18, 16, v18
    v_lshlrev_b32 v16, 16, v16
    v_lshlrev_b32 v17, 16, v17
    v_mul_f32 v12, v18, v12
    v_mul_f32 v13, v18, v13
    v_mul_f32 v14, v18, v14
    v_mul_f32 v15, v18, v15
    v_mul_f32 v28, 0x%x, v12
    v_mul_f32 v29, 0x%x, v13
    v_mov_b32 v30, v28
    v_sub_f32 v31, 0, v29
    ''' % (f32bits(LOG2E), f32bits(LOG2E), f32bits(1.0 / (2 * math.pi))))
    L, LC = 28, 30
    X0 = 32
    cmul(a, X0, 16, 14, 34)
    a('v_sub_f32 v%d, 0, v%d' % (X0 + 1, X0 + 1))
    a('v_max_f32_e64 v34, abs(v%d), abs(v%d)' % (X0, X0 + 1))
    for dpp in ('quad_perm:[1,0,3,2]', 'quad_perm:[2,3,0,1]', 'row_half_mirror', 'row_mirror'):
        a.nop(2)
        a('v_max_f32_dpp v34, v34, v34 %s row_mask:0xf bank_mask:0xf' % dpp)
    a.nop(1)
    a('''
    v_readlane_b32 s64, v34, 0
    v_readlane_b32 s65, v34, 16
    v_readlane_b32 s66, v34, 32
    v_readlane_b32 s67, v34, 48
    s_nop 3
    s_max_u32 s64, s64, s65
    s_max_u32 s66, s66, s67
    s_max_u32 s64, s64, s66
    s_lshr_b32 s64, s64, 23
    s_sub_u32 s64, 263, s64
    s_min_u32 s64, s64, 227
    s_max_u32 s64, s64, 27
    s_lshl_b32 s66, s64, 23
    s_mov_b32 s67, s66
    s_sub_u32 s99, 254, s64
    s_lshl_b32 s99, s99, 23
    v_pk_mul_f32 v[32:33], v[32:33], s[66:67]
    ''')
    a('v_lshl_add_u32 v7, v1, 2, s10')
    YB = 40
    Y = lambda b: YB + 2 * b
    TMP = 80
    T2 = 112
    OUT = 128
    deval(a, [(8, Y(1)), (16, Y(2)), (32, Y(4)), (64, Y(8)), (128, Y(16))], L, TMP)
    srd(a, 48, P_DBG, 256)
    nopub = a.newlabel('K1_NOPUB')
    a('''
    s_waitcnt vmcnt(0)
    s_barrier
    s_cmp_lg_u32 s3, 1
    s_cbranch_scc1 %s
    v_mov_b32 v2, 1
    v_mov_b32 v3, 0
    s_lshl_b32 s11, s6, 4
    s_mov_b64 exec, 1
    buffer_atomic_add v2, v3, s[48:51], s11 offen sc0 sc1
    s_waitcnt vmcnt(0)
    v_readfirstlane_b32 s11, v2
    s_mov_b64 exec, -1
    s_cmp_lg_u32 s11, 31
    s_cbranch_scc1 %s
    v_mov_b32 v2, 1
    v_lshlrev_b32 v3, 7, v1
    s_lshl_b32 s11, s6, 12
    s_add_u32 s11, s11, 0x%x
    s_mov_b32 exec_hi, 0
    buffer_store_dword v2, v3, %s, s11 offen sc1
    s_mov_b32 exec_hi, -1
    ''' % (nopub, nopub, WS_GO1, sr(S_SWS, 4)))
    a.label(nopub)
    a('s_setprio %d' % PPRIO)
    a('v_mov_b32 v%d, 0x3c00' % TMP)
    a('ds_write_b32 v7, v%d' % TMP)
    cmul(a, Y(3), Y(2), Y(1), T2)
    cmul(a, Y(5), Y(4), Y(1), T2 + 2)
    cmul(a, Y(6), Y(4), Y(2), T2 + 4)
    cmul(a, Y(9), Y(8), Y(1), T2 + 6)
    cmul(a, Y(10), Y(8), Y(2), T2 + 8)
    cmul(a, Y(12), Y(8), Y(4), T2 + 10)
    cmul(a, Y(7), Y(4), Y(3), T2)
    cmul(a, Y(11), Y(8), Y(3), T2 + 2)
    cmul(a, Y(13), Y(8), Y(5), T2 + 4)
    cmul(a, Y(14), Y(8), Y(6), T2 + 6)
    cmul(a, Y(15), Y(8), Y(7), T2 + 8)
    split_write(a, [(b, Y(b)) for b in range(1, 9)], TMP, 7, 60, 61)
    split_write(a, [(b, Y(b)) for b in range(9, 17)], TMP, 7, 60, 61)
    for b0 in (1, 9):
        bs = [b for b in range(b0, b0 + 8) if b <= 15]
        for i, b in enumerate(bs):
            cmul(a, OUT + 2 * i, Y(16), Y(b), T2 + 2 * i)
        split_write(a, [(16 + b, OUT + 2 * i) for i, b in enumerate(bs)], TMP, 7, 60, 61)
    a.stamp(3)
    a('''
    v_and_b32 v8, 31, v1
    v_mul_u32_u24 v8, %d, v8
    v_lshrrev_b32 v9, 5, v1
    v_lshl_add_u32 v8, v9, 4, v8
    v_add_u32 v8, s10, v8
    ''' % KG_ROW)
    BF = 112
    for k in range(8):
        a('ds_read_b128 %s, v8 offset:%d' % (vr(BF + 4 * k, 4), 32 * k))
    E = {1: 12, 2: 14, 4: 16, 256: 18, 512: 20, 1024: 22, 2048: 24}
    deval(a, [(A, r) for A, r in E.items()], LC, TMP)
    XR = lambda r: 36 + 2 * r
    def X(r): return X0 if r == 0 else XR(r)
    T3 = 2
    tp = [2, 4, 26, 34]
    seq = [(1, 0, 256), (2, 0, 512), (4, 0, 1024), (8, 0, 2048), (9, 0, 4), (13, 0, 2), (17, 0, 1),
           (3, 2, 256), (5, 1, 1024), (6, 2, 1024), (10, 1, 4), (11, 2, 4), (14, 1, 2), (15, 9, 2), (18, 13, 1), (19, 9, 1),
           (7, 3, 1024), (12, 3, 4), (16, 10, 2), (20, 15, 1)]
    for i, (r, src, A) in enumerate(seq):
        cmul(a, X(r), X(src), E[A], tp[i % 4])
    split_write(a, [(r, X(r)) for r in range(0, 21)], TMP, 7, 60, 61, base=KG_LO)
    a.stamp(4)
    AF = 144
    for k in range(8):
        a('ds_read_b128 %s, v8 offset:%d' % (vr(AF + 4 * k, 4), KG_LO + 32 * k))
    ACC = 80
    for k in range(8):
        a('s_waitcnt lgkmcnt(%d)' % (7 - k))
        cin = '0' if k == 0 else vr(ACC, 16)
        a('v_mfma_f32_32x32x16_f16 %s, %s, %s, %s' % (vr(ACC, 16), vr(AF + 4 * k, 4), vr(BF + 4 * k, 4), cin))
    a.nop(16)
    a.stamp(5)
    if TOUCH:
        srd(a, 52, P_WO, 576 * 576 * 2)
        a('''
        s_lshr_b32 s65, s2, 3
        s_lshl_b32 s65, s65, 2
        s_add_u32 s65, s65, s3
        s_mul_i32 s65, s65, 4608
        v_lshlrev_b32 v101, 7, v1
        s_mov_b32 exec_hi, 0xf
        buffer_load_dword v78, v101, s[52:55], s65 offen
        s_mov_b64 exec, -1
        ''')
    even = a.newlabel('K1_EVEN')
    a('s_mov_b32 s66, s99')
    a('s_mov_b32 s67, s99')
    for i in range(0, 12, 2):
        a('v_pk_mul_f32 %s, %s, s[66:67]' % (vr(ACC + i, 2), vr(ACC + i, 2)))
    a('v_lshlrev_b32 v9, 4, v1')
    a('s_cmp_eq_u32 s9, 0')
    a('s_cbranch_scc1 %s' % even)
    a('v_add_u32 v9, s10, v9')
    for i in range(3):
        a('ds_write_b128 v9, %s offset:%d' % (vr(ACC + 4 * i, 4), 1024 * i))
    conv_inputs(a, 'O')
    a('s_mov_b64 exec, -1')
    a('s_waitcnt lgkmcnt(0)')
    a('s_barrier')
    conv_loads(a)
    endl = a.newlabel('K1_PEND')
    nosel = a.newlabel('K1_NOSEL')
    zf = a.newlabel('K1_ZF')
    a('''
    s_cmp_lg_u32 s3, 1
    s_cbranch_scc1 %s
    s_cmp_gt_u32 s4, 9
    s_cbranch_scc1 %s
    s_cmp_eq_u32 s4, 9
    s_cbranch_scc1 %s
    s_lshl_b32 s11, s4, 4
    v_add_u32 v12, s11, v10
    v_mul_u32_u24 v12, 57, v12
    v_lshrrev_b32 v12, 10, v12
    v_lshrrev_b32 v13, 1, v12
    v_cmp_eq_u32 vcc, v13, v11
    v_and_b32 v13, 1, v12
    v_lshlrev_b32 v13, 4, v13
    v_mov_b32 v14, 0x3f80
    v_lshlrev_b32 v13, v13, v14
    v_cndmask_b32 v16, 0, v13, vcc
    v_mov_b32 v17, v16
    v_mov_b32 v18, v16
    v_mov_b32 v19, v16
    v_lshlrev_b32 v12, 4, v1
    s_lshl_b32 s11, s4, 10
    s_add_u32 s11, s11, 0x%x
    buffer_store_dwordx4 v[16:19], v12, %s, s11 offen
    s_branch %s
    ''' % (nosel, endl, zf, WS_SEL, sr(S_SWS, 4), endl))
    a.label(zf)
    a('''
    v_mov_b32 v16, 0
    v_mov_b32 v17, 0
    v_mov_b32 v18, 0
    v_mov_b32 v19, 0
    v_lshlrev_b32 v12, 4, v1
    s_mov_b32 s11, 0x%x
    buffer_store_dwordx4 v[16:19], v12, %s, s11 offen
    buffer_store_dwordx4 v[16:19], v12, %s, s11 offen offset:1024
    buffer_store_dwordx4 v[16:19], v12, %s, s11 offen offset:2048
    buffer_store_dwordx4 v[16:19], v12, %s, s11 offen offset:3072
    s_add_u32 s11, s11, 4096
    buffer_store_dwordx4 v[16:19], v12, %s, s11 offen
    s_branch %s
    ''' % ((WS_FLG,) + (sr(S_SWS, 4),) * 5 + (endl,)))
    a.label(nosel)
    a('s_cmp_eq_u32 s14, 0')
    a('s_cbranch_scc1 %s' % endl)
    a('s_mov_b32 s62, 0x3f803f80')
    a('v_mov_b32 v12, 0')
    a('v_mov_b32 v13, 0')
    for i in range(0, 36, 4):
        for k in range(4):
            a('v_and_b32 v%d, 0xffff, v%d' % (20 + 2 * k, GW + i + k))
            a('v_and_b32 v%d, 0xffff0000, v%d' % (21 + 2 * k, GW + i + k))
        for k in range(4):
            a('v_dot2_f32_bf16 v%d, v%d, v%d, 0' % (30 + 2 * k, GX + i + k, 20 + 2 * k))
            a('v_dot2_f32_bf16 v%d, v%d, v%d, 0' % (31 + 2 * k, GX + i + k, 21 + 2 * k))
        a.nop(3)
        for k in range(4):
            a('v_cvt_pk_bf16_f32 v%d, v%d, v%d' % (40 + k, 30 + 2 * k, 31 + 2 * k))
        a('v_dot2_f32_bf16 v12, v40, s62, v12')
        a('v_dot2_f32_bf16 v13, v41, s62, v13')
        a('v_dot2_f32_bf16 v12, v42, s62, v12')
        a('v_dot2_f32_bf16 v13, v43, s62, v13')
    a.nop(3)
    a('v_add_f32 v12, v12, v13')
    a.nop(2)
    a('v_add_f32_dpp v12, v12, v12 quad_perm:[1,0,3,2] row_mask:0xf bank_mask:0xf')
    a.nop(2)
    a('v_add_f32_dpp v12, v12, v12 quad_perm:[2,3,0,1] row_mask:0xf bank_mask:0xf')
    a.nop(2)
    a('v_add_f32_dpp v12, v12, v12 row_half_mirror row_mask:0xf bank_mask:0xf')
    a('''
    v_cvt_pk_bf16_f32 v12, v12, v12
    v_lshlrev_b32 v12, 16, v12
    v_mul_f32 v12, 0x%x, v12
    v_exp_f32 v12, v12
    s_nop 0
    v_add_f32 v12, 1.0, v12
    v_rcp_f32 v12, v12
    s_nop 0
    v_cvt_pk_bf16_f32 v12, v12, v12
    v_lshlrev_b32 v12, 16, v12
    v_lshrrev_b32 v13, 3, v1
    v_lshlrev_b32 v13, 2, v13
    s_lshl_b32 s11, s4, 5
    s_add_u32 s11, s11, 0x%x
    v_and_b32 v14, 7, v1
    v_cmp_eq_u32 vcc, 0, v14
    s_and_saveexec_b64 s[74:75], vcc
    buffer_store_dword v12, v13, %s, s11 offen
    ''' % (f32bits(-LOG2E), WS_G, sr(S_SWS, 4)))
    a('s_mov_b64 exec, -1')
    a.label(endl)
    a('s_branch K1_CONV')
    a.label(even)
    a('s_add_u32 s11, s10, %d' % KG_WAVE)
    a('v_add_u32 v9, s11, v9')
    a('s_barrier')
    for i in range(3):
        a('ds_read_b128 %s, v9 offset:%d' % (vr(12 + 4 * i, 4), 1024 * i))
    conv_loads(a)
    a('''
    s_mov_b32 s64, 1
    s_mov_b32 s65, -1
    s_mov_b32 s66, -1
    s_mov_b32 s67, 0
    s_waitcnt lgkmcnt(0)
    ''')
    for i in range(0, 12, 2):
        a('v_pk_add_f32 %s, %s, %s' % (vr(ACC + i, 2), vr(ACC + i, 2), vr(12 + i, 2)))
    a('v_cndmask_b32 v%d, 0, v%d, s[64:65]' % (ACC + 4, ACC + 4))
    for i in (9, 10, 11):
        a('v_cndmask_b32 v%d, 0, v%d, s[66:67]' % (ACC + i, ACC + i))
    a('v_max3_f32 v12, abs(v%d), abs(v%d), abs(v%d)' % (ACC, ACC + 1, ACC + 2))
    a('v_max3_f32 v13, abs(v%d), abs(v%d), abs(v%d)' % (ACC + 3, ACC + 4, ACC + 5))
    a('v_max3_f32 v14, abs(v%d), abs(v%d), abs(v%d)' % (ACC + 6, ACC + 7, ACC + 8))
    a('v_max3_f32 v15, abs(v%d), abs(v%d), abs(v%d)' % (ACC + 9, ACC + 10, ACC + 11))
    a('v_max3_f32 v12, v12, v13, v14')
    a('v_max_f32 v12, v12, v15')
    for dpp in ('quad_perm:[1,0,3,2]', 'quad_perm:[2,3,0,1]', 'row_half_mirror', 'row_mirror'):
        a.nop(2)
        a('v_max_f32_dpp v12, v12, v12 %s row_mask:0xf bank_mask:0xf' % dpp)
    a.nop(2)
    a('''
    v_readlane_b32 s64, v12, 0
    v_readlane_b32 s65, v12, 16
    v_readlane_b32 s66, v12, 32
    v_readlane_b32 s67, v12, 48
    s_nop 3
    s_max_u32 s64, s64, s65
    s_max_u32 s66, s66, s67
    s_max_u32 s64, s64, s66
    s_lshr_b32 s64, s64, 23
    s_sub_u32 s64, 268, s64
    s_min_u32 s64, s64, 254
    s_lshl_b32 s66, s64, 23
    s_mov_b32 s67, s66
    ''')
    for i in range(0, 12, 2):
        a('v_pk_mul_f32 %s, %s, s[66:67]' % (vr(ACC + i, 2), vr(ACC + i, 2)))
    for i in range(0, 12, 2):
        a('v_cvt_pk_f16_f32 v%d, v%d, v%d' % (12 + i // 2, ACC + i, ACC + i + 1))
    a('''
    v_and_b32 v8, 31, v1
    v_lshlrev_b32 v8, 1, v8
    v_lshrrev_b32 v9, 5, v1
    v_lshl_add_u32 v8, v9, 8, v8
    v_add_u32 v8, s10, v8
    s_mul_i32 s11, s7, 4608
    ''')
    for r in range(12):
        off = (8 * (r >> 2) + (r & 3)) * 64
        if r % 2 == 0:
            a('ds_write_b16 v8, v%d offset:%d' % (12 + r // 2, off))
        else:
            a('ds_write_b16_d16_hi v8, v%d offset:%d' % (12 + r // 2, off))
    V0, V0N, V4, V2, V6, V1, V3, V5, V7 = 0, 1, 288, 416, 480, 544, 576, 608, 640
    C0 = [V0, V1, V2, V3, V4, V5, V6, V7]
    C1 = [V0, V0, V2, V4, V4, V4, V6, V0N]
    a('v_lshl_add_u32 v8, v1, 1, s10')
    a('s_mov_b32 s66, -1')
    a('s_mov_b32 s67, 0')
    for e in range(8):
        if C0[e] == C1[e]:
            a('ds_read_u16 v%d, v8 offset:%d' % (20 + e, 2 * C0[e]))
        else:
            a('v_mov_b32 v9, %d' % (2 * C1[e]))
            a('v_mov_b32 v11, %d' % (2 * C0[e]))
            a('v_cndmask_b32 v9, v9, v11, s[66:67]')
            a('v_add_u32 v9, v9, v8')
            a('ds_read_u16 v%d, v9' % (20 + e))
    a('ds_read_u16 v28, v8 offset:%d' % (2 * (64 + V0)))
    a('ds_read_u16 v29, v8 offset:%d' % (2 * (64 + V4)))
    a('ds_read_u16 v30, v8 offset:%d' % (2 * (64 + V0N)))
    for rd in (2, 3):
        a('ds_read_u16 v%d, v8 offset:%d' % (27 + 2 * rd, 2 * (64 * rd)))
        a('ds_read_u16 v%d, v8 offset:%d' % (28 + 2 * rd, 2 * (64 * rd + 1)))
    a('''
    v_lshl_add_u32 v9, v1, 4, s11
    v_and_b32 v11, 1, v1
    v_cmp_eq_u32 vcc, 0, v11
    v_mov_b32 v56, 0
    v_mov_b32 v57, 0
    v_mov_b32 v58, 0
    v_mov_b32 v59, 0
    s_mov_b32 s66, 0x10001
    s_waitcnt lgkmcnt(0)
    ''')
    for k in range(4):
        a('v_lshl_or_b32 v%d, v%d, 16, v%d' % (40 + k, 20 + 6 - 2 * k, 20 + 7 - 2 * k))
    a('v_mul_lo_u32 v44, v30, s66')
    a('v_mul_lo_u32 v45, v29, s66')
    a('v_lshl_or_b32 v46, v28, 16, v29')
    a('v_mul_lo_u32 v47, v28, s66')
    for rd in (2, 3):
        A, B, D = 27 + 2 * rd, 28 + 2 * rd, 40 + 4 * rd
        a('v_mul_lo_u32 v%d, v%d, s66' % (D, B))
        a('v_cndmask_b32 v11, v%d, v%d, vcc' % (B, A))
        a('v_mul_lo_u32 v%d, v%d, s66' % (D + 2, A))
        a('v_lshl_or_b32 v%d, v11, 16, v%d' % (D + 1, B))
        a('v_mov_b32 v%d, v%d' % (D + 3, D + 2))
    for rd in range(4):
        a('ds_write_b128 v9, %s offset:%d' % (vr(40 + 4 * rd, 4), 480 + 1024 * rd))
    a('''
    s_mov_b64 exec, 0x3fffffff
    ds_write_b128 v9, v[56:59]
    v_mov_b32 v60, s64
    s_mov_b64 exec, 1
    ds_write_b32 v9, v60 offset:4576
    s_mov_b64 exec, -1
    v_lshrrev_b32 v11, 4, v1
    ''')
    conv_part(a)


C_IN = lambda q: 144 + 8 * q
C_UD = lambda q: 176 + 8 * q
C_OUT = lambda q: 168 + 4 * q
C_BF, C_AF, C_ACC = 40, 104, 216
V_UW0, V_UW2, V_AA, V_BA, V_RW, V_RR = 248, 249, 250, 251, 252, 253


def conv_inputs(a, tag):
    lbl = 'K1_PX' + tag
    if tag == 'O':
        a('''
        s_cmp_lg_u32 s3, 1
        s_cbranch_scc1 %s_ok
        s_lshl_b32 s11, s78, 7
        s_add_u32 s11, s11, 0xb40000
        v_mov_b32 v3, 0
        s_mov_b32 s72, 0
        s_mov_b64 exec, 1
        ''' % lbl)
        a.label(lbl)
        a('''
        buffer_load_dword v2, v3, s[56:59], s11 offen sc1
        s_add_u32 s72, s72, 1
        s_waitcnt vmcnt(0)
        v_readfirstlane_b32 s12, v2
        s_cmp_eq_u32 s12, 1
        s_cbranch_scc1 %s_ok
        s_cmp_gt_u32 s72, 0x8000
        s_cbranch_scc1 %s_ok
        s_sleep 4
        s_branch %s
        ''' % (lbl, lbl, lbl))
    a.label(lbl + '_ok')
    return


def conv_loads(a):
    a('''
    v_lshlrev_b32 v2, 4, v0
    v_subrev_u32 v5, 4, v2
    v_and_b32 v4, 31, v1
    v_lshlrev_b32 v4, 2, v4
    s_mul_i32 s11, s78, 8704
    s_add_u32 s11, s11, 0x%x
    s_add_u32 s52, s46, s11
    s_addc_u32 s53, s47, 0
    s_and_b32 s53, s53, 0xffff
    s_mov_b32 s54, 4096
    s_mov_b32 s55, 0x20000
    s_add_u32 s68, s52, 4352
    s_addc_u32 s69, s53, 0
    s_mov_b32 s70, 4096
    s_mov_b32 s71, 0x20000
    s_lshl_b32 s11, s4, 8
    s_add_u32 s11, s11, 0x%x
    ''' % (WS_XT, WS_PM))
    for q in range(2):
        b = C_IN(q)
        S = 's[52:55]' if q == 0 else 's[68:71]'
        a('buffer_load_dword v%d, v5, %s, 0 offen sc1' % (b + 1, S))
        a('buffer_load_dwordx4 %s, v2, %s, 0 offen sc1' % (vr(b + 2, 4), S))


def conv_part(a):
    a.label('K1_CONV')
    a('s_setprio %d' % CPRIO)
    lg = Cnt(a, 'lgkmcnt', 15)
    a('s_waitcnt lgkmcnt(0)')
    a('s_barrier')
    a('''
    v_lshlrev_b32 v3, 4, v1
    v_lshrrev_b32 v12, 2, v10
    v_add_u32 v%d, %d, v2
    v_add_u32 v%d, %d, v2
    v_not_b32 v13, v10
    v_and_b32 v13, 3, v13
    v_mul_u32_u24 v13, %d, v13
    v_lshl_add_u32 v13, v12, 3, v13
    v_lshlrev_b32 v14, 4, v11
    v_sub_u32 v13, v13, v14
    s_lshl_b32 s9, s3, 6
    s_add_u32 s11, s9, %d
    v_add_u32 v%d, s11, v13
    v_lshl_add_u32 v13, v10, 5, v14
    s_sub_u32 s11, 192, s9
    v_add_u32 v%d, s11, v13
    v_lshl_add_u32 v13, v10, 2, v11
    v_bfe_u32 v14, v10, 1, 2
    v_xor_b32 v13, v13, v14
    s_lshl_b32 s9, s3, 10
    s_add_u32 s9, s9, %d
    v_lshl_add_u32 v%d, v13, 4, s9
    v_and_b32 v13, 31, v1
    v_lshlrev_b32 v13, 1, v13
    v_bfe_u32 v14, v13, 3, 2
    v_xor_b32 v13, v13, v14
    v_lshlrev_b32 v13, 4, v13
    v_lshrrev_b32 v14, 5, v1
    v_lshl_add_u32 v13, v14, 12, v13
    s_lshl_b32 s9, s3, 13
    s_add_u32 s9, s9, %d
    v_add_u32 v%d, s9, v13
    v_lshrrev_b32 v12, 1, v1
    v_mul_u32_u24 v12, %d, v12
    v_and_b32 v13, 1, v1
    v_lshl_add_u32 v12, v13, 4, v12
    v_add_u32 v12, %d, v12
    v_and_b32 v13, 1, v1
    v_bfe_u32 v14, v1, 1, 1
    v_lshl_add_u32 v13, v14, 2, v13
    v_add_u32 v13, 2, v13
    v_mul_u32_u24 v13, %d, v13
    v_add_u32 v13, %d, v13
    v_mov_b32 v16, 0
    v_mov_b32 v17, 0
    v_mov_b32 v18, 0
    v_mov_b32 v19, 0
    v_mov_b32 v15, 4576
    ds_read_b32 v20, v15
    ds_read_b32 v21, v15 offset:4608
    s_mov_b64 exec, 0xffff
    ds_write_b128 v12, v[16:19]
    s_mov_b64 exec, 15
    ds_write_b32 v13, v16
    s_mov_b64 exec, -1
    s_waitcnt vmcnt(0) lgkmcnt(0)
    v_readfirstlane_b32 s76, v20
    v_readfirstlane_b32 s77, v21
    ''' % (V_UW0, RA + 32, V_UW2, RA + 2 * CSZ + 36, CSZ, RA + 56, V_AA, V_BA, L_RED, V_RW, L_RED, V_RR, CSZ, RA, CSZ, RA + 32))
    a.stamp(6)
    DPPS = ('quad_perm:[1,0,3,2]', 'quad_perm:[2,3,0,1]', 'row_half_mirror', 'row_mirror')
    a('s_mov_b32 s8, 0x7fff7fff')
    for q in range(2):
        for k in range(4):
            a('v_and_b32 v%d, s8, v%d' % (16 + 4 * q + k, C_IN(q) + 2 + k))
    for q in range(2):
        a('v_pk_max_u16 v%d, v%d, v%d' % (16 + 4 * q, 16 + 4 * q, 17 + 4 * q))
        a('v_pk_max_u16 v%d, v%d, v%d' % (18 + 4 * q, 18 + 4 * q, 19 + 4 * q))
    for q in range(2):
        a('v_pk_max_u16 v%d, v%d, v%d' % (16 + 4 * q, 16 + 4 * q, 18 + 4 * q))
    a('v_and_b32 v17, 0xffff, v16')
    a('v_lshl_or_b32 v17, v20, 16, v17')
    a('v_lshrrev_b32 v18, 16, v16')
    a('v_and_b32 v19, 0xffff0000, v20')
    a('v_or_b32 v18, v18, v19')
    a('v_pk_max_u16 v16, v17, v18')
    for dpp in DPPS:
        a.nop(2)
        a('v_mov_b32_dpp v17, v16 %s row_mask:0xf bank_mask:0xf' % dpp)
        a('v_pk_max_u16 v16, v16, v17')
    a('''
    v_lshrrev_b32 v17, 4, v0
    v_lshlrev_b32 v17, 2, v17
    v_add_u32 v17, %d, v17
    v_cmp_eq_u32 vcc, 0, v10
    v_lshlrev_b32 v18, 2, v10
    v_add_u32 v18, %d, v18
    s_and_saveexec_b64 s[74:75], vcc
    ds_write_b32 v17, v16
    s_mov_b64 exec, s[74:75]
    s_waitcnt lgkmcnt(0)
    s_barrier
    ds_read_b32 v16, v18
    s_waitcnt lgkmcnt(0)
    ''' % (L_RED, L_RED))
    for dpp in DPPS:
        a.nop(2)
        a('v_mov_b32_dpp v17, v16 %s row_mask:0xf bank_mask:0xf' % dpp)
        a('v_pk_max_u16 v16, v16, v17')
    a.nop(1)
    a('v_readfirstlane_b32 s15, v16')
    def stage(q):
        b = C_IN(q)
        ub = 4 * CSZ * q
        T = 16
        for k in range(4):
            a('v_lshlrev_b32 v%d, 16, v%d' % (T + 2 * k, b + 2 + k))
            a('v_and_b32 v%d, 0xffff0000, v%d' % (T + 2 * k + 1, b + 2 + k))
        a('''
        v_and_b32 v%d, 0xffff0000, v%d
        %s
        s_mov_b32 s13, s12
        %s
        s_lshr_b32 s8, s8, 7
        s_sub_u32 s8, 268, s8
        s_min_u32 s8, s8, 254
        s_add_u32 s%d, s8, s%d
        s_sub_u32 s%d, 254, s%d
        s_lshl_b32 s8, s8, 23
        s_mov_b32 s9, s8
        ''' % (T + 8, b + 1, 's_lshl_b32 s12, s97, 16' if q == 0 else 's_and_b32 s12, s97, 0xffff0000',
               's_and_b32 s8, s15, 0xffff' if q == 0 else 's_lshr_b32 s8, s15, 16', 76 + q, 76 + q, 76 + q, 76 + q))
        u = C_UD(q)
        for k in range(4):
            a('v_pk_mul_f32 %s, %s, s[12:13]' % (vr(u + 2 * k, 2), vr(T + 2 * k, 2)))
        for k in range(4):
            a('v_pk_mul_f32 %s, %s, s[8:9]' % (vr(T + 2 * k, 2), vr(T + 2 * k, 2)))
        a('v_mul_f32 v%d, s8, v%d' % (T + 8, T + 8))
        F = 32
        for k in range(4):
            a('v_cvt_pk_f16_f32 v%d, v%d, v%d' % (F + k, T + 2 * k, T + 2 * k + 1))
        a('v_cvt_pk_f16_f32 v%d, v%d, v%d' % (F - 1, T + 8, T + 8))
        if ub:
            a('v_add_u32 v12, %d, v%d' % (ub, V_UW2))
            w2 = 12
        else:
            w2 = V_UW2
        a('ds_write_b128 v%d, %s offset:%d' % (V_UW0, vr(F, 4), ub))
        a('ds_write2_b32 v%d, v%d, v%d offset0:0 offset1:1' % (w2, F, F + 1))
        a('ds_write2_b32 v%d, v%d, v%d offset0:2 offset1:3' % (w2, F + 2, F + 3))
        for k in range(4):
            a('v_alignbit_b32 v%d, v%d, v%d, 16' % (36 + k, F + k, F + k - 1))
        a('v_add_u32 v13, %d, v%d' % (CSZ, w2))
        a('ds_write_b128 v%d, v[36:39] offset:%d' % (V_UW0, ub + CSZ))
        a('ds_write2_b32 v13, v36, v37 offset0:0 offset1:1')
        a('ds_write2_b32 v13, v38, v39 offset0:2 offset1:3')
        for k in range(4):
            a('v_cvt_pk_bf16_f32 v%d, v%d, v%d' % (T + k, u + 2 * k, u + 2 * k + 1))
        for k in range(4):
            a('v_lshlrev_b32 v%d, 16, v%d' % (u + 2 * k, T + k))
            a('v_and_b32 v%d, 0xffff0000, v%d' % (u + 2 * k + 1, T + k))
    BF, AFR, ACC = C_BF, C_AF, C_ACC
    def mfma_loop(q):
        ub = 4 * CSZ * q
        kb = KLB(q)
        def aread(t):
            r = AFR + 4 * (t % 8)
            a('ds_read_b64 %s, v%d offset:%d' % (vr(r, 2), V_AA, ub + 256 * t))
            lg.issue(('A', t))
            a('ds_read_b64 %s, v%d offset:%d' % (vr(r + 2, 2), V_AA, ub + 256 * t + 8))
            lg.issue(('A', t))
        def bread(s_):
            a('ds_read_b128 %s, v%d offset:%d' % (vr(BF + 4 * s_, 4), V_BA, kb + 256 * s_))
            lg.issue(('B', s_))
        aread(0)
        for n in range(8): bread(2 * n + 1)
        aread(1)
        for n in range(8): bread(2 * n)
        started = set()
        for t in range(16):
            lg.wait(('A', t))
            for n in range(8):
                if 2 * n + 1 < t: continue
                s_ = 2 * n - t + 1
                if t < 2 and n % 2 == 0:
                    lg.wait(('B', min(s_ + 2, 15 if t == 0 else 14)))
                cin = vr(ACC + 4 * n, 4) if n in started else '0'
                started.add(n)
                a('v_mfma_f32_16x16x32_f16 %s, %s, %s, %s' % (vr(ACC + 4 * n, 4), vr(AFR + 4 * (t % 8), 4), vr(BF + 4 * s_, 4), cin))
            if t == 0:
                for tt in range(2, 5): aread(tt)
            elif t == 1:
                for tt in range(5, 8): aread(tt)
            if t + 8 < 16: aread(t + 8)
        a.nop(8)
    def reduce_store(q):
        if q: a('s_barrier')
        for n in range(8):
            a('ds_write_b128 v%d, %s offset:%d' % (V_RW, vr(ACC + 4 * n, 4), n * 4096))
        a('v_xor_b32 v12, 16, v%d' % V_RR)
        a('s_waitcnt lgkmcnt(0)')
        lg.ops = []
        a('s_barrier')
        R = 40
        for w in range(4):
            a('ds_read_b128 %s, v%d offset:%d' % (vr(R + 8 * w, 4), V_RR, w * 1024))
            a('ds_read_b128 %s, v12 offset:%d' % (vr(R + 8 * w + 4, 4), w * 1024))
        a('s_mul_i32 s8, s78, %d' % (2 * TS))
        a('s_add_u32 s8, s8, 0x%x' % (WS_BT + TS * q))
        a('s_waitcnt lgkmcnt(4)')
        for h in range(0, 8, 2):
            a('v_pk_add_f32 %s, %s, %s' % (vr(R + h, 2), vr(R + h, 2), vr(R + 8 + h, 2)))
        a('s_waitcnt lgkmcnt(0)')
        for h in range(0, 8, 2):
            a('v_pk_add_f32 %s, %s, %s' % (vr(R + 16 + h, 2), vr(R + 16 + h, 2), vr(R + 24 + h, 2)))
        for h in range(0, 8, 2):
            a('v_pk_add_f32 %s, %s, %s' % (vr(R + h, 2), vr(R + h, 2), vr(R + 16 + h, 2)))
        for k in range(8):
            a('v_ldexp_f32 v%d, v%d, s%d' % (R + k, R + k, 76 + q))
        for k in range(4):
            a('v_cvt_pk_bf16_f32 v%d, v%d, v%d' % (R + 8 + k, R + 2 * k, R + 2 * k + 1))
        for k in range(4):
            a('v_lshlrev_b32 v%d, 16, v%d' % (R + 2 * k, R + 8 + k))
            a('v_and_b32 v%d, 0xffff0000, v%d' % (R + 2 * k + 1, R + 8 + k))
        u = C_UD(q)
        for k in range(4):
            a('v_pk_add_f32 %s, %s, %s' % (vr(R + 2 * k, 2), vr(R + 2 * k, 2), vr(u + 2 * k, 2)))
        O = C_OUT(q)
        for k in range(4):
            a('v_cvt_pk_bf16_f32 v%d, v%d, v%d' % (O + k, R + 2 * k, R + 2 * k + 1))
        a('buffer_store_dwordx4 %s, v2, %s, s8 offen' % (vr(O, 4), sr(S_SWS, 4)))
    stage(0)
    stage(1)
    a('s_waitcnt lgkmcnt(0)')
    a('s_barrier')
    mfma_loop(0)
    reduce_store(0)
    mfma_loop(1)
    reduce_store(1)
    a.endpgm()


def gen_k1(a):
    a.lines.append('.globl k1_kernel\n.p2align 8\n.type k1_kernel,@function\nk1_kernel:')
    a('s_cmp_ge_u32 s2, %d' % K1_GRID)
    a('s_cbranch_scc1 K1_EXIT')
    a.kidx = 0
    a.stamp_init()
    load_kernargs(a)
    a('''
    v_lshrrev_b32 v2, 6, v0
    v_and_b32 v1, 63, v0
    s_nop 0
    v_readfirstlane_b32 s3, v2
    ''')
    a('''
    s_cmp_lt_u32 s2, %d
    s_cbranch_scc1 K1_PREP
    s_sub_u32 s97, s2, %d
    ''' % (N_PREP, N_PREP))
    gemm_part(a)
    prep_part(a)
    a.label('K1_EXIT')
    a('s_endpgm')
```

```python
from asmlib import *
from gen_k1 import *

KM_GRID = 256
WSLOT = 9216
NSL = 3
L_WO = 0
L_PQ = 4 * NSL * WSLOT
L_BT = L_PQ + 36864
KM_LDS = L_BT + 9216
KM_ACCUM = 256
KM_VGPR = 256 + 256

S_SWO, S_SWS3, S_SOUT, S_SU = 48, 52, 56, 60
STEPS = {0: [0], 1: [0, 1], 2: [0, 1], 3: [1, 2], 4: [1, 2], 5: [2, 3], 6: [2, 3], 7: [3, 4], 8: [3, 4]}
FRAGS = [('Z', k) for k in range(5)] + [(c, k) for c in range(9) for k in STEPS[c]]

V_TID16 = 2
V_L16 = 3
V_TRW, V_TRB = 6, 7
V_G, V_OMG = 8, 9
V_UW0, V_UW2 = 236, 237
V_AA, V_BA = 238, 239
WD = 240
PQA = 249
PQB = 228
V_RW, V_RR = 254, 255
WOF = lambda j, k: (k * 36 + 4 * j) if k < 4 else (144 + 2 * j)
A_KVF = 164
A_ZF = 232


SK = lambda q: [76, 78, 100][q]


def poll(a, vaddr, soff, nlanes, tmpv, lbl):
    mask_lo = (1 << min(nlanes, 32)) - 1
    mask_hi = ((1 << (nlanes - 32)) - 1) if nlanes > 32 else 0
    a('s_mov_b32 s70, 0x%x' % mask_lo)
    a('s_mov_b32 s71, 0x%x' % mask_hi)
    a('s_mov_b32 s72, 0')
    a.label(lbl)
    a('buffer_load_dword v%d, v%d, %s, %s offen sc1' % (tmpv, vaddr, sr(S_SWS3, 4), soff))
    a('s_add_u32 s72, s72, 1')
    a('s_waitcnt vmcnt(0)')
    a('v_cmp_ne_u32 vcc, 0, v%d' % tmpv)
    a('s_and_b64 vcc, vcc, s[70:71]')
    a('s_cmp_eq_u64 vcc, s[70:71]')
    a('s_cbranch_scc1 %s_ok' % lbl)
    a('s_cmp_gt_u32 s72, 0x8000')
    a('s_cbranch_scc1 %s_ok' % lbl)
    a('s_sleep 2')
    a('s_branch %s' % lbl)
    a.label(lbl + '_ok')


def reduce_task(a):
    cb = sum(((15 if c == 'Z' else c) << (4 * f)) for f, (c, k) in enumerate(FRAGS))
    kb = sum((k << (4 * f)) for f, (c, k) in enumerate(FRAGS))
    a('''
    s_mul_i32 s64, s15, 94
    s_lshr_b32 s64, s64, 11
    s_mul_i32 s65, s64, 22
    s_sub_u32 s65, s15, s65
    s_mov_b32 s66, 0x%x
    s_mov_b32 s67, 0x%x
    s_mov_b32 s68, 0x%x
    s_mov_b32 s69, 0x%x
    s_cmp_ge_u32 s65, 16
    s_cselect_b32 s66, 0x%x, s66
    s_cselect_b32 s68, 0x%x, s68
    s_and_b32 s70, s65, 15
    s_lshl_b32 s70, s70, 2
    s_lshr_b64 s[66:67], s[66:67], s70
    s_lshr_b64 s[68:69], s[68:69], s70
    s_and_b32 s66, s66, 15
    s_and_b32 s68, s68, 15
    s_lshl_b32 s70, s68, 5
    v_lshl_add_u32 v16, v11, 3, s70
    s_cmp_eq_u32 s66, 15
    s_cbranch_scc1 KM_RZ
    s_lshl_b32 s70, s66, 4
    v_add_u32 v17, s70, v10
    v_mul_u32_u24 v18, 57, v17
    v_lshrrev_b32 v18, 10, v18
    v_lshrrev_b32 v19, 2, v18
    v_mul_u32_u24 v20, 72, v19
    v_sub_u32 v21, v17, v20
    v_add_u32 v21, 72, v21
    v_sub_u32 v22, v16, v20
    v_lshrrev_b32 v23, 4, v22
    v_lshrrev_b32 v24, 4, v21
    v_lshl_add_u32 v23, v23, 1, v24
    v_subrev_u32 v23, 4, v23
    v_and_b32 v24, 15, v21
    v_and_b32 v25, 12, v22
    v_lshl_add_u32 v24, v25, 2, v24
    v_lshlrev_b32 v24, 4, v24
    v_lshl_add_u32 v24, v23, 10, v24
    v_add_u32 v25, 256, v24
    s_mov_b64 s[74:75], -1
    s_branch KM_RC
    ''' % (cb & 0xffffffff, (cb >> 32) & 0xffffffff, kb & 0xffffffff, (kb >> 32) & 0xffffffff, cb >> 64, kb >> 64))
    a.label('KM_RZ')
    a('''
    v_lshrrev_b32 v18, 2, v10
    v_lshlrev_b32 v18, 1, v18
    v_and_b32 v19, 1, v10
    v_add_u32 v18, v18, v19
    v_and_b32 v19, 2, v10
    v_cmp_eq_u32 s[74:75], 0, v19
    v_lshrrev_b32 v19, 2, v18
    v_mul_u32_u24 v20, 72, v19
    v_sub_u32 v22, v16, v20
    v_lshlrev_b32 v24, 2, v22
    v_add_u32 v24, 13312, v24
    v_add_u32 v25, 16, v24
    ''')
    a.label('KM_RC')
    a('''
    v_mul_u32_u24 v26, 18, v18
    v_sub_u32 v26, v26, v16
    v_add_u32 v27, 17, v26
    v_cmp_gt_u32 vcc, 25, v27
    s_and_b64 s[74:75], s[74:75], vcc
    s_lshl_b32 s70, s64, 1
    v_add_u32 v19, s70, v19
    v_mul_u32_u24 v19, %d, v19
    v_add_u32 v24, v24, v19
    v_add_u32 v25, v25, v19
    v_mov_b32 v27, 0x40000000
    v_cndmask_b32 v24, v27, v24, s[74:75]
    v_cndmask_b32 v25, v27, v25, s[74:75]
    s_mov_b32 s70, 0x%x
    ''' % (KVP_REC, WS_KVP))
    R = 32
    for rb in range(16):
        a('buffer_load_dwordx4 %s, v24, %s, s70 offen' % (vr(R + 8 * rb, 4), sr(S_SWS3, 4)))
        a('buffer_load_dwordx4 %s, v25, %s, s70 offen' % (vr(R + 8 * rb + 4, 4), sr(S_SWS3, 4)))
        if rb < 15:
            a('s_add_u32 s70, s70, %d' % (8 * KVP_REC))
    a('''
    s_lshl_b32 s70, s15, 10
    s_add_u32 s70, s70, 0x%x
    s_lshl_b32 s71, s64, 7
    s_lshl_b32 s72, s65, 2
    s_add_u32 s71, s71, s72
    s_add_u32 s71, s71, 0x%x
    s_waitcnt vmcnt(0)
    ''' % (WS_KVF, WS_FLG))
    for st in (8, 4, 2, 1):
        for i in range(st):
            for h in range(0, 8, 2):
                a('v_pk_add_f32 %s, %s, %s' % (vr(R + 8 * i + h, 2), vr(R + 8 * i + h, 2), vr(R + 8 * (i + st) + h, 2)))
    for j in range(8):
        a('v_subrev_u32 v27, v26, %d' % j if False else 'v_sub_u32 v27, %d, v26' % j)
        a('v_cmp_gt_u32 vcc, 18, v27')
        a('s_and_b64 vcc, vcc, s[74:75]')
        a('s_nop 0')
        a('v_cndmask_b32 v%d, 0, v%d, vcc' % (R + j, R + j))
    for k in range(4):
        a('v_cvt_pk_bf16_f32 v%d, v%d, v%d' % (28 + k, R + 2 * k, R + 2 * k + 1))
    a('''
    buffer_store_dwordx4 v[28:31], v%d, %s, s70 offen sc1
    v_mov_b32 v27, 1
    v_mov_b32 v26, 0
    s_mov_b32 s64, s44
    s_and_b32 s65, s45, 0xffff
    s_mov_b32 s66, 256
    s_mov_b32 s67, 0x20000
    s_waitcnt vmcnt(0)
    s_mov_b64 exec, 1
    buffer_atomic_add v27, v26, s[64:67], 0 offen sc0 sc1
    s_waitcnt vmcnt(0)
    v_readfirstlane_b32 s70, v27
    s_mov_b64 exec, -1
    s_cmp_lg_u32 s70, 87
    s_cbranch_scc1 KM_NORED
    v_mov_b32 v27, 1
    v_lshlrev_b32 v26, 7, v1
    s_mov_b32 s70, 0x%x
    buffer_store_dword v27, v26, %s, s70 offen sc1
    s_add_u32 s70, s70, 8192
    buffer_store_dword v27, v26, %s, s70 offen sc1
    s_add_u32 s70, s70, 8192
    buffer_store_dword v27, v26, %s, s70 offen sc1
    s_add_u32 s70, s70, 8192
    buffer_store_dword v27, v26, %s, s70 offen sc1
    ''' % ((V_L16, sr(S_SWS3, 4), WS_GO2) + (sr(S_SWS3, 4),) * 4))


class Proxy:
    def __init__(self, a):
        self._a = a
        self.rec = None
    def __call__(self, txt):
        if self.rec is None:
            self._a(txt)
        else:
            for ln in txt.strip('\n').split('\n'):
                if ln.strip():
                    self.rec.append((True, lambda ln=ln: self._a(ln)))
    def __getattr__(self, n):
        return getattr(self._a, n)
    def __setattr__(self, n, v):
        if n in ('_a', 'rec'):
            object.__setattr__(self, n, v)
        else:
            setattr(self._a, n, v)


class PCnt:
    def __init__(self, px, cnt):
        self.px, self.c = px, cnt
    def issue(self, tag):
        if self.px.rec is None: self.c.issue(tag)
        else: self.px.rec.append((False, lambda: self.c.issue(tag)))
    def wait(self, tag):
        if self.px.rec is None: self.c.wait(tag)
        else: self.px.rec.append((True, lambda: self.c.wait(tag)))
    def reset(self):
        self.c.ops = []


def gen_km(a0):
    a = Proxy(a0)
    def record(*fns):
        a.rec = []
        for f in fns: f()
        r = a.rec
        a.rec = None
        return r
    def pump(side, n):
        while side and n > 0:
            isins, f = side.pop(0)
            f()
            if isins: n -= 1
        while side and not side[0][0]:
            side.pop(0)[1]()
    a.lines.append('.globl km_kernel\n.p2align 8\n.type km_kernel,@function\nkm_kernel:')
    a('s_cmp_ge_u32 s2, %d' % KM_GRID)
    a('s_cbranch_scc1 KM_EXIT')
    a.kidx = 1
    a.stamp_init()
    load_kernargs(a)
    a('''
    v_lshrrev_b32 v2, 6, v0
    v_and_b32 v1, 63, v0
    s_nop 0
    v_readfirstlane_b32 s3, v2
    s_and_b32 s4, s2, 7
    s_lshr_b32 s5, s2, 3
    s_lshl_b32 s4, s4, 3
    s_and_b32 s6, s5, 7
    s_add_u32 s4, s4, s6
    s_lshl_b32 s4, s4, 5
    s_lshr_b32 s14, s5, 3
    s_mul_i32 s5, s14, 144
    v_and_b32 v10, 15, v1
    v_lshrrev_b32 v11, 4, v1
    s_mul_i32 s6, s3, 144
    s_mul_i32 s7, s3, %d
    s_add_u32 s7, s7, %d
    s_and_b32 s12, s3, 1
    s_lshr_b32 s13, s3, 1
    s_lshr_b32 s97, s2, 6
    s_and_b32 s98, s2, 63
    s_mul_i32 s99, s97, 144
    s_add_u32 s99, s99, s98
    v_lshlrev_b32 v2, 4, v0
    v_lshlrev_b32 v3, 4, v1
    s_waitcnt lgkmcnt(0)
    ''' % (NSL * WSLOT, L_WO))
    srd(a, S_SWO, P_WO, 576 * 576 * 2)
    srd(a, S_SWS3, P_WS, WS_END)
    srd(a, S_SOUT, P_OUT, 2048 * 576 * 2)
    vm = PCnt(a, Cnt(a0, 'vmcnt', 63))
    lg = PCnt(a, Cnt(a0, 'lgkmcnt', 15))

    a('''
    s_lshl_b32 s9, s3, 3
    s_add_u32 s8, s9, s4
    s_mul_i32 s8, s8, 1152
    s_lshl_b32 s11, s3, 13
    s_add_u32 s11, s11, %d
    s_and_b32 s9, s9, 15
    v_xor_b32 v12, s9, v1
    ''' % L_PQ)
    for i in range(8):
        a('v_xor_b32 v13, %d, v12' % i)
        a('s_add_u32 m0, s11, %d' % (1024 * i))
        a('v_lshlrev_b32 v13, 4, v13')
        a('buffer_load_dwordx4 v13, %s, s8 offen lds' % sr(S_SWS3, 4))
        a('s_add_u32 s8, s8, 1152')
        vm.issue(('PQ',))
    a('''
    v_lshrrev_b32 v12, 3, v1
    v_and_b32 v13, 7, v1
    v_xor_b32 v13, v13, v12
    v_mul_u32_u24 v12, 1152, v12
    v_lshl_add_u32 v13, v13, 4, v12
    s_sub_u32 s8, s8, %d
    s_lshl_b32 s11, s3, 10
    s_add_u32 m0, s11, %d
    s_nop 0
    buffer_load_dwordx4 v13, %s, s8 offen lds
    ''' % (8 * 1152 - 1024, L_PQ + 32768, sr(S_SWS3, 4)))
    vm.issue(('PQ',))
    KVF = {}
    a('s_mul_i32 s8, s3, %d' % (22 * 1024))
    a('s_add_u32 s8, s8, 0x%x' % WS_KVF)
    idx = 0
    for f, (c, k) in enumerate(FRAGS):
        if f % 4 == 0 and f:
            a('s_add_u32 s8, s8, 4096')
        if c == 'Z':
            dst = ar(A_ZF + 4 * k, 4)
        else:
            KVF[(c, k)] = A_KVF + 4 * idx
            idx += 1
            dst = ar(KVF[(c, k)], 4)
        a('buffer_load_dwordx4 %s, v3, %s, s8 offen offset:%d' % (dst, sr(S_SWS3, 4), 1024 * (f % 4)))
        vm.issue(('F', f))
    a('''
    s_mul_i32 s8, s6, 1152
    s_lshl_b32 s9, s5, 1
    s_add_u32 s8, s8, s9
    v_mul_u32_u24 v13, 57, v1
    v_lshrrev_b32 v13, 10, v13
    v_mul_u32_u24 v14, 18, v13
    v_sub_u32 v14, v1, v14
    v_mul_u32_u24 v13, 1152, v13
    v_lshl_add_u32 v13, v14, 4, v13
    v_add_u32 v%d, s8, v13
    v_mov_b32 v15, 864
    ''' % WD)
    for i in range(1, 9):
        a('''
        v_add_u32 v14, 10, v14
        v_cmp_le_u32 vcc, 18, v14
        v_add_u32 v%d, %d, v%d
        v_subrev_u32 v13, 18, v14
        v_cndmask_b32 v12, 0, v15, vcc
        v_cndmask_b32 v14, v14, v13, vcc
        v_add_u32 v%d, v%d, v12
        ''' % (WD + i, 3 * 1152 + 160, WD + i - 1, WD + i, WD + i))

    def wo_dma(k):
        a('s_mov_b32 s73, 0x%x' % (k * 32 * 1152))
        for i in range(9 if k < 4 else 5):
            a('s_add_u32 m0, s7, 0x%x' % ((k % NSL) * WSLOT + i * 1024))
            a('s_nop 0')
            a('buffer_load_dwordx4 v%d, %s, s73 offen lds' % (WD + i, sr(S_SWO, 4)))
            vm.issue(('W', k))
    def wo_drain(k, wait=True):
        vm.wait(('W', k))
        for j in range(9):
            a('ds_read_b64_tr_b16 %s, v%d offset:%d' % (ar(WOF(j, k), 2), V_TRW, (k % NSL) * WSLOT + 32 * j))
            lg.issue(('WO', k))
            if k < 4:
                a('ds_read_b64_tr_b16 %s, v%d offset:%d' % (ar(WOF(j, k) + 2, 2), V_TRW, (k % NSL) * WSLOT + 32 * j + 16 * 288))
                lg.issue(('WO', k))
        if wait:
            lg.wait(('WO', k))
    a('''
    s_lshl_b32 s9, s12, 4
    s_add_u32 s9, s9, s4
    v_add_u32 v12, s9, v10
    v_lshlrev_b32 v12, 2, v12
    s_mov_b32 s9, 0x%x
    buffer_load_dword v%d, v12, %s, s9 offen
    ''' % (WS_G, V_G, sr(S_SWS3, 4)))
    vm.issue(('G',))
    a('''
    v_lshrrev_b32 v12, 2, v10
    v_lshl_add_u32 v13, v11, 2, v12
    v_mul_u32_u24 v14, 288, v13
    v_and_b32 v15, 3, v1
    v_lshl_add_u32 v14, v15, 3, v14
    v_add_u32 v%d, s7, v14
    v_lshlrev_b32 v14, 6, v13
    v_lshl_add_u32 v14, v15, 3, v14
    s_lshl_b32 s9, s12, 5
    s_lshl_b32 s11, s13, 10
    s_add_u32 s9, s9, s11
    s_add_u32 s9, s9, %d
    v_add_u32 v%d, s9, v14
    v_lshlrev_b32 v12, 10, v10
    v_add_u32 v12, %d, v12
    v_lshlrev_b32 v15, 7, v10
    v_add_u32 v15, %d, v15
    v_and_b32 v13, 7, v10
    s_mul_i32 s9, s3, 18
    ''' % (V_TRW, L_BT, V_TRB, L_PQ, L_PQ + 32768))
    for k in range(5):
        if k < 4:
            a('v_add_u32 v14, %d, v11' % (4 * k))
        else:
            a('v_and_b32 v14, 1, v11')
            a('v_add_u32 v14, 16, v14')
        a('v_add_u32 v14, s9, v14')
        a('v_cmp_le_u32 vcc, 64, v14')
        a('v_xor_b32 v16, v14, v10')
        a('v_lshl_add_u32 v16, v16, 4, v12')
        a('v_add_u32 v17, 16384, v16')
        a('v_xor_b32 v14, v14, v13')
        a('v_and_b32 v14, 7, v14')
        a('v_lshl_add_u32 v14, v14, 4, v15')
        a('v_add_u32 v18, 2048, v14')
        a('v_cndmask_b32 v%d, v16, v14, vcc' % (PQA + k))
        a('v_cndmask_b32 v%d, v17, v18, vcc' % (PQB + k))
    def sel_loads():
        a('s_mov_b32 s76, 0x%x' % WS_SEL)
        for c in range(9):
            if c == 4 or c == 8:
                a('s_add_u32 s76, s76, 4096')
            a('buffer_load_dwordx4 %s, v3, %s, s76 offen offset:%d' % (vr(56 + 4 * c, 4), sr(S_SWS3, 4), 1024 * (c % 4)))
            vm.issue(('SEL',))
    def bt_dma():
        a('''
        s_mul_i32 s76, s5, 4352
        s_lshl_b32 s77, s4, 1
        s_add_u32 s76, s76, s77
        s_add_u32 s76, s76, 0x%x
        v_lshrrev_b32 v234, 2, v1
        v_mul_u32_u24 v234, 4352, v234
        v_and_b32 v235, 3, v1
        v_lshl_add_u32 v234, v235, 4, v234
        s_mul_i32 s77, s3, 139264
        s_add_u32 s77, s77, s76
        s_lshl_b32 s78, s3, 11
        s_add_u32 m0, s78, %d
        s_nop 0
        buffer_load_dwordx4 v234, %s, s77 offen lds
        s_add_u32 s77, s77, 69632
        s_add_u32 m0, s78, %d
        s_nop 0
        buffer_load_dwordx4 v234, %s, s77 offen lds
        s_add_u32 s77, s76, 557056
        s_mov_b32 m0, %d
        s_nop 0
        buffer_load_dwordx4 v234, %s, s77 offen lds
        ''' % (WS_BT, L_BT, sr(S_SWS3, 4), L_BT + 1024, sr(S_SWS3, 4), L_BT + 8192, sr(S_SWS3, 4)))
        for i in range(3): vm.issue(('BT',))

    st4 = lambda i: None
    side = record(sel_loads, lambda: wo_dma(0), lambda: wo_dma(1), lambda: wo_dma(2), bt_dma)
    pump(side, 45)
    SELR = 56
    a.stamp(1)
    vm.wait(('PQ',))
    PQ = lambda k, st: 16 + (k * 2 + st) * 4
    a('s_barrier')
    for k in range(5):
        for st in range(2):
            a('ds_read_b128 %s, v%d' % (vr(PQ(k, st), 4), (PQA if st == 0 else PQB) + k))
            lg.issue(('PQF', k))
    a('s_mov_b32 s66, 0x0000bf80')
    a('s_mov_b32 s67, 0xbf800000')
    a('s_mov_b32 s68, 0x%x' % f32bits(1e-6))
    DEN = lambda st: 216 + 4 * st
    lg.wait(('PQF', 4))
    for k in range(5):
        vm.wait(('F', k))
        for st in range(2):
            cin = '0' if k == 0 else vr(DEN(st), 4)
            a('v_mfma_f32_16x16x32_bf16 %s, %s, %s, %s' % (vr(DEN(st), 4), ar(A_ZF + 4 * k, 4), vr(PQ(k, st), 4), cin))
            pump(side, 2)
    NUM = lambda c, st: 144 + (c * 2 + st) * 4
    RT = lambda st: 124 + 4 * st
    T = lambda st: 132 + 6 * st
    def rterms():
        for st in range(2):
            a('v_cvt_pk_bf16_f32 v%d, v%d, v%d' % (T(st), DEN(st), DEN(st) + 1))
        for st in range(2):
            a('v_lshlrev_b32 v%d, 16, v%d' % (T(st) + 2, T(st)))
            a('v_and_b32 v%d, 0xffff0000, v%d' % (T(st) + 3, T(st)))
        for st in range(2):
            a('v_add_f32 v%d, s68, v%d' % (T(st) + 2, T(st) + 2))
            a('v_add_f32 v%d, s68, v%d' % (T(st) + 3, T(st) + 3))
        for st in range(2):
            a('v_cvt_pk_bf16_f32 v%d, v%d, v%d' % (T(st), T(st) + 2, T(st) + 3))
        for st in range(2):
            a('v_lshlrev_b32 v%d, 16, v%d' % (T(st) + 2, T(st)))
            a('v_and_b32 v%d, 0xffff0000, v%d' % (T(st) + 3, T(st)))
        for st in range(2):
            a('v_rcp_f32 v%d, v%d' % (T(st) + 2, T(st) + 2))
            a('v_rcp_f32 v%d, v%d' % (T(st) + 3, T(st) + 3))
        a.nop(1)
        for term in range(3):
            for st in range(2):
                a('v_cvt_pk_bf16_f32 v%d, v%d, v%d' % (RT(st) + term, T(st) + 2, T(st) + 3))
            if term < 2:
                for st in range(2):
                    a('v_dot2_f32_bf16 v%d, v%d, s66, v%d' % (T(st) + 2, RT(st) + term, T(st) + 2))
                    a('v_dot2_f32_bf16 v%d, v%d, s67, v%d' % (T(st) + 3, RT(st) + term, T(st) + 3))
                a.nop(3)
        for st in range(2):
            a('v_mov_b32 v%d, 0' % (RT(st) + 3))
    f = 5
    for c in range(9):
        for i, k in enumerate(STEPS[c]):
            vm.wait(('F', f)); f += 1
            for st in range(2):
                cin = '0' if i == 0 else vr(NUM(c, st), 4)
                a('v_mfma_f32_16x16x32_bf16 %s, %s, %s, %s' % (vr(NUM(c, st), 4), ar(KVF[(c, k)], 4), vr(PQ(k, st), 4), cin))
                pump(side, 2)
        if c == 3:
            rterms()
    a.stamp(4)
    pump(side, 10 ** 6)
    vm.wait(('SEL',))
    side = record(lambda: wo_drain(0), lambda: wo_dma(3), lambda: wo_drain(1), lambda: wo_dma(4))
    OB = 16
    RR = lambda i: 100 + 4 * i
    TT = 116
    def proc(cc):
        for st in range(2):
            n = NUM(cc, st)
            a('v_cvt_pk_bf16_f32 v%d, v%d, v%d' % (n, n, n + 1))
            a('v_cvt_pk_bf16_f32 v%d, v%d, v%d' % (n + 2, n + 2, n + 3))
        for st in range(2):
            n = NUM(cc, st)
            t = TT + 4 * st
            a('v_lshlrev_b32 v%d, 16, v%d' % (t, n))
            a('v_and_b32 v%d, 0xffff0000, v%d' % (t + 1, n))
            a('v_lshlrev_b32 v%d, 16, v%d' % (t + 2, n + 2))
            a('v_and_b32 v%d, 0xffff0000, v%d' % (t + 3, n + 2))
        for st in range(2):
            t = TT + 4 * st
            r = RR((cc % 2) * 2 + st)
            a('v_pk_mul_f32 %s, %s, %s' % (vr(t, 2), vr(t, 2), vr(r, 2)))
            a('v_pk_mul_f32 %s, %s, %s' % (vr(t + 2, 2), vr(t + 2, 2), vr(r + 2, 2)))
        for st in range(2):
            t = TT + 4 * st
            o = OB + st * 18 + 2 * cc
            a('v_cvt_pk_bf16_f32 v%d, v%d, v%d' % (o, t, t + 1))
            a('v_cvt_pk_bf16_f32 v%d, v%d, v%d' % (o + 1, t + 2, t + 3))
    ACC2 = lambda j, st: 56 + (j * 2 + st) * 4 if False else 144 + (j * 2 + st) * 4
    for c in range(9):
        for st in range(2):
            a('v_mfma_f32_16x16x32_bf16 %s, %s, %s, 0' % (vr(RR((c % 2) * 2 + st), 4), vr(SELR + 4 * c, 4), vr(RT(st), 4)))
        if c >= 1:
            proc(c - 1)
        if c >= 2: pump(side, 12)
    a.nop(4)
    proc(8)
    pump(side, 10 ** 6)
    a.stamp(5)
    st4(4)
    wo_drain(2, wait=False)
    for k in range(5):
        if k == 1: wo_drain(3, wait=False)
        if k == 2: wo_drain(4, wait=False)
        lg.wait(('WO', k))
        for j in range(9):
            for st in range(2):
                cin = '0' if k == 0 else vr(ACC2(j, st), 4)
                if k < 4:
                    a('v_mfma_f32_16x16x32_bf16 %s, %s, %s, %s' % (vr(ACC2(j, st), 4), ar(WOF(j, k), 4), vr(OB + st * 18 + 4 * k, 4), cin))
                else:
                    a('v_mfma_f32_16x16x16_bf16 %s, %s, %s, %s' % (vr(ACC2(j, st), 4), ar(WOF(j, k), 2), vr(OB + st * 18 + 16, 2), cin))
    a.stamp(6)
    st4(6)
    RS = 304
    a('''
    s_lshl_b32 s9, s3, 10
    v_add_u32 v13, s9, v3
    v_add_u32 v14, 0x9000, v13
    s_waitcnt vmcnt(0)
    s_nop 4
    s_barrier
    ''')
    for t in range(18):
        j, st = t >> 1, t & 1
        if t < 9:
            a('ds_write_b128 v13, %s offset:%d' % (vr(ACC2(j, st), 4), t * 4096))
        else:
            a('ds_write_b128 v14, %s offset:%d' % (vr(ACC2(j, st), 4), (t - 9) * 4096))
    a('''
    s_lshl_b32 s9, s3, 12
    v_add_u32 v13, s9, v3
    v_add_u32 v14, 0x8000, v13
    s_lshl_b32 s9, s12, 4
    v_add_u32 v15, s9, v10
    v_mul_u32_u24 v15, %d, v15
    v_lshl_add_u32 v15, v11, 3, v15
    s_lshl_b32 s9, s13, 5
    s_add_u32 s9, s9, %d
    v_add_u32 v15, s9, v15
    v_sub_f32 v%d, 1.0, v%d
    v_cvt_pk_bf16_f32 v%d, v%d, v%d
    v_lshlrev_b32 v%d, 16, v%d
    s_mul_i32 s8, s4, 1152
    s_lshl_b32 s9, s5, 1
    s_add_u32 s8, s8, s9
    s_mov_b32 s11, %d
    ''' % (RS, L_PQ, V_OMG, V_G, V_OMG, V_OMG, V_OMG, V_OMG, V_OMG, L_PQ))
    for i in range(3):
        a('''
        v_add_u32 v12, %d, v0
        v_mul_u32_u24 v4, 3641, v12
        v_lshrrev_b32 v4, 16, v4
        v_mul_u32_u24 v5, 18, v4
        v_sub_u32 v5, v12, v5
        v_lshlrev_b32 v5, 4, v5
        v_mul_u32_u24 v12, %d, v4
        v_add3_u32 v%d, v12, v5, s11
        v_mul_u32_u24 v4, 1152, v4
        v_add_u32 v%d, v4, v5
        ''' % (256 * i, RS, 228 + i, 232 + i))
    a('s_waitcnt lgkmcnt(0)')
    a('s_barrier')
    def reads(it):
        R = 16 + 24 * it
        for w in range(4):
            if it < 2:
                a('ds_read_b128 %s, v13 offset:%d' % (vr(R + 4 * w, 4), it * 16384 + w * 1024))
            else:
                a('ds_read_b128 %s, v14 offset:%d' % (vr(R + 4 * w, 4), (it - 2) * 16384 + w * 1024))
        a('ds_read_b64_tr_b16 %s, v%d offset:%d' % (vr(R + 16, 2), V_TRB, it * 2048))
    def comp(its):
        def each(fn):
            for it in its: fn(16 + 24 * it, it)
        each(lambda R, it: [a('v_pk_add_f32 %s, %s, %s' % (vr(R + o + h, 2), vr(R + o + h, 2), vr(R + o + 4 + h, 2))) for h in (0, 2) for o in (0, 8)])
        each(lambda R, it: [a('v_pk_add_f32 %s, %s, %s' % (vr(R + h, 2), vr(R + h, 2), vr(R + 8 + h, 2))) for h in (0, 2)])
        each(lambda R, it: [a('v_cvt_pk_bf16_f32 v%d, v%d, v%d' % (R + 4 + k, R + 2 * k, R + 2 * k + 1)) for k in range(2)])
        def unp(R, it):
            for k in range(2):
                a('v_lshlrev_b32 v%d, 16, v%d' % (R + 2 * k, R + 4 + k))
                a('v_and_b32 v%d, 0xffff0000, v%d' % (R + 2 * k + 1, R + 4 + k))
                a('v_lshlrev_b32 v%d, 16, v%d' % (R + 8 + 2 * k, R + 16 + k))
                a('v_and_b32 v%d, 0xffff0000, v%d' % (R + 8 + 2 * k + 1, R + 16 + k))
        each(unp)
        def mul(R, it):
            for h in (0, 2):
                a('v_pk_mul_f32 %s, %s, %s op_sel_hi:[1,0]' % (vr(R + h, 2), vr(R + h, 2), vr(V_G, 2)))
                a('v_pk_mul_f32 %s, %s, %s op_sel:[0,1] op_sel_hi:[1,1]' % (vr(R + 8 + h, 2), vr(R + 8 + h, 2), vr(V_G, 2)))
        each(mul)
        def cv(R, it):
            for k in range(2):
                a('v_cvt_pk_bf16_f32 v%d, v%d, v%d' % (R + 4 + k, R + 2 * k, R + 2 * k + 1))
                a('v_cvt_pk_bf16_f32 v%d, v%d, v%d' % (R + 6 + k, R + 8 + 2 * k, R + 8 + 2 * k + 1))
        each(cv)
        def unp2(R, it):
            for k in range(2):
                a('v_lshlrev_b32 v%d, 16, v%d' % (R + 2 * k, R + 4 + k))
                a('v_and_b32 v%d, 0xffff0000, v%d' % (R + 2 * k + 1, R + 4 + k))
                a('v_lshlrev_b32 v%d, 16, v%d' % (R + 8 + 2 * k, R + 6 + k))
                a('v_and_b32 v%d, 0xffff0000, v%d' % (R + 8 + 2 * k + 1, R + 6 + k))
        each(unp2)
        each(lambda R, it: [a('v_pk_add_f32 %s, %s, %s' % (vr(R + h, 2), vr(R + h, 2), vr(R + 8 + h, 2))) for h in (0, 2)])
        each(lambda R, it: [a('v_cvt_pk_bf16_f32 v%d, v%d, v%d' % (R + 18 + k, R + 2 * k, R + 2 * k + 1)) for k in range(2)])
        each(lambda R, it: a('ds_write_b64 v15, %s offset:%d' % (vr(R + 18, 2), it * 64)))
    for it in range(4):
        reads(it)
    a('s_waitcnt lgkmcnt(10)')
    comp([0, 1])
    a('s_waitcnt lgkmcnt(2)')
    comp([2, 3])
    a('s_cmp_ge_u32 s3, 2')
    a('s_cbranch_scc1 KM_S4')
    reads(4)
    a('s_waitcnt lgkmcnt(0)')
    comp([4])
    a.label('KM_S4')
    a('''
    s_waitcnt lgkmcnt(0)
    s_barrier
    ds_read_b128 v[16:19], v228
    ds_read_b128 v[20:23], v229
    s_waitcnt lgkmcnt(1)
    buffer_store_dwordx4 v[16:19], v232, %s, s8 offen
    s_waitcnt lgkmcnt(0)
    buffer_store_dwordx4 v[20:23], v233, %s, s8 offen
    s_cmp_lg_u32 s3, 0
    s_cbranch_scc1 KM_FIN
    ds_read_b128 v[24:27], v230
    s_waitcnt lgkmcnt(0)
    buffer_store_dwordx4 v[24:27], v234, %s, s8 offen
    ''' % ((sr(S_SOUT, 4),) * 3))
    a.label('KM_FIN')
    a.endpgm()
    a.label('KM_EXIT')
    a('s_endpgm')
```

```python
from asmlib import *
import math

WS_PQ = 0x000000
TS = 4352
WS_XT = 0x240000
WS_BT = 0x4B0000
WS_KF = 0x720000
KF_STRIDE = 4608
WS_KVP = 0x950000
KVP_REC = 13 * 1024 + 512
WS_KVF = 0xB00000
WS_SEL = 0xB18000
WS_G = 0xB1C000
WS_PM = 0xB20000
WS_FLG = 0xB34000
WS_GO1 = 0xB40000
WS_GO2 = 0xB50000
WS_GO3 = 0xB60000
WS_END = 0xB70000

N_GEMM = 192
N_PREP = 288
K1_GRID = N_GEMM + N_PREP
K1_LDS = 81920

import os
TOUCH = int(os.environ.get('TOUCH', '1'))
TOUCH_FLAGS = os.environ.get('TOUCH_FLAGS', '')
WFLAGS = os.environ.get('WFLAGS', '')
AFLAGS = os.environ.get('AFLAGS', '')
NOMEM = int(os.environ.get('NOMEM', '0'))
NOPREP = int(os.environ.get('NOPREP', '0'))
NOXS = int(os.environ.get('NOXS', '0'))
PRO = int(os.environ.get('PRO', '2'))
GPRIO = int(os.environ.get('GPRIO', '3'))
PPRIO = int(os.environ.get('PPRIO', '0'))
S3 = int(os.environ.get('S3', '0'))
NOX = int(os.environ.get('NOX', '0'))
NOW = int(os.environ.get('NOW', '0'))
CPRIO = int(os.environ.get('CPRIO', '2'))
QPRIO = int(os.environ.get('QPRIO', '-1'))
IPRIO = int(os.environ.get('IPRIO', '0'))
NOBAR = int(os.environ.get('NOBAR', '0'))
CLOOP = int(os.environ.get('CLOOP', '1'))
LOG2E = 1.4426950408889634

P_X, P_W, P_WO, P_BU, P_ARE, P_AIM, P_BRE, P_BIM = 16, 18, 20, 22, 24, 26, 28, 30
P_CRE, P_CIM, P_LDT, P_DSK, P_GW, P_OUT, P_DBG, P_WS = 32, 34, 36, 38, 40, 42, 44, 46


class Cnt:
    def __init__(self, a, name, cap):
        self.a, self.name, self.cap = a, name, cap
        self.ops = []
    def issue(self, tag):
        self.ops.append(tag)
    def wait(self, tag):
        idx = max(i for i, t in enumerate(self.ops) if t == tag) if tag in self.ops else None
        if idx is None:
            return
        n = len(self.ops) - 1 - idx
        n = min(n, self.cap)
        self.a('s_waitcnt %s(%d)' % (self.name, n))
        self.ops = self.ops[len(self.ops) - n:] if n > 0 else []
    def wait_all(self):
        self.a('s_waitcnt %s(0)' % self.name)
        self.ops = []


def load_kernargs(a):
    a('s_load_dwordx16 s[16:31], s[0:1], 0')
    a('s_load_dwordx16 s[32:47], s[0:1], 64')


def phi_batch(a, pairs, tmp, s_l2e, s_eps, keep_raw=None):
    n = len(pairs)
    H = lambda i: (keep_raw[i] if keep_raw else tmp + 6 * i)
    T = lambda i: tmp + 6 * i + 2
    E = lambda i: tmp + 6 * i + 4
    for i, (a0, a1, d) in enumerate(pairs):
        a('v_cvt_pk_bf16_f32 v%d, v%d, v%d' % (H(i), a0, a1))
    for i in range(n):
        a('v_lshlrev_b32 v%d, 16, v%d' % (T(i), H(i)))
        a('v_and_b32 v%d, 0xffff0000, v%d' % (T(i) + 1, H(i)))
    for i in range(n):
        a('v_pk_mul_f32 %s, %s, %s' % (vr(E(i), 2), vr(T(i), 2), sr(s_l2e, 2)))
    for i in range(n):
        a('v_exp_f32_e64 v%d, v%d clamp' % (E(i), E(i)))
        a('v_exp_f32_e64 v%d, v%d clamp' % (E(i) + 1, E(i) + 1))
    for i in range(n):
        a('v_max_f32 v%d, 0, v%d' % (T(i), T(i)))
        a('v_max_f32 v%d, 0, v%d' % (T(i) + 1, T(i) + 1))
    for i in range(n):
        a('v_pk_add_f32 %s, %s, %s' % (vr(E(i), 2), vr(E(i), 2), vr(T(i), 2)))
    for i, (a0, a1, d) in enumerate(pairs):
        a('v_cvt_pk_bf16_f32 v%d, v%d, v%d' % (d, E(i), E(i) + 1))
    for i, (a0, a1, d) in enumerate(pairs):
        a('v_pk_min_u16 v%d, v%d, v%d' % (V_PMIN, V_PMIN, d))


V_PMIN = 243


def phi_fix(a, regs, tmp, s_eps, lbl):
    a('''
    v_lshrrev_b32 v%d, 16, v%d
    v_and_b32 v%d, 0xffff, v%d
    v_min_u32 v%d, v%d, v%d
    v_cmp_gt_u32 vcc, 0x3a00, v%d
    s_cbranch_vccz %s
    ''' % (tmp, V_PMIN, tmp + 1, V_PMIN, tmp, tmp, tmp + 1, tmp, lbl))
    for r in regs:
        a('v_lshlrev_b32 v%d, 16, v%d' % (tmp, r))
        a('v_and_b32 v%d, 0xffff0000, v%d' % (tmp + 1, r))
        a('v_pk_add_f32 %s, %s, %s' % (vr(tmp, 2), vr(tmp, 2), sr(s_eps, 2)))
        a('v_cvt_pk_bf16_f32 v%d, v%d, v%d' % (r, tmp, tmp + 1))
    a.label(lbl)


V_XOFF, V_SW, V_DMA, V_TR, V_TR2, V_SR0, V_SR1 = 2, 3, 4, 9, 240, 241, 242
V_XR, V_AF, V_B, V_ACC = 16, 96, 128, 168
V_A = 16
V_T = 96
SLOT = 18432
SCR = 4 * SLOT
S_SX, S_SW, S_SWS = 48, 52, 56
PAIRS = [(0, 4), (0, 5), (1, 4), (1, 5), (1, 6), (2, 5), (2, 6), (2, 7), (3, 6), (3, 7), (3, 8), (4, 7), (4, 8)]


STEPS = {0: [0], 1: [0, 1], 2: [0, 1], 3: [1, 2], 4: [1, 2], 5: [2, 3], 6: [2, 3], 7: [3, 4], 8: [3, 4]}
FRAGS = [('Z', k) for k in range(5)] + [(c, k) for c in range(9) for k in STEPS[c]]


def reduce_task(a):
    cb = sum(((15 if c == 'Z' else c) << (4 * f)) for f, (c, k) in enumerate(FRAGS))
    kb = sum((k << (4 * f)) for f, (c, k) in enumerate(FRAGS))
    a('''
    s_mul_i32 s64, s15, 94
    s_lshr_b32 s64, s64, 11
    s_mul_i32 s65, s64, 22
    s_sub_u32 s65, s15, s65
    s_mov_b32 s66, 0x%x
    s_mov_b32 s67, 0x%x
    s_mov_b32 s68, 0x%x
    s_mov_b32 s69, 0x%x
    s_cmp_ge_u32 s65, 16
    s_cselect_b32 s66, 0x%x, s66
    s_cselect_b32 s68, 0x%x, s68
    s_and_b32 s70, s65, 15
    s_lshl_b32 s70, s70, 2
    s_lshr_b64 s[66:67], s[66:67], s70
    s_lshr_b64 s[68:69], s[68:69], s70
    s_and_b32 s66, s66, 15
    s_and_b32 s68, s68, 15
    s_lshl_b32 s70, s68, 5
    v_lshl_add_u32 v16, v11, 3, s70
    s_cmp_eq_u32 s66, 15
    s_cbranch_scc1 K1_RZ
    s_lshl_b32 s70, s66, 4
    v_add_u32 v17, s70, v10
    v_mul_u32_u24 v18, 57, v17
    v_lshrrev_b32 v18, 10, v18
    v_lshrrev_b32 v19, 2, v18
    v_mul_u32_u24 v20, 72, v19
    v_sub_u32 v21, v17, v20
    v_add_u32 v21, 72, v21
    v_sub_u32 v22, v16, v20
    v_lshrrev_b32 v23, 4, v22
    v_lshrrev_b32 v24, 4, v21
    v_lshl_add_u32 v23, v23, 1, v24
    v_subrev_u32 v23, 4, v23
    v_and_b32 v24, 15, v21
    v_and_b32 v25, 12, v22
    v_lshl_add_u32 v24, v25, 2, v24
    v_lshlrev_b32 v24, 4, v24
    v_lshl_add_u32 v24, v23, 10, v24
    v_add_u32 v25, 256, v24
    s_mov_b64 s[74:75], -1
    s_branch K1_RC
    ''' % (cb & 0xffffffff, (cb >> 32) & 0xffffffff, kb & 0xffffffff, (kb >> 32) & 0xffffffff, cb >> 64, kb >> 64))
    a.label('K1_RZ')
    a('''
    v_lshrrev_b32 v18, 2, v10
    v_lshlrev_b32 v18, 1, v18
    v_and_b32 v19, 1, v10
    v_add_u32 v18, v18, v19
    v_and_b32 v19, 2, v10
    v_cmp_eq_u32 s[74:75], 0, v19
    v_lshrrev_b32 v19, 2, v18
    v_mul_u32_u24 v20, 72, v19
    v_sub_u32 v22, v16, v20
    v_lshlrev_b32 v24, 2, v22
    v_add_u32 v24, 13312, v24
    v_add_u32 v25, 16, v24
    ''')
    a.label('K1_RC')
    a('''
    v_mul_u32_u24 v26, 18, v18
    v_sub_u32 v26, v26, v16
    v_add_u32 v27, 17, v26
    v_cmp_gt_u32 vcc, 25, v27
    s_and_b64 s[74:75], s[74:75], vcc
    s_lshl_b32 s70, s64, 1
    v_add_u32 v19, s70, v19
    v_mul_u32_u24 v19, %d, v19
    v_add_u32 v24, v24, v19
    v_add_u32 v25, v25, v19
    v_mov_b32 v27, 0x40000000
    v_cndmask_b32 v24, v27, v24, s[74:75]
    v_cndmask_b32 v25, v27, v25, s[74:75]
    s_mul_i32 s70, s3, %d
    s_add_u32 s70, s70, 0x%x
    ''' % (KVP_REC, 32 * KVP_REC, WS_KVP))
    R = 32
    for rb in range(4):
        a('buffer_load_dwordx4 %s, v24, %s, s70 offen sc1' % (vr(R + 8 * rb, 4), sr(S_SWS, 4)))
        a('buffer_load_dwordx4 %s, v25, %s, s70 offen sc1' % (vr(R + 8 * rb + 4, 4), sr(S_SWS, 4)))
        if rb < 3:
            a('s_add_u32 s70, s70, %d' % (8 * KVP_REC))
    a('''
    s_lshl_b32 s70, s15, 10
    s_add_u32 s70, s70, 0x%x
    s_lshl_b32 s71, s3, 11
    s_add_u32 s71, s71, 1024
    v_add_u32 v2, s71, v3
    s_waitcnt vmcnt(0)
    ''' % WS_KVF)
    for st in (2, 1):
        for i in range(st):
            for h in range(0, 8, 2):
                a('v_pk_add_f32 %s, %s, %s' % (vr(R + 8 * i + h, 2), vr(R + 8 * i + h, 2), vr(R + 8 * (i + st) + h, 2)))
    a('ds_write_b128 v2, %s' % vr(R, 4))
    a('ds_write_b128 v2, %s offset:1024' % vr(R + 4, 4))
    a('s_waitcnt lgkmcnt(0)')
    a('s_barrier')
    a('s_cmp_lg_u32 s3, 0')
    a('s_cbranch_scc1 K1_KVEXIT')
    for w in range(1, 4):
        a('ds_read_b128 %s, v2 offset:%d' % (vr(R + 8 * w, 4), 2048 * w))
        a('ds_read_b128 %s, v2 offset:%d' % (vr(R + 8 * w + 4, 4), 2048 * w + 1024))
    a('s_waitcnt lgkmcnt(0)')
    for st in (2, 1):
        for i in range(st):
            for h in range(0, 8, 2):
                a('v_pk_add_f32 %s, %s, %s' % (vr(R + 8 * i + h, 2), vr(R + 8 * i + h, 2), vr(R + 8 * (i + st) + h, 2)))
    for j in range(8):
        a('v_subrev_u32 v27, v26, %d' % j if False else 'v_sub_u32 v27, %d, v26' % j)
        a('v_cmp_gt_u32 vcc, 18, v27')
        a('s_and_b64 vcc, vcc, s[74:75]')
        a('s_nop 0')
        a('v_cndmask_b32 v%d, 0, v%d, vcc' % (R + j, R + j))
    for k in range(4):
        a('v_cvt_pk_bf16_f32 v%d, v%d, v%d' % (28 + k, R + 2 * k, R + 2 * k + 1))
    a('buffer_store_dwordx4 v[28:31], v3, %s, s70 offen' % sr(S_SWS, 4))


def gemm_main(a, qtype):
    vm = Cnt(a, 'vmcnt', 63)
    lg = Cnt(a, 'lgkmcnt', 15)
    side = []
    wcount = {}
    xcount = {}

    def dma_ops(c):
        if NOMEM or NOW: return []
        slot = (c % 4) * SLOT
        ops = []
        def one(i):
            a('s_add_u32 m0, s8, 0x%x' % (slot + i * 1024))
            a('s_mov_b32 s10, 0x%x' % (c * 64 * 3456))
            a('buffer_load_dwordx4 v%d, %s, s10 offen lds' % (V_DMA + i, sr(S_SW, 4)))
            vm.issue(('W', c)); wcount[c] = wcount.get(c, 0) + 1
        def last():
            a('s_add_u32 m0, s9, 0x%x' % (slot + 16384))
            a('s_mov_b32 exec_hi, 0')
            a('buffer_load_dwordx4 v%d, %s, s10 offen lds' % (V_DMA + 4, sr(S_SW, 4)))
            a('s_mov_b32 exec_hi, -1')
            vm.issue(('W', c)); wcount[c] = wcount.get(c, 0) + 1
        for i in range(4):
            ops.append(lambda i=i: one(i))
        ops.append(last)
        return ops

    def x_ops(c):
        if NOMEM or NOX: return []
        r = V_XR + (c % 5) * 16
        def one(q):
            a('buffer_load_dwordx4 %s, v%d, %s, s%d offen offset:%d' % (vr(r + 4 * q, 4), V_XOFF, sr(S_SX, 4), 64 + q, c * 128))
            vm.issue(('X', c)); xcount[c] = xcount.get(c, 0) + 1
        return [lambda q=q: one(q) for q in range(4)]

    def flush(tagc=None):
        while side:
            side.pop(0)()

    def xstage(c):
        if NOXS: return
        while not NOMEM and not NOX and c >= 2 and xcount.get(c, 0) < 4:
            side.pop(0)()
        vm.wait(('X', c))
        r = V_XR + (c % 5) * 16
        for rt in range(2):
            for q in range(2):
                a('ds_write_b128 v%d, %s offset:%d' % (V_SW, vr(r + 4 * (2 * rt + q), 4), 1024 * q))
                lg.issue(('XW', c))
            for kk in range(2):
                a('ds_read_b128 %s, v%d' % (vr(V_AF + (c % 2) * 16 + (kk * 2 + rt) * 4, 4), V_SR0 + kk))
                lg.issue(('A', c))

    def bread(k, j):
        c, kk = k // 2, k % 2
        r = V_B + ((k * 9 + j) % 10) * 4
        for hh in range(2):
            off = (c % 2) * SLOT + (8 * hh + 32 * kk) * 288 + 32 * j
            a('ds_read_b64_tr_b16 %s, v%d offset:%d' % (vr(r + 2 * hh, 2), V_TR if (c % 4) < 2 else V_TR2, off))
            lg.issue(('B', k, j))

    for c in range(PRO):
        for op in dma_ops(c): op()
        if c >= 2:
            for op in x_ops(c): op()
    if not S3: a.stamp(1)
    vm.ops = [('X', 0)] * 4 + [('X', 1)] * 4 + vm.ops
    xstage(0)
    vm.wait(('W', 0))
    a('s_barrier')
    if not S3: a.stamp(2)
    for c in range(PRO, 4):
        side.extend(dma_ops(c)); side.extend(x_ops(c))
    side.extend(x_ops(4)); side.extend(x_ops(5))
    wq = set(range(4)); xq = set(range(6))
    for j in range(9):
        bread(0, j)
    for k in range(18):
        c, kk = k // 2, k % 2
        if kk == 1 and c + 1 <= 8:
            while not NOMEM and not NOW and wcount.get(c + 1, 0) < 5:
                side.pop(0)()
            vm.wait(('W', c + 1))
            if not NOBAR: a('s_barrier')
            if c >= 1 and c + 3 <= 8:
                side.extend(dma_ops(c + 3))
        if S3:
            if k % 3 == 0 and k: a.stamp(k // 3)
        else:
            if k == 6: a.stamp(3)
            if k == 12: a.stamp(4)
        lg.wait(('A', c))
        for j in range(9):
            if j % 3 == 0:
                lg.wait(('B', k, j + 2))
            rb = V_B + ((k * 9 + j) % 10) * 4
            for rt in range(2):
                ra = V_AF + (c % 2) * 16 + (kk * 2 + rt) * 4
                acc = V_ACC + (rt * 9 + j) * 4
                cin = '0' if k == 0 else vr(acc, 4)
                if qtype:
                    a('v_mfma_f32_16x16x32_bf16 %s, %s, %s, %s' % (vr(acc, 4), vr(rb, 4), vr(ra, 4), cin))
                else:
                    a('v_mfma_f32_16x16x32_bf16 %s, %s, %s, %s' % (vr(acc, 4), vr(ra, 4), vr(rb, 4), cin))
            if k + 1 < 18:
                bread(k + 1, j)
            if side:
                side.pop(0)()
            if kk == 0 and j == 4 and c + 1 <= 8:
                xstage(c + 1)
                if c + 6 <= 8:
                    side.extend(x_ops(c + 6))
    assert not side
    a.stamp(6 if S3 else 5)
    a.nop(10)


def gemm_part(a):
    a.label('K1_GEMM')
    a('s_setprio %d' % GPRIO)
    a('''
    s_and_b32 s4, s97, 7
    s_lshr_b32 s5, s97, 3
    s_and_b32 s6, s4, 3
    s_lshl_b32 s6, s6, 2
    s_and_b32 s7, s5, 3
    s_add_u32 s6, s6, s7
    s_lshr_b32 s4, s4, 2
    s_mul_i32 s4, s4, 6
    s_lshr_b32 s5, s5, 2
    s_add_u32 s7, s4, s5
    ''')
    a('''
    s_mul_i32 s4, s7, 11
    s_lshr_b32 s4, s4, 5
    s_mul_i32 s5, s4, 3
    s_sub_u32 s5, s7, s5
    s_sub_u32 s11, s7, s4
    s_sub_u32 s11, s11, 1
    ''')
    a('''
    s_mul_i32 s12, s4, 288
    s_mul_i32 s13, s11, 144
    s_add_u32 s13, s13, 1152
    s_cmp_eq_u32 s5, 0
    s_cselect_b32 s12, s12, s13
    s_cselect_b32 s13, 0, 1008
    s_lshl_b32 s8, s3, 12
    s_lshl_b32 s9, s3, 9
    ''')
    a('''
    v_and_b32 v10, 15, v1
    v_lshrrev_b32 v11, 4, v1
    ''')
    a('''
    s_lshl_b32 s14, s6, 7
    s_lshl_b32 s15, s3, 5
    s_add_u32 s14, s14, s15
    v_lshrrev_b32 v13, 3, v1
    v_and_b32 v14, 7, v1
    v_add_u32 v12, s14, v13
    v_mul_u32_u24 v12, 1152, v12
    v_lshl_add_u32 v2, v14, 4, v12
    s_mov_b32 s64, 0
    s_mov_b32 s65, 9216
    s_mov_b32 s66, 18432
    s_mov_b32 s67, 27648
    s_lshl_b32 s15, s3, 11
    s_add_u32 s15, s15, %d
    v_xor_b32 v14, v14, v13
    v_lshlrev_b32 v14, 4, v14
    v_lshl_add_u32 v14, v13, 7, v14
    v_add_u32 v3, s15, v14
    v_and_b32 v13, 7, v10
    v_xor_b32 v13, v13, v11
    v_lshlrev_b32 v14, 7, v10
    v_add_u32 v14, s15, v14
    v_lshl_add_u32 v241, v13, 4, v14
    v_xor_b32 v13, 4, v13
    v_lshl_add_u32 v242, v13, 4, v14
    ''' % SCR)
    a('s_waitcnt lgkmcnt(0)')
    srd(a, S_SX, P_X, 2048 * 576 * 2)
    if not NOMEM:
        for c in range(2):
            for q in range(4):
                a('buffer_load_dwordx4 %s, v%d, %s, s%d offen offset:%d' % (vr(V_XR + c * 16 + 4 * q, 4), V_XOFF, sr(S_SX, 4), 64 + q, c * 128))
    def dma_addr(dst):
        a('''
        v_and_b32 v12, 0x33, v13
        v_and_b32 v15, 4, v13
        v_lshl_or_b32 v12, v15, 1, v12
        v_bfe_u32 v15, v13, 3, 1
        v_lshl_or_b32 v12, v15, 2, v12
        v_cmp_le_u32 vcc, 9, v14
        v_mul_u32_u24 v12, 3456, v12
        v_lshl_add_u32 v12, v14, 4, v12
        v_cndmask_b32 v15, v244, v245, vcc
        v_add_u32 v%d, v12, v15
        ''' % dst)
    a('''
    v_mov_b32 v244, s12
    s_add_u32 s15, s12, s13
    v_mov_b32 v245, s15
    s_lshl_b32 s15, s3, 8
    v_add_u32 v12, s15, v1
    v_mul_u32_u24 v13, 3641, v12
    v_lshrrev_b32 v13, 16, v13
    v_mul_u32_u24 v14, 18, v13
    v_sub_u32 v14, v12, v14
    ''')
    for i in range(4):
        dma_addr(V_DMA + i)
        if i < 3:
            a('''
            v_add_u32 v14, 10, v14
            v_cmp_le_u32 vcc, 18, v14
            v_subrev_u32 v15, 18, v14
            v_add_u32 v13, 3, v13
            v_cndmask_b32 v14, v14, v15, vcc
            v_addc_co_u32 v13, vcc, 0, v13, vcc
            ''')
    a('''
    s_lshl_b32 s15, s3, 5
    s_add_u32 s15, s15, 1024
    v_add_u32 v12, s15, v1
    v_mul_u32_u24 v13, 3641, v12
    v_lshrrev_b32 v13, 16, v13
    v_mul_u32_u24 v14, 18, v13
    v_sub_u32 v14, v12, v14
    ''')
    dma_addr(V_DMA + 4)
    a('''
    v_lshrrev_b32 v12, 2, v10
    v_and_b32 v13, 1, v11
    v_lshl_add_u32 v12, v13, 2, v12
    v_lshrrev_b32 v13, 1, v11
    v_lshl_add_u32 v12, v13, 4, v12
    v_mul_u32_u24 v12, 288, v12
    v_and_b32 v13, 3, v1
    v_lshl_add_u32 v9, v13, 3, v12
    v_add_u32 v240, 36864, v9
    ''')
    srd(a, S_SW, P_W, 576 * 1728 * 2)
    srd(a, S_SWS, P_WS, WS_END)
    a('s_mov_b32 s60, 0x%x' % f32bits(LOG2E))
    a('s_mov_b32 s61, 0x%x' % f32bits(LOG2E))
    a('s_mov_b32 s62, 0x%x' % f32bits(1e-6))
    a('s_mov_b32 s63, 0x%x' % f32bits(1e-6))
    a('s_cmp_eq_u32 s5, 0')
    a('s_cbranch_scc0 K1_GEMM_KV')

    if QPRIO >= 0: a('s_setprio %d' % QPRIO)
    gemm_main(a, True)
    a('s_setprio 0')
    P = lambda rt, j: V_A + (rt * 9 + j) * 2
    allp = []
    for rt in range(2):
        for j in range(9):
            acc = V_ACC + (rt * 9 + j) * 4
            allp.append((acc, acc + 1, P(rt, j)))
            allp.append((acc + 2, acc + 3, P(rt, j) + 1))
    RS = 304
    a('''
    s_mul_i32 s15, s3, 9728
    v_mul_u32_u24 v12, %d, v10
    v_lshl_add_u32 v12, v11, 3, v12
    v_add_u32 v12, s15, v12
    s_mul_i32 s64, s14, 1152
    s_add_u32 s64, s64, s12
    s_barrier
    ''' % RS)
    a('v_mov_b32 v%d, -1' % V_PMIN)
    for b in range(0, 36, 6):
        phi_batch(a, allp[b:b + 6], V_T, 60, 62)
    phi_fix(a, [d for (x, y, d) in allp], V_T, 62, 'K1_QFIX')
    for t in range(18):
        rt, j = t // 9, t % 9
        a('ds_write_b64 v12, %s offset:%d' % (vr(P(rt, j), 2), rt * 16 * RS + 32 * j))
    if not S3: a.stamp(6)
    for i in range(9):
        a('''
        v_add_u32 v13, %d, v1
        v_mul_u32_u24 v14, 3641, v13
        v_lshrrev_b32 v14, 16, v14
        v_mul_u32_u24 v15, 18, v14
        v_sub_u32 v15, v13, v15
        v_lshlrev_b32 v15, 4, v15
        v_mul_u32_u24 v13, %d, v14
        v_add3_u32 v13, v13, v15, s15
        v_mul_u32_u24 v14, 1152, v14
        v_add_u32 v%d, v14, v15
        ds_read_b128 %s, v13
        ''' % (64 * i, RS, V_T + i, vr(V_ACC + 4 * i, 4)))
    for i in range(9):
        a('s_waitcnt lgkmcnt(%d)' % (8 - i))
        a('buffer_store_dwordx4 %s, v%d, %s, s64 offen' % (vr(V_ACC + 4 * i, 4), V_T + i, sr(S_SWS, 4)))
    a.endpgm()

    a.label('K1_GEMM_KV')
    gemm_main(a, False)
    a('''
    s_lshl_b32 s98, s6, 1
    s_and_b32 s99, s11, 1
    s_add_u32 s98, s98, s99
    s_lshr_b32 s99, s11, 1
    s_lshl_b32 s99, s99, 5
    s_add_u32 s99, s99, s98
    s_lshl_b32 s99, s99, 7
    s_add_u32 s99, s99, 0x%x
    v_mov_b32 v12, 0
    s_mov_b64 exec, 1
    buffer_store_dword v12, v12, %s, s99 offen sc1
    s_mov_b64 exec, -1
    ''' % (WS_GO3, sr(S_SWS, 4)))
    O = lambda j: V_A + 4 * j
    pk = []
    for j in range(5):
        for rt in range(2):
            acc = V_ACC + (rt * 9 + j) * 4
            pk.append((acc, acc + 1, O(j) + 2 * rt))
            pk.append((acc + 2, acc + 3, O(j) + 2 * rt + 1))
    a('v_mov_b32 v%d, -1' % V_PMIN)
    phi_batch(a, pk[0:8], V_T, 60, 62)
    phi_batch(a, pk[8:16], V_T, 60, 62)
    RAW = V_A + 40
    phi_batch(a, pk[16:20], V_T, 60, 62, keep_raw=[RAW + i for i in range(4)])
    phi_fix(a, [d for (x, y, d) in pk], V_T, 62, 'K1_KFIX')
    a('v_cmp_gt_u32 vcc, 8, v10')
    for j in range(5, 9):
        for rt in range(2):
            acc = V_ACC + (rt * 9 + j) * 4
            a('v_cvt_pk_bf16_f32 v%d, v%d, v%d' % (O(j) + 2 * rt, acc, acc + 1))
            a('v_cvt_pk_bf16_f32 v%d, v%d, v%d' % (O(j) + 2 * rt + 1, acc + 2, acc + 3))
    for i in range(4):
        a('v_cndmask_b32 v%d, v%d, v%d, vcc' % (O(4) + i, RAW + i, O(4) + i))
    a.nop(2)
    pairs = PAIRS
    KV = lambda p: V_ACC + 4 * p
    for p, (ta, tb) in enumerate(pairs):
        a('v_mfma_f32_16x16x32_bf16 %s, %s, %s, 0' % (vr(KV(p), 4), vr(O(ta), 4), vr(O(tb), 4)))
    a('s_mov_b32 s64, 0x3f803f80')
    Z = V_T
    for t in range(5):
        a('v_dot2_f32_bf16 v%d, v%d, s64, 0' % (Z + t, O(t)))
    for i in range(1, 4):
        for t in range(5):
            a('v_dot2_f32_bf16 v%d, v%d, s64, v%d' % (Z + t, O(t) + i, Z + t))
    if not S3: a.stamp(6)
    a('s_barrier')
    a('''
    s_lshl_b32 s15, s3, 10
    v_lshlrev_b32 v12, 4, v1
    v_add_u32 v13, s15, v12
    ''')
    for p in range(13):
        a('ds_write_b128 v13, %s offset:%d' % (vr(KV(p), 4), p * 4096))
    a('''
    s_lshl_b32 s15, s3, 2
    v_add_u32 v14, s15, v11
    v_mul_u32_u24 v14, 320, v14
    v_lshl_add_u32 v14, v10, 2, v14
    ''')
    for t in range(5):
        a('ds_write_b32 v14, v%d offset:%d' % (Z + t, 53248 + 64 * t))
    a('s_waitcnt lgkmcnt(0)')
    a('s_barrier')
    a('s_lshl_b32 s68, s6, 3')
    a('s_add_u32 s68, s68, s11')
    a('s_mul_i32 s68, s68, %d' % KVP_REC)
    a('s_add_u32 s68, s68, 0x%x' % WS_KVP)
    a('s_lshl_b32 s15, s3, 12')
    a('v_add_u32 v13, s15, v12')
    a('s_lshl_b32 s15, s3, 10')
    a('v_add_u32 v14, s15, v12')
    done = a.newlabel('K1_KVZ')
    for it in range(3):
        R = V_A + 16 * it
        for w in range(4):
            a('ds_read_b128 %s, v13 offset:%d' % (vr(R + 4 * w, 4), it * 16384 + w * 1024))
    def red_store(it):
        R = V_A + 16 * it
        a('v_pk_add_f32 %s, %s, %s' % (vr(R, 2), vr(R, 2), vr(R + 4, 2)))
        a('v_pk_add_f32 %s, %s, %s' % (vr(R + 2, 2), vr(R + 2, 2), vr(R + 6, 2)))
        a('v_pk_add_f32 %s, %s, %s' % (vr(R + 8, 2), vr(R + 8, 2), vr(R + 12, 2)))
        a('v_pk_add_f32 %s, %s, %s' % (vr(R + 10, 2), vr(R + 10, 2), vr(R + 14, 2)))
        a('v_pk_add_f32 %s, %s, %s' % (vr(R, 2), vr(R, 2), vr(R + 8, 2)))
        a('v_pk_add_f32 %s, %s, %s' % (vr(R + 2, 2), vr(R + 2, 2), vr(R + 10, 2)))
        a('s_add_u32 s69, s68, %d' % (4096 * it))
        a('buffer_store_dwordx4 %s, v14, %s, s69 offen sc1' % (vr(R, 4), sr(S_SWS, 4)))
    for it in range(3):
        a('s_waitcnt lgkmcnt(%d)' % (8 - 4 * it))
        red_store(it)
    a('s_cmp_lg_u32 s3, 0')
    a('s_cbranch_scc1 %s' % done)
    for w in range(4):
        a('ds_read_b128 %s, v13 offset:%d' % (vr(V_A + 48 + 4 * w, 4), 3 * 16384 + w * 1024))
    a('s_waitcnt lgkmcnt(0)')
    red_store(3)
    a('s_branch K1_KVFIN')
    a.label(done)
    a('s_cmp_lt_u32 s3, 2')
    fin = a.newlabel('K1_KVEND')
    a('s_cbranch_scc1 %s' % fin)
    a('''
    v_subrev_u32 v14, 128, v0
    v_cmp_gt_u32 vcc, 80, v14
    s_and_saveexec_b64 s[74:75], vcc
    s_cbranch_execz %s
    v_lshlrev_b32 v15, 2, v14
    ''' % fin)
    for i in range(16):
        a('ds_read_b32 v%d, v15 offset:%d' % (V_T + i, 53248 + 320 * i))
    a('s_add_u32 s69, s68, 13312')
    a('s_waitcnt lgkmcnt(0)')
    for st in (8, 4, 2, 1):
        for i in range(st):
            a('v_add_f32 v%d, v%d, v%d' % (V_T + i, V_T + i, V_T + i + st))
    a('buffer_store_dword v%d, v15, %s, s69 offen sc1' % (V_T, sr(S_SWS, 4)))
    a.label(fin)
    a.label('K1_KVFIN')
    srd(a, 48, P_DBG, 256)
    a('''
    s_mov_b64 exec, -1
    s_waitcnt vmcnt(0)
    s_barrier
    v_mov_b32 v3, 0
    s_cmp_lg_u32 s3, 0
    s_cbranch_scc1 K1_KVW
    v_mov_b32 v2, 1
    s_lshr_b32 s12, s11, 1
    s_lshl_b32 s12, s12, 4
    s_add_u32 s12, s12, 160
    s_mov_b64 exec, 1
    buffer_atomic_add v2, v3, s[48:51], s12 offen sc0 sc1
    s_waitcnt vmcnt(0)
    v_readfirstlane_b32 s12, v2
    s_mov_b64 exec, -1
    s_cmp_lg_u32 s12, 31
    s_cbranch_scc1 K1_KVP
    v_mov_b32 v2, 1
    v_lshlrev_b32 v4, 7, v1
    s_lshr_b32 s12, s11, 1
    s_lshl_b32 s12, s12, 12
    s_add_u32 s12, s12, 0x%x
    s_mov_b32 exec_hi, 0
    buffer_store_dword v2, v4, %s, s12 offen sc1
    s_mov_b32 exec_hi, -1
    s_branch K1_KVW
    ''' % (WS_GO3, sr(S_SWS, 4)))
    a.label('K1_KVP')
    a('''
    s_cmp_ge_u32 s98, 22
    s_cbranch_scc1 K1_KVEXIT
    s_mov_b32 s72, 0
    s_mov_b64 exec, 1
    ''')
    a.label('K1_KVPL')
    a('''
    buffer_load_dword v2, v3, %s, s99 offen sc1
    s_add_u32 s72, s72, 1
    s_waitcnt vmcnt(0)
    v_readfirstlane_b32 s12, v2
    s_cmp_eq_u32 s12, 1
    s_cbranch_scc1 K1_KVW
    s_cmp_gt_u32 s72, 0x8000
    s_cbranch_scc1 K1_KVW
    s_sleep 2
    s_branch K1_KVPL
    ''' % sr(S_SWS, 4))
    a.label('K1_KVW')
    a('''
    s_mov_b64 exec, -1
    s_cmp_ge_u32 s98, 22
    s_cbranch_scc1 K1_KVEXIT
    s_barrier
    v_lshlrev_b32 v3, 4, v1
    s_lshr_b32 s12, s11, 1
    s_mul_i32 s12, s12, 22
    s_add_u32 s15, s12, s98
    ''')
    reduce_task(a)
    a.label('K1_KVEXIT')
    a.endpgm()


KG_ROW = 272
KG_LO = 32 * KG_ROW
KG_WAVE = KG_LO + 21 * KG_ROW + 16 * 0
KLB = lambda q: 4608 * q
RA = 9216
XTL = RA + 4 * KG_WAVE
CSZ = 4160
UCB = lambda q: RA + 4 * CSZ * q
L_RED = RA + 8 * CSZ


def cmul(a, d, x, y, t):
    a('v_pk_mul_f32 %s, %s, %s op_sel:[1,1] op_sel_hi:[1,0]' % (vr(t, 2), vr(x, 2), vr(y, 2)))
    a('v_pk_fma_f32 %s, %s, %s, %s op_sel:[0,0,0] op_sel_hi:[0,1,1] neg_lo:[0,0,1]' % (vr(d, 2), vr(x, 2), vr(y, 2), vr(t, 2)))


def split_write(a, rows, tmp, vaddr, s_c1, s_c2, base=0):
    for i, (r, p) in enumerate(rows):
        a('v_cvt_pk_f16_f32 v%d, v%d, v%d' % (tmp + i, p, p + 1))
    for i, (r, p) in enumerate(rows):
        a('ds_write_b32 v%d, v%d offset:%d' % (vaddr, tmp + i, base + r * KG_ROW))


def deval(a, items, L, tmp):
    for i, (A, d) in enumerate(items):
        a('v_mul_f32 v%d, 0x%x, v%d' % (tmp + 4 * i, f32bits(float(A)), L))
        a('v_mul_f32 v%d, 0x%x, v%d' % (tmp + 4 * i + 1, f32bits(float(A)), L + 1))
    for i, (A, d) in enumerate(items):
        a('v_fract_f32 v%d, v%d' % (tmp + 4 * i + 1, tmp + 4 * i + 1))
        a('v_exp_f32 v%d, v%d' % (tmp + 4 * i, tmp + 4 * i))
    for i, (A, d) in enumerate(items):
        a('v_cos_f32 v%d, v%d' % (tmp + 4 * i + 2, tmp + 4 * i + 1))
        a('v_sin_f32 v%d, v%d' % (tmp + 4 * i + 3, tmp + 4 * i + 1))
    a.nop(1)
    for i, (A, d) in enumerate(items):
        a('v_pk_mul_f32 %s, %s, %s op_sel:[0,0] op_sel_hi:[0,1]' % (vr(d, 2), vr(tmp + 4 * i, 2), vr(tmp + 4 * i + 2, 2)))


def prep_part(a):
    a.label('K1_PREP')
    if NOPREP: a('s_endpgm')
    a('s_setprio %d' % IPRIO)
    if TOUCH:
        a('''
        s_and_b32 s64, s2, 7
        s_lshr_b32 s65, s2, 3
        s_lshl_b32 s65, s65, 2
        s_add_u32 s65, s65, s3
        s_lshl_b32 s67, s65, 6
        v_add_u32 v28, s67, v1
        v_mul_u32_u24 v29, 34953, v28
        v_lshrrev_b32 v29, 19, v29
        v_mul_u32_u24 v30, 15, v29
        v_sub_u32 v30, v28, v30
        v_mul_u32_u24 v31, 52, v30
        v_lshrrev_b32 v31, 8, v31
        v_mul_u32_u24 v32, 5, v31
        v_sub_u32 v32, v30, v32
        v_mul_u32_u24 v29, 3456, v29
        v_mul_u32_u24 v31, 1152, v31
        v_add_u32 v29, v29, v31
        v_lshl_add_u32 v29, v32, 7, v29
        s_lshr_b32 s66, s64, 2
        s_lshl_b32 s66, s66, 9
        s_and_b32 s67, s64, 3
        s_mul_i32 s67, s67, 589824
        s_lshl_b32 s65, s65, 12
        s_add_u32 s67, s67, s65
        v_lshlrev_b32 v28, 7, v1
        s_waitcnt lgkmcnt(0)
        ''')
        srd(a, 48, P_X, 2048 * 576 * 2)
        srd(a, 52, P_W, 576 * 1728 * 2)
    a('s_mov_b32 s4, s2')
    a('''
    s_mul_i32 s5, s4, 7282
    s_lshr_b32 s5, s5, 16
    s_mul_i32 s6, s5, 9
    s_sub_u32 s6, s4, s6
    s_lshr_b32 s7, s3, 1
    s_lshl_b32 s78, s6, 5
    s_add_u32 s78, s78, s5
    s_lshl_b32 s8, s78, 1
    s_add_u32 s8, s8, s7
    s_and_b32 s9, s3, 1
    s_mul_i32 s10, s3, %d
    s_add_u32 s10, s10, %d
    v_and_b32 v10, 15, v1
    v_lshrrev_b32 v11, 4, v1
    ''' % (KG_WAVE, RA))
    a('''
    s_lshl_b32 s11, s8, 8
    s_lshl_b32 s12, s9, 7
    s_add_u32 s11, s11, s12
    v_lshl_add_u32 v2, v1, 1, s11
    s_lshl_b32 s12, s78, 2
    s_waitcnt lgkmcnt(0)
    s_load_dword s13, s[36:37], s12
    s_load_dword s97, s[38:39], s12
    global_load_ushort v12, v2, s[24:25]
    global_load_ushort v13, v2, s[26:27]
    global_load_ushort v14, v2, s[28:29]
    global_load_ushort v15, v2, s[30:31]
    global_load_ushort v16, v2, s[32:33]
    global_load_ushort v17, v2, s[34:35]
    ''')
    a('''
    s_lshl_b32 s11, s5, 6
    s_lshl_b32 s12, s3, 4
    s_add_u32 s11, s11, s12
    v_lshrrev_b32 v3, 3, v1
    v_add_u32 v3, s11, v3
    v_mul_u32_u24 v3, 1152, v3
    v_and_b32 v4, 7, v1
    v_lshl_add_u32 v3, v4, 4, v3
    s_lshl_b32 s11, s6, 7
    v_add_u32 v3, s11, v3
    v_add_u32 v4, 9216, v3
    global_load_dwordx4 v[20:23], v3, s[16:17]
    global_load_dwordx4 v[24:27], v4, s[16:17]
    ''')
    GX, GW = 176, 212
    nog = a.newlabel('K1_NOG')
    a('''
    s_cmp_eq_u32 s3, 3
    s_cselect_b32 s14, 1, 0
    s_cmp_lt_u32 s4, 256
    s_cselect_b32 s14, s14, 0
    s_cmp_eq_u32 s14, 0
    s_cbranch_scc1 %s
    s_lshl_b32 s11, s4, 3
    v_lshrrev_b32 v4, 3, v1
    v_add_u32 v4, s11, v4
    v_mul_u32_u24 v5, 1152, v4
    v_and_b32 v6, 7, v1
    v_lshlrev_b32 v6, 4, v6
    v_add_u32 v5, v5, v6
    ''' % nog)
    for i in range(9):
        a('global_load_dwordx4 %s, v5, s[16:17] offset:%d' % (vr(GX + 4 * i, 4), 128 * i))
        a('global_load_dwordx4 %s, v6, s[40:41] offset:%d' % (vr(GW + 4 * i, 4), 128 * i))
    a.label(nog)
    if TOUCH:
        a('''
        buffer_load_dword v78, v29, s[52:55], s66 offen
        s_mov_b32 exec_hi, 0
        buffer_load_dword v79, v28, s[48:51], s67 offen
        s_mov_b32 exec_hi, -1
        ''')
    srd(a, S_SWS, P_WS, WS_END)
    a('s_mov_b32 s60, 0x0000bf80')
    a('s_mov_b32 s61, 0xbf800000')
    a.stamp(1)
    a('s_waitcnt vmcnt(%d) lgkmcnt(0)' % (2 if TOUCH else 0))
    a.stamp(2)
    a('''
    s_lshl_b32 s11, s3, 11
    s_add_u32 s11, s11, %d
    v_lshl_add_u32 v7, v1, 4, s11
    ds_write_b128 v7, v[20:23]
    ds_write_b128 v7, v[24:27] offset:1024
    v_lshrrev_b32 v8, 2, v10
    v_lshl_add_u32 v8, v11, 4, v8
    v_lshlrev_b32 v8, 7, v8
    v_and_b32 v9, 3, v1
    v_lshl_add_u32 v8, v9, 3, v8
    s_lshl_b32 s11, s3, 5
    s_add_u32 s11, s11, %d
    v_add_u32 v8, s11, v8
    s_waitcnt lgkmcnt(0)
    s_barrier
    ds_read_b64_tr_b16 v[20:21], v8
    ds_read_b64_tr_b16 v[22:23], v8 offset:512
    ds_read_b64_tr_b16 v[24:25], v8 offset:1024
    ds_read_b64_tr_b16 v[26:27], v8 offset:1536
    v_mul_u32_u24 v9, 144, v10
    v_lshl_add_u32 v9, v11, 5, v9
    v_add_u32 v9, s10, v9
    v_lshrrev_b32 v7, 3, v1
    v_mul_u32_u24 v8, 144, v7
    v_and_b32 v6, 7, v1
    v_lshl_add_u32 v8, v6, 4, v8
    v_add_u32 v8, s10, v8
    s_lshl_b32 s11, s6, 6
    s_lshl_b32 s12, s3, 4
    s_add_u32 s11, s11, s12
    v_add_u32 v7, s11, v7
    v_mul_u32_u24 v7, 4352, v7
    v_lshl_add_u32 v6, v6, 4, v7
    s_lshl_b32 s15, s5, 7
    s_add_u32 s15, s15, 0x%x
    s_add_u32 s98, s15, 34816
    s_waitcnt lgkmcnt(0)
    ds_write_b128 v9, v[20:23]
    ds_write_b128 v9, v[24:27] offset:16
    ds_read_b128 v[248:251], v8
    ds_read_b128 v[252:255], v8 offset:1152
    ''' % (XTL, XTL, WS_XT))
    a('s_waitcnt lgkmcnt(0)')
    a('buffer_store_dwordx4 v[248:251], v6, %s, s15 offen sc1' % sr(S_SWS, 4))
    a('buffer_store_dwordx4 v[252:255], v6, %s, s98 offen sc1' % sr(S_SWS, 4))
    a('''
    s_lshl_b32 s11, s78, 7
    s_add_u32 s11, s11, 0x%x
    s_lshl_b32 s12, s4, 7
    s_add_u32 s12, s12, 0x%x
    s_cmp_eq_u32 s3, 0
    s_cselect_b32 s11, s11, s12
    v_mov_b32 v2, 0
    s_mov_b64 exec, 1
    buffer_store_dword v2, v2, %s, s11 offen sc1
    s_mov_b64 exec, -1
    ''' % (WS_GO1, WS_GO2, sr(S_SWS, 4)))
    a('s_setprio %d' % PPRIO)
    a('''
    s_lshl_b32 s12, s7, 4
    s_lshr_b32 s13, s13, s12
    s_lshl_b32 s13, s13, 16
    v_mov_b32 v18, s13
    v_mul_f32 v18, 0x%x, v18
    v_exp_f32 v18, v18
    v_lshlrev_b32 v12, 16, v12
    v_lshlrev_b32 v13, 16, v13
    v_cvt_pk_bf16_f32 v18, v18, v18
    v_lshlrev_b32 v14, 16, v14
    v_lshlrev_b32 v15, 16, v15
    v_lshlrev_b32 v18, 16, v18
    v_lshlrev_b32 v16, 16, v16
    v_lshlrev_b32 v17, 16, v17
    v_mul_f32 v12, v18, v12
    v_mul_f32 v13, v18, v13
    v_mul_f32 v14, v18, v14
    v_mul_f32 v15, v18, v15
    v_mul_f32 v28, 0x%x, v12
    v_mul_f32 v29, 0x%x, v13
    v_mov_b32 v30, v28
    v_sub_f32 v31, 0, v29
    ''' % (f32bits(LOG2E), f32bits(LOG2E), f32bits(1.0 / (2 * math.pi))))
    L, LC = 28, 30
    X0 = 32
    cmul(a, X0, 16, 14, 34)
    a('v_sub_f32 v%d, 0, v%d' % (X0 + 1, X0 + 1))
    a('v_max_f32_e64 v34, abs(v%d), abs(v%d)' % (X0, X0 + 1))
    for dpp in ('quad_perm:[1,0,3,2]', 'quad_perm:[2,3,0,1]', 'row_half_mirror', 'row_mirror'):
        a.nop(2)
        a('v_max_f32_dpp v34, v34, v34 %s row_mask:0xf bank_mask:0xf' % dpp)
    a.nop(1)
    a('''
    v_readlane_b32 s64, v34, 0
    v_readlane_b32 s65, v34, 16
    v_readlane_b32 s66, v34, 32
    v_readlane_b32 s67, v34, 48
    s_nop 3
    s_max_u32 s64, s64, s65
    s_max_u32 s66, s66, s67
    s_max_u32 s64, s64, s66
    s_lshr_b32 s64, s64, 23
    s_sub_u32 s64, 263, s64
    s_min_u32 s64, s64, 227
    s_max_u32 s64, s64, 27
    s_lshl_b32 s66, s64, 23
    s_mov_b32 s67, s66
    s_sub_u32 s99, 254, s64
    s_lshl_b32 s99, s99, 23
    v_pk_mul_f32 v[32:33], v[32:33], s[66:67]
    ''')
    a('v_lshl_add_u32 v7, v1, 2, s10')
    YB = 40
    Y = lambda b: YB + 2 * b
    TMP = 80
    T2 = 112
    OUT = 128
    deval(a, [(8, Y(1)), (16, Y(2)), (32, Y(4)), (64, Y(8)), (128, Y(16))], L, TMP)
    srd(a, 48, P_DBG, 256)
    nopub = a.newlabel('K1_NOPUB')
    a('''
    s_waitcnt vmcnt(0)
    s_barrier
    s_cmp_lg_u32 s3, 1
    s_cbranch_scc1 %s
    v_mov_b32 v2, 1
    v_mov_b32 v3, 0
    s_lshl_b32 s11, s6, 4
    s_mov_b64 exec, 1
    buffer_atomic_add v2, v3, s[48:51], s11 offen sc0 sc1
    s_waitcnt vmcnt(0)
    v_readfirstlane_b32 s11, v2
    s_mov_b64 exec, -1
    s_cmp_lg_u32 s11, 31
    s_cbranch_scc1 %s
    v_mov_b32 v2, 1
    v_lshlrev_b32 v3, 7, v1
    s_lshl_b32 s11, s6, 12
    s_add_u32 s11, s11, 0x%x
    s_mov_b32 exec_hi, 0
    buffer_store_dword v2, v3, %s, s11 offen sc1
    s_mov_b32 exec_hi, -1
    ''' % (nopub, nopub, WS_GO1, sr(S_SWS, 4)))
    a.label(nopub)
    a('s_setprio %d' % PPRIO)
    a('v_mov_b32 v%d, 0x3c00' % TMP)
    a('ds_write_b32 v7, v%d' % TMP)
    cmul(a, Y(3), Y(2), Y(1), T2)
    cmul(a, Y(5), Y(4), Y(1), T2 + 2)
    cmul(a, Y(6), Y(4), Y(2), T2 + 4)
    cmul(a, Y(9), Y(8), Y(1), T2 + 6)
    cmul(a, Y(10), Y(8), Y(2), T2 + 8)
    cmul(a, Y(12), Y(8), Y(4), T2 + 10)
    cmul(a, Y(7), Y(4), Y(3), T2)
    cmul(a, Y(11), Y(8), Y(3), T2 + 2)
    cmul(a, Y(13), Y(8), Y(5), T2 + 4)
    cmul(a, Y(14), Y(8), Y(6), T2 + 6)
    cmul(a, Y(15), Y(8), Y(7), T2 + 8)
    split_write(a, [(b, Y(b)) for b in range(1, 9)], TMP, 7, 60, 61)
    split_write(a, [(b, Y(b)) for b in range(9, 17)], TMP, 7, 60, 61)
    for b0 in (1, 9):
        bs = [b for b in range(b0, b0 + 8) if b <= 15]
        for i, b in enumerate(bs):
            cmul(a, OUT + 2 * i, Y(16), Y(b), T2 + 2 * i)
        split_write(a, [(16 + b, OUT + 2 * i) for i, b in enumerate(bs)], TMP, 7, 60, 61)
    a.stamp(3)
    a('''
    v_and_b32 v8, 31, v1
    v_mul_u32_u24 v8, %d, v8
    v_lshrrev_b32 v9, 5, v1
    v_lshl_add_u32 v8, v9, 4, v8
    v_add_u32 v8, s10, v8
    ''' % KG_ROW)
    BF = 112
    for k in range(8):
        a('ds_read_b128 %s, v8 offset:%d' % (vr(BF + 4 * k, 4), 32 * k))
    E = {1: 12, 2: 14, 4: 16, 256: 18, 512: 20, 1024: 22, 2048: 24}
    deval(a, [(A, r) for A, r in E.items()], LC, TMP)
    XR = lambda r: 36 + 2 * r
    def X(r): return X0 if r == 0 else XR(r)
    T3 = 2
    tp = [2, 4, 26, 34]
    seq = [(1, 0, 256), (2, 0, 512), (4, 0, 1024), (8, 0, 2048), (9, 0, 4), (13, 0, 2), (17, 0, 1),
           (3, 2, 256), (5, 1, 1024), (6, 2, 1024), (10, 1, 4), (11, 2, 4), (14, 1, 2), (15, 9, 2), (18, 13, 1), (19, 9, 1),
           (7, 3, 1024), (12, 3, 4), (16, 10, 2), (20, 15, 1)]
    for i, (r, src, A) in enumerate(seq):
        cmul(a, X(r), X(src), E[A], tp[i % 4])
    split_write(a, [(r, X(r)) for r in range(0, 21)], TMP, 7, 60, 61, base=KG_LO)
    a.stamp(4)
    AF = 144
    for k in range(8):
        a('ds_read_b128 %s, v8 offset:%d' % (vr(AF + 4 * k, 4), KG_LO + 32 * k))
    ACC = 80
    for k in range(8):
        a('s_waitcnt lgkmcnt(%d)' % (7 - k))
        cin = '0' if k == 0 else vr(ACC, 16)
        a('v_mfma_f32_32x32x16_f16 %s, %s, %s, %s' % (vr(ACC, 16), vr(AF + 4 * k, 4), vr(BF + 4 * k, 4), cin))
    a.nop(16)
    a.stamp(5)
    if TOUCH:
        srd(a, 52, P_WO, 576 * 576 * 2)
        a('''
        s_lshr_b32 s65, s2, 3
        s_lshl_b32 s65, s65, 2
        s_add_u32 s65, s65, s3
        s_mul_i32 s65, s65, 4608
        v_lshlrev_b32 v101, 7, v1
        s_mov_b32 exec_hi, 0xf
        buffer_load_dword v78, v101, s[52:55], s65 offen
        s_mov_b64 exec, -1
        ''')
    even = a.newlabel('K1_EVEN')
    a('s_mov_b32 s66, s99')
    a('s_mov_b32 s67, s99')
    for i in range(0, 12, 2):
        a('v_pk_mul_f32 %s, %s, s[66:67]' % (vr(ACC + i, 2), vr(ACC + i, 2)))
    a('v_lshlrev_b32 v9, 4, v1')
    a('s_cmp_eq_u32 s9, 0')
    a('s_cbranch_scc1 %s' % even)
    a('v_add_u32 v9, s10, v9')
    for i in range(3):
        a('ds_write_b128 v9, %s offset:%d' % (vr(ACC + 4 * i, 4), 1024 * i))
    conv_inputs(a, 'O')
    a('s_mov_b64 exec, -1')
    a('s_waitcnt lgkmcnt(0)')
    a('s_barrier')
    conv_loads(a)
    endl = a.newlabel('K1_PEND')
    nosel = a.newlabel('K1_NOSEL')
    zf = a.newlabel('K1_ZF')
    a('''
    s_cmp_lg_u32 s3, 1
    s_cbranch_scc1 %s
    s_cmp_gt_u32 s4, 9
    s_cbranch_scc1 %s
    s_cmp_eq_u32 s4, 9
    s_cbranch_scc1 %s
    s_lshl_b32 s11, s4, 4
    v_add_u32 v12, s11, v10
    v_mul_u32_u24 v12, 57, v12
    v_lshrrev_b32 v12, 10, v12
    v_lshrrev_b32 v13, 1, v12
    v_cmp_eq_u32 vcc, v13, v11
    v_and_b32 v13, 1, v12
    v_lshlrev_b32 v13, 4, v13
    v_mov_b32 v14, 0x3f80
    v_lshlrev_b32 v13, v13, v14
    v_cndmask_b32 v16, 0, v13, vcc
    v_mov_b32 v17, v16
    v_mov_b32 v18, v16
    v_mov_b32 v19, v16
    v_lshlrev_b32 v12, 4, v1
    s_lshl_b32 s11, s4, 10
    s_add_u32 s11, s11, 0x%x
    buffer_store_dwordx4 v[16:19], v12, %s, s11 offen
    s_branch %s
    ''' % (nosel, endl, zf, WS_SEL, sr(S_SWS, 4), endl))
    a.label(zf)
    a('''
    v_mov_b32 v16, 0
    v_mov_b32 v17, 0
    v_mov_b32 v18, 0
    v_mov_b32 v19, 0
    v_lshlrev_b32 v12, 4, v1
    s_mov_b32 s11, 0x%x
    buffer_store_dwordx4 v[16:19], v12, %s, s11 offen
    buffer_store_dwordx4 v[16:19], v12, %s, s11 offen offset:1024
    buffer_store_dwordx4 v[16:19], v12, %s, s11 offen offset:2048
    buffer_store_dwordx4 v[16:19], v12, %s, s11 offen offset:3072
    s_add_u32 s11, s11, 4096
    buffer_store_dwordx4 v[16:19], v12, %s, s11 offen
    s_branch %s
    ''' % ((WS_FLG,) + (sr(S_SWS, 4),) * 5 + (endl,)))
    a.label(nosel)
    a('s_cmp_eq_u32 s14, 0')
    a('s_cbranch_scc1 %s' % endl)
    a('s_mov_b32 s62, 0x3f803f80')
    a('v_mov_b32 v12, 0')
    a('v_mov_b32 v13, 0')
    for i in range(0, 36, 4):
        for k in range(4):
            a('v_and_b32 v%d, 0xffff, v%d' % (20 + 2 * k, GW + i + k))
            a('v_and_b32 v%d, 0xffff0000, v%d' % (21 + 2 * k, GW + i + k))
        for k in range(4):
            a('v_dot2_f32_bf16 v%d, v%d, v%d, 0' % (30 + 2 * k, GX + i + k, 20 + 2 * k))
            a('v_dot2_f32_bf16 v%d, v%d, v%d, 0' % (31 + 2 * k, GX + i + k, 21 + 2 * k))
        a.nop(3)
        for k in range(4):
            a('v_cvt_pk_bf16_f32 v%d, v%d, v%d' % (40 + k, 30 + 2 * k, 31 + 2 * k))
        a('v_dot2_f32_bf16 v12, v40, s62, v12')
        a('v_dot2_f32_bf16 v13, v41, s62, v13')
        a('v_dot2_f32_bf16 v12, v42, s62, v12')
        a('v_dot2_f32_bf16 v13, v43, s62, v13')
    a.nop(3)
    a('v_add_f32 v12, v12, v13')
    a.nop(2)
    a('v_add_f32_dpp v12, v12, v12 quad_perm:[1,0,3,2] row_mask:0xf bank_mask:0xf')
    a.nop(2)
    a('v_add_f32_dpp v12, v12, v12 quad_perm:[2,3,0,1] row_mask:0xf bank_mask:0xf')
    a.nop(2)
    a('v_add_f32_dpp v12, v12, v12 row_half_mirror row_mask:0xf bank_mask:0xf')
    a('''
    v_cvt_pk_bf16_f32 v12, v12, v12
    v_lshlrev_b32 v12, 16, v12
    v_mul_f32 v12, 0x%x, v12
    v_exp_f32 v12, v12
    s_nop 0
    v_add_f32 v12, 1.0, v12
    v_rcp_f32 v12, v12
    s_nop 0
    v_cvt_pk_bf16_f32 v12, v12, v12
    v_lshlrev_b32 v12, 16, v12
    v_lshrrev_b32 v13, 3, v1
    v_lshlrev_b32 v13, 2, v13
    s_lshl_b32 s11, s4, 5
    s_add_u32 s11, s11, 0x%x
    v_and_b32 v14, 7, v1
    v_cmp_eq_u32 vcc, 0, v14
    s_and_saveexec_b64 s[74:75], vcc
    buffer_store_dword v12, v13, %s, s11 offen
    ''' % (f32bits(-LOG2E), WS_G, sr(S_SWS, 4)))
    a('s_mov_b64 exec, -1')
    a.label(endl)
    a('s_branch K1_CONV')
    a.label(even)
    a('s_add_u32 s11, s10, %d' % KG_WAVE)
    a('v_add_u32 v9, s11, v9')
    a('s_barrier')
    for i in range(3):
        a('ds_read_b128 %s, v9 offset:%d' % (vr(12 + 4 * i, 4), 1024 * i))
    conv_loads(a)
    a('''
    s_mov_b32 s64, 1
    s_mov_b32 s65, -1
    s_mov_b32 s66, -1
    s_mov_b32 s67, 0
    s_waitcnt lgkmcnt(0)
    ''')
    for i in range(0, 12, 2):
        a('v_pk_add_f32 %s, %s, %s' % (vr(ACC + i, 2), vr(ACC + i, 2), vr(12 + i, 2)))
    a('v_cndmask_b32 v%d, 0, v%d, s[64:65]' % (ACC + 4, ACC + 4))
    for i in (9, 10, 11):
        a('v_cndmask_b32 v%d, 0, v%d, s[66:67]' % (ACC + i, ACC + i))
    a('v_max3_f32 v12, abs(v%d), abs(v%d), abs(v%d)' % (ACC, ACC + 1, ACC + 2))
    a('v_max3_f32 v13, abs(v%d), abs(v%d), abs(v%d)' % (ACC + 3, ACC + 4, ACC + 5))
    a('v_max3_f32 v14, abs(v%d), abs(v%d), abs(v%d)' % (ACC + 6, ACC + 7, ACC + 8))
    a('v_max3_f32 v15, abs(v%d), abs(v%d), abs(v%d)' % (ACC + 9, ACC + 10, ACC + 11))
    a('v_max3_f32 v12, v12, v13, v14')
    a('v_max_f32 v12, v12, v15')
    for dpp in ('quad_perm:[1,0,3,2]', 'quad_perm:[2,3,0,1]', 'row_half_mirror', 'row_mirror'):
        a.nop(2)
        a('v_max_f32_dpp v12, v12, v12 %s row_mask:0xf bank_mask:0xf' % dpp)
    a.nop(2)
    a('''
    v_readlane_b32 s64, v12, 0
    v_readlane_b32 s65, v12, 16
    v_readlane_b32 s66, v12, 32
    v_readlane_b32 s67, v12, 48
    s_nop 3
    s_max_u32 s64, s64, s65
    s_max_u32 s66, s66, s67
    s_max_u32 s64, s64, s66
    s_lshr_b32 s64, s64, 23
    s_sub_u32 s64, 268, s64
    s_min_u32 s64, s64, 254
    s_lshl_b32 s66, s64, 23
    s_mov_b32 s67, s66
    ''')
    for i in range(0, 12, 2):
        a('v_pk_mul_f32 %s, %s, s[66:67]' % (vr(ACC + i, 2), vr(ACC + i, 2)))
    for i in range(0, 12, 2):
        a('v_cvt_pk_f16_f32 v%d, v%d, v%d' % (12 + i // 2, ACC + i, ACC + i + 1))
    a('''
    v_and_b32 v8, 31, v1
    v_lshlrev_b32 v8, 1, v8
    v_lshrrev_b32 v9, 5, v1
    v_lshl_add_u32 v8, v9, 8, v8
    v_add_u32 v8, s10, v8
    s_mul_i32 s11, s7, 4608
    ''')
    for r in range(12):
        off = (8 * (r >> 2) + (r & 3)) * 64
        if r % 2 == 0:
            a('ds_write_b16 v8, v%d offset:%d' % (12 + r // 2, off))
        else:
            a('ds_write_b16_d16_hi v8, v%d offset:%d' % (12 + r // 2, off))
    V0, V0N, V4, V2, V6, V1, V3, V5, V7 = 0, 1, 288, 416, 480, 544, 576, 608, 640
    C0 = [V0, V1, V2, V3, V4, V5, V6, V7]
    C1 = [V0, V0, V2, V4, V4, V4, V6, V0N]
    a('v_lshl_add_u32 v8, v1, 1, s10')
    a('s_mov_b32 s66, -1')
    a('s_mov_b32 s67, 0')
    for e in range(8):
        if C0[e] == C1[e]:
            a('ds_read_u16 v%d, v8 offset:%d' % (20 + e, 2 * C0[e]))
        else:
            a('v_mov_b32 v9, %d' % (2 * C1[e]))
            a('v_mov_b32 v11, %d' % (2 * C0[e]))
            a('v_cndmask_b32 v9, v9, v11, s[66:67]')
            a('v_add_u32 v9, v9, v8')
            a('ds_read_u16 v%d, v9' % (20 + e))
    a('ds_read_u16 v28, v8 offset:%d' % (2 * (64 + V0)))
    a('ds_read_u16 v29, v8 offset:%d' % (2 * (64 + V4)))
    a('ds_read_u16 v30, v8 offset:%d' % (2 * (64 + V0N)))
    for rd in (2, 3):
        a('ds_read_u16 v%d, v8 offset:%d' % (27 + 2 * rd, 2 * (64 * rd)))
        a('ds_read_u16 v%d, v8 offset:%d' % (28 + 2 * rd, 2 * (64 * rd + 1)))
    a('''
    v_lshl_add_u32 v9, v1, 4, s11
    v_and_b32 v11, 1, v1
    v_cmp_eq_u32 vcc, 0, v11
    v_mov_b32 v56, 0
    v_mov_b32 v57, 0
    v_mov_b32 v58, 0
    v_mov_b32 v59, 0
    s_mov_b32 s66, 0x10001
    s_waitcnt lgkmcnt(0)
    ''')
    for k in range(4):
        a('v_lshl_or_b32 v%d, v%d, 16, v%d' % (40 + k, 20 + 6 - 2 * k, 20 + 7 - 2 * k))
    a('v_mul_lo_u32 v44, v30, s66')
    a('v_mul_lo_u32 v45, v29, s66')
    a('v_lshl_or_b32 v46, v28, 16, v29')
    a('v_mul_lo_u32 v47, v28, s66')
    for rd in (2, 3):
        A, B, D = 27 + 2 * rd, 28 + 2 * rd, 40 + 4 * rd
        a('v_mul_lo_u32 v%d, v%d, s66' % (D, B))
        a('v_cndmask_b32 v11, v%d, v%d, vcc' % (B, A))
        a('v_mul_lo_u32 v%d, v%d, s66' % (D + 2, A))
        a('v_lshl_or_b32 v%d, v11, 16, v%d' % (D + 1, B))
        a('v_mov_b32 v%d, v%d' % (D + 3, D + 2))
    for rd in range(4):
        a('ds_write_b128 v9, %s offset:%d' % (vr(40 + 4 * rd, 4), 480 + 1024 * rd))
    a('''
    s_mov_b64 exec, 0x3fffffff
    ds_write_b128 v9, v[56:59]
    v_mov_b32 v60, s64
    s_mov_b64 exec, 1
    ds_write_b32 v9, v60 offset:4576
    s_mov_b64 exec, -1
    v_lshrrev_b32 v11, 4, v1
    ''')
    conv_part(a)


C_IN = lambda q: 144 + 8 * q
C_UD = lambda q: 176 + 8 * q
C_OUT = lambda q: 168 + 4 * q
C_BF, C_AF, C_ACC = 40, 104, 216
V_UW0, V_UW2, V_AA, V_BA, V_RW, V_RR = 248, 249, 250, 251, 252, 253


def conv_inputs(a, tag):
    lbl = 'K1_PX' + tag
    if tag == 'O':
        a('''
        s_cmp_lg_u32 s3, 1
        s_cbranch_scc1 %s_ok
        s_lshl_b32 s11, s78, 7
        s_add_u32 s11, s11, 0xb40000
        v_mov_b32 v3, 0
        s_mov_b32 s72, 0
        s_mov_b64 exec, 1
        ''' % lbl)
        a.label(lbl)
        a('''
        buffer_load_dword v2, v3, s[56:59], s11 offen sc1
        s_add_u32 s72, s72, 1
        s_waitcnt vmcnt(0)
        v_readfirstlane_b32 s12, v2
        s_cmp_eq_u32 s12, 1
        s_cbranch_scc1 %s_ok
        s_cmp_gt_u32 s72, 0x8000
        s_cbranch_scc1 %s_ok
        s_sleep 4
        s_branch %s
        ''' % (lbl, lbl, lbl))
    a.label(lbl + '_ok')
    return


def conv_loads(a):
    a('''
    v_lshlrev_b32 v2, 4, v0
    v_subrev_u32 v5, 4, v2
    v_and_b32 v4, 31, v1
    v_lshlrev_b32 v4, 2, v4
    s_mul_i32 s11, s78, 8704
    s_add_u32 s11, s11, 0x%x
    s_add_u32 s52, s46, s11
    s_addc_u32 s53, s47, 0
    s_and_b32 s53, s53, 0xffff
    s_mov_b32 s54, 4096
    s_mov_b32 s55, 0x20000
    s_add_u32 s68, s52, 4352
    s_addc_u32 s69, s53, 0
    s_mov_b32 s70, 4096
    s_mov_b32 s71, 0x20000
    s_lshl_b32 s11, s4, 8
    s_add_u32 s11, s11, 0x%x
    ''' % (WS_XT, WS_PM))
    for q in range(2):
        b = C_IN(q)
        S = 's[52:55]' if q == 0 else 's[68:71]'
        a('buffer_load_dword v%d, v5, %s, 0 offen sc1' % (b + 1, S))
        a('buffer_load_dwordx4 %s, v2, %s, 0 offen sc1' % (vr(b + 2, 4), S))


def conv_part(a):
    a.label('K1_CONV')
    a('s_setprio %d' % CPRIO)
    lg = Cnt(a, 'lgkmcnt', 15)
    a('s_waitcnt lgkmcnt(0)')
    a('s_barrier')
    a('''
    v_lshlrev_b32 v3, 4, v1
    v_lshrrev_b32 v12, 2, v10
    v_add_u32 v%d, %d, v2
    v_add_u32 v%d, %d, v2
    v_not_b32 v13, v10
    v_and_b32 v13, 3, v13
    v_mul_u32_u24 v13, %d, v13
    v_lshl_add_u32 v13, v12, 3, v13
    v_lshlrev_b32 v14, 4, v11
    v_sub_u32 v13, v13, v14
    s_lshl_b32 s9, s3, 6
    s_add_u32 s11, s9, %d
    v_add_u32 v%d, s11, v13
    v_lshl_add_u32 v13, v10, 5, v14
    s_sub_u32 s11, 192, s9
    v_add_u32 v%d, s11, v13
    v_lshl_add_u32 v13, v10, 2, v11
    v_bfe_u32 v14, v10, 1, 2
    v_xor_b32 v13, v13, v14
    s_lshl_b32 s9, s3, 10
    s_add_u32 s9, s9, %d
    v_lshl_add_u32 v%d, v13, 4, s9
    v_and_b32 v13, 31, v1
    v_lshlrev_b32 v13, 1, v13
    v_bfe_u32 v14, v13, 3, 2
    v_xor_b32 v13, v13, v14
    v_lshlrev_b32 v13, 4, v13
    v_lshrrev_b32 v14, 5, v1
    v_lshl_add_u32 v13, v14, 12, v13
    s_lshl_b32 s9, s3, 13
    s_add_u32 s9, s9, %d
    v_add_u32 v%d, s9, v13
    v_lshrrev_b32 v12, 1, v1
    v_mul_u32_u24 v12, %d, v12
    v_and_b32 v13, 1, v1
    v_lshl_add_u32 v12, v13, 4, v12
    v_add_u32 v12, %d, v12
    v_and_b32 v13, 1, v1
    v_bfe_u32 v14, v1, 1, 1
    v_lshl_add_u32 v13, v14, 2, v13
    v_add_u32 v13, 2, v13
    v_mul_u32_u24 v13, %d, v13
    v_add_u32 v13, %d, v13
    v_mov_b32 v16, 0
    v_mov_b32 v17, 0
    v_mov_b32 v18, 0
    v_mov_b32 v19, 0
    v_mov_b32 v15, 4576
    ds_read_b32 v20, v15
    ds_read_b32 v21, v15 offset:4608
    s_mov_b64 exec, 0xffff
    ds_write_b128 v12, v[16:19]
    s_mov_b64 exec, 15
    ds_write_b32 v13, v16
    s_mov_b64 exec, -1
    s_waitcnt vmcnt(0) lgkmcnt(0)
    v_readfirstlane_b32 s76, v20
    v_readfirstlane_b32 s77, v21
    ''' % (V_UW0, RA + 32, V_UW2, RA + 2 * CSZ + 36, CSZ, RA + 56, V_AA, V_BA, L_RED, V_RW, L_RED, V_RR, CSZ, RA, CSZ, RA + 32))
    a.stamp(6)
    DPPS = ('quad_perm:[1,0,3,2]', 'quad_perm:[2,3,0,1]', 'row_half_mirror', 'row_mirror')
    a('s_mov_b32 s8, 0x7fff7fff')
    for q in range(2):
        for k in range(4):
            a('v_and_b32 v%d, s8, v%d' % (16 + 4 * q + k, C_IN(q) + 2 + k))
    for q in range(2):
        a('v_pk_max_u16 v%d, v%d, v%d' % (16 + 4 * q, 16 + 4 * q, 17 + 4 * q))
        a('v_pk_max_u16 v%d, v%d, v%d' % (18 + 4 * q, 18 + 4 * q, 19 + 4 * q))
    for q in range(2):
        a('v_pk_max_u16 v%d, v%d, v%d' % (16 + 4 * q, 16 + 4 * q, 18 + 4 * q))
    a('v_and_b32 v17, 0xffff, v16')
    a('v_lshl_or_b32 v17, v20, 16, v17')
    a('v_lshrrev_b32 v18, 16, v16')
    a('v_and_b32 v19, 0xffff0000, v20')
    a('v_or_b32 v18, v18, v19')
    a('v_pk_max_u16 v16, v17, v18')
    for dpp in DPPS:
        a.nop(2)
        a('v_mov_b32_dpp v17, v16 %s row_mask:0xf bank_mask:0xf' % dpp)
        a('v_pk_max_u16 v16, v16, v17')
    a('''
    v_lshrrev_b32 v17, 4, v0
    v_lshlrev_b32 v17, 2, v17
    v_add_u32 v17, %d, v17
    v_cmp_eq_u32 vcc, 0, v10
    v_lshlrev_b32 v18, 2, v10
    v_add_u32 v18, %d, v18
    s_and_saveexec_b64 s[74:75], vcc
    ds_write_b32 v17, v16
    s_mov_b64 exec, s[74:75]
    s_waitcnt lgkmcnt(0)
    s_barrier
    ds_read_b32 v16, v18
    s_waitcnt lgkmcnt(0)
    ''' % (L_RED, L_RED))
    for dpp in DPPS:
        a.nop(2)
        a('v_mov_b32_dpp v17, v16 %s row_mask:0xf bank_mask:0xf' % dpp)
        a('v_pk_max_u16 v16, v16, v17')
    a.nop(1)
    a('v_readfirstlane_b32 s15, v16')
    def stage(q):
        b = C_IN(q)
        ub = 4 * CSZ * q
        T = 16
        for k in range(4):
            a('v_lshlrev_b32 v%d, 16, v%d' % (T + 2 * k, b + 2 + k))
            a('v_and_b32 v%d, 0xffff0000, v%d' % (T + 2 * k + 1, b + 2 + k))
        a('''
        v_and_b32 v%d, 0xffff0000, v%d
        %s
        s_mov_b32 s13, s12
        %s
        s_lshr_b32 s8, s8, 7
        s_sub_u32 s8, 268, s8
        s_min_u32 s8, s8, 254
        s_add_u32 s%d, s8, s%d
        s_sub_u32 s%d, 254, s%d
        s_lshl_b32 s8, s8, 23
        s_mov_b32 s9, s8
        ''' % (T + 8, b + 1, 's_nop 0' if CLOOP else ('s_lshl_b32 s12, s97, 16' if q == 0 else 's_and_b32 s12, s97, 0xffff0000'),
               's_mov_b32 s8, s14' if CLOOP else ('s_and_b32 s8, s15, 0xffff' if q == 0 else 's_lshr_b32 s8, s15, 16'), 76 + q, 76 + q, 76 + q, 76 + q))
        u = C_UD(q)
        for k in range(4):
            a('v_pk_mul_f32 %s, %s, s[12:13]' % (vr(u + 2 * k, 2), vr(T + 2 * k, 2)))
        for k in range(4):
            a('v_pk_mul_f32 %s, %s, s[8:9]' % (vr(T + 2 * k, 2), vr(T + 2 * k, 2)))
        a('v_mul_f32 v%d, s8, v%d' % (T + 8, T + 8))
        F = 32
        for k in range(4):
            a('v_cvt_pk_f16_f32 v%d, v%d, v%d' % (F + k, T + 2 * k, T + 2 * k + 1))
        a('v_cvt_pk_f16_f32 v%d, v%d, v%d' % (F - 1, T + 8, T + 8))
        if ub:
            a('v_add_u32 v12, %d, v%d' % (ub, V_UW2))
            w2 = 12
        else:
            w2 = V_UW2
        a('ds_write_b128 v%d, %s offset:%d' % (V_UW0, vr(F, 4), ub))
        a('ds_write2_b32 v%d, v%d, v%d offset0:0 offset1:1' % (w2, F, F + 1))
        a('ds_write2_b32 v%d, v%d, v%d offset0:2 offset1:3' % (w2, F + 2, F + 3))
        for k in range(4):
            a('v_alignbit_b32 v%d, v%d, v%d, 16' % (36 + k, F + k, F + k - 1))
        a('v_add_u32 v13, %d, v%d' % (CSZ, w2))
        a('ds_write_b128 v%d, v[36:39] offset:%d' % (V_UW0, ub + CSZ))
        a('ds_write2_b32 v13, v36, v37 offset0:0 offset1:1')
        a('ds_write2_b32 v13, v38, v39 offset0:2 offset1:3')
        for k in range(4):
            a('v_cvt_pk_bf16_f32 v%d, v%d, v%d' % (T + k, u + 2 * k, u + 2 * k + 1))
        for k in range(4):
            a('v_lshlrev_b32 v%d, 16, v%d' % (u + 2 * k, T + k))
            a('v_and_b32 v%d, 0xffff0000, v%d' % (u + 2 * k + 1, T + k))
    BF, AFR, ACC = C_BF, C_AF, C_ACC
    def mfma_loop(q):
        ub = 4 * CSZ * q
        kb = KLB(q)
        def aread(t):
            r = AFR + 4 * (t % 8)
            a('ds_read_b64 %s, v%d offset:%d' % (vr(r, 2), V_AA, ub + 256 * t))
            lg.issue(('A', t))
            a('ds_read_b64 %s, v%d offset:%d' % (vr(r + 2, 2), V_AA, ub + 256 * t + 8))
            lg.issue(('A', t))
        def bread(s_):
            a('ds_read_b128 %s, v%d offset:%d' % (vr(BF + 4 * s_, 4), V_BA, kb + 256 * s_))
            lg.issue(('B', s_))
        aread(0)
        for n in range(8): bread(2 * n + 1)
        aread(1)
        for n in range(8): bread(2 * n)
        started = set()
        for t in range(16):
            lg.wait(('A', t))
            for n in range(8):
                if 2 * n + 1 < t: continue
                s_ = 2 * n - t + 1
                if t < 2 and n % 2 == 0:
                    lg.wait(('B', min(s_ + 2, 15 if t == 0 else 14)))
                cin = vr(ACC + 4 * n, 4) if n in started else '0'
                started.add(n)
                a('v_mfma_f32_16x16x32_f16 %s, %s, %s, %s' % (vr(ACC + 4 * n, 4), vr(AFR + 4 * (t % 8), 4), vr(BF + 4 * s_, 4), cin))
            if t == 0:
                for tt in range(2, 5): aread(tt)
            elif t == 1:
                for tt in range(5, 8): aread(tt)
            if t + 8 < 16: aread(t + 8)
        a.nop(8)
    def reduce_store(q):
        if q: a('s_barrier')
        for n in range(8):
            a('ds_write_b128 v%d, %s offset:%d' % (V_RW, vr(ACC + 4 * n, 4), n * 4096))
        a('v_xor_b32 v12, 16, v%d' % V_RR)
        a('s_waitcnt lgkmcnt(0)')
        lg.ops = []
        a('s_barrier')
        R = 40
        for w in range(4):
            a('ds_read_b128 %s, v%d offset:%d' % (vr(R + 8 * w, 4), V_RR, w * 1024))
            a('ds_read_b128 %s, v12 offset:%d' % (vr(R + 8 * w + 4, 4), w * 1024))
        if CLOOP:
            a('s_mov_b32 s8, s79')
        else:
            a('s_mul_i32 s8, s78, %d' % (2 * TS))
            a('s_add_u32 s8, s8, 0x%x' % (WS_BT + TS * q))
        a('s_waitcnt lgkmcnt(4)')
        for h in range(0, 8, 2):
            a('v_pk_add_f32 %s, %s, %s' % (vr(R + h, 2), vr(R + h, 2), vr(R + 8 + h, 2)))
        a('s_waitcnt lgkmcnt(0)')
        for h in range(0, 8, 2):
            a('v_pk_add_f32 %s, %s, %s' % (vr(R + 16 + h, 2), vr(R + 16 + h, 2), vr(R + 24 + h, 2)))
        for h in range(0, 8, 2):
            a('v_pk_add_f32 %s, %s, %s' % (vr(R + h, 2), vr(R + h, 2), vr(R + 16 + h, 2)))
        for k in range(8):
            a('v_ldexp_f32 v%d, v%d, s%d' % (R + k, R + k, 76 + q))
        for k in range(4):
            a('v_cvt_pk_bf16_f32 v%d, v%d, v%d' % (R + 8 + k, R + 2 * k, R + 2 * k + 1))
        for k in range(4):
            a('v_lshlrev_b32 v%d, 16, v%d' % (R + 2 * k, R + 8 + k))
            a('v_and_b32 v%d, 0xffff0000, v%d' % (R + 2 * k + 1, R + 8 + k))
        u = C_UD(q)
        for k in range(4):
            a('v_pk_add_f32 %s, %s, %s' % (vr(R + 2 * k, 2), vr(R + 2 * k, 2), vr(u + 2 * k, 2)))
        O = C_OUT(q)
        for k in range(4):
            a('v_cvt_pk_bf16_f32 v%d, v%d, v%d' % (O + k, R + 2 * k, R + 2 * k + 1))
        a('buffer_store_dwordx4 %s, v2, %s, s8 offen' % (vr(O, 4), sr(S_SWS, 4)))
    if CLOOP:
        a('s_lshl_b32 s12, s97, 16')
        a('s_and_b32 s14, s15, 0xffff')
        a('s_mul_i32 s79, s78, %d' % (2 * TS))
        a('s_add_u32 s79, s79, 0x%x' % WS_BT)
        a('s_mov_b32 s73, 0')
        a.label('K1_CLOOP')
        stage(0)
        a('s_waitcnt lgkmcnt(0)')
        a('s_barrier')
        mfma_loop(0)
        reduce_store(0)
        a('s_cmp_lg_u32 s73, 0')
        a('s_cbranch_scc1 K1_CEND')
        for k in range(1, 6):
            a('v_mov_b32 v%d, v%d' % (C_IN(0) + k, C_IN(1) + k))
        a('''
        s_mov_b32 s73, 1
        s_and_b32 s12, s97, 0xffff0000
        s_lshr_b32 s14, s15, 16
        s_mov_b32 s76, s77
        s_add_u32 s79, s79, %d
        v_add_u32 v%d, 4608, v%d
        s_branch K1_CLOOP
        ''' % (TS, V_BA, V_BA))
        a.label('K1_CEND')
    else:
        stage(0)
        stage(1)
        a('s_waitcnt lgkmcnt(0)')
        a('s_barrier')
        mfma_loop(0)
        reduce_store(0)
        mfma_loop(1)
        reduce_store(1)
    a.endpgm()


def gen_k1(a):
    a.lines.append('.globl k1_kernel\n.p2align 8\n.type k1_kernel,@function\nk1_kernel:')
    a('s_cmp_ge_u32 s2, %d' % K1_GRID)
    a('s_cbranch_scc1 K1_EXIT')
    a.kidx = 0
    a.stamp_init()
    load_kernargs(a)
    a('''
    v_lshrrev_b32 v2, 6, v0
    v_and_b32 v1, 63, v0
    s_nop 0
    v_readfirstlane_b32 s3, v2
    ''')
    a('''
    s_cmp_lt_u32 s2, %d
    s_cbranch_scc1 K1_PREP
    s_sub_u32 s97, s2, %d
    ''' % (N_PREP, N_PREP))
    gemm_part(a)
    prep_part(a)
    a.label('K1_EXIT')
    a('s_endpgm')
```

```python
from asmlib import *
import math

WS_PQ = 0x000000
TS = 4352
WS_XT = 0x240000
WS_BT = 0x4B0000
WS_KF = 0x720000
KF_STRIDE = 4608
WS_KVP = 0x950000
KVP_REC = 13 * 1024 + 512
WS_KVF = 0xB00000
WS_SEL = 0xB18000
WS_G = 0xB1C000
WS_PM = 0xB20000
WS_FLG = 0xB34000
WS_GO1 = 0xB40000
WS_GO2 = 0xB50000
WS_GO3 = 0xB60000
WS_END = 0xB70000

N_GEMM = 192
N_PREP = 288
K1_GRID = N_GEMM + N_PREP
K1_LDS = 81920

import os
TOUCH = int(os.environ.get('TOUCH', '1'))
TOUCH_FLAGS = os.environ.get('TOUCH_FLAGS', '')
WFLAGS = os.environ.get('WFLAGS', '')
AFLAGS = os.environ.get('AFLAGS', '')
NOMEM = int(os.environ.get('NOMEM', '0'))
NOPREP = int(os.environ.get('NOPREP', '0'))
NOXS = int(os.environ.get('NOXS', '0'))
PRO = int(os.environ.get('PRO', '2'))
GPRIO = int(os.environ.get('GPRIO', '3'))
PPRIO = int(os.environ.get('PPRIO', '0'))
S3 = int(os.environ.get('S3', '0'))
NOX = int(os.environ.get('NOX', '0'))
NOW = int(os.environ.get('NOW', '0'))
CPRIO = int(os.environ.get('CPRIO', '2'))
QPRIO = int(os.environ.get('QPRIO', '-1'))
IPRIO = int(os.environ.get('IPRIO', '0'))
NOBAR = int(os.environ.get('NOBAR', '0'))
CLOOP = int(os.environ.get('CLOOP', '1'))
ROLL = int(os.environ.get('ROLL', '1'))
LOG2E = 1.4426950408889634

P_X, P_W, P_WO, P_BU, P_ARE, P_AIM, P_BRE, P_BIM = 16, 18, 20, 22, 24, 26, 28, 30
P_CRE, P_CIM, P_LDT, P_DSK, P_GW, P_OUT, P_DBG, P_WS = 32, 34, 36, 38, 40, 42, 44, 46


class Cnt:
    def __init__(self, a, name, cap):
        self.a, self.name, self.cap = a, name, cap
        self.ops = []
    def issue(self, tag):
        self.ops.append(tag)
    def wait(self, tag):
        idx = max(i for i, t in enumerate(self.ops) if t == tag) if tag in self.ops else None
        if idx is None:
            return
        n = len(self.ops) - 1 - idx
        n = min(n, self.cap)
        self.a('s_waitcnt %s(%d)' % (self.name, n))
        self.ops = self.ops[len(self.ops) - n:] if n > 0 else []
    def wait_all(self):
        self.a('s_waitcnt %s(0)' % self.name)
        self.ops = []


def load_kernargs(a):
    a('s_load_dwordx16 s[16:31], s[0:1], 0')
    a('s_load_dwordx16 s[32:47], s[0:1], 64')


def phi_batch(a, pairs, tmp, s_l2e, s_eps, keep_raw=None):
    n = len(pairs)
    H = lambda i: (keep_raw[i] if keep_raw else tmp + 6 * i)
    T = lambda i: tmp + 6 * i + 2
    E = lambda i: tmp + 6 * i + 4
    for i, (a0, a1, d) in enumerate(pairs):
        a('v_cvt_pk_bf16_f32 v%d, v%d, v%d' % (H(i), a0, a1))
    for i in range(n):
        a('v_lshlrev_b32 v%d, 16, v%d' % (T(i), H(i)))
        a('v_and_b32 v%d, 0xffff0000, v%d' % (T(i) + 1, H(i)))
    for i in range(n):
        a('v_pk_mul_f32 %s, %s, %s' % (vr(E(i), 2), vr(T(i), 2), sr(s_l2e, 2)))
    for i in range(n):
        a('v_exp_f32_e64 v%d, v%d clamp' % (E(i), E(i)))
        a('v_exp_f32_e64 v%d, v%d clamp' % (E(i) + 1, E(i) + 1))
    for i in range(n):
        a('v_max_f32 v%d, 0, v%d' % (T(i), T(i)))
        a('v_max_f32 v%d, 0, v%d' % (T(i) + 1, T(i) + 1))
    for i in range(n):
        a('v_pk_add_f32 %s, %s, %s' % (vr(E(i), 2), vr(E(i), 2), vr(T(i), 2)))
    for i, (a0, a1, d) in enumerate(pairs):
        a('v_cvt_pk_bf16_f32 v%d, v%d, v%d' % (d, E(i), E(i) + 1))
    for i, (a0, a1, d) in enumerate(pairs):
        a('v_pk_min_u16 v%d, v%d, v%d' % (V_PMIN, V_PMIN, d))


V_PMIN = 243


def phi_fix(a, regs, tmp, s_eps, lbl):
    a('''
    v_lshrrev_b32 v%d, 16, v%d
    v_and_b32 v%d, 0xffff, v%d
    v_min_u32 v%d, v%d, v%d
    v_cmp_gt_u32 vcc, 0x3a00, v%d
    s_cbranch_vccz %s
    ''' % (tmp, V_PMIN, tmp + 1, V_PMIN, tmp, tmp, tmp + 1, tmp, lbl))
    for r in regs:
        a('v_lshlrev_b32 v%d, 16, v%d' % (tmp, r))
        a('v_and_b32 v%d, 0xffff0000, v%d' % (tmp + 1, r))
        a('v_pk_add_f32 %s, %s, %s' % (vr(tmp, 2), vr(tmp, 2), sr(s_eps, 2)))
        a('v_cvt_pk_bf16_f32 v%d, v%d, v%d' % (r, tmp, tmp + 1))
    a.label(lbl)


V_XOFF, V_SW, V_DMA, V_TR, V_TR2, V_SR0, V_SR1 = 2, 3, 4, 9, 240, 241, 242
V_XR, V_AF, V_B, V_ACC = 16, 96, 128, 168
V_A = 16
V_T = 96
SLOT = 18432
SCR = 4 * SLOT
S_SX, S_SW, S_SWS = 48, 52, 56
PAIRS = [(0, 4), (0, 5), (1, 4), (1, 5), (1, 6), (2, 5), (2, 6), (2, 7), (3, 6), (3, 7), (3, 8), (4, 7), (4, 8)]


STEPS = {0: [0], 1: [0, 1], 2: [0, 1], 3: [1, 2], 4: [1, 2], 5: [2, 3], 6: [2, 3], 7: [3, 4], 8: [3, 4]}
FRAGS = [('Z', k) for k in range(5)] + [(c, k) for c in range(9) for k in STEPS[c]]


def reduce_task(a):
    cb = sum(((15 if c == 'Z' else c) << (4 * f)) for f, (c, k) in enumerate(FRAGS))
    kb = sum((k << (4 * f)) for f, (c, k) in enumerate(FRAGS))
    a('''
    s_mul_i32 s64, s15, 94
    s_lshr_b32 s64, s64, 11
    s_mul_i32 s65, s64, 22
    s_sub_u32 s65, s15, s65
    s_mov_b32 s66, 0x%x
    s_mov_b32 s67, 0x%x
    s_mov_b32 s68, 0x%x
    s_mov_b32 s69, 0x%x
    s_cmp_ge_u32 s65, 16
    s_cselect_b32 s66, 0x%x, s66
    s_cselect_b32 s68, 0x%x, s68
    s_and_b32 s70, s65, 15
    s_lshl_b32 s70, s70, 2
    s_lshr_b64 s[66:67], s[66:67], s70
    s_lshr_b64 s[68:69], s[68:69], s70
    s_and_b32 s66, s66, 15
    s_and_b32 s68, s68, 15
    s_lshl_b32 s70, s68, 5
    v_lshl_add_u32 v16, v11, 3, s70
    s_cmp_eq_u32 s66, 15
    s_cbranch_scc1 K1_RZ
    s_lshl_b32 s70, s66, 4
    v_add_u32 v17, s70, v10
    v_mul_u32_u24 v18, 57, v17
    v_lshrrev_b32 v18, 10, v18
    v_lshrrev_b32 v19, 2, v18
    v_mul_u32_u24 v20, 72, v19
    v_sub_u32 v21, v17, v20
    v_add_u32 v21, 72, v21
    v_sub_u32 v22, v16, v20
    v_lshrrev_b32 v23, 4, v22
    v_lshrrev_b32 v24, 4, v21
    v_lshl_add_u32 v23, v23, 1, v24
    v_subrev_u32 v23, 4, v23
    v_and_b32 v24, 15, v21
    v_and_b32 v25, 12, v22
    v_lshl_add_u32 v24, v25, 2, v24
    v_lshlrev_b32 v24, 4, v24
    v_lshl_add_u32 v24, v23, 10, v24
    v_add_u32 v25, 256, v24
    s_mov_b64 s[74:75], -1
    s_branch K1_RC
    ''' % (cb & 0xffffffff, (cb >> 32) & 0xffffffff, kb & 0xffffffff, (kb >> 32) & 0xffffffff, cb >> 64, kb >> 64))
    a.label('K1_RZ')
    a('''
    v_lshrrev_b32 v18, 2, v10
    v_lshlrev_b32 v18, 1, v18
    v_and_b32 v19, 1, v10
    v_add_u32 v18, v18, v19
    v_and_b32 v19, 2, v10
    v_cmp_eq_u32 s[74:75], 0, v19
    v_lshrrev_b32 v19, 2, v18
    v_mul_u32_u24 v20, 72, v19
    v_sub_u32 v22, v16, v20
    v_lshlrev_b32 v24, 2, v22
    v_add_u32 v24, 13312, v24
    v_add_u32 v25, 16, v24
    ''')
    a.label('K1_RC')
    a('''
    v_mul_u32_u24 v26, 18, v18
    v_sub_u32 v26, v26, v16
    v_add_u32 v27, 17, v26
    v_cmp_gt_u32 vcc, 25, v27
    s_and_b64 s[74:75], s[74:75], vcc
    s_lshl_b32 s70, s64, 1
    v_add_u32 v19, s70, v19
    v_mul_u32_u24 v19, %d, v19
    v_add_u32 v24, v24, v19
    v_add_u32 v25, v25, v19
    v_mov_b32 v27, 0x40000000
    v_cndmask_b32 v24, v27, v24, s[74:75]
    v_cndmask_b32 v25, v27, v25, s[74:75]
    s_mul_i32 s70, s3, %d
    s_add_u32 s70, s70, 0x%x
    ''' % (KVP_REC, 32 * KVP_REC, WS_KVP))
    R = 32
    for rb in range(4):
        a('buffer_load_dwordx4 %s, v24, %s, s70 offen sc1' % (vr(R + 8 * rb, 4), sr(S_SWS, 4)))
        a('buffer_load_dwordx4 %s, v25, %s, s70 offen sc1' % (vr(R + 8 * rb + 4, 4), sr(S_SWS, 4)))
        if rb < 3:
            a('s_add_u32 s70, s70, %d' % (8 * KVP_REC))
    a('''
    s_lshl_b32 s70, s15, 10
    s_add_u32 s70, s70, 0x%x
    s_lshl_b32 s71, s3, 11
    s_add_u32 s71, s71, 1024
    v_add_u32 v2, s71, v3
    s_waitcnt vmcnt(0)
    ''' % WS_KVF)
    for st in (2, 1):
        for i in range(st):
            for h in range(0, 8, 2):
                a('v_pk_add_f32 %s, %s, %s' % (vr(R + 8 * i + h, 2), vr(R + 8 * i + h, 2), vr(R + 8 * (i + st) + h, 2)))
    a('ds_write_b128 v2, %s' % vr(R, 4))
    a('ds_write_b128 v2, %s offset:1024' % vr(R + 4, 4))
    a('s_waitcnt lgkmcnt(0)')
    a('s_barrier')
    a('s_cmp_lg_u32 s3, 0')
    a('s_cbranch_scc1 K1_KVEXIT')
    for w in range(1, 4):
        a('ds_read_b128 %s, v2 offset:%d' % (vr(R + 8 * w, 4), 2048 * w))
        a('ds_read_b128 %s, v2 offset:%d' % (vr(R + 8 * w + 4, 4), 2048 * w + 1024))
    a('s_waitcnt lgkmcnt(0)')
    for st in (2, 1):
        for i in range(st):
            for h in range(0, 8, 2):
                a('v_pk_add_f32 %s, %s, %s' % (vr(R + 8 * i + h, 2), vr(R + 8 * i + h, 2), vr(R + 8 * (i + st) + h, 2)))
    for j in range(8):
        a('v_subrev_u32 v27, v26, %d' % j if False else 'v_sub_u32 v27, %d, v26' % j)
        a('v_cmp_gt_u32 vcc, 18, v27')
        a('s_and_b64 vcc, vcc, s[74:75]')
        a('s_nop 0')
        a('v_cndmask_b32 v%d, 0, v%d, vcc' % (R + j, R + j))
    for k in range(4):
        a('v_cvt_pk_bf16_f32 v%d, v%d, v%d' % (28 + k, R + 2 * k, R + 2 * k + 1))
    a('buffer_store_dwordx4 v[28:31], v3, %s, s70 offen' % sr(S_SWS, 4))


def gemm_roll(a, qtype):
    tag = 'Q' if qtype else 'K'
    lg = Cnt(a, 'lgkmcnt', 15)
    XR = lambda p: V_XR + 16 * p
    VB = 56
    V_CUR, V_NXT = V_TR, V_TR2
    def wdma(mbase4, mbase5, slotoff):
        ops = []
        for i in range(4):
            ops.append(['s_add_u32 m0, s%d, 0x%x' % (mbase4, slotoff + i * 1024), 's_mov_b64 exec, s[74:75]',
                        'buffer_load_dwordx4 v%d, %s, s68 offen lds' % (V_DMA + i, sr(S_SW, 4)), 's_mov_b64 exec, -1'])
        ops.append(['s_add_u32 m0, s%d, 0x%x' % (mbase5, slotoff + 16384), 's_mov_b64 exec, s[76:77]',
                    'buffer_load_dwordx4 v%d, %s, s68 offen lds' % (V_DMA + 4, sr(S_SW, 4)), 's_mov_b64 exec, -1',
                    's_add_u32 s68, s68, 0x%x' % (64 * 3456),
                    's_cmp_lt_u32 s68, 0x%x' % (9 * 64 * 3456), 's_cselect_b64 s[74:75], -1, 0', 's_cselect_b32 s76, -1, 0'])
        return ops
    def xld(p, off):
        ops = []
        for q in range(4):
            ops.append(['s_mov_b64 exec, s[78:79]',
                        'buffer_load_dwordx4 %s, v%d, %s, s%d offen offset:%d' % (vr(XR(p) + 4 * q, 4), V_XOFF, sr(S_SX, 4), 64 + q, off),
                        's_mov_b64 exec, -1'])
        ops[-1] += ['s_add_u32 s73, s73, 1', 's_cmp_lt_u32 s73, 9', 's_cselect_b64 s[78:79], -1, 0']
        return ops
    def xstage(p):
        r = XR(p)
        for rt in range(2):
            for q in range(2):
                a('ds_write_b128 v%d, %s offset:%d' % (V_SW, vr(r + 4 * (2 * rt + q), 4), 1024 * q))
                lg.issue(('XW', p))
            for kk in range(2):
                a('ds_read_b128 %s, v%d' % (vr(V_AF + p * 16 + (kk * 2 + rt) * 4, 4), V_SR0 + kk))
                lg.issue(('A', p))
    def bread(base, off, kk, j, t):
        for hh in range(2):
            a('ds_read_b64_tr_b16 %s, v%d offset:%d' % (vr(VB + 4 * j + 2 * hh, 2), base, off + (8 * hh + 32 * kk) * 288 + 32 * j))
            lg.issue(('B', t, j))
    a('''
    s_mov_b32 s68, 0
    s_mov_b32 s69, s8
    s_add_u32 s70, s8, %d
    s_mov_b32 s71, s9
    s_add_u32 s72, s9, %d
    s_mov_b64 s[74:75], -1
    s_mov_b32 s76, -1
    s_mov_b32 s77, 0
    s_mov_b64 s[78:79], -1
    s_mov_b32 s73, 2
    s_mov_b32 s96, 0
    ''' % (2 * SLOT, 2 * SLOT))
    for op in wdma(69, 71, 0) + wdma(69, 71, SLOT):
        for ln in op: a(ln)
    for i in range(72):
        a('v_mov_b32 v%d, 0' % (V_ACC + i))
    a.stamp(1)
    a('s_waitcnt vmcnt(14)')
    xstage(0)
    for op in xld(0, 256) + wdma(70, 72, 0):
        for ln in op: a(ln)
    a('s_waitcnt vmcnt(14)')
    a('s_barrier')
    a.stamp(2)
    a('s_waitcnt lgkmcnt(0)')
    lg.ops = []
    for j in range(9):
        bread(V_CUR, 0, 0, j, 0)
    entry = list(lg.ops)
    a.label('K1_GL' + tag)
    for t in range(4):
        p, kk = t // 2, t % 2
        side = []
        if kk == 1:
            a('s_waitcnt vmcnt(13)')
            a('s_barrier')
            side = wdma(70, 72, SLOT) if p == 0 else wdma(69, 71, 0)
        if t == 2:
            a('s_cmp_eq_u32 s96, 4')
            a('s_cbranch_scc1 K1_GX' + tag)
        lg.wait(('A', p))
        for j in range(9):
            if j % 3 == 0:
                lg.wait(('B', t, j + 2))
            for rt in range(2):
                ra = V_AF + p * 16 + (kk * 2 + rt) * 4
                acc = V_ACC + (rt * 9 + j) * 4
                if qtype:
                    a('v_mfma_f32_16x16x32_bf16 %s, %s, %s, %s' % (vr(acc, 4), vr(VB + 4 * j, 4), vr(ra, 4), vr(acc, 4)))
                else:
                    a('v_mfma_f32_16x16x32_bf16 %s, %s, %s, %s' % (vr(acc, 4), vr(ra, 4), vr(VB + 4 * j, 4), vr(acc, 4)))
            jj = j - 1
            def pf(jj):
                if t == 0: bread(V_CUR, 0, 1, jj, 1)
                elif t == 1: bread(V_CUR, SLOT, 0, jj, 2)
                elif t == 2: bread(V_CUR, SLOT, 1, jj, 3)
                else: bread(V_NXT, 0, 0, jj, 0)
            if jj >= 0: pf(jj)
            if side:
                for ln in side.pop(0): a(ln)
            if kk == 0 and j == 3:
                a('s_waitcnt vmcnt(14)')
                xstage(1 - p)
                side = xld(1 - p, 384 if p == 0 else 512)
        pf(8)
        assert not side
    a('''
    v_swap_b32 v%d, v%d
    v_add_u32 v%d, 256, v%d
    s_mov_b32 s15, s69
    s_mov_b32 s69, s70
    s_mov_b32 s70, s15
    s_mov_b32 s15, s71
    s_mov_b32 s71, s72
    s_mov_b32 s72, s15
    s_add_u32 s96, s96, 1
    s_branch K1_GL%s
    ''' % (V_CUR, V_NXT, V_XOFF, V_XOFF, tag))
    assert [x for x in lg.ops if x[0] == 'B'] == entry[-len([x for x in lg.ops if x[0] == 'B']):], (lg.ops, entry)
    a.label('K1_GX' + tag)
    a('s_waitcnt lgkmcnt(0)')
    a.stamp(5)
    a.nop(10)


def gemm_main(a, qtype):
    if ROLL:
        return gemm_roll(a, qtype)
    vm = Cnt(a, 'vmcnt', 63)
    lg = Cnt(a, 'lgkmcnt', 15)
    side = []
    wcount = {}
    xcount = {}

    def dma_ops(c):
        if NOMEM or NOW: return []
        slot = (c % 4) * SLOT
        ops = []
        def one(i):
            a('s_add_u32 m0, s8, 0x%x' % (slot + i * 1024))
            a('s_mov_b32 s10, 0x%x' % (c * 64 * 3456))
            a('buffer_load_dwordx4 v%d, %s, s10 offen lds' % (V_DMA + i, sr(S_SW, 4)))
            vm.issue(('W', c)); wcount[c] = wcount.get(c, 0) + 1
        def last():
            a('s_add_u32 m0, s9, 0x%x' % (slot + 16384))
            a('s_mov_b32 exec_hi, 0')
            a('buffer_load_dwordx4 v%d, %s, s10 offen lds' % (V_DMA + 4, sr(S_SW, 4)))
            a('s_mov_b32 exec_hi, -1')
            vm.issue(('W', c)); wcount[c] = wcount.get(c, 0) + 1
        for i in range(4):
            ops.append(lambda i=i: one(i))
        ops.append(last)
        return ops

    def x_ops(c):
        if NOMEM or NOX: return []
        r = V_XR + (c % 5) * 16
        def one(q):
            a('buffer_load_dwordx4 %s, v%d, %s, s%d offen offset:%d' % (vr(r + 4 * q, 4), V_XOFF, sr(S_SX, 4), 64 + q, c * 128))
            vm.issue(('X', c)); xcount[c] = xcount.get(c, 0) + 1
        return [lambda q=q: one(q) for q in range(4)]

    def flush(tagc=None):
        while side:
            side.pop(0)()

    def xstage(c):
        if NOXS: return
        while not NOMEM and not NOX and c >= 2 and xcount.get(c, 0) < 4:
            side.pop(0)()
        vm.wait(('X', c))
        r = V_XR + (c % 5) * 16
        for rt in range(2):
            for q in range(2):
                a('ds_write_b128 v%d, %s offset:%d' % (V_SW, vr(r + 4 * (2 * rt + q), 4), 1024 * q))
                lg.issue(('XW', c))
            for kk in range(2):
                a('ds_read_b128 %s, v%d' % (vr(V_AF + (c % 2) * 16 + (kk * 2 + rt) * 4, 4), V_SR0 + kk))
                lg.issue(('A', c))

    def bread(k, j):
        c, kk = k // 2, k % 2
        r = V_B + ((k * 9 + j) % 10) * 4
        for hh in range(2):
            off = (c % 2) * SLOT + (8 * hh + 32 * kk) * 288 + 32 * j
            a('ds_read_b64_tr_b16 %s, v%d offset:%d' % (vr(r + 2 * hh, 2), V_TR if (c % 4) < 2 else V_TR2, off))
            lg.issue(('B', k, j))

    for c in range(PRO):
        for op in dma_ops(c): op()
        if c >= 2:
            for op in x_ops(c): op()
    if not S3: a.stamp(1)
    vm.ops = [('X', 0)] * 4 + [('X', 1)] * 4 + vm.ops
    xstage(0)
    vm.wait(('W', 0))
    a('s_barrier')
    if not S3: a.stamp(2)
    for c in range(PRO, 4):
        side.extend(dma_ops(c)); side.extend(x_ops(c))
    side.extend(x_ops(4)); side.extend(x_ops(5))
    wq = set(range(4)); xq = set(range(6))
    for j in range(9):
        bread(0, j)
    for k in range(18):
        c, kk = k // 2, k % 2
        if kk == 1 and c + 1 <= 8:
            while not NOMEM and not NOW and wcount.get(c + 1, 0) < 5:
                side.pop(0)()
            vm.wait(('W', c + 1))
            if not NOBAR: a('s_barrier')
            if c >= 1 and c + 3 <= 8:
                side.extend(dma_ops(c + 3))
        if S3:
            if k % 3 == 0 and k: a.stamp(k // 3)
        else:
            if k == 6: a.stamp(3)
            if k == 12: a.stamp(4)
        lg.wait(('A', c))
        for j in range(9):
            if j % 3 == 0:
                lg.wait(('B', k, j + 2))
            rb = V_B + ((k * 9 + j) % 10) * 4
            for rt in range(2):
                ra = V_AF + (c % 2) * 16 + (kk * 2 + rt) * 4
                acc = V_ACC + (rt * 9 + j) * 4
                cin = '0' if k == 0 else vr(acc, 4)
                if qtype:
                    a('v_mfma_f32_16x16x32_bf16 %s, %s, %s, %s' % (vr(acc, 4), vr(rb, 4), vr(ra, 4), cin))
                else:
                    a('v_mfma_f32_16x16x32_bf16 %s, %s, %s, %s' % (vr(acc, 4), vr(ra, 4), vr(rb, 4), cin))
            if k + 1 < 18:
                bread(k + 1, j)
            if side:
                side.pop(0)()
            if kk == 0 and j == 4 and c + 1 <= 8:
                xstage(c + 1)
                if c + 6 <= 8:
                    side.extend(x_ops(c + 6))
    assert not side
    a.stamp(6 if S3 else 5)
    a.nop(10)


def gemm_part(a):
    a.label('K1_GEMM')
    a('s_setprio %d' % GPRIO)
    a('''
    s_and_b32 s4, s97, 7
    s_lshr_b32 s5, s97, 3
    s_and_b32 s6, s4, 3
    s_lshl_b32 s6, s6, 2
    s_and_b32 s7, s5, 3
    s_add_u32 s6, s6, s7
    s_lshr_b32 s4, s4, 2
    s_mul_i32 s4, s4, 6
    s_lshr_b32 s5, s5, 2
    s_add_u32 s7, s4, s5
    ''')
    a('''
    s_mul_i32 s4, s7, 11
    s_lshr_b32 s4, s4, 5
    s_mul_i32 s5, s4, 3
    s_sub_u32 s5, s7, s5
    s_sub_u32 s11, s7, s4
    s_sub_u32 s11, s11, 1
    ''')
    a('''
    s_mul_i32 s12, s4, 288
    s_mul_i32 s13, s11, 144
    s_add_u32 s13, s13, 1152
    s_cmp_eq_u32 s5, 0
    s_cselect_b32 s12, s12, s13
    s_cselect_b32 s13, 0, 1008
    s_lshl_b32 s8, s3, 12
    s_lshl_b32 s9, s3, 9
    ''')
    a('''
    v_and_b32 v10, 15, v1
    v_lshrrev_b32 v11, 4, v1
    ''')
    a('''
    s_lshl_b32 s14, s6, 7
    s_lshl_b32 s15, s3, 5
    s_add_u32 s14, s14, s15
    v_lshrrev_b32 v13, 3, v1
    v_and_b32 v14, 7, v1
    v_add_u32 v12, s14, v13
    v_mul_u32_u24 v12, 1152, v12
    v_lshl_add_u32 v2, v14, 4, v12
    s_mov_b32 s64, 0
    s_mov_b32 s65, 9216
    s_mov_b32 s66, 18432
    s_mov_b32 s67, 27648
    s_lshl_b32 s15, s3, 11
    s_add_u32 s15, s15, %d
    v_xor_b32 v14, v14, v13
    v_lshlrev_b32 v14, 4, v14
    v_lshl_add_u32 v14, v13, 7, v14
    v_add_u32 v3, s15, v14
    v_and_b32 v13, 7, v10
    v_xor_b32 v13, v13, v11
    v_lshlrev_b32 v14, 7, v10
    v_add_u32 v14, s15, v14
    v_lshl_add_u32 v241, v13, 4, v14
    v_xor_b32 v13, 4, v13
    v_lshl_add_u32 v242, v13, 4, v14
    ''' % SCR)
    a('s_waitcnt lgkmcnt(0)')
    srd(a, S_SX, P_X, 2048 * 576 * 2)
    if not NOMEM:
        for c in range(2):
            for q in range(4):
                a('buffer_load_dwordx4 %s, v%d, %s, s%d offen offset:%d' % (vr(V_XR + c * 16 + 4 * q, 4), V_XOFF, sr(S_SX, 4), 64 + q, c * 128))
    def dma_addr(dst):
        a('''
        v_and_b32 v12, 0x33, v13
        v_and_b32 v15, 4, v13
        v_lshl_or_b32 v12, v15, 1, v12
        v_bfe_u32 v15, v13, 3, 1
        v_lshl_or_b32 v12, v15, 2, v12
        v_cmp_le_u32 vcc, 9, v14
        v_mul_u32_u24 v12, 3456, v12
        v_lshl_add_u32 v12, v14, 4, v12
        v_cndmask_b32 v15, v244, v245, vcc
        v_add_u32 v%d, v12, v15
        ''' % dst)
    a('''
    v_mov_b32 v244, s12
    s_add_u32 s15, s12, s13
    v_mov_b32 v245, s15
    s_lshl_b32 s15, s3, 8
    v_add_u32 v12, s15, v1
    v_mul_u32_u24 v13, 3641, v12
    v_lshrrev_b32 v13, 16, v13
    v_mul_u32_u24 v14, 18, v13
    v_sub_u32 v14, v12, v14
    ''')
    for i in range(4):
        dma_addr(V_DMA + i)
        if i < 3:
            a('''
            v_add_u32 v14, 10, v14
            v_cmp_le_u32 vcc, 18, v14
            v_subrev_u32 v15, 18, v14
            v_add_u32 v13, 3, v13
            v_cndmask_b32 v14, v14, v15, vcc
            v_addc_co_u32 v13, vcc, 0, v13, vcc
            ''')
    a('''
    s_lshl_b32 s15, s3, 5
    s_add_u32 s15, s15, 1024
    v_add_u32 v12, s15, v1
    v_mul_u32_u24 v13, 3641, v12
    v_lshrrev_b32 v13, 16, v13
    v_mul_u32_u24 v14, 18, v13
    v_sub_u32 v14, v12, v14
    ''')
    dma_addr(V_DMA + 4)
    a('''
    v_lshrrev_b32 v12, 2, v10
    v_and_b32 v13, 1, v11
    v_lshl_add_u32 v12, v13, 2, v12
    v_lshrrev_b32 v13, 1, v11
    v_lshl_add_u32 v12, v13, 4, v12
    v_mul_u32_u24 v12, 288, v12
    v_and_b32 v13, 3, v1
    v_lshl_add_u32 v9, v13, 3, v12
    v_add_u32 v240, 36864, v9
    ''')
    srd(a, S_SW, P_W, 576 * 1728 * 2)
    srd(a, S_SWS, P_WS, WS_END)
    a('s_mov_b32 s60, 0x%x' % f32bits(LOG2E))
    a('s_mov_b32 s61, 0x%x' % f32bits(LOG2E))
    a('s_mov_b32 s62, 0x%x' % f32bits(1e-6))
    a('s_mov_b32 s63, 0x%x' % f32bits(1e-6))
    a('s_cmp_eq_u32 s5, 0')
    a('s_cbranch_scc0 K1_GEMM_KV')

    if QPRIO >= 0: a('s_setprio %d' % QPRIO)
    gemm_main(a, True)
    a('s_setprio 0')
    P = lambda rt, j: V_A + (rt * 9 + j) * 2
    allp = []
    for rt in range(2):
        for j in range(9):
            acc = V_ACC + (rt * 9 + j) * 4
            allp.append((acc, acc + 1, P(rt, j)))
            allp.append((acc + 2, acc + 3, P(rt, j) + 1))
    RS = 304
    a('''
    s_mul_i32 s15, s3, 9728
    v_mul_u32_u24 v12, %d, v10
    v_lshl_add_u32 v12, v11, 3, v12
    v_add_u32 v12, s15, v12
    s_mul_i32 s64, s14, 1152
    s_add_u32 s64, s64, s12
    s_barrier
    ''' % RS)
    a('v_mov_b32 v%d, -1' % V_PMIN)
    for b in range(0, 36, 6):
        phi_batch(a, allp[b:b + 6], V_T, 60, 62)
    phi_fix(a, [d for (x, y, d) in allp], V_T, 62, 'K1_QFIX')
    for t in range(18):
        rt, j = t // 9, t % 9
        a('ds_write_b64 v12, %s offset:%d' % (vr(P(rt, j), 2), rt * 16 * RS + 32 * j))
    if not S3: a.stamp(6)
    for i in range(9):
        a('''
        v_add_u32 v13, %d, v1
        v_mul_u32_u24 v14, 3641, v13
        v_lshrrev_b32 v14, 16, v14
        v_mul_u32_u24 v15, 18, v14
        v_sub_u32 v15, v13, v15
        v_lshlrev_b32 v15, 4, v15
        v_mul_u32_u24 v13, %d, v14
        v_add3_u32 v13, v13, v15, s15
        v_mul_u32_u24 v14, 1152, v14
        v_add_u32 v%d, v14, v15
        ds_read_b128 %s, v13
        ''' % (64 * i, RS, V_T + i, vr(V_ACC + 4 * i, 4)))
    for i in range(9):
        a('s_waitcnt lgkmcnt(%d)' % (8 - i))
        a('buffer_store_dwordx4 %s, v%d, %s, s64 offen' % (vr(V_ACC + 4 * i, 4), V_T + i, sr(S_SWS, 4)))
    a.endpgm()

    a.label('K1_GEMM_KV')
    gemm_main(a, False)
    a('''
    s_lshl_b32 s98, s6, 1
    s_and_b32 s99, s11, 1
    s_add_u32 s98, s98, s99
    s_lshr_b32 s99, s11, 1
    s_lshl_b32 s99, s99, 5
    s_add_u32 s99, s99, s98
    s_lshl_b32 s99, s99, 7
    s_add_u32 s99, s99, 0x%x
    v_mov_b32 v12, 0
    s_mov_b64 exec, 1
    buffer_store_dword v12, v12, %s, s99 offen sc1
    s_mov_b64 exec, -1
    ''' % (WS_GO3, sr(S_SWS, 4)))
    O = lambda j: V_A + 4 * j
    pk = []
    for j in range(5):
        for rt in range(2):
            acc = V_ACC + (rt * 9 + j) * 4
            pk.append((acc, acc + 1, O(j) + 2 * rt))
            pk.append((acc + 2, acc + 3, O(j) + 2 * rt + 1))
    a('v_mov_b32 v%d, -1' % V_PMIN)
    phi_batch(a, pk[0:8], V_T, 60, 62)
    phi_batch(a, pk[8:16], V_T, 60, 62)
    RAW = V_A + 40
    phi_batch(a, pk[16:20], V_T, 60, 62, keep_raw=[RAW + i for i in range(4)])
    phi_fix(a, [d for (x, y, d) in pk], V_T, 62, 'K1_KFIX')
    a('v_cmp_gt_u32 vcc, 8, v10')
    for j in range(5, 9):
        for rt in range(2):
            acc = V_ACC + (rt * 9 + j) * 4
            a('v_cvt_pk_bf16_f32 v%d, v%d, v%d' % (O(j) + 2 * rt, acc, acc + 1))
            a('v_cvt_pk_bf16_f32 v%d, v%d, v%d' % (O(j) + 2 * rt + 1, acc + 2, acc + 3))
    for i in range(4):
        a('v_cndmask_b32 v%d, v%d, v%d, vcc' % (O(4) + i, RAW + i, O(4) + i))
    a.nop(2)
    pairs = PAIRS
    KV = lambda p: V_ACC + 4 * p
    for p, (ta, tb) in enumerate(pairs):
        a('v_mfma_f32_16x16x32_bf16 %s, %s, %s, 0' % (vr(KV(p), 4), vr(O(ta), 4), vr(O(tb), 4)))
    a('s_mov_b32 s64, 0x3f803f80')
    Z = V_T
    for t in range(5):
        a('v_dot2_f32_bf16 v%d, v%d, s64, 0' % (Z + t, O(t)))
    for i in range(1, 4):
        for t in range(5):
            a('v_dot2_f32_bf16 v%d, v%d, s64, v%d' % (Z + t, O(t) + i, Z + t))
    if not S3: a.stamp(6)
    a('s_barrier')
    a('''
    s_lshl_b32 s15, s3, 10
    v_lshlrev_b32 v12, 4, v1
    v_add_u32 v13, s15, v12
    ''')
    for p in range(13):
        a('ds_write_b128 v13, %s offset:%d' % (vr(KV(p), 4), p * 4096))
    a('''
    s_lshl_b32 s15, s3, 2
    v_add_u32 v14, s15, v11
    v_mul_u32_u24 v14, 320, v14
    v_lshl_add_u32 v14, v10, 2, v14
    ''')
    for t in range(5):
        a('ds_write_b32 v14, v%d offset:%d' % (Z + t, 53248 + 64 * t))
    a('s_waitcnt lgkmcnt(0)')
    a('s_barrier')
    a('s_lshl_b32 s68, s6, 3')
    a('s_add_u32 s68, s68, s11')
    a('s_mul_i32 s68, s68, %d' % KVP_REC)
    a('s_add_u32 s68, s68, 0x%x' % WS_KVP)
    a('s_lshl_b32 s15, s3, 12')
    a('v_add_u32 v13, s15, v12')
    a('s_lshl_b32 s15, s3, 10')
    a('v_add_u32 v14, s15, v12')
    done = a.newlabel('K1_KVZ')
    for it in range(3):
        R = V_A + 16 * it
        for w in range(4):
            a('ds_read_b128 %s, v13 offset:%d' % (vr(R + 4 * w, 4), it * 16384 + w * 1024))
    def red_store(it):
        R = V_A + 16 * it
        a('v_pk_add_f32 %s, %s, %s' % (vr(R, 2), vr(R, 2), vr(R + 4, 2)))
        a('v_pk_add_f32 %s, %s, %s' % (vr(R + 2, 2), vr(R + 2, 2), vr(R + 6, 2)))
        a('v_pk_add_f32 %s, %s, %s' % (vr(R + 8, 2), vr(R + 8, 2), vr(R + 12, 2)))
        a('v_pk_add_f32 %s, %s, %s' % (vr(R + 10, 2), vr(R + 10, 2), vr(R + 14, 2)))
        a('v_pk_add_f32 %s, %s, %s' % (vr(R, 2), vr(R, 2), vr(R + 8, 2)))
        a('v_pk_add_f32 %s, %s, %s' % (vr(R + 2, 2), vr(R + 2, 2), vr(R + 10, 2)))
        a('s_add_u32 s69, s68, %d' % (4096 * it))
        a('buffer_store_dwordx4 %s, v14, %s, s69 offen sc1' % (vr(R, 4), sr(S_SWS, 4)))
    for it in range(3):
        a('s_waitcnt lgkmcnt(%d)' % (8 - 4 * it))
        red_store(it)
    a('s_cmp_lg_u32 s3, 0')
    a('s_cbranch_scc1 %s' % done)
    for w in range(4):
        a('ds_read_b128 %s, v13 offset:%d' % (vr(V_A + 48 + 4 * w, 4), 3 * 16384 + w * 1024))
    a('s_waitcnt lgkmcnt(0)')
    red_store(3)
    a('s_branch K1_KVFIN')
    a.label(done)
    a('s_cmp_lt_u32 s3, 2')
    fin = a.newlabel('K1_KVEND')
    a('s_cbranch_scc1 %s' % fin)
    a('''
    v_subrev_u32 v14, 128, v0
    v_cmp_gt_u32 vcc, 80, v14
    s_and_saveexec_b64 s[74:75], vcc
    s_cbranch_execz %s
    v_lshlrev_b32 v15, 2, v14
    ''' % fin)
    for i in range(16):
        a('ds_read_b32 v%d, v15 offset:%d' % (V_T + i, 53248 + 320 * i))
    a('s_add_u32 s69, s68, 13312')
    a('s_waitcnt lgkmcnt(0)')
    for st in (8, 4, 2, 1):
        for i in range(st):
            a('v_add_f32 v%d, v%d, v%d' % (V_T + i, V_T + i, V_T + i + st))
    a('buffer_store_dword v%d, v15, %s, s69 offen sc1' % (V_T, sr(S_SWS, 4)))
    a.label(fin)
    a.label('K1_KVFIN')
    srd(a, 48, P_DBG, 256)
    a('''
    s_mov_b64 exec, -1
    s_waitcnt vmcnt(0)
    s_barrier
    v_mov_b32 v3, 0
    s_cmp_lg_u32 s3, 0
    s_cbranch_scc1 K1_KVW
    v_mov_b32 v2, 1
    s_lshr_b32 s12, s11, 1
    s_lshl_b32 s12, s12, 4
    s_add_u32 s12, s12, 160
    s_mov_b64 exec, 1
    buffer_atomic_add v2, v3, s[48:51], s12 offen sc0 sc1
    s_waitcnt vmcnt(0)
    v_readfirstlane_b32 s12, v2
    s_mov_b64 exec, -1
    s_cmp_lg_u32 s12, 31
    s_cbranch_scc1 K1_KVP
    v_mov_b32 v2, 1
    v_lshlrev_b32 v4, 7, v1
    s_lshr_b32 s12, s11, 1
    s_lshl_b32 s12, s12, 12
    s_add_u32 s12, s12, 0x%x
    s_mov_b32 exec_hi, 0
    buffer_store_dword v2, v4, %s, s12 offen sc1
    s_mov_b32 exec_hi, -1
    s_branch K1_KVW
    ''' % (WS_GO3, sr(S_SWS, 4)))
    a.label('K1_KVP')
    a('''
    s_cmp_ge_u32 s98, 22
    s_cbranch_scc1 K1_KVEXIT
    s_mov_b32 s72, 0
    s_mov_b64 exec, 1
    ''')
    a.label('K1_KVPL')
    a('''
    buffer_load_dword v2, v3, %s, s99 offen sc1
    s_add_u32 s72, s72, 1
    s_waitcnt vmcnt(0)
    v_readfirstlane_b32 s12, v2
    s_cmp_eq_u32 s12, 1
    s_cbranch_scc1 K1_KVW
    s_cmp_gt_u32 s72, 0x8000
    s_cbranch_scc1 K1_KVW
    s_sleep 2
    s_branch K1_KVPL
    ''' % sr(S_SWS, 4))
    a.label('K1_KVW')
    a('''
    s_mov_b64 exec, -1
    s_cmp_ge_u32 s98, 22
    s_cbranch_scc1 K1_KVEXIT
    s_barrier
    v_lshlrev_b32 v3, 4, v1
    s_lshr_b32 s12, s11, 1
    s_mul_i32 s12, s12, 22
    s_add_u32 s15, s12, s98
    ''')
    reduce_task(a)
    a.label('K1_KVEXIT')
    a.endpgm()


KG_ROW = 272
KG_LO = 32 * KG_ROW
KG_WAVE = KG_LO + 21 * KG_ROW + 16 * 0
KLB = lambda q: 4608 * q
RA = 9216
XTL = RA + 4 * KG_WAVE
CSZ = 4160
UCB = lambda q: RA + 4 * CSZ * q
L_RED = RA + 8 * CSZ


def cmul(a, d, x, y, t):
    a('v_pk_mul_f32 %s, %s, %s op_sel:[1,1] op_sel_hi:[1,0]' % (vr(t, 2), vr(x, 2), vr(y, 2)))
    a('v_pk_fma_f32 %s, %s, %s, %s op_sel:[0,0,0] op_sel_hi:[0,1,1] neg_lo:[0,0,1]' % (vr(d, 2), vr(x, 2), vr(y, 2), vr(t, 2)))


def split_write(a, rows, tmp, vaddr, s_c1, s_c2, base=0):
    for i, (r, p) in enumerate(rows):
        a('v_cvt_pk_f16_f32 v%d, v%d, v%d' % (tmp + i, p, p + 1))
    for i, (r, p) in enumerate(rows):
        a('ds_write_b32 v%d, v%d offset:%d' % (vaddr, tmp + i, base + r * KG_ROW))


def deval(a, items, L, tmp):
    for i, (A, d) in enumerate(items):
        a('v_mul_f32 v%d, 0x%x, v%d' % (tmp + 4 * i, f32bits(float(A)), L))
        a('v_mul_f32 v%d, 0x%x, v%d' % (tmp + 4 * i + 1, f32bits(float(A)), L + 1))
    for i, (A, d) in enumerate(items):
        a('v_fract_f32 v%d, v%d' % (tmp + 4 * i + 1, tmp + 4 * i + 1))
        a('v_exp_f32 v%d, v%d' % (tmp + 4 * i, tmp + 4 * i))
    for i, (A, d) in enumerate(items):
        a('v_cos_f32 v%d, v%d' % (tmp + 4 * i + 2, tmp + 4 * i + 1))
        a('v_sin_f32 v%d, v%d' % (tmp + 4 * i + 3, tmp + 4 * i + 1))
    a.nop(1)
    for i, (A, d) in enumerate(items):
        a('v_pk_mul_f32 %s, %s, %s op_sel:[0,0] op_sel_hi:[0,1]' % (vr(d, 2), vr(tmp + 4 * i, 2), vr(tmp + 4 * i + 2, 2)))


def prep_part(a):
    a.label('K1_PREP')
    if NOPREP: a('s_endpgm')
    a('s_setprio %d' % IPRIO)
    if TOUCH:
        a('''
        s_and_b32 s64, s2, 7
        s_lshr_b32 s65, s2, 3
        s_lshl_b32 s65, s65, 2
        s_add_u32 s65, s65, s3
        s_lshl_b32 s67, s65, 6
        v_add_u32 v28, s67, v1
        v_mul_u32_u24 v29, 34953, v28
        v_lshrrev_b32 v29, 19, v29
        v_mul_u32_u24 v30, 15, v29
        v_sub_u32 v30, v28, v30
        v_mul_u32_u24 v31, 52, v30
        v_lshrrev_b32 v31, 8, v31
        v_mul_u32_u24 v32, 5, v31
        v_sub_u32 v32, v30, v32
        v_mul_u32_u24 v29, 3456, v29
        v_mul_u32_u24 v31, 1152, v31
        v_add_u32 v29, v29, v31
        v_lshl_add_u32 v29, v32, 7, v29
        s_lshr_b32 s66, s64, 2
        s_lshl_b32 s66, s66, 9
        s_and_b32 s67, s64, 3
        s_mul_i32 s67, s67, 589824
        s_lshl_b32 s65, s65, 12
        s_add_u32 s67, s67, s65
        v_lshlrev_b32 v28, 7, v1
        s_waitcnt lgkmcnt(0)
        ''')
        srd(a, 48, P_X, 2048 * 576 * 2)
        srd(a, 52, P_W, 576 * 1728 * 2)
    a('s_mov_b32 s4, s2')
    a('''
    s_mul_i32 s5, s4, 7282
    s_lshr_b32 s5, s5, 16
    s_mul_i32 s6, s5, 9
    s_sub_u32 s6, s4, s6
    s_lshr_b32 s7, s3, 1
    s_lshl_b32 s78, s6, 5
    s_add_u32 s78, s78, s5
    s_lshl_b32 s8, s78, 1
    s_add_u32 s8, s8, s7
    s_and_b32 s9, s3, 1
    s_mul_i32 s10, s3, %d
    s_add_u32 s10, s10, %d
    v_and_b32 v10, 15, v1
    v_lshrrev_b32 v11, 4, v1
    ''' % (KG_WAVE, RA))
    a('''
    s_lshl_b32 s11, s8, 8
    s_lshl_b32 s12, s9, 7
    s_add_u32 s11, s11, s12
    v_lshl_add_u32 v2, v1, 1, s11
    s_lshl_b32 s12, s78, 2
    s_waitcnt lgkmcnt(0)
    s_load_dword s13, s[36:37], s12
    s_load_dword s97, s[38:39], s12
    global_load_ushort v12, v2, s[24:25]
    global_load_ushort v13, v2, s[26:27]
    global_load_ushort v14, v2, s[28:29]
    global_load_ushort v15, v2, s[30:31]
    global_load_ushort v16, v2, s[32:33]
    global_load_ushort v17, v2, s[34:35]
    ''')
    a('''
    s_lshl_b32 s11, s5, 6
    s_lshl_b32 s12, s3, 4
    s_add_u32 s11, s11, s12
    v_lshrrev_b32 v3, 3, v1
    v_add_u32 v3, s11, v3
    v_mul_u32_u24 v3, 1152, v3
    v_and_b32 v4, 7, v1
    v_lshl_add_u32 v3, v4, 4, v3
    s_lshl_b32 s11, s6, 7
    v_add_u32 v3, s11, v3
    v_add_u32 v4, 9216, v3
    global_load_dwordx4 v[20:23], v3, s[16:17]
    global_load_dwordx4 v[24:27], v4, s[16:17]
    ''')
    GX, GW = 176, 212
    nog = a.newlabel('K1_NOG')
    a('''
    s_cmp_eq_u32 s3, 3
    s_cselect_b32 s14, 1, 0
    s_cmp_lt_u32 s4, 256
    s_cselect_b32 s14, s14, 0
    s_cmp_eq_u32 s14, 0
    s_cbranch_scc1 %s
    s_lshl_b32 s11, s4, 3
    v_lshrrev_b32 v4, 3, v1
    v_add_u32 v4, s11, v4
    v_mul_u32_u24 v5, 1152, v4
    v_and_b32 v6, 7, v1
    v_lshlrev_b32 v6, 4, v6
    v_add_u32 v5, v5, v6
    ''' % nog)
    for i in range(9):
        a('global_load_dwordx4 %s, v5, s[16:17] offset:%d' % (vr(GX + 4 * i, 4), 128 * i))
        a('global_load_dwordx4 %s, v6, s[40:41] offset:%d' % (vr(GW + 4 * i, 4), 128 * i))
    a.label(nog)
    if TOUCH:
        a('''
        buffer_load_dword v78, v29, s[52:55], s66 offen
        s_mov_b32 exec_hi, 0
        buffer_load_dword v79, v28, s[48:51], s67 offen
        s_mov_b32 exec_hi, -1
        ''')
    srd(a, S_SWS, P_WS, WS_END)
    a('s_mov_b32 s60, 0x0000bf80')
    a('s_mov_b32 s61, 0xbf800000')
    a.stamp(1)
    a('s_waitcnt vmcnt(%d) lgkmcnt(0)' % (2 if TOUCH else 0))
    a.stamp(2)
    a('''
    s_lshl_b32 s11, s3, 11
    s_add_u32 s11, s11, %d
    v_lshl_add_u32 v7, v1, 4, s11
    ds_write_b128 v7, v[20:23]
    ds_write_b128 v7, v[24:27] offset:1024
    v_lshrrev_b32 v8, 2, v10
    v_lshl_add_u32 v8, v11, 4, v8
    v_lshlrev_b32 v8, 7, v8
    v_and_b32 v9, 3, v1
    v_lshl_add_u32 v8, v9, 3, v8
    s_lshl_b32 s11, s3, 5
    s_add_u32 s11, s11, %d
    v_add_u32 v8, s11, v8
    s_waitcnt lgkmcnt(0)
    s_barrier
    ds_read_b64_tr_b16 v[20:21], v8
    ds_read_b64_tr_b16 v[22:23], v8 offset:512
    ds_read_b64_tr_b16 v[24:25], v8 offset:1024
    ds_read_b64_tr_b16 v[26:27], v8 offset:1536
    v_mul_u32_u24 v9, 144, v10
    v_lshl_add_u32 v9, v11, 5, v9
    v_add_u32 v9, s10, v9
    v_lshrrev_b32 v7, 3, v1
    v_mul_u32_u24 v8, 144, v7
    v_and_b32 v6, 7, v1
    v_lshl_add_u32 v8, v6, 4, v8
    v_add_u32 v8, s10, v8
    s_lshl_b32 s11, s6, 6
    s_lshl_b32 s12, s3, 4
    s_add_u32 s11, s11, s12
    v_add_u32 v7, s11, v7
    v_mul_u32_u24 v7, 4352, v7
    v_lshl_add_u32 v6, v6, 4, v7
    s_lshl_b32 s15, s5, 7
    s_add_u32 s15, s15, 0x%x
    s_add_u32 s98, s15, 34816
    s_waitcnt lgkmcnt(0)
    ds_write_b128 v9, v[20:23]
    ds_write_b128 v9, v[24:27] offset:16
    ds_read_b128 v[248:251], v8
    ds_read_b128 v[252:255], v8 offset:1152
    ''' % (XTL, XTL, WS_XT))
    a('s_waitcnt lgkmcnt(0)')
    a('buffer_store_dwordx4 v[248:251], v6, %s, s15 offen sc1' % sr(S_SWS, 4))
    a('buffer_store_dwordx4 v[252:255], v6, %s, s98 offen sc1' % sr(S_SWS, 4))
    a('''
    s_lshl_b32 s11, s78, 7
    s_add_u32 s11, s11, 0x%x
    s_lshl_b32 s12, s4, 7
    s_add_u32 s12, s12, 0x%x
    s_cmp_eq_u32 s3, 0
    s_cselect_b32 s11, s11, s12
    v_mov_b32 v2, 0
    s_mov_b64 exec, 1
    buffer_store_dword v2, v2, %s, s11 offen sc1
    s_mov_b64 exec, -1
    ''' % (WS_GO1, WS_GO2, sr(S_SWS, 4)))
    a('s_setprio %d' % PPRIO)
    a('''
    s_lshl_b32 s12, s7, 4
    s_lshr_b32 s13, s13, s12
    s_lshl_b32 s13, s13, 16
    v_mov_b32 v18, s13
    v_mul_f32 v18, 0x%x, v18
    v_exp_f32 v18, v18
    v_lshlrev_b32 v12, 16, v12
    v_lshlrev_b32 v13, 16, v13
    v_cvt_pk_bf16_f32 v18, v18, v18
    v_lshlrev_b32 v14, 16, v14
    v_lshlrev_b32 v15, 16, v15
    v_lshlrev_b32 v18, 16, v18
    v_lshlrev_b32 v16, 16, v16
    v_lshlrev_b32 v17, 16, v17
    v_mul_f32 v12, v18, v12
    v_mul_f32 v13, v18, v13
    v_mul_f32 v14, v18, v14
    v_mul_f32 v15, v18, v15
    v_mul_f32 v28, 0x%x, v12
    v_mul_f32 v29, 0x%x, v13
    v_mov_b32 v30, v28
    v_sub_f32 v31, 0, v29
    ''' % (f32bits(LOG2E), f32bits(LOG2E), f32bits(1.0 / (2 * math.pi))))
    L, LC = 28, 30
    X0 = 32
    cmul(a, X0, 16, 14, 34)
    a('v_sub_f32 v%d, 0, v%d' % (X0 + 1, X0 + 1))
    a('v_max_f32_e64 v34, abs(v%d), abs(v%d)' % (X0, X0 + 1))
    for dpp in ('quad_perm:[1,0,3,2]', 'quad_perm:[2,3,0,1]', 'row_half_mirror', 'row_mirror'):
        a.nop(2)
        a('v_max_f32_dpp v34, v34, v34 %s row_mask:0xf bank_mask:0xf' % dpp)
    a.nop(1)
    a('''
    v_readlane_b32 s64, v34, 0
    v_readlane_b32 s65, v34, 16
    v_readlane_b32 s66, v34, 32
    v_readlane_b32 s67, v34, 48
    s_nop 3
    s_max_u32 s64, s64, s65
    s_max_u32 s66, s66, s67
    s_max_u32 s64, s64, s66
    s_lshr_b32 s64, s64, 23
    s_sub_u32 s64, 263, s64
    s_min_u32 s64, s64, 227
    s_max_u32 s64, s64, 27
    s_lshl_b32 s66, s64, 23
    s_mov_b32 s67, s66
    s_sub_u32 s99, 254, s64
    s_lshl_b32 s99, s99, 23
    v_pk_mul_f32 v[32:33], v[32:33], s[66:67]
    ''')
    a('v_lshl_add_u32 v7, v1, 2, s10')
    YB = 40
    Y = lambda b: YB + 2 * b
    TMP = 80
    T2 = 112
    OUT = 128
    deval(a, [(8, Y(1)), (16, Y(2)), (32, Y(4)), (64, Y(8)), (128, Y(16))], L, TMP)
    srd(a, 48, P_DBG, 256)
    nopub = a.newlabel('K1_NOPUB')
    a('''
    s_waitcnt vmcnt(0)
    s_barrier
    s_cmp_lg_u32 s3, 1
    s_cbranch_scc1 %s
    v_mov_b32 v2, 1
    v_mov_b32 v3, 0
    s_lshl_b32 s11, s6, 4
    s_mov_b64 exec, 1
    buffer_atomic_add v2, v3, s[48:51], s11 offen sc0 sc1
    s_waitcnt vmcnt(0)
    v_readfirstlane_b32 s11, v2
    s_mov_b64 exec, -1
    s_cmp_lg_u32 s11, 31
    s_cbranch_scc1 %s
    v_mov_b32 v2, 1
    v_lshlrev_b32 v3, 7, v1
    s_lshl_b32 s11, s6, 12
    s_add_u32 s11, s11, 0x%x
    s_mov_b32 exec_hi, 0
    buffer_store_dword v2, v3, %s, s11 offen sc1
    s_mov_b32 exec_hi, -1
    ''' % (nopub, nopub, WS_GO1, sr(S_SWS, 4)))
    a.label(nopub)
    a('s_setprio %d' % PPRIO)
    a('v_mov_b32 v%d, 0x3c00' % TMP)
    a('ds_write_b32 v7, v%d' % TMP)
    cmul(a, Y(3), Y(2), Y(1), T2)
    cmul(a, Y(5), Y(4), Y(1), T2 + 2)
    cmul(a, Y(6), Y(4), Y(2), T2 + 4)
    cmul(a, Y(9), Y(8), Y(1), T2 + 6)
    cmul(a, Y(10), Y(8), Y(2), T2 + 8)
    cmul(a, Y(12), Y(8), Y(4), T2 + 10)
    cmul(a, Y(7), Y(4), Y(3), T2)
    cmul(a, Y(11), Y(8), Y(3), T2 + 2)
    cmul(a, Y(13), Y(8), Y(5), T2 + 4)
    cmul(a, Y(14), Y(8), Y(6), T2 + 6)
    cmul(a, Y(15), Y(8), Y(7), T2 + 8)
    split_write(a, [(b, Y(b)) for b in range(1, 9)], TMP, 7, 60, 61)
    split_write(a, [(b, Y(b)) for b in range(9, 17)], TMP, 7, 60, 61)
    for b0 in (1, 9):
        bs = [b for b in range(b0, b0 + 8) if b <= 15]
        for i, b in enumerate(bs):
            cmul(a, OUT + 2 * i, Y(16), Y(b), T2 + 2 * i)
        split_write(a, [(16 + b, OUT + 2 * i) for i, b in enumerate(bs)], TMP, 7, 60, 61)
    a.stamp(3)
    a('''
    v_and_b32 v8, 31, v1
    v_mul_u32_u24 v8, %d, v8
    v_lshrrev_b32 v9, 5, v1
    v_lshl_add_u32 v8, v9, 4, v8
    v_add_u32 v8, s10, v8
    ''' % KG_ROW)
    BF = 112
    for k in range(8):
        a('ds_read_b128 %s, v8 offset:%d' % (vr(BF + 4 * k, 4), 32 * k))
    E = {1: 12, 2: 14, 4: 16, 256: 18, 512: 20, 1024: 22, 2048: 24}
    deval(a, [(A, r) for A, r in E.items()], LC, TMP)
    XR = lambda r: 36 + 2 * r
    def X(r): return X0 if r == 0 else XR(r)
    T3 = 2
    tp = [2, 4, 26, 34]
    seq = [(1, 0, 256), (2, 0, 512), (4, 0, 1024), (8, 0, 2048), (9, 0, 4), (13, 0, 2), (17, 0, 1),
           (3, 2, 256), (5, 1, 1024), (6, 2, 1024), (10, 1, 4), (11, 2, 4), (14, 1, 2), (15, 9, 2), (18, 13, 1), (19, 9, 1),
           (7, 3, 1024), (12, 3, 4), (16, 10, 2), (20, 15, 1)]
    for i, (r, src, A) in enumerate(seq):
        cmul(a, X(r), X(src), E[A], tp[i % 4])
    split_write(a, [(r, X(r)) for r in range(0, 21)], TMP, 7, 60, 61, base=KG_LO)
    a.stamp(4)
    AF = 144
    for k in range(8):
        a('ds_read_b128 %s, v8 offset:%d' % (vr(AF + 4 * k, 4), KG_LO + 32 * k))
    ACC = 80
    for k in range(8):
        a('s_waitcnt lgkmcnt(%d)' % (7 - k))
        cin = '0' if k == 0 else vr(ACC, 16)
        a('v_mfma_f32_32x32x16_f16 %s, %s, %s, %s' % (vr(ACC, 16), vr(AF + 4 * k, 4), vr(BF + 4 * k, 4), cin))
    a.nop(16)
    a.stamp(5)
    if TOUCH:
        srd(a, 52, P_WO, 576 * 576 * 2)
        a('''
        s_lshr_b32 s65, s2, 3
        s_lshl_b32 s65, s65, 2
        s_add_u32 s65, s65, s3
        s_mul_i32 s65, s65, 4608
        v_lshlrev_b32 v101, 7, v1
        s_mov_b32 exec_hi, 0xf
        buffer_load_dword v78, v101, s[52:55], s65 offen
        s_mov_b64 exec, -1
        ''')
    even = a.newlabel('K1_EVEN')
    a('s_mov_b32 s66, s99')
    a('s_mov_b32 s67, s99')
    for i in range(0, 12, 2):
        a('v_pk_mul_f32 %s, %s, s[66:67]' % (vr(ACC + i, 2), vr(ACC + i, 2)))
    a('v_lshlrev_b32 v9, 4, v1')
    a('s_cmp_eq_u32 s9, 0')
    a('s_cbranch_scc1 %s' % even)
    a('v_add_u32 v9, s10, v9')
    for i in range(3):
        a('ds_write_b128 v9, %s offset:%d' % (vr(ACC + 4 * i, 4), 1024 * i))
    conv_inputs(a, 'O')
    a('s_mov_b64 exec, -1')
    a('s_waitcnt lgkmcnt(0)')
    a('s_barrier')
    conv_loads(a)
    endl = a.newlabel('K1_PEND')
    nosel = a.newlabel('K1_NOSEL')
    zf = a.newlabel('K1_ZF')
    a('''
    s_cmp_lg_u32 s3, 1
    s_cbranch_scc1 %s
    s_cmp_gt_u32 s4, 9
    s_cbranch_scc1 %s
    s_cmp_eq_u32 s4, 9
    s_cbranch_scc1 %s
    s_lshl_b32 s11, s4, 4
    v_add_u32 v12, s11, v10
    v_mul_u32_u24 v12, 57, v12
    v_lshrrev_b32 v12, 10, v12
    v_lshrrev_b32 v13, 1, v12
    v_cmp_eq_u32 vcc, v13, v11
    v_and_b32 v13, 1, v12
    v_lshlrev_b32 v13, 4, v13
    v_mov_b32 v14, 0x3f80
    v_lshlrev_b32 v13, v13, v14
    v_cndmask_b32 v16, 0, v13, vcc
    v_mov_b32 v17, v16
    v_mov_b32 v18, v16
    v_mov_b32 v19, v16
    v_lshlrev_b32 v12, 4, v1
    s_lshl_b32 s11, s4, 10
    s_add_u32 s11, s11, 0x%x
    buffer_store_dwordx4 v[16:19], v12, %s, s11 offen
    s_branch %s
    ''' % (nosel, endl, zf, WS_SEL, sr(S_SWS, 4), endl))
    a.label(zf)
    a('''
    v_mov_b32 v16, 0
    v_mov_b32 v17, 0
    v_mov_b32 v18, 0
    v_mov_b32 v19, 0
    v_lshlrev_b32 v12, 4, v1
    s_mov_b32 s11, 0x%x
    buffer_store_dwordx4 v[16:19], v12, %s, s11 offen
    buffer_store_dwordx4 v[16:19], v12, %s, s11 offen offset:1024
    buffer_store_dwordx4 v[16:19], v12, %s, s11 offen offset:2048
    buffer_store_dwordx4 v[16:19], v12, %s, s11 offen offset:3072
    s_add_u32 s11, s11, 4096
    buffer_store_dwordx4 v[16:19], v12, %s, s11 offen
    s_branch %s
    ''' % ((WS_FLG,) + (sr(S_SWS, 4),) * 5 + (endl,)))
    a.label(nosel)
    a('s_cmp_eq_u32 s14, 0')
    a('s_cbranch_scc1 %s' % endl)
    a('s_mov_b32 s62, 0x3f803f80')
    a('v_mov_b32 v12, 0')
    a('v_mov_b32 v13, 0')
    for i in range(0, 36, 4):
        for k in range(4):
            a('v_and_b32 v%d, 0xffff, v%d' % (20 + 2 * k, GW + i + k))
            a('v_and_b32 v%d, 0xffff0000, v%d' % (21 + 2 * k, GW + i + k))
        for k in range(4):
            a('v_dot2_f32_bf16 v%d, v%d, v%d, 0' % (30 + 2 * k, GX + i + k, 20 + 2 * k))
            a('v_dot2_f32_bf16 v%d, v%d, v%d, 0' % (31 + 2 * k, GX + i + k, 21 + 2 * k))
        a.nop(3)
        for k in range(4):
            a('v_cvt_pk_bf16_f32 v%d, v%d, v%d' % (40 + k, 30 + 2 * k, 31 + 2 * k))
        a('v_dot2_f32_bf16 v12, v40, s62, v12')
        a('v_dot2_f32_bf16 v13, v41, s62, v13')
        a('v_dot2_f32_bf16 v12, v42, s62, v12')
        a('v_dot2_f32_bf16 v13, v43, s62, v13')
    a.nop(3)
    a('v_add_f32 v12, v12, v13')
    a.nop(2)
    a('v_add_f32_dpp v12, v12, v12 quad_perm:[1,0,3,2] row_mask:0xf bank_mask:0xf')
    a.nop(2)
    a('v_add_f32_dpp v12, v12, v12 quad_perm:[2,3,0,1] row_mask:0xf bank_mask:0xf')
    a.nop(2)
    a('v_add_f32_dpp v12, v12, v12 row_half_mirror row_mask:0xf bank_mask:0xf')
    a('''
    v_cvt_pk_bf16_f32 v12, v12, v12
    v_lshlrev_b32 v12, 16, v12
    v_mul_f32 v12, 0x%x, v12
    v_exp_f32 v12, v12
    s_nop 0
    v_add_f32 v12, 1.0, v12
    v_rcp_f32 v12, v12
    s_nop 0
    v_cvt_pk_bf16_f32 v12, v12, v12
    v_lshlrev_b32 v12, 16, v12
    v_lshrrev_b32 v13, 3, v1
    v_lshlrev_b32 v13, 2, v13
    s_lshl_b32 s11, s4, 5
    s_add_u32 s11, s11, 0x%x
    v_and_b32 v14, 7, v1
    v_cmp_eq_u32 vcc, 0, v14
    s_and_saveexec_b64 s[74:75], vcc
    buffer_store_dword v12, v13, %s, s11 offen
    ''' % (f32bits(-LOG2E), WS_G, sr(S_SWS, 4)))
    a('s_mov_b64 exec, -1')
    a.label(endl)
    a('s_branch K1_CONV')
    a.label(even)
    a('s_add_u32 s11, s10, %d' % KG_WAVE)
    a('v_add_u32 v9, s11, v9')
    a('s_barrier')
    for i in range(3):
        a('ds_read_b128 %s, v9 offset:%d' % (vr(12 + 4 * i, 4), 1024 * i))
    conv_loads(a)
    a('''
    s_mov_b32 s64, 1
    s_mov_b32 s65, -1
    s_mov_b32 s66, -1
    s_mov_b32 s67, 0
    s_waitcnt lgkmcnt(0)
    ''')
    for i in range(0, 12, 2):
        a('v_pk_add_f32 %s, %s, %s' % (vr(ACC + i, 2), vr(ACC + i, 2), vr(12 + i, 2)))
    a('v_cndmask_b32 v%d, 0, v%d, s[64:65]' % (ACC + 4, ACC + 4))
    for i in (9, 10, 11):
        a('v_cndmask_b32 v%d, 0, v%d, s[66:67]' % (ACC + i, ACC + i))
    a('v_max3_f32 v12, abs(v%d), abs(v%d), abs(v%d)' % (ACC, ACC + 1, ACC + 2))
    a('v_max3_f32 v13, abs(v%d), abs(v%d), abs(v%d)' % (ACC + 3, ACC + 4, ACC + 5))
    a('v_max3_f32 v14, abs(v%d), abs(v%d), abs(v%d)' % (ACC + 6, ACC + 7, ACC + 8))
    a('v_max3_f32 v15, abs(v%d), abs(v%d), abs(v%d)' % (ACC + 9, ACC + 10, ACC + 11))
    a('v_max3_f32 v12, v12, v13, v14')
    a('v_max_f32 v12, v12, v15')
    for dpp in ('quad_perm:[1,0,3,2]', 'quad_perm:[2,3,0,1]', 'row_half_mirror', 'row_mirror'):
        a.nop(2)
        a('v_max_f32_dpp v12, v12, v12 %s row_mask:0xf bank_mask:0xf' % dpp)
    a.nop(2)
    a('''
    v_readlane_b32 s64, v12, 0
    v_readlane_b32 s65, v12, 16
    v_readlane_b32 s66, v12, 32
    v_readlane_b32 s67, v12, 48
    s_nop 3
    s_max_u32 s64, s64, s65
    s_max_u32 s66, s66, s67
    s_max_u32 s64, s64, s66
    s_lshr_b32 s64, s64, 23
    s_sub_u32 s64, 268, s64
    s_min_u32 s64, s64, 254
    s_lshl_b32 s66, s64, 23
    s_mov_b32 s67, s66
    ''')
    for i in range(0, 12, 2):
        a('v_pk_mul_f32 %s, %s, s[66:67]' % (vr(ACC + i, 2), vr(ACC + i, 2)))
    for i in range(0, 12, 2):
        a('v_cvt_pk_f16_f32 v%d, v%d, v%d' % (12 + i // 2, ACC + i, ACC + i + 1))
    a('''
    v_and_b32 v8, 31, v1
    v_lshlrev_b32 v8, 1, v8
    v_lshrrev_b32 v9, 5, v1
    v_lshl_add_u32 v8, v9, 8, v8
    v_add_u32 v8, s10, v8
    s_mul_i32 s11, s7, 4608
    ''')
    for r in range(12):
        off = (8 * (r >> 2) + (r & 3)) * 64
        if r % 2 == 0:
            a('ds_write_b16 v8, v%d offset:%d' % (12 + r // 2, off))
        else:
            a('ds_write_b16_d16_hi v8, v%d offset:%d' % (12 + r // 2, off))
    V0, V0N, V4, V2, V6, V1, V3, V5, V7 = 0, 1, 288, 416, 480, 544, 576, 608, 640
    C0 = [V0, V1, V2, V3, V4, V5, V6, V7]
    C1 = [V0, V0, V2, V4, V4, V4, V6, V0N]
    a('v_lshl_add_u32 v8, v1, 1, s10')
    a('s_mov_b32 s66, -1')
    a('s_mov_b32 s67, 0')
    for e in range(8):
        if C0[e] == C1[e]:
            a('ds_read_u16 v%d, v8 offset:%d' % (20 + e, 2 * C0[e]))
        else:
            a('v_mov_b32 v9, %d' % (2 * C1[e]))
            a('v_mov_b32 v11, %d' % (2 * C0[e]))
            a('v_cndmask_b32 v9, v9, v11, s[66:67]')
            a('v_add_u32 v9, v9, v8')
            a('ds_read_u16 v%d, v9' % (20 + e))
    a('ds_read_u16 v28, v8 offset:%d' % (2 * (64 + V0)))
    a('ds_read_u16 v29, v8 offset:%d' % (2 * (64 + V4)))
    a('ds_read_u16 v30, v8 offset:%d' % (2 * (64 + V0N)))
    for rd in (2, 3):
        a('ds_read_u16 v%d, v8 offset:%d' % (27 + 2 * rd, 2 * (64 * rd)))
        a('ds_read_u16 v%d, v8 offset:%d' % (28 + 2 * rd, 2 * (64 * rd + 1)))
    a('''
    v_lshl_add_u32 v9, v1, 4, s11
    v_and_b32 v11, 1, v1
    v_cmp_eq_u32 vcc, 0, v11
    v_mov_b32 v56, 0
    v_mov_b32 v57, 0
    v_mov_b32 v58, 0
    v_mov_b32 v59, 0
    s_mov_b32 s66, 0x10001
    s_waitcnt lgkmcnt(0)
    ''')
    for k in range(4):
        a('v_lshl_or_b32 v%d, v%d, 16, v%d' % (40 + k, 20 + 6 - 2 * k, 20 + 7 - 2 * k))
    a('v_mul_lo_u32 v44, v30, s66')
    a('v_mul_lo_u32 v45, v29, s66')
    a('v_lshl_or_b32 v46, v28, 16, v29')
    a('v_mul_lo_u32 v47, v28, s66')
    for rd in (2, 3):
        A, B, D = 27 + 2 * rd, 28 + 2 * rd, 40 + 4 * rd
        a('v_mul_lo_u32 v%d, v%d, s66' % (D, B))
        a('v_cndmask_b32 v11, v%d, v%d, vcc' % (B, A))
        a('v_mul_lo_u32 v%d, v%d, s66' % (D + 2, A))
        a('v_lshl_or_b32 v%d, v11, 16, v%d' % (D + 1, B))
        a('v_mov_b32 v%d, v%d' % (D + 3, D + 2))
    for rd in range(4):
        a('ds_write_b128 v9, %s offset:%d' % (vr(40 + 4 * rd, 4), 480 + 1024 * rd))
    a('''
    s_mov_b64 exec, 0x3fffffff
    ds_write_b128 v9, v[56:59]
    v_mov_b32 v60, s64
    s_mov_b64 exec, 1
    ds_write_b32 v9, v60 offset:4576
    s_mov_b64 exec, -1
    v_lshrrev_b32 v11, 4, v1
    ''')
    conv_part(a)


C_IN = lambda q: 144 + 8 * q
C_UD = lambda q: 176 + 8 * q
C_OUT = lambda q: 168 + 4 * q
C_BF, C_AF, C_ACC = 40, 104, 216
V_UW0, V_UW2, V_AA, V_BA, V_RW, V_RR = 248, 249, 250, 251, 252, 253


def conv_inputs(a, tag):
    lbl = 'K1_PX' + tag
    if tag == 'O':
        a('''
        s_cmp_lg_u32 s3, 1
        s_cbranch_scc1 %s_ok
        s_lshl_b32 s11, s78, 7
        s_add_u32 s11, s11, 0xb40000
        v_mov_b32 v3, 0
        s_mov_b32 s72, 0
        s_mov_b64 exec, 1
        ''' % lbl)
        a.label(lbl)
        a('''
        buffer_load_dword v2, v3, s[56:59], s11 offen sc1
        s_add_u32 s72, s72, 1
        s_waitcnt vmcnt(0)
        v_readfirstlane_b32 s12, v2
        s_cmp_eq_u32 s12, 1
        s_cbranch_scc1 %s_ok
        s_cmp_gt_u32 s72, 0x8000
        s_cbranch_scc1 %s_ok
        s_sleep 4
        s_branch %s
        ''' % (lbl, lbl, lbl))
    a.label(lbl + '_ok')
    return


def conv_loads(a):
    a('''
    v_lshlrev_b32 v2, 4, v0
    v_subrev_u32 v5, 4, v2
    v_and_b32 v4, 31, v1
    v_lshlrev_b32 v4, 2, v4
    s_mul_i32 s11, s78, 8704
    s_add_u32 s11, s11, 0x%x
    s_add_u32 s52, s46, s11
    s_addc_u32 s53, s47, 0
    s_and_b32 s53, s53, 0xffff
    s_mov_b32 s54, 4096
    s_mov_b32 s55, 0x20000
    s_add_u32 s68, s52, 4352
    s_addc_u32 s69, s53, 0
    s_mov_b32 s70, 4096
    s_mov_b32 s71, 0x20000
    s_lshl_b32 s11, s4, 8
    s_add_u32 s11, s11, 0x%x
    ''' % (WS_XT, WS_PM))
    for q in range(2):
        b = C_IN(q)
        S = 's[52:55]' if q == 0 else 's[68:71]'
        a('buffer_load_dword v%d, v5, %s, 0 offen sc1' % (b + 1, S))
        a('buffer_load_dwordx4 %s, v2, %s, 0 offen sc1' % (vr(b + 2, 4), S))


def conv_part(a):
    a.label('K1_CONV')
    a('s_setprio %d' % CPRIO)
    lg = Cnt(a, 'lgkmcnt', 15)
    a('s_waitcnt lgkmcnt(0)')
    a('s_barrier')
    a('''
    v_lshlrev_b32 v3, 4, v1
    v_lshrrev_b32 v12, 2, v10
    v_add_u32 v%d, %d, v2
    v_add_u32 v%d, %d, v2
    v_not_b32 v13, v10
    v_and_b32 v13, 3, v13
    v_mul_u32_u24 v13, %d, v13
    v_lshl_add_u32 v13, v12, 3, v13
    v_lshlrev_b32 v14, 4, v11
    v_sub_u32 v13, v13, v14
    s_lshl_b32 s9, s3, 6
    s_add_u32 s11, s9, %d
    v_add_u32 v%d, s11, v13
    v_lshl_add_u32 v13, v10, 5, v14
    s_sub_u32 s11, 192, s9
    v_add_u32 v%d, s11, v13
    v_lshl_add_u32 v13, v10, 2, v11
    v_bfe_u32 v14, v10, 1, 2
    v_xor_b32 v13, v13, v14
    s_lshl_b32 s9, s3, 10
    s_add_u32 s9, s9, %d
    v_lshl_add_u32 v%d, v13, 4, s9
    v_and_b32 v13, 31, v1
    v_lshlrev_b32 v13, 1, v13
    v_bfe_u32 v14, v13, 3, 2
    v_xor_b32 v13, v13, v14
    v_lshlrev_b32 v13, 4, v13
    v_lshrrev_b32 v14, 5, v1
    v_lshl_add_u32 v13, v14, 12, v13
    s_lshl_b32 s9, s3, 13
    s_add_u32 s9, s9, %d
    v_add_u32 v%d, s9, v13
    v_lshrrev_b32 v12, 1, v1
    v_mul_u32_u24 v12, %d, v12
    v_and_b32 v13, 1, v1
    v_lshl_add_u32 v12, v13, 4, v12
    v_add_u32 v12, %d, v12
    v_and_b32 v13, 1, v1
    v_bfe_u32 v14, v1, 1, 1
    v_lshl_add_u32 v13, v14, 2, v13
    v_add_u32 v13, 2, v13
    v_mul_u32_u24 v13, %d, v13
    v_add_u32 v13, %d, v13
    v_mov_b32 v16, 0
    v_mov_b32 v17, 0
    v_mov_b32 v18, 0
    v_mov_b32 v19, 0
    v_mov_b32 v15, 4576
    ds_read_b32 v20, v15
    ds_read_b32 v21, v15 offset:4608
    s_mov_b64 exec, 0xffff
    ds_write_b128 v12, v[16:19]
    s_mov_b64 exec, 15
    ds_write_b32 v13, v16
    s_mov_b64 exec, -1
    s_waitcnt vmcnt(0) lgkmcnt(0)
    v_readfirstlane_b32 s76, v20
    v_readfirstlane_b32 s77, v21
    ''' % (V_UW0, RA + 32, V_UW2, RA + 2 * CSZ + 36, CSZ, RA + 56, V_AA, V_BA, L_RED, V_RW, L_RED, V_RR, CSZ, RA, CSZ, RA + 32))
    a.stamp(6)
    DPPS = ('quad_perm:[1,0,3,2]', 'quad_perm:[2,3,0,1]', 'row_half_mirror', 'row_mirror')
    a('s_mov_b32 s8, 0x7fff7fff')
    for q in range(2):
        for k in range(4):
            a('v_and_b32 v%d, s8, v%d' % (16 + 4 * q + k, C_IN(q) + 2 + k))
    for q in range(2):
        a('v_pk_max_u16 v%d, v%d, v%d' % (16 + 4 * q, 16 + 4 * q, 17 + 4 * q))
        a('v_pk_max_u16 v%d, v%d, v%d' % (18 + 4 * q, 18 + 4 * q, 19 + 4 * q))
    for q in range(2):
        a('v_pk_max_u16 v%d, v%d, v%d' % (16 + 4 * q, 16 + 4 * q, 18 + 4 * q))
    a('v_and_b32 v17, 0xffff, v16')
    a('v_lshl_or_b32 v17, v20, 16, v17')
    a('v_lshrrev_b32 v18, 16, v16')
    a('v_and_b32 v19, 0xffff0000, v20')
    a('v_or_b32 v18, v18, v19')
    a('v_pk_max_u16 v16, v17, v18')
    for dpp in DPPS:
        a.nop(2)
        a('v_mov_b32_dpp v17, v16 %s row_mask:0xf bank_mask:0xf' % dpp)
        a('v_pk_max_u16 v16, v16, v17')
    a('''
    v_lshrrev_b32 v17, 4, v0
    v_lshlrev_b32 v17, 2, v17
    v_add_u32 v17, %d, v17
    v_cmp_eq_u32 vcc, 0, v10
    v_lshlrev_b32 v18, 2, v10
    v_add_u32 v18, %d, v18
    s_and_saveexec_b64 s[74:75], vcc
    ds_write_b32 v17, v16
    s_mov_b64 exec, s[74:75]
    s_waitcnt lgkmcnt(0)
    s_barrier
    ds_read_b32 v16, v18
    s_waitcnt lgkmcnt(0)
    ''' % (L_RED, L_RED))
    for dpp in DPPS:
        a.nop(2)
        a('v_mov_b32_dpp v17, v16 %s row_mask:0xf bank_mask:0xf' % dpp)
        a('v_pk_max_u16 v16, v16, v17')
    a.nop(1)
    a('v_readfirstlane_b32 s15, v16')
    def stage(q):
        b = C_IN(q)
        ub = 4 * CSZ * q
        T = 16
        for k in range(4):
            a('v_lshlrev_b32 v%d, 16, v%d' % (T + 2 * k, b + 2 + k))
            a('v_and_b32 v%d, 0xffff0000, v%d' % (T + 2 * k + 1, b + 2 + k))
        a('''
        v_and_b32 v%d, 0xffff0000, v%d
        %s
        s_mov_b32 s13, s12
        %s
        s_lshr_b32 s8, s8, 7
        s_sub_u32 s8, 268, s8
        s_min_u32 s8, s8, 254
        s_add_u32 s%d, s8, s%d
        s_sub_u32 s%d, 254, s%d
        s_lshl_b32 s8, s8, 23
        s_mov_b32 s9, s8
        ''' % (T + 8, b + 1, 's_nop 0' if CLOOP else ('s_lshl_b32 s12, s97, 16' if q == 0 else 's_and_b32 s12, s97, 0xffff0000'),
               's_mov_b32 s8, s14' if CLOOP else ('s_and_b32 s8, s15, 0xffff' if q == 0 else 's_lshr_b32 s8, s15, 16'), 76 + q, 76 + q, 76 + q, 76 + q))
        u = C_UD(q)
        for k in range(4):
            a('v_pk_mul_f32 %s, %s, s[12:13]' % (vr(u + 2 * k, 2), vr(T + 2 * k, 2)))
        for k in range(4):
            a('v_pk_mul_f32 %s, %s, s[8:9]' % (vr(T + 2 * k, 2), vr(T + 2 * k, 2)))
        a('v_mul_f32 v%d, s8, v%d' % (T + 8, T + 8))
        F = 32
        for k in range(4):
            a('v_cvt_pk_f16_f32 v%d, v%d, v%d' % (F + k, T + 2 * k, T + 2 * k + 1))
        a('v_cvt_pk_f16_f32 v%d, v%d, v%d' % (F - 1, T + 8, T + 8))
        if ub:
            a('v_add_u32 v12, %d, v%d' % (ub, V_UW2))
            w2 = 12
        else:
            w2 = V_UW2
        a('ds_write_b128 v%d, %s offset:%d' % (V_UW0, vr(F, 4), ub))
        a('ds_write2_b32 v%d, v%d, v%d offset0:0 offset1:1' % (w2, F, F + 1))
        a('ds_write2_b32 v%d, v%d, v%d offset0:2 offset1:3' % (w2, F + 2, F + 3))
        for k in range(4):
            a('v_alignbit_b32 v%d, v%d, v%d, 16' % (36 + k, F + k, F + k - 1))
        a('v_add_u32 v13, %d, v%d' % (CSZ, w2))
        a('ds_write_b128 v%d, v[36:39] offset:%d' % (V_UW0, ub + CSZ))
        a('ds_write2_b32 v13, v36, v37 offset0:0 offset1:1')
        a('ds_write2_b32 v13, v38, v39 offset0:2 offset1:3')
        for k in range(4):
            a('v_cvt_pk_bf16_f32 v%d, v%d, v%d' % (T + k, u + 2 * k, u + 2 * k + 1))
        for k in range(4):
            a('v_lshlrev_b32 v%d, 16, v%d' % (u + 2 * k, T + k))
            a('v_and_b32 v%d, 0xffff0000, v%d' % (u + 2 * k + 1, T + k))
    BF, AFR, ACC = C_BF, C_AF, C_ACC
    def mfma_loop(q):
        ub = 4 * CSZ * q
        kb = KLB(q)
        def aread(t):
            r = AFR + 4 * (t % 8)
            a('ds_read_b64 %s, v%d offset:%d' % (vr(r, 2), V_AA, ub + 256 * t))
            lg.issue(('A', t))
            a('ds_read_b64 %s, v%d offset:%d' % (vr(r + 2, 2), V_AA, ub + 256 * t + 8))
            lg.issue(('A', t))
        def bread(s_):
            a('ds_read_b128 %s, v%d offset:%d' % (vr(BF + 4 * s_, 4), V_BA, kb + 256 * s_))
            lg.issue(('B', s_))
        aread(0)
        for n in range(8): bread(2 * n + 1)
        aread(1)
        for n in range(8): bread(2 * n)
        started = set()
        for t in range(16):
            lg.wait(('A', t))
            for n in range(8):
                if 2 * n + 1 < t: continue
                s_ = 2 * n - t + 1
                if t < 2 and n % 2 == 0:
                    lg.wait(('B', min(s_ + 2, 15 if t == 0 else 14)))
                cin = vr(ACC + 4 * n, 4) if n in started else '0'
                started.add(n)
                a('v_mfma_f32_16x16x32_f16 %s, %s, %s, %s' % (vr(ACC + 4 * n, 4), vr(AFR + 4 * (t % 8), 4), vr(BF + 4 * s_, 4), cin))
            if t == 0:
                for tt in range(2, 5): aread(tt)
            elif t == 1:
                for tt in range(5, 8): aread(tt)
            if t + 8 < 16: aread(t + 8)
        a.nop(8)
    def reduce_store(q):
        if q: a('s_barrier')
        for n in range(8):
            a('ds_write_b128 v%d, %s offset:%d' % (V_RW, vr(ACC + 4 * n, 4), n * 4096))
        a('v_xor_b32 v12, 16, v%d' % V_RR)
        a('s_waitcnt lgkmcnt(0)')
        lg.ops = []
        a('s_barrier')
        R = 40
        for w in range(4):
            a('ds_read_b128 %s, v%d offset:%d' % (vr(R + 8 * w, 4), V_RR, w * 1024))
            a('ds_read_b128 %s, v12 offset:%d' % (vr(R + 8 * w + 4, 4), w * 1024))
        if CLOOP:
            a('s_mov_b32 s8, s79')
        else:
            a('s_mul_i32 s8, s78, %d' % (2 * TS))
            a('s_add_u32 s8, s8, 0x%x' % (WS_BT + TS * q))
        a('s_waitcnt lgkmcnt(4)')
        for h in range(0, 8, 2):
            a('v_pk_add_f32 %s, %s, %s' % (vr(R + h, 2), vr(R + h, 2), vr(R + 8 + h, 2)))
        a('s_waitcnt lgkmcnt(0)')
        for h in range(0, 8, 2):
            a('v_pk_add_f32 %s, %s, %s' % (vr(R + 16 + h, 2), vr(R + 16 + h, 2), vr(R + 24 + h, 2)))
        for h in range(0, 8, 2):
            a('v_pk_add_f32 %s, %s, %s' % (vr(R + h, 2), vr(R + h, 2), vr(R + 16 + h, 2)))
        for k in range(8):
            a('v_ldexp_f32 v%d, v%d, s%d' % (R + k, R + k, 76 + q))
        for k in range(4):
            a('v_cvt_pk_bf16_f32 v%d, v%d, v%d' % (R + 8 + k, R + 2 * k, R + 2 * k + 1))
        for k in range(4):
            a('v_lshlrev_b32 v%d, 16, v%d' % (R + 2 * k, R + 8 + k))
            a('v_and_b32 v%d, 0xffff0000, v%d' % (R + 2 * k + 1, R + 8 + k))
        u = C_UD(q)
        for k in range(4):
            a('v_pk_add_f32 %s, %s, %s' % (vr(R + 2 * k, 2), vr(R + 2 * k, 2), vr(u + 2 * k, 2)))
        O = C_OUT(q)
        for k in range(4):
            a('v_cvt_pk_bf16_f32 v%d, v%d, v%d' % (O + k, R + 2 * k, R + 2 * k + 1))
        a('buffer_store_dwordx4 %s, v2, %s, s8 offen' % (vr(O, 4), sr(S_SWS, 4)))
    if CLOOP:
        a('s_lshl_b32 s12, s97, 16')
        a('s_and_b32 s14, s15, 0xffff')
        a('s_mul_i32 s79, s78, %d' % (2 * TS))
        a('s_add_u32 s79, s79, 0x%x' % WS_BT)
        a('s_mov_b32 s73, 0')
        a.label('K1_CLOOP')
        stage(0)
        a('s_waitcnt lgkmcnt(0)')
        a('s_barrier')
        mfma_loop(0)
        reduce_store(0)
        a('s_cmp_lg_u32 s73, 0')
        a('s_cbranch_scc1 K1_CEND')
        for k in range(1, 6):
            a('v_mov_b32 v%d, v%d' % (C_IN(0) + k, C_IN(1) + k))
        a('''
        s_mov_b32 s73, 1
        s_and_b32 s12, s97, 0xffff0000
        s_lshr_b32 s14, s15, 16
        s_mov_b32 s76, s77
        s_add_u32 s79, s79, %d
        v_add_u32 v%d, 4608, v%d
        s_branch K1_CLOOP
        ''' % (TS, V_BA, V_BA))
        a.label('K1_CEND')
    else:
        stage(0)
        stage(1)
        a('s_waitcnt lgkmcnt(0)')
        a('s_barrier')
        mfma_loop(0)
        reduce_store(0)
        mfma_loop(1)
        reduce_store(1)
    a.endpgm()


def gen_k1(a):
    a.lines.append('.globl k1_kernel\n.p2align 8\n.type k1_kernel,@function\nk1_kernel:')
    a('s_cmp_ge_u32 s2, %d' % K1_GRID)
    a('s_cbranch_scc1 K1_EXIT')
    a.kidx = 0
    a.stamp_init()
    load_kernargs(a)
    a('''
    v_lshrrev_b32 v2, 6, v0
    v_and_b32 v1, 63, v0
    s_nop 0
    v_readfirstlane_b32 s3, v2
    ''')
    a('''
    s_cmp_lt_u32 s2, %d
    s_cbranch_scc1 K1_PREP
    s_sub_u32 s97, s2, %d
    ''' % (N_PREP, N_PREP))
    gemm_part(a)
    prep_part(a)
    a.label('K1_EXIT')
    a('s_endpgm')
```

```python
from asmlib import *
import math

WS_PQ = 0x000000
TS = 4352
WS_XT = 0x240000
WS_BT = 0x4B0000
WS_KF = 0x720000
KF_STRIDE = 4608
WS_KVP = 0x950000
KVP_REC = 13 * 1024 + 512
WS_KVF = 0xB00000
WS_SEL = 0xB18000
WS_G = 0xB1C000
WS_PM = 0xB20000
WS_FLG = 0xB34000
WS_GO1 = 0xB40000
WS_GO2 = 0xB50000
WS_GO3 = 0xB60000
WS_END = 0xB70000

N_GEMM = 192
N_PREP = 288
K1_GRID = N_GEMM + N_PREP
K1_LDS = 81920

import os
TOUCH = int(os.environ.get('TOUCH', '1'))
TOUCH_FLAGS = os.environ.get('TOUCH_FLAGS', '')
WFLAGS = os.environ.get('WFLAGS', '')
AFLAGS = os.environ.get('AFLAGS', '')
NOMEM = int(os.environ.get('NOMEM', '0'))
NOPREP = int(os.environ.get('NOPREP', '0'))
NOXS = int(os.environ.get('NOXS', '0'))
PRO = int(os.environ.get('PRO', '2'))
GPRIO = int(os.environ.get('GPRIO', '3'))
PPRIO = int(os.environ.get('PPRIO', '0'))
S3 = int(os.environ.get('S3', '0'))
NOX = int(os.environ.get('NOX', '0'))
NOW = int(os.environ.get('NOW', '0'))
CPRIO = int(os.environ.get('CPRIO', '2'))
QPRIO = int(os.environ.get('QPRIO', '-1'))
IPRIO = int(os.environ.get('IPRIO', '0'))
NOBAR = int(os.environ.get('NOBAR', '0'))
CLOOP = int(os.environ.get('CLOOP', '1'))
ROLL = int(os.environ.get('ROLL', '0'))
GFIRST = int(os.environ.get('GFIRST', '0'))
LOG2E = 1.4426950408889634

P_X, P_W, P_WO, P_BU, P_ARE, P_AIM, P_BRE, P_BIM = 16, 18, 20, 22, 24, 26, 28, 30
P_CRE, P_CIM, P_LDT, P_DSK, P_GW, P_OUT, P_DBG, P_WS = 32, 34, 36, 38, 40, 42, 44, 46


class Cnt:
    def __init__(self, a, name, cap):
        self.a, self.name, self.cap = a, name, cap
        self.ops = []
    def issue(self, tag):
        self.ops.append(tag)
    def wait(self, tag):
        idx = max(i for i, t in enumerate(self.ops) if t == tag) if tag in self.ops else None
        if idx is None:
            return
        n = len(self.ops) - 1 - idx
        n = min(n, self.cap)
        self.a('s_waitcnt %s(%d)' % (self.name, n))
        self.ops = self.ops[len(self.ops) - n:] if n > 0 else []
    def wait_all(self):
        self.a('s_waitcnt %s(0)' % self.name)
        self.ops = []


def load_kernargs(a):
    a('s_load_dwordx16 s[16:31], s[0:1], 0')
    a('s_load_dwordx16 s[32:47], s[0:1], 64')


def phi_batch(a, pairs, tmp, s_l2e, s_eps, keep_raw=None):
    n = len(pairs)
    H = lambda i: (keep_raw[i] if keep_raw else tmp + 6 * i)
    T = lambda i: tmp + 6 * i + 2
    E = lambda i: tmp + 6 * i + 4
    for i, (a0, a1, d) in enumerate(pairs):
        a('v_cvt_pk_bf16_f32 v%d, v%d, v%d' % (H(i), a0, a1))
    for i in range(n):
        a('v_lshlrev_b32 v%d, 16, v%d' % (T(i), H(i)))
        a('v_and_b32 v%d, 0xffff0000, v%d' % (T(i) + 1, H(i)))
    for i in range(n):
        a('v_pk_mul_f32 %s, %s, %s' % (vr(E(i), 2), vr(T(i), 2), sr(s_l2e, 2)))
    for i in range(n):
        a('v_exp_f32_e64 v%d, v%d clamp' % (E(i), E(i)))
        a('v_exp_f32_e64 v%d, v%d clamp' % (E(i) + 1, E(i) + 1))
    for i in range(n):
        a('v_max_f32 v%d, 0, v%d' % (T(i), T(i)))
        a('v_max_f32 v%d, 0, v%d' % (T(i) + 1, T(i) + 1))
    for i in range(n):
        a('v_pk_add_f32 %s, %s, %s' % (vr(E(i), 2), vr(E(i), 2), vr(T(i), 2)))
    for i, (a0, a1, d) in enumerate(pairs):
        a('v_cvt_pk_bf16_f32 v%d, v%d, v%d' % (d, E(i), E(i) + 1))
    for i, (a0, a1, d) in enumerate(pairs):
        a('v_pk_min_u16 v%d, v%d, v%d' % (V_PMIN, V_PMIN, d))


V_PMIN = 243


def phi_fix(a, regs, tmp, s_eps, lbl):
    a('''
    v_lshrrev_b32 v%d, 16, v%d
    v_and_b32 v%d, 0xffff, v%d
    v_min_u32 v%d, v%d, v%d
    v_cmp_gt_u32 vcc, 0x3a00, v%d
    s_cbranch_vccz %s
    ''' % (tmp, V_PMIN, tmp + 1, V_PMIN, tmp, tmp, tmp + 1, tmp, lbl))
    for r in regs:
        a('v_lshlrev_b32 v%d, 16, v%d' % (tmp, r))
        a('v_and_b32 v%d, 0xffff0000, v%d' % (tmp + 1, r))
        a('v_pk_add_f32 %s, %s, %s' % (vr(tmp, 2), vr(tmp, 2), sr(s_eps, 2)))
        a('v_cvt_pk_bf16_f32 v%d, v%d, v%d' % (r, tmp, tmp + 1))
    a.label(lbl)


V_XOFF, V_SW, V_DMA, V_TR, V_TR2, V_SR0, V_SR1 = 2, 3, 4, 9, 240, 241, 242
V_XR, V_AF, V_B, V_ACC = 16, 96, 128, 168
V_A = 16
V_T = 96
SLOT = 18432
SCR = 4 * SLOT
S_SX, S_SW, S_SWS = 48, 52, 56
PAIRS = [(0, 4), (0, 5), (1, 4), (1, 5), (1, 6), (2, 5), (2, 6), (2, 7), (3, 6), (3, 7), (3, 8), (4, 7), (4, 8)]


STEPS = {0: [0], 1: [0, 1], 2: [0, 1], 3: [1, 2], 4: [1, 2], 5: [2, 3], 6: [2, 3], 7: [3, 4], 8: [3, 4]}
FRAGS = [('Z', k) for k in range(5)] + [(c, k) for c in range(9) for k in STEPS[c]]


def reduce_task(a):
    cb = sum(((15 if c == 'Z' else c) << (4 * f)) for f, (c, k) in enumerate(FRAGS))
    kb = sum((k << (4 * f)) for f, (c, k) in enumerate(FRAGS))
    a('''
    s_mul_i32 s64, s15, 94
    s_lshr_b32 s64, s64, 11
    s_mul_i32 s65, s64, 22
    s_sub_u32 s65, s15, s65
    s_mov_b32 s66, 0x%x
    s_mov_b32 s67, 0x%x
    s_mov_b32 s68, 0x%x
    s_mov_b32 s69, 0x%x
    s_cmp_ge_u32 s65, 16
    s_cselect_b32 s66, 0x%x, s66
    s_cselect_b32 s68, 0x%x, s68
    s_and_b32 s70, s65, 15
    s_lshl_b32 s70, s70, 2
    s_lshr_b64 s[66:67], s[66:67], s70
    s_lshr_b64 s[68:69], s[68:69], s70
    s_and_b32 s66, s66, 15
    s_and_b32 s68, s68, 15
    s_lshl_b32 s70, s68, 5
    v_lshl_add_u32 v16, v11, 3, s70
    s_cmp_eq_u32 s66, 15
    s_cbranch_scc1 K1_RZ
    s_lshl_b32 s70, s66, 4
    v_add_u32 v17, s70, v10
    v_mul_u32_u24 v18, 57, v17
    v_lshrrev_b32 v18, 10, v18
    v_lshrrev_b32 v19, 2, v18
    v_mul_u32_u24 v20, 72, v19
    v_sub_u32 v21, v17, v20
    v_add_u32 v21, 72, v21
    v_sub_u32 v22, v16, v20
    v_lshrrev_b32 v23, 4, v22
    v_lshrrev_b32 v24, 4, v21
    v_lshl_add_u32 v23, v23, 1, v24
    v_subrev_u32 v23, 4, v23
    v_and_b32 v24, 15, v21
    v_and_b32 v25, 12, v22
    v_lshl_add_u32 v24, v25, 2, v24
    v_lshlrev_b32 v24, 4, v24
    v_lshl_add_u32 v24, v23, 10, v24
    v_add_u32 v25, 256, v24
    s_mov_b64 s[74:75], -1
    s_branch K1_RC
    ''' % (cb & 0xffffffff, (cb >> 32) & 0xffffffff, kb & 0xffffffff, (kb >> 32) & 0xffffffff, cb >> 64, kb >> 64))
    a.label('K1_RZ')
    a('''
    v_lshrrev_b32 v18, 2, v10
    v_lshlrev_b32 v18, 1, v18
    v_and_b32 v19, 1, v10
    v_add_u32 v18, v18, v19
    v_and_b32 v19, 2, v10
    v_cmp_eq_u32 s[74:75], 0, v19
    v_lshrrev_b32 v19, 2, v18
    v_mul_u32_u24 v20, 72, v19
    v_sub_u32 v22, v16, v20
    v_lshlrev_b32 v24, 2, v22
    v_add_u32 v24, 13312, v24
    v_add_u32 v25, 16, v24
    ''')
    a.label('K1_RC')
    a('''
    v_mul_u32_u24 v26, 18, v18
    v_sub_u32 v26, v26, v16
    v_add_u32 v27, 17, v26
    v_cmp_gt_u32 vcc, 25, v27
    s_and_b64 s[74:75], s[74:75], vcc
    s_lshl_b32 s70, s64, 1
    v_add_u32 v19, s70, v19
    v_mul_u32_u24 v19, %d, v19
    v_add_u32 v24, v24, v19
    v_add_u32 v25, v25, v19
    v_mov_b32 v27, 0x40000000
    v_cndmask_b32 v24, v27, v24, s[74:75]
    v_cndmask_b32 v25, v27, v25, s[74:75]
    s_mul_i32 s70, s3, %d
    s_add_u32 s70, s70, 0x%x
    ''' % (KVP_REC, 32 * KVP_REC, WS_KVP))
    R = 32
    for rb in range(4):
        a('buffer_load_dwordx4 %s, v24, %s, s70 offen sc1' % (vr(R + 8 * rb, 4), sr(S_SWS, 4)))
        a('buffer_load_dwordx4 %s, v25, %s, s70 offen sc1' % (vr(R + 8 * rb + 4, 4), sr(S_SWS, 4)))
        if rb < 3:
            a('s_add_u32 s70, s70, %d' % (8 * KVP_REC))
    a('''
    s_lshl_b32 s70, s15, 10
    s_add_u32 s70, s70, 0x%x
    s_lshl_b32 s71, s3, 11
    s_add_u32 s71, s71, 1024
    v_add_u32 v2, s71, v3
    s_waitcnt vmcnt(0)
    ''' % WS_KVF)
    for st in (2, 1):
        for i in range(st):
            for h in range(0, 8, 2):
                a('v_pk_add_f32 %s, %s, %s' % (vr(R + 8 * i + h, 2), vr(R + 8 * i + h, 2), vr(R + 8 * (i + st) + h, 2)))
    a('ds_write_b128 v2, %s' % vr(R, 4))
    a('ds_write_b128 v2, %s offset:1024' % vr(R + 4, 4))
    a('s_waitcnt lgkmcnt(0)')
    a('s_barrier')
    a('s_cmp_lg_u32 s3, 0')
    a('s_cbranch_scc1 K1_KVEXIT')
    for w in range(1, 4):
        a('ds_read_b128 %s, v2 offset:%d' % (vr(R + 8 * w, 4), 2048 * w))
        a('ds_read_b128 %s, v2 offset:%d' % (vr(R + 8 * w + 4, 4), 2048 * w + 1024))
    a('s_waitcnt lgkmcnt(0)')
    for st in (2, 1):
        for i in range(st):
            for h in range(0, 8, 2):
                a('v_pk_add_f32 %s, %s, %s' % (vr(R + 8 * i + h, 2), vr(R + 8 * i + h, 2), vr(R + 8 * (i + st) + h, 2)))
    for j in range(8):
        a('v_subrev_u32 v27, v26, %d' % j if False else 'v_sub_u32 v27, %d, v26' % j)
        a('v_cmp_gt_u32 vcc, 18, v27')
        a('s_and_b64 vcc, vcc, s[74:75]')
        a('s_nop 0')
        a('v_cndmask_b32 v%d, 0, v%d, vcc' % (R + j, R + j))
    for k in range(4):
        a('v_cvt_pk_bf16_f32 v%d, v%d, v%d' % (28 + k, R + 2 * k, R + 2 * k + 1))
    a('buffer_store_dwordx4 v[28:31], v3, %s, s70 offen' % sr(S_SWS, 4))


def gemm_roll(a, qtype):
    tag = 'Q' if qtype else 'K'
    lg = Cnt(a, 'lgkmcnt', 15)
    XR = lambda p: V_XR + 16 * p
    VB = 56
    V_CUR, V_NXT = V_TR, V_TR2
    def wdma(mbase4, mbase5, slotoff):
        ops = []
        for i in range(4):
            ops.append(['s_add_u32 m0, s%d, 0x%x' % (mbase4, slotoff + i * 1024), 's_mov_b64 exec, s[74:75]',
                        'buffer_load_dwordx4 v%d, %s, s68 offen lds' % (V_DMA + i, sr(S_SW, 4)), 's_mov_b64 exec, -1'])
        ops.append(['s_add_u32 m0, s%d, 0x%x' % (mbase5, slotoff + 16384), 's_mov_b64 exec, s[76:77]',
                    'buffer_load_dwordx4 v%d, %s, s68 offen lds' % (V_DMA + 4, sr(S_SW, 4)), 's_mov_b64 exec, -1',
                    's_add_u32 s68, s68, 0x%x' % (64 * 3456),
                    's_cmp_lt_u32 s68, 0x%x' % (9 * 64 * 3456), 's_cselect_b64 s[74:75], -1, 0', 's_cselect_b32 s76, -1, 0'])
        return ops
    def xld(p, off):
        ops = []
        for q in range(4):
            ops.append(['s_mov_b64 exec, s[78:79]',
                        'buffer_load_dwordx4 %s, v%d, %s, s%d offen offset:%d' % (vr(XR(p) + 4 * q, 4), V_XOFF, sr(S_SX, 4), 64 + q, off),
                        's_mov_b64 exec, -1'])
        ops[-1] += ['s_add_u32 s73, s73, 1', 's_cmp_lt_u32 s73, 9', 's_cselect_b64 s[78:79], -1, 0']
        return ops
    def xstage(p):
        r = XR(p)
        for rt in range(2):
            for q in range(2):
                a('ds_write_b128 v%d, %s offset:%d' % (V_SW, vr(r + 4 * (2 * rt + q), 4), 1024 * q))
                lg.issue(('XW', p))
            for kk in range(2):
                a('ds_read_b128 %s, v%d' % (vr(V_AF + p * 16 + (kk * 2 + rt) * 4, 4), V_SR0 + kk))
                lg.issue(('A', p))
    def bread(base, off, kk, j, t):
        for hh in range(2):
            a('ds_read_b64_tr_b16 %s, v%d offset:%d' % (vr(VB + 4 * j + 2 * hh, 2), base, off + (8 * hh + 32 * kk) * 288 + 32 * j))
            lg.issue(('B', t, j))
    a('''
    s_mov_b32 s68, 0
    s_mov_b32 s69, s8
    s_add_u32 s70, s8, %d
    s_mov_b32 s71, s9
    s_add_u32 s72, s9, %d
    s_mov_b64 s[74:75], -1
    s_mov_b32 s76, -1
    s_mov_b32 s77, 0
    s_mov_b64 s[78:79], -1
    s_mov_b32 s73, 2
    s_mov_b32 s96, 0
    ''' % (2 * SLOT, 2 * SLOT))
    for op in wdma(69, 71, 0) + wdma(69, 71, SLOT):
        for ln in op: a(ln)
    for i in range(72):
        a('v_mov_b32 v%d, 0' % (V_ACC + i))
    a.stamp(1)
    a('s_waitcnt vmcnt(14)')
    xstage(0)
    for op in xld(0, 256) + wdma(70, 72, 0):
        for ln in op: a(ln)
    a('s_waitcnt vmcnt(14)')
    a('s_barrier')
    a.stamp(2)
    a('s_waitcnt lgkmcnt(0)')
    lg.ops = []
    for j in range(9):
        bread(V_CUR, 0, 0, j, 0)
    entry = list(lg.ops)
    a.label('K1_GL' + tag)
    for t in range(4):
        p, kk = t // 2, t % 2
        side = []
        if kk == 1:
            a('s_waitcnt vmcnt(13)')
            a('s_barrier')
            side = wdma(70, 72, SLOT) if p == 0 else wdma(69, 71, 0)
        if t == 2:
            a('s_cmp_eq_u32 s96, 4')
            a('s_cbranch_scc1 K1_GX' + tag)
        lg.wait(('A', p))
        for j in range(9):
            if j % 3 == 0:
                lg.wait(('B', t, j + 2))
            for rt in range(2):
                ra = V_AF + p * 16 + (kk * 2 + rt) * 4
                acc = V_ACC + (rt * 9 + j) * 4
                if qtype:
                    a('v_mfma_f32_16x16x32_bf16 %s, %s, %s, %s' % (vr(acc, 4), vr(VB + 4 * j, 4), vr(ra, 4), vr(acc, 4)))
                else:
                    a('v_mfma_f32_16x16x32_bf16 %s, %s, %s, %s' % (vr(acc, 4), vr(ra, 4), vr(VB + 4 * j, 4), vr(acc, 4)))
            jj = j - 1
            def pf(jj):
                if t == 0: bread(V_CUR, 0, 1, jj, 1)
                elif t == 1: bread(V_CUR, SLOT, 0, jj, 2)
                elif t == 2: bread(V_CUR, SLOT, 1, jj, 3)
                else: bread(V_NXT, 0, 0, jj, 0)
            if jj >= 0: pf(jj)
            if side:
                for ln in side.pop(0): a(ln)
            if kk == 0 and j == 3:
                a('s_waitcnt vmcnt(14)')
                xstage(1 - p)
                side = xld(1 - p, 384 if p == 0 else 512)
        pf(8)
        assert not side
    a('''
    v_swap_b32 v%d, v%d
    v_add_u32 v%d, 256, v%d
    s_mov_b32 s15, s69
    s_mov_b32 s69, s70
    s_mov_b32 s70, s15
    s_mov_b32 s15, s71
    s_mov_b32 s71, s72
    s_mov_b32 s72, s15
    s_add_u32 s96, s96, 1
    s_branch K1_GL%s
    ''' % (V_CUR, V_NXT, V_XOFF, V_XOFF, tag))
    assert [x for x in lg.ops if x[0] == 'B'] == entry[-len([x for x in lg.ops if x[0] == 'B']):], (lg.ops, entry)
    a.label('K1_GX' + tag)
    a('s_waitcnt lgkmcnt(0)')
    a.stamp(5)
    a.nop(10)


def gemm_main(a, qtype):
    if ROLL:
        return gemm_roll(a, qtype)
    vm = Cnt(a, 'vmcnt', 63)
    lg = Cnt(a, 'lgkmcnt', 15)
    side = []
    wcount = {}
    xcount = {}

    def dma_ops(c):
        if NOMEM or NOW: return []
        slot = (c % 4) * SLOT
        ops = []
        def one(i):
            a('s_add_u32 m0, s8, 0x%x' % (slot + i * 1024))
            a('s_mov_b32 s10, 0x%x' % (c * 64 * 3456))
            a('buffer_load_dwordx4 v%d, %s, s10 offen lds' % (V_DMA + i, sr(S_SW, 4)))
            vm.issue(('W', c)); wcount[c] = wcount.get(c, 0) + 1
        def last():
            a('s_add_u32 m0, s9, 0x%x' % (slot + 16384))
            a('s_mov_b32 exec_hi, 0')
            a('buffer_load_dwordx4 v%d, %s, s10 offen lds' % (V_DMA + 4, sr(S_SW, 4)))
            a('s_mov_b32 exec_hi, -1')
            vm.issue(('W', c)); wcount[c] = wcount.get(c, 0) + 1
        for i in range(4):
            ops.append(lambda i=i: one(i))
        ops.append(last)
        return ops

    def x_ops(c):
        if NOMEM or NOX: return []
        r = V_XR + (c % 5) * 16
        def one(q):
            a('buffer_load_dwordx4 %s, v%d, %s, s%d offen offset:%d' % (vr(r + 4 * q, 4), V_XOFF, sr(S_SX, 4), 64 + q, c * 128))
            vm.issue(('X', c)); xcount[c] = xcount.get(c, 0) + 1
        return [lambda q=q: one(q) for q in range(4)]

    def flush(tagc=None):
        while side:
            side.pop(0)()

    def xstage(c):
        if NOXS: return
        while not NOMEM and not NOX and c >= 2 and xcount.get(c, 0) < 4:
            side.pop(0)()
        vm.wait(('X', c))
        r = V_XR + (c % 5) * 16
        for rt in range(2):
            for q in range(2):
                a('ds_write_b128 v%d, %s offset:%d' % (V_SW, vr(r + 4 * (2 * rt + q), 4), 1024 * q))
                lg.issue(('XW', c))
            for kk in range(2):
                a('ds_read_b128 %s, v%d' % (vr(V_AF + (c % 2) * 16 + (kk * 2 + rt) * 4, 4), V_SR0 + kk))
                lg.issue(('A', c))

    def bread(k, j):
        c, kk = k // 2, k % 2
        r = V_B + ((k * 9 + j) % 10) * 4
        for hh in range(2):
            off = (c % 2) * SLOT + (8 * hh + 32 * kk) * 288 + 32 * j
            a('ds_read_b64_tr_b16 %s, v%d offset:%d' % (vr(r + 2 * hh, 2), V_TR if (c % 4) < 2 else V_TR2, off))
            lg.issue(('B', k, j))

    for c in range(PRO):
        for op in dma_ops(c): op()
        if c >= 2:
            for op in x_ops(c): op()
    if not S3: a.stamp(1)
    vm.ops = [('X', 0)] * 4 + [('X', 1)] * 4 + vm.ops
    xstage(0)
    vm.wait(('W', 0))
    a('s_barrier')
    if not S3: a.stamp(2)
    for c in range(PRO, 4):
        side.extend(dma_ops(c)); side.extend(x_ops(c))
    side.extend(x_ops(4)); side.extend(x_ops(5))
    wq = set(range(4)); xq = set(range(6))
    for j in range(9):
        bread(0, j)
    for k in range(18):
        c, kk = k // 2, k % 2
        if kk == 1 and c + 1 <= 8:
            while not NOMEM and not NOW and wcount.get(c + 1, 0) < 5:
                side.pop(0)()
            vm.wait(('W', c + 1))
            if not NOBAR: a('s_barrier')
            if c >= 1 and c + 3 <= 8:
                side.extend(dma_ops(c + 3))
        if S3:
            if k % 3 == 0 and k: a.stamp(k // 3)
        else:
            if k == 6: a.stamp(3)
            if k == 12: a.stamp(4)
        lg.wait(('A', c))
        for j in range(9):
            if j % 3 == 0:
                lg.wait(('B', k, j + 2))
            rb = V_B + ((k * 9 + j) % 10) * 4
            for rt in range(2):
                ra = V_AF + (c % 2) * 16 + (kk * 2 + rt) * 4
                acc = V_ACC + (rt * 9 + j) * 4
                cin = '0' if k == 0 else vr(acc, 4)
                if qtype:
                    a('v_mfma_f32_16x16x32_bf16 %s, %s, %s, %s' % (vr(acc, 4), vr(rb, 4), vr(ra, 4), cin))
                else:
                    a('v_mfma_f32_16x16x32_bf16 %s, %s, %s, %s' % (vr(acc, 4), vr(ra, 4), vr(rb, 4), cin))
            if k + 1 < 18:
                bread(k + 1, j)
            if side:
                side.pop(0)()
            if kk == 0 and j == 4 and c + 1 <= 8:
                xstage(c + 1)
                if c + 6 <= 8:
                    side.extend(x_ops(c + 6))
    assert not side
    a.stamp(6 if S3 else 5)
    a.nop(10)


def gemm_part(a):
    a.label('K1_GEMM')
    a('s_setprio %d' % GPRIO)
    a('''
    s_and_b32 s4, s97, 7
    s_lshr_b32 s5, s97, 3
    s_and_b32 s6, s4, 3
    s_lshl_b32 s6, s6, 2
    s_and_b32 s7, s5, 3
    s_add_u32 s6, s6, s7
    s_lshr_b32 s4, s4, 2
    s_mul_i32 s4, s4, 6
    s_lshr_b32 s5, s5, 2
    s_add_u32 s7, s4, s5
    ''')
    a('''
    s_mul_i32 s4, s7, 11
    s_lshr_b32 s4, s4, 5
    s_mul_i32 s5, s4, 3
    s_sub_u32 s5, s7, s5
    s_sub_u32 s11, s7, s4
    s_sub_u32 s11, s11, 1
    ''')
    a('''
    s_mul_i32 s12, s4, 288
    s_mul_i32 s13, s11, 144
    s_add_u32 s13, s13, 1152
    s_cmp_eq_u32 s5, 0
    s_cselect_b32 s12, s12, s13
    s_cselect_b32 s13, 0, 1008
    s_lshl_b32 s8, s3, 12
    s_lshl_b32 s9, s3, 9
    ''')
    a('''
    v_and_b32 v10, 15, v1
    v_lshrrev_b32 v11, 4, v1
    ''')
    a('''
    s_lshl_b32 s14, s6, 7
    s_lshl_b32 s15, s3, 5
    s_add_u32 s14, s14, s15
    v_lshrrev_b32 v13, 3, v1
    v_and_b32 v14, 7, v1
    v_add_u32 v12, s14, v13
    v_mul_u32_u24 v12, 1152, v12
    v_lshl_add_u32 v2, v14, 4, v12
    s_mov_b32 s64, 0
    s_mov_b32 s65, 9216
    s_mov_b32 s66, 18432
    s_mov_b32 s67, 27648
    s_lshl_b32 s15, s3, 11
    s_add_u32 s15, s15, %d
    v_xor_b32 v14, v14, v13
    v_lshlrev_b32 v14, 4, v14
    v_lshl_add_u32 v14, v13, 7, v14
    v_add_u32 v3, s15, v14
    v_and_b32 v13, 7, v10
    v_xor_b32 v13, v13, v11
    v_lshlrev_b32 v14, 7, v10
    v_add_u32 v14, s15, v14
    v_lshl_add_u32 v241, v13, 4, v14
    v_xor_b32 v13, 4, v13
    v_lshl_add_u32 v242, v13, 4, v14
    ''' % SCR)
    a('s_waitcnt lgkmcnt(0)')
    srd(a, S_SX, P_X, 2048 * 576 * 2)
    if not NOMEM:
        for c in range(2):
            for q in range(4):
                a('buffer_load_dwordx4 %s, v%d, %s, s%d offen offset:%d' % (vr(V_XR + c * 16 + 4 * q, 4), V_XOFF, sr(S_SX, 4), 64 + q, c * 128))
    def dma_addr(dst):
        a('''
        v_and_b32 v12, 0x33, v13
        v_and_b32 v15, 4, v13
        v_lshl_or_b32 v12, v15, 1, v12
        v_bfe_u32 v15, v13, 3, 1
        v_lshl_or_b32 v12, v15, 2, v12
        v_cmp_le_u32 vcc, 9, v14
        v_mul_u32_u24 v12, 3456, v12
        v_lshl_add_u32 v12, v14, 4, v12
        v_cndmask_b32 v15, v244, v245, vcc
        v_add_u32 v%d, v12, v15
        ''' % dst)
    a('''
    v_mov_b32 v244, s12
    s_add_u32 s15, s12, s13
    v_mov_b32 v245, s15
    s_lshl_b32 s15, s3, 8
    v_add_u32 v12, s15, v1
    v_mul_u32_u24 v13, 3641, v12
    v_lshrrev_b32 v13, 16, v13
    v_mul_u32_u24 v14, 18, v13
    v_sub_u32 v14, v12, v14
    ''')
    for i in range(4):
        dma_addr(V_DMA + i)
        if i < 3:
            a('''
            v_add_u32 v14, 10, v14
            v_cmp_le_u32 vcc, 18, v14
            v_subrev_u32 v15, 18, v14
            v_add_u32 v13, 3, v13
            v_cndmask_b32 v14, v14, v15, vcc
            v_addc_co_u32 v13, vcc, 0, v13, vcc
            ''')
    a('''
    s_lshl_b32 s15, s3, 5
    s_add_u32 s15, s15, 1024
    v_add_u32 v12, s15, v1
    v_mul_u32_u24 v13, 3641, v12
    v_lshrrev_b32 v13, 16, v13
    v_mul_u32_u24 v14, 18, v13
    v_sub_u32 v14, v12, v14
    ''')
    dma_addr(V_DMA + 4)
    a('''
    v_lshrrev_b32 v12, 2, v10
    v_and_b32 v13, 1, v11
    v_lshl_add_u32 v12, v13, 2, v12
    v_lshrrev_b32 v13, 1, v11
    v_lshl_add_u32 v12, v13, 4, v12
    v_mul_u32_u24 v12, 288, v12
    v_and_b32 v13, 3, v1
    v_lshl_add_u32 v9, v13, 3, v12
    v_add_u32 v240, 36864, v9
    ''')
    srd(a, S_SW, P_W, 576 * 1728 * 2)
    srd(a, S_SWS, P_WS, WS_END)
    a('s_mov_b32 s60, 0x%x' % f32bits(LOG2E))
    a('s_mov_b32 s61, 0x%x' % f32bits(LOG2E))
    a('s_mov_b32 s62, 0x%x' % f32bits(1e-6))
    a('s_mov_b32 s63, 0x%x' % f32bits(1e-6))
    a('s_cmp_eq_u32 s5, 0')
    a('s_cbranch_scc0 K1_GEMM_KV')

    if QPRIO >= 0: a('s_setprio %d' % QPRIO)
    gemm_main(a, True)
    a('s_setprio 0')
    P = lambda rt, j: V_A + (rt * 9 + j) * 2
    allp = []
    for rt in range(2):
        for j in range(9):
            acc = V_ACC + (rt * 9 + j) * 4
            allp.append((acc, acc + 1, P(rt, j)))
            allp.append((acc + 2, acc + 3, P(rt, j) + 1))
    RS = 304
    a('''
    s_mul_i32 s15, s3, 9728
    v_mul_u32_u24 v12, %d, v10
    v_lshl_add_u32 v12, v11, 3, v12
    v_add_u32 v12, s15, v12
    s_mul_i32 s64, s14, 1152
    s_add_u32 s64, s64, s12
    s_barrier
    ''' % RS)
    a('v_mov_b32 v%d, -1' % V_PMIN)
    for b in range(0, 36, 6):
        phi_batch(a, allp[b:b + 6], V_T, 60, 62)
    phi_fix(a, [d for (x, y, d) in allp], V_T, 62, 'K1_QFIX')
    for t in range(18):
        rt, j = t // 9, t % 9
        a('ds_write_b64 v12, %s offset:%d' % (vr(P(rt, j), 2), rt * 16 * RS + 32 * j))
    if not S3: a.stamp(6)
    for i in range(9):
        a('''
        v_add_u32 v13, %d, v1
        v_mul_u32_u24 v14, 3641, v13
        v_lshrrev_b32 v14, 16, v14
        v_mul_u32_u24 v15, 18, v14
        v_sub_u32 v15, v13, v15
        v_lshlrev_b32 v15, 4, v15
        v_mul_u32_u24 v13, %d, v14
        v_add3_u32 v13, v13, v15, s15
        v_mul_u32_u24 v14, 1152, v14
        v_add_u32 v%d, v14, v15
        ds_read_b128 %s, v13
        ''' % (64 * i, RS, V_T + i, vr(V_ACC + 4 * i, 4)))
    for i in range(9):
        a('s_waitcnt lgkmcnt(%d)' % (8 - i))
        a('buffer_store_dwordx4 %s, v%d, %s, s64 offen' % (vr(V_ACC + 4 * i, 4), V_T + i, sr(S_SWS, 4)))
    a.endpgm()

    a.label('K1_GEMM_KV')
    gemm_main(a, False)
    a('''
    s_lshl_b32 s98, s6, 1
    s_and_b32 s99, s11, 1
    s_add_u32 s98, s98, s99
    s_lshr_b32 s99, s11, 1
    s_lshl_b32 s99, s99, 5
    s_add_u32 s99, s99, s98
    s_lshl_b32 s99, s99, 7
    s_add_u32 s99, s99, 0x%x
    v_mov_b32 v12, 0
    s_mov_b64 exec, 1
    buffer_store_dword v12, v12, %s, s99 offen sc1
    s_mov_b64 exec, -1
    ''' % (WS_GO3, sr(S_SWS, 4)))
    O = lambda j: V_A + 4 * j
    pk = []
    for j in range(5):
        for rt in range(2):
            acc = V_ACC + (rt * 9 + j) * 4
            pk.append((acc, acc + 1, O(j) + 2 * rt))
            pk.append((acc + 2, acc + 3, O(j) + 2 * rt + 1))
    a('v_mov_b32 v%d, -1' % V_PMIN)
    phi_batch(a, pk[0:8], V_T, 60, 62)
    phi_batch(a, pk[8:16], V_T, 60, 62)
    RAW = V_A + 40
    phi_batch(a, pk[16:20], V_T, 60, 62, keep_raw=[RAW + i for i in range(4)])
    phi_fix(a, [d for (x, y, d) in pk], V_T, 62, 'K1_KFIX')
    a('v_cmp_gt_u32 vcc, 8, v10')
    for j in range(5, 9):
        for rt in range(2):
            acc = V_ACC + (rt * 9 + j) * 4
            a('v_cvt_pk_bf16_f32 v%d, v%d, v%d' % (O(j) + 2 * rt, acc, acc + 1))
            a('v_cvt_pk_bf16_f32 v%d, v%d, v%d' % (O(j) + 2 * rt + 1, acc + 2, acc + 3))
    for i in range(4):
        a('v_cndmask_b32 v%d, v%d, v%d, vcc' % (O(4) + i, RAW + i, O(4) + i))
    a.nop(2)
    pairs = PAIRS
    KV = lambda p: V_ACC + 4 * p
    for p, (ta, tb) in enumerate(pairs):
        a('v_mfma_f32_16x16x32_bf16 %s, %s, %s, 0' % (vr(KV(p), 4), vr(O(ta), 4), vr(O(tb), 4)))
    a('s_mov_b32 s64, 0x3f803f80')
    Z = V_T
    for t in range(5):
        a('v_dot2_f32_bf16 v%d, v%d, s64, 0' % (Z + t, O(t)))
    for i in range(1, 4):
        for t in range(5):
            a('v_dot2_f32_bf16 v%d, v%d, s64, v%d' % (Z + t, O(t) + i, Z + t))
    if not S3: a.stamp(6)
    a('s_barrier')
    a('''
    s_lshl_b32 s15, s3, 10
    v_lshlrev_b32 v12, 4, v1
    v_add_u32 v13, s15, v12
    ''')
    for p in range(13):
        a('ds_write_b128 v13, %s offset:%d' % (vr(KV(p), 4), p * 4096))
    a('''
    s_lshl_b32 s15, s3, 2
    v_add_u32 v14, s15, v11
    v_mul_u32_u24 v14, 320, v14
    v_lshl_add_u32 v14, v10, 2, v14
    ''')
    for t in range(5):
        a('ds_write_b32 v14, v%d offset:%d' % (Z + t, 53248 + 64 * t))
    a('s_waitcnt lgkmcnt(0)')
    a('s_barrier')
    a('s_lshl_b32 s68, s6, 3')
    a('s_add_u32 s68, s68, s11')
    a('s_mul_i32 s68, s68, %d' % KVP_REC)
    a('s_add_u32 s68, s68, 0x%x' % WS_KVP)
    a('s_lshl_b32 s15, s3, 12')
    a('v_add_u32 v13, s15, v12')
    a('s_lshl_b32 s15, s3, 10')
    a('v_add_u32 v14, s15, v12')
    done = a.newlabel('K1_KVZ')
    for it in range(3):
        R = V_A + 16 * it
        for w in range(4):
            a('ds_read_b128 %s, v13 offset:%d' % (vr(R + 4 * w, 4), it * 16384 + w * 1024))
    def red_store(it):
        R = V_A + 16 * it
        a('v_pk_add_f32 %s, %s, %s' % (vr(R, 2), vr(R, 2), vr(R + 4, 2)))
        a('v_pk_add_f32 %s, %s, %s' % (vr(R + 2, 2), vr(R + 2, 2), vr(R + 6, 2)))
        a('v_pk_add_f32 %s, %s, %s' % (vr(R + 8, 2), vr(R + 8, 2), vr(R + 12, 2)))
        a('v_pk_add_f32 %s, %s, %s' % (vr(R + 10, 2), vr(R + 10, 2), vr(R + 14, 2)))
        a('v_pk_add_f32 %s, %s, %s' % (vr(R, 2), vr(R, 2), vr(R + 8, 2)))
        a('v_pk_add_f32 %s, %s, %s' % (vr(R + 2, 2), vr(R + 2, 2), vr(R + 10, 2)))
        a('s_add_u32 s69, s68, %d' % (4096 * it))
        a('buffer_store_dwordx4 %s, v14, %s, s69 offen sc1' % (vr(R, 4), sr(S_SWS, 4)))
    for it in range(3):
        a('s_waitcnt lgkmcnt(%d)' % (8 - 4 * it))
        red_store(it)
    a('s_cmp_lg_u32 s3, 0')
    a('s_cbranch_scc1 %s' % done)
    for w in range(4):
        a('ds_read_b128 %s, v13 offset:%d' % (vr(V_A + 48 + 4 * w, 4), 3 * 16384 + w * 1024))
    a('s_waitcnt lgkmcnt(0)')
    red_store(3)
    a('s_branch K1_KVFIN')
    a.label(done)
    a('s_cmp_lt_u32 s3, 2')
    fin = a.newlabel('K1_KVEND')
    a('s_cbranch_scc1 %s' % fin)
    a('''
    v_subrev_u32 v14, 128, v0
    v_cmp_gt_u32 vcc, 80, v14
    s_and_saveexec_b64 s[74:75], vcc
    s_cbranch_execz %s
    v_lshlrev_b32 v15, 2, v14
    ''' % fin)
    for i in range(16):
        a('ds_read_b32 v%d, v15 offset:%d' % (V_T + i, 53248 + 320 * i))
    a('s_add_u32 s69, s68, 13312')
    a('s_waitcnt lgkmcnt(0)')
    for st in (8, 4, 2, 1):
        for i in range(st):
            a('v_add_f32 v%d, v%d, v%d' % (V_T + i, V_T + i, V_T + i + st))
    a('buffer_store_dword v%d, v15, %s, s69 offen sc1' % (V_T, sr(S_SWS, 4)))
    a.label(fin)
    a.label('K1_KVFIN')
    srd(a, 48, P_DBG, 256)
    a('''
    s_mov_b64 exec, -1
    s_waitcnt vmcnt(0)
    s_barrier
    v_mov_b32 v3, 0
    s_cmp_lg_u32 s3, 0
    s_cbranch_scc1 K1_KVW
    v_mov_b32 v2, 1
    s_lshr_b32 s12, s11, 1
    s_lshl_b32 s12, s12, 4
    s_add_u32 s12, s12, 160
    s_mov_b64 exec, 1
    buffer_atomic_add v2, v3, s[48:51], s12 offen sc0 sc1
    s_waitcnt vmcnt(0)
    v_readfirstlane_b32 s12, v2
    s_mov_b64 exec, -1
    s_cmp_lg_u32 s12, 31
    s_cbranch_scc1 K1_KVP
    v_mov_b32 v2, 1
    v_lshlrev_b32 v4, 7, v1
    s_lshr_b32 s12, s11, 1
    s_lshl_b32 s12, s12, 12
    s_add_u32 s12, s12, 0x%x
    s_mov_b32 exec_hi, 0
    buffer_store_dword v2, v4, %s, s12 offen sc1
    s_mov_b32 exec_hi, -1
    s_branch K1_KVW
    ''' % (WS_GO3, sr(S_SWS, 4)))
    a.label('K1_KVP')
    a('''
    s_cmp_ge_u32 s98, 22
    s_cbranch_scc1 K1_KVEXIT
    s_mov_b32 s72, 0
    s_mov_b64 exec, 1
    ''')
    a.label('K1_KVPL')
    a('''
    buffer_load_dword v2, v3, %s, s99 offen sc1
    s_add_u32 s72, s72, 1
    s_waitcnt vmcnt(0)
    v_readfirstlane_b32 s12, v2
    s_cmp_eq_u32 s12, 1
    s_cbranch_scc1 K1_KVW
    s_cmp_gt_u32 s72, 0x8000
    s_cbranch_scc1 K1_KVW
    s_sleep 2
    s_branch K1_KVPL
    ''' % sr(S_SWS, 4))
    a.label('K1_KVW')
    a('''
    s_mov_b64 exec, -1
    s_cmp_ge_u32 s98, 22
    s_cbranch_scc1 K1_KVEXIT
    s_barrier
    v_lshlrev_b32 v3, 4, v1
    s_lshr_b32 s12, s11, 1
    s_mul_i32 s12, s12, 22
    s_add_u32 s15, s12, s98
    ''')
    reduce_task(a)
    a.label('K1_KVEXIT')
    a.endpgm()


KG_ROW = 272
KG_LO = 32 * KG_ROW
KG_WAVE = KG_LO + 21 * KG_ROW + 16 * 0
KLB = lambda q: 4608 * q
RA = 9216
XTL = RA + 4 * KG_WAVE
CSZ = 4160
UCB = lambda q: RA + 4 * CSZ * q
L_RED = RA + 8 * CSZ


def cmul(a, d, x, y, t):
    a('v_pk_mul_f32 %s, %s, %s op_sel:[1,1] op_sel_hi:[1,0]' % (vr(t, 2), vr(x, 2), vr(y, 2)))
    a('v_pk_fma_f32 %s, %s, %s, %s op_sel:[0,0,0] op_sel_hi:[0,1,1] neg_lo:[0,0,1]' % (vr(d, 2), vr(x, 2), vr(y, 2), vr(t, 2)))


def split_write(a, rows, tmp, vaddr, s_c1, s_c2, base=0):
    for i, (r, p) in enumerate(rows):
        a('v_cvt_pk_f16_f32 v%d, v%d, v%d' % (tmp + i, p, p + 1))
    for i, (r, p) in enumerate(rows):
        a('ds_write_b32 v%d, v%d offset:%d' % (vaddr, tmp + i, base + r * KG_ROW))


def deval(a, items, L, tmp):
    for i, (A, d) in enumerate(items):
        a('v_mul_f32 v%d, 0x%x, v%d' % (tmp + 4 * i, f32bits(float(A)), L))
        a('v_mul_f32 v%d, 0x%x, v%d' % (tmp + 4 * i + 1, f32bits(float(A)), L + 1))
    for i, (A, d) in enumerate(items):
        a('v_fract_f32 v%d, v%d' % (tmp + 4 * i + 1, tmp + 4 * i + 1))
        a('v_exp_f32 v%d, v%d' % (tmp + 4 * i, tmp + 4 * i))
    for i, (A, d) in enumerate(items):
        a('v_cos_f32 v%d, v%d' % (tmp + 4 * i + 2, tmp + 4 * i + 1))
        a('v_sin_f32 v%d, v%d' % (tmp + 4 * i + 3, tmp + 4 * i + 1))
    a.nop(1)
    for i, (A, d) in enumerate(items):
        a('v_pk_mul_f32 %s, %s, %s op_sel:[0,0] op_sel_hi:[0,1]' % (vr(d, 2), vr(tmp + 4 * i, 2), vr(tmp + 4 * i + 2, 2)))


def prep_part(a):
    a.label('K1_PREP')
    if NOPREP: a('s_endpgm')
    a('s_setprio %d' % IPRIO)
    if TOUCH:
        a('''
        s_and_b32 s64, s2, 7
        s_lshr_b32 s65, s2, 3
        s_lshl_b32 s65, s65, 2
        s_add_u32 s65, s65, s3
        s_lshl_b32 s67, s65, 6
        v_add_u32 v28, s67, v1
        v_mul_u32_u24 v29, 34953, v28
        v_lshrrev_b32 v29, 19, v29
        v_mul_u32_u24 v30, 15, v29
        v_sub_u32 v30, v28, v30
        v_mul_u32_u24 v31, 52, v30
        v_lshrrev_b32 v31, 8, v31
        v_mul_u32_u24 v32, 5, v31
        v_sub_u32 v32, v30, v32
        v_mul_u32_u24 v29, 3456, v29
        v_mul_u32_u24 v31, 1152, v31
        v_add_u32 v29, v29, v31
        v_lshl_add_u32 v29, v32, 7, v29
        s_lshr_b32 s66, s64, 2
        s_lshl_b32 s66, s66, 9
        s_and_b32 s67, s64, 3
        s_mul_i32 s67, s67, 589824
        s_lshl_b32 s65, s65, 12
        s_add_u32 s67, s67, s65
        v_lshlrev_b32 v28, 7, v1
        s_waitcnt lgkmcnt(0)
        ''')
        srd(a, 48, P_X, 2048 * 576 * 2)
        srd(a, 52, P_W, 576 * 1728 * 2)
    a('s_mov_b32 s4, s2')
    a('''
    s_mul_i32 s5, s4, 7282
    s_lshr_b32 s5, s5, 16
    s_mul_i32 s6, s5, 9
    s_sub_u32 s6, s4, s6
    s_lshr_b32 s7, s3, 1
    s_lshl_b32 s78, s6, 5
    s_add_u32 s78, s78, s5
    s_lshl_b32 s8, s78, 1
    s_add_u32 s8, s8, s7
    s_and_b32 s9, s3, 1
    s_mul_i32 s10, s3, %d
    s_add_u32 s10, s10, %d
    v_and_b32 v10, 15, v1
    v_lshrrev_b32 v11, 4, v1
    ''' % (KG_WAVE, RA))
    a('''
    s_lshl_b32 s11, s8, 8
    s_lshl_b32 s12, s9, 7
    s_add_u32 s11, s11, s12
    v_lshl_add_u32 v2, v1, 1, s11
    s_lshl_b32 s12, s78, 2
    s_waitcnt lgkmcnt(0)
    s_load_dword s13, s[36:37], s12
    s_load_dword s97, s[38:39], s12
    global_load_ushort v12, v2, s[24:25]
    global_load_ushort v13, v2, s[26:27]
    global_load_ushort v14, v2, s[28:29]
    global_load_ushort v15, v2, s[30:31]
    global_load_ushort v16, v2, s[32:33]
    global_load_ushort v17, v2, s[34:35]
    ''')
    a('''
    s_lshl_b32 s11, s5, 6
    s_lshl_b32 s12, s3, 4
    s_add_u32 s11, s11, s12
    v_lshrrev_b32 v3, 3, v1
    v_add_u32 v3, s11, v3
    v_mul_u32_u24 v3, 1152, v3
    v_and_b32 v4, 7, v1
    v_lshl_add_u32 v3, v4, 4, v3
    s_lshl_b32 s11, s6, 7
    v_add_u32 v3, s11, v3
    v_add_u32 v4, 9216, v3
    global_load_dwordx4 v[20:23], v3, s[16:17]
    global_load_dwordx4 v[24:27], v4, s[16:17]
    ''')
    GX, GW = 176, 212
    nog = a.newlabel('K1_NOG')
    a('''
    s_cmp_eq_u32 s3, 3
    s_cselect_b32 s14, 1, 0
    s_cmp_lt_u32 s4, 256
    s_cselect_b32 s14, s14, 0
    s_cmp_eq_u32 s14, 0
    s_cbranch_scc1 %s
    s_lshl_b32 s11, s4, 3
    v_lshrrev_b32 v4, 3, v1
    v_add_u32 v4, s11, v4
    v_mul_u32_u24 v5, 1152, v4
    v_and_b32 v6, 7, v1
    v_lshlrev_b32 v6, 4, v6
    v_add_u32 v5, v5, v6
    ''' % nog)
    for i in range(9):
        a('global_load_dwordx4 %s, v5, s[16:17] offset:%d' % (vr(GX + 4 * i, 4), 128 * i))
        a('global_load_dwordx4 %s, v6, s[40:41] offset:%d' % (vr(GW + 4 * i, 4), 128 * i))
    a.label(nog)
    if TOUCH:
        a('''
        buffer_load_dword v78, v29, s[52:55], s66 offen
        s_mov_b32 exec_hi, 0
        buffer_load_dword v79, v28, s[48:51], s67 offen
        s_mov_b32 exec_hi, -1
        ''')
    srd(a, S_SWS, P_WS, WS_END)
    a('s_mov_b32 s60, 0x0000bf80')
    a('s_mov_b32 s61, 0xbf800000')
    a.stamp(1)
    a('s_waitcnt vmcnt(%d) lgkmcnt(0)' % (2 if TOUCH else 0))
    a.stamp(2)
    a('''
    s_lshl_b32 s11, s3, 11
    s_add_u32 s11, s11, %d
    v_lshl_add_u32 v7, v1, 4, s11
    ds_write_b128 v7, v[20:23]
    ds_write_b128 v7, v[24:27] offset:1024
    v_lshrrev_b32 v8, 2, v10
    v_lshl_add_u32 v8, v11, 4, v8
    v_lshlrev_b32 v8, 7, v8
    v_and_b32 v9, 3, v1
    v_lshl_add_u32 v8, v9, 3, v8
    s_lshl_b32 s11, s3, 5
    s_add_u32 s11, s11, %d
    v_add_u32 v8, s11, v8
    s_waitcnt lgkmcnt(0)
    s_barrier
    ds_read_b64_tr_b16 v[20:21], v8
    ds_read_b64_tr_b16 v[22:23], v8 offset:512
    ds_read_b64_tr_b16 v[24:25], v8 offset:1024
    ds_read_b64_tr_b16 v[26:27], v8 offset:1536
    v_mul_u32_u24 v9, 144, v10
    v_lshl_add_u32 v9, v11, 5, v9
    v_add_u32 v9, s10, v9
    v_lshrrev_b32 v7, 3, v1
    v_mul_u32_u24 v8, 144, v7
    v_and_b32 v6, 7, v1
    v_lshl_add_u32 v8, v6, 4, v8
    v_add_u32 v8, s10, v8
    s_lshl_b32 s11, s6, 6
    s_lshl_b32 s12, s3, 4
    s_add_u32 s11, s11, s12
    v_add_u32 v7, s11, v7
    v_mul_u32_u24 v7, 4352, v7
    v_lshl_add_u32 v6, v6, 4, v7
    s_lshl_b32 s15, s5, 7
    s_add_u32 s15, s15, 0x%x
    s_add_u32 s98, s15, 34816
    s_waitcnt lgkmcnt(0)
    ds_write_b128 v9, v[20:23]
    ds_write_b128 v9, v[24:27] offset:16
    ds_read_b128 v[248:251], v8
    ds_read_b128 v[252:255], v8 offset:1152
    ''' % (XTL, XTL, WS_XT))
    a('s_waitcnt lgkmcnt(0)')
    a('buffer_store_dwordx4 v[248:251], v6, %s, s15 offen sc1' % sr(S_SWS, 4))
    a('buffer_store_dwordx4 v[252:255], v6, %s, s98 offen sc1' % sr(S_SWS, 4))
    a('''
    s_lshl_b32 s11, s78, 7
    s_add_u32 s11, s11, 0x%x
    s_lshl_b32 s12, s4, 7
    s_add_u32 s12, s12, 0x%x
    s_cmp_eq_u32 s3, 0
    s_cselect_b32 s11, s11, s12
    v_mov_b32 v2, 0
    s_mov_b64 exec, 1
    buffer_store_dword v2, v2, %s, s11 offen sc1
    s_mov_b64 exec, -1
    ''' % (WS_GO1, WS_GO2, sr(S_SWS, 4)))
    a('s_setprio %d' % PPRIO)
    a('''
    s_lshl_b32 s12, s7, 4
    s_lshr_b32 s13, s13, s12
    s_lshl_b32 s13, s13, 16
    v_mov_b32 v18, s13
    v_mul_f32 v18, 0x%x, v18
    v_exp_f32 v18, v18
    v_lshlrev_b32 v12, 16, v12
    v_lshlrev_b32 v13, 16, v13
    v_cvt_pk_bf16_f32 v18, v18, v18
    v_lshlrev_b32 v14, 16, v14
    v_lshlrev_b32 v15, 16, v15
    v_lshlrev_b32 v18, 16, v18
    v_lshlrev_b32 v16, 16, v16
    v_lshlrev_b32 v17, 16, v17
    v_mul_f32 v12, v18, v12
    v_mul_f32 v13, v18, v13
    v_mul_f32 v14, v18, v14
    v_mul_f32 v15, v18, v15
    v_mul_f32 v28, 0x%x, v12
    v_mul_f32 v29, 0x%x, v13
    v_mov_b32 v30, v28
    v_sub_f32 v31, 0, v29
    ''' % (f32bits(LOG2E), f32bits(LOG2E), f32bits(1.0 / (2 * math.pi))))
    L, LC = 28, 30
    X0 = 32
    cmul(a, X0, 16, 14, 34)
    a('v_sub_f32 v%d, 0, v%d' % (X0 + 1, X0 + 1))
    a('v_max_f32_e64 v34, abs(v%d), abs(v%d)' % (X0, X0 + 1))
    for dpp in ('quad_perm:[1,0,3,2]', 'quad_perm:[2,3,0,1]', 'row_half_mirror', 'row_mirror'):
        a.nop(2)
        a('v_max_f32_dpp v34, v34, v34 %s row_mask:0xf bank_mask:0xf' % dpp)
    a.nop(1)
    a('''
    v_readlane_b32 s64, v34, 0
    v_readlane_b32 s65, v34, 16
    v_readlane_b32 s66, v34, 32
    v_readlane_b32 s67, v34, 48
    s_nop 3
    s_max_u32 s64, s64, s65
    s_max_u32 s66, s66, s67
    s_max_u32 s64, s64, s66
    s_lshr_b32 s64, s64, 23
    s_sub_u32 s64, 263, s64
    s_min_u32 s64, s64, 227
    s_max_u32 s64, s64, 27
    s_lshl_b32 s66, s64, 23
    s_mov_b32 s67, s66
    s_sub_u32 s99, 254, s64
    s_lshl_b32 s99, s99, 23
    v_pk_mul_f32 v[32:33], v[32:33], s[66:67]
    ''')
    a('v_lshl_add_u32 v7, v1, 2, s10')
    YB = 40
    Y = lambda b: YB + 2 * b
    TMP = 80
    T2 = 112
    OUT = 128
    deval(a, [(8, Y(1)), (16, Y(2)), (32, Y(4)), (64, Y(8)), (128, Y(16))], L, TMP)
    srd(a, 48, P_DBG, 256)
    nopub = a.newlabel('K1_NOPUB')
    a('''
    s_waitcnt vmcnt(0)
    s_barrier
    s_cmp_lg_u32 s3, 1
    s_cbranch_scc1 %s
    v_mov_b32 v2, 1
    v_mov_b32 v3, 0
    s_lshl_b32 s11, s6, 4
    s_mov_b64 exec, 1
    buffer_atomic_add v2, v3, s[48:51], s11 offen sc0 sc1
    s_waitcnt vmcnt(0)
    v_readfirstlane_b32 s11, v2
    s_mov_b64 exec, -1
    s_cmp_lg_u32 s11, 31
    s_cbranch_scc1 %s
    v_mov_b32 v2, 1
    v_lshlrev_b32 v3, 7, v1
    s_lshl_b32 s11, s6, 12
    s_add_u32 s11, s11, 0x%x
    s_mov_b32 exec_hi, 0
    buffer_store_dword v2, v3, %s, s11 offen sc1
    s_mov_b32 exec_hi, -1
    ''' % (nopub, nopub, WS_GO1, sr(S_SWS, 4)))
    a.label(nopub)
    a('s_setprio %d' % PPRIO)
    a('v_mov_b32 v%d, 0x3c00' % TMP)
    a('ds_write_b32 v7, v%d' % TMP)
    cmul(a, Y(3), Y(2), Y(1), T2)
    cmul(a, Y(5), Y(4), Y(1), T2 + 2)
    cmul(a, Y(6), Y(4), Y(2), T2 + 4)
    cmul(a, Y(9), Y(8), Y(1), T2 + 6)
    cmul(a, Y(10), Y(8), Y(2), T2 + 8)
    cmul(a, Y(12), Y(8), Y(4), T2 + 10)
    cmul(a, Y(7), Y(4), Y(3), T2)
    cmul(a, Y(11), Y(8), Y(3), T2 + 2)
    cmul(a, Y(13), Y(8), Y(5), T2 + 4)
    cmul(a, Y(14), Y(8), Y(6), T2 + 6)
    cmul(a, Y(15), Y(8), Y(7), T2 + 8)
    split_write(a, [(b, Y(b)) for b in range(1, 9)], TMP, 7, 60, 61)
    split_write(a, [(b, Y(b)) for b in range(9, 17)], TMP, 7, 60, 61)
    for b0 in (1, 9):
        bs = [b for b in range(b0, b0 + 8) if b <= 15]
        for i, b in enumerate(bs):
            cmul(a, OUT + 2 * i, Y(16), Y(b), T2 + 2 * i)
        split_write(a, [(16 + b, OUT + 2 * i) for i, b in enumerate(bs)], TMP, 7, 60, 61)
    a.stamp(3)
    a('''
    v_and_b32 v8, 31, v1
    v_mul_u32_u24 v8, %d, v8
    v_lshrrev_b32 v9, 5, v1
    v_lshl_add_u32 v8, v9, 4, v8
    v_add_u32 v8, s10, v8
    ''' % KG_ROW)
    BF = 112
    for k in range(8):
        a('ds_read_b128 %s, v8 offset:%d' % (vr(BF + 4 * k, 4), 32 * k))
    E = {1: 12, 2: 14, 4: 16, 256: 18, 512: 20, 1024: 22, 2048: 24}
    deval(a, [(A, r) for A, r in E.items()], LC, TMP)
    XR = lambda r: 36 + 2 * r
    def X(r): return X0 if r == 0 else XR(r)
    T3 = 2
    tp = [2, 4, 26, 34]
    seq = [(1, 0, 256), (2, 0, 512), (4, 0, 1024), (8, 0, 2048), (9, 0, 4), (13, 0, 2), (17, 0, 1),
           (3, 2, 256), (5, 1, 1024), (6, 2, 1024), (10, 1, 4), (11, 2, 4), (14, 1, 2), (15, 9, 2), (18, 13, 1), (19, 9, 1),
           (7, 3, 1024), (12, 3, 4), (16, 10, 2), (20, 15, 1)]
    for i, (r, src, A) in enumerate(seq):
        cmul(a, X(r), X(src), E[A], tp[i % 4])
    split_write(a, [(r, X(r)) for r in range(0, 21)], TMP, 7, 60, 61, base=KG_LO)
    a.stamp(4)
    AF = 144
    for k in range(8):
        a('ds_read_b128 %s, v8 offset:%d' % (vr(AF + 4 * k, 4), KG_LO + 32 * k))
    ACC = 80
    for k in range(8):
        a('s_waitcnt lgkmcnt(%d)' % (7 - k))
        cin = '0' if k == 0 else vr(ACC, 16)
        a('v_mfma_f32_32x32x16_f16 %s, %s, %s, %s' % (vr(ACC, 16), vr(AF + 4 * k, 4), vr(BF + 4 * k, 4), cin))
    a.nop(16)
    a.stamp(5)
    if TOUCH:
        srd(a, 52, P_WO, 576 * 576 * 2)
        a('''
        s_lshr_b32 s65, s2, 3
        s_lshl_b32 s65, s65, 2
        s_add_u32 s65, s65, s3
        s_mul_i32 s65, s65, 4608
        v_lshlrev_b32 v101, 7, v1
        s_mov_b32 exec_hi, 0xf
        buffer_load_dword v78, v101, s[52:55], s65 offen
        s_mov_b64 exec, -1
        ''')
    even = a.newlabel('K1_EVEN')
    a('s_mov_b32 s66, s99')
    a('s_mov_b32 s67, s99')
    for i in range(0, 12, 2):
        a('v_pk_mul_f32 %s, %s, s[66:67]' % (vr(ACC + i, 2), vr(ACC + i, 2)))
    a('v_lshlrev_b32 v9, 4, v1')
    a('s_cmp_eq_u32 s9, 0')
    a('s_cbranch_scc1 %s' % even)
    a('v_add_u32 v9, s10, v9')
    for i in range(3):
        a('ds_write_b128 v9, %s offset:%d' % (vr(ACC + 4 * i, 4), 1024 * i))
    conv_inputs(a, 'O')
    a('s_mov_b64 exec, -1')
    a('s_waitcnt lgkmcnt(0)')
    a('s_barrier')
    conv_loads(a)
    endl = a.newlabel('K1_PEND')
    nosel = a.newlabel('K1_NOSEL')
    zf = a.newlabel('K1_ZF')
    a('''
    s_cmp_lg_u32 s3, 1
    s_cbranch_scc1 %s
    s_cmp_gt_u32 s4, 9
    s_cbranch_scc1 %s
    s_cmp_eq_u32 s4, 9
    s_cbranch_scc1 %s
    s_lshl_b32 s11, s4, 4
    v_add_u32 v12, s11, v10
    v_mul_u32_u24 v12, 57, v12
    v_lshrrev_b32 v12, 10, v12
    v_lshrrev_b32 v13, 1, v12
    v_cmp_eq_u32 vcc, v13, v11
    v_and_b32 v13, 1, v12
    v_lshlrev_b32 v13, 4, v13
    v_mov_b32 v14, 0x3f80
    v_lshlrev_b32 v13, v13, v14
    v_cndmask_b32 v16, 0, v13, vcc
    v_mov_b32 v17, v16
    v_mov_b32 v18, v16
    v_mov_b32 v19, v16
    v_lshlrev_b32 v12, 4, v1
    s_lshl_b32 s11, s4, 10
    s_add_u32 s11, s11, 0x%x
    buffer_store_dwordx4 v[16:19], v12, %s, s11 offen
    s_branch %s
    ''' % (nosel, endl, zf, WS_SEL, sr(S_SWS, 4), endl))
    a.label(zf)
    a('''
    v_mov_b32 v16, 0
    v_mov_b32 v17, 0
    v_mov_b32 v18, 0
    v_mov_b32 v19, 0
    v_lshlrev_b32 v12, 4, v1
    s_mov_b32 s11, 0x%x
    buffer_store_dwordx4 v[16:19], v12, %s, s11 offen
    buffer_store_dwordx4 v[16:19], v12, %s, s11 offen offset:1024
    buffer_store_dwordx4 v[16:19], v12, %s, s11 offen offset:2048
    buffer_store_dwordx4 v[16:19], v12, %s, s11 offen offset:3072
    s_add_u32 s11, s11, 4096
    buffer_store_dwordx4 v[16:19], v12, %s, s11 offen
    s_branch %s
    ''' % ((WS_FLG,) + (sr(S_SWS, 4),) * 5 + (endl,)))
    a.label(nosel)
    a('s_cmp_eq_u32 s14, 0')
    a('s_cbranch_scc1 %s' % endl)
    a('s_mov_b32 s62, 0x3f803f80')
    a('v_mov_b32 v12, 0')
    a('v_mov_b32 v13, 0')
    for i in range(0, 36, 4):
        for k in range(4):
            a('v_and_b32 v%d, 0xffff, v%d' % (20 + 2 * k, GW + i + k))
            a('v_and_b32 v%d, 0xffff0000, v%d' % (21 + 2 * k, GW + i + k))
        for k in range(4):
            a('v_dot2_f32_bf16 v%d, v%d, v%d, 0' % (30 + 2 * k, GX + i + k, 20 + 2 * k))
            a('v_dot2_f32_bf16 v%d, v%d, v%d, 0' % (31 + 2 * k, GX + i + k, 21 + 2 * k))
        a.nop(3)
        for k in range(4):
            a('v_cvt_pk_bf16_f32 v%d, v%d, v%d' % (40 + k, 30 + 2 * k, 31 + 2 * k))
        a('v_dot2_f32_bf16 v12, v40, s62, v12')
        a('v_dot2_f32_bf16 v13, v41, s62, v13')
        a('v_dot2_f32_bf16 v12, v42, s62, v12')
        a('v_dot2_f32_bf16 v13, v43, s62, v13')
    a.nop(3)
    a('v_add_f32 v12, v12, v13')
    a.nop(2)
    a('v_add_f32_dpp v12, v12, v12 quad_perm:[1,0,3,2] row_mask:0xf bank_mask:0xf')
    a.nop(2)
    a('v_add_f32_dpp v12, v12, v12 quad_perm:[2,3,0,1] row_mask:0xf bank_mask:0xf')
    a.nop(2)
    a('v_add_f32_dpp v12, v12, v12 row_half_mirror row_mask:0xf bank_mask:0xf')
    a('''
    v_cvt_pk_bf16_f32 v12, v12, v12
    v_lshlrev_b32 v12, 16, v12
    v_mul_f32 v12, 0x%x, v12
    v_exp_f32 v12, v12
    s_nop 0
    v_add_f32 v12, 1.0, v12
    v_rcp_f32 v12, v12
    s_nop 0
    v_cvt_pk_bf16_f32 v12, v12, v12
    v_lshlrev_b32 v12, 16, v12
    v_lshrrev_b32 v13, 3, v1
    v_lshlrev_b32 v13, 2, v13
    s_lshl_b32 s11, s4, 5
    s_add_u32 s11, s11, 0x%x
    v_and_b32 v14, 7, v1
    v_cmp_eq_u32 vcc, 0, v14
    s_and_saveexec_b64 s[74:75], vcc
    buffer_store_dword v12, v13, %s, s11 offen
    ''' % (f32bits(-LOG2E), WS_G, sr(S_SWS, 4)))
    a('s_mov_b64 exec, -1')
    a.label(endl)
    a('s_branch K1_CONV')
    a.label(even)
    a('s_add_u32 s11, s10, %d' % KG_WAVE)
    a('v_add_u32 v9, s11, v9')
    a('s_barrier')
    for i in range(3):
        a('ds_read_b128 %s, v9 offset:%d' % (vr(12 + 4 * i, 4), 1024 * i))
    conv_loads(a)
    a('''
    s_mov_b32 s64, 1
    s_mov_b32 s65, -1
    s_mov_b32 s66, -1
    s_mov_b32 s67, 0
    s_waitcnt lgkmcnt(0)
    ''')
    for i in range(0, 12, 2):
        a('v_pk_add_f32 %s, %s, %s' % (vr(ACC + i, 2), vr(ACC + i, 2), vr(12 + i, 2)))
    a('v_cndmask_b32 v%d, 0, v%d, s[64:65]' % (ACC + 4, ACC + 4))
    for i in (9, 10, 11):
        a('v_cndmask_b32 v%d, 0, v%d, s[66:67]' % (ACC + i, ACC + i))
    a('v_max3_f32 v12, abs(v%d), abs(v%d), abs(v%d)' % (ACC, ACC + 1, ACC + 2))
    a('v_max3_f32 v13, abs(v%d), abs(v%d), abs(v%d)' % (ACC + 3, ACC + 4, ACC + 5))
    a('v_max3_f32 v14, abs(v%d), abs(v%d), abs(v%d)' % (ACC + 6, ACC + 7, ACC + 8))
    a('v_max3_f32 v15, abs(v%d), abs(v%d), abs(v%d)' % (ACC + 9, ACC + 10, ACC + 11))
    a('v_max3_f32 v12, v12, v13, v14')
    a('v_max_f32 v12, v12, v15')
    for dpp in ('quad_perm:[1,0,3,2]', 'quad_perm:[2,3,0,1]', 'row_half_mirror', 'row_mirror'):
        a.nop(2)
        a('v_max_f32_dpp v12, v12, v12 %s row_mask:0xf bank_mask:0xf' % dpp)
    a.nop(2)
    a('''
    v_readlane_b32 s64, v12, 0
    v_readlane_b32 s65, v12, 16
    v_readlane_b32 s66, v12, 32
    v_readlane_b32 s67, v12, 48
    s_nop 3
    s_max_u32 s64, s64, s65
    s_max_u32 s66, s66, s67
    s_max_u32 s64, s64, s66
    s_lshr_b32 s64, s64, 23
    s_sub_u32 s64, 268, s64
    s_min_u32 s64, s64, 254
    s_lshl_b32 s66, s64, 23
    s_mov_b32 s67, s66
    ''')
    for i in range(0, 12, 2):
        a('v_pk_mul_f32 %s, %s, s[66:67]' % (vr(ACC + i, 2), vr(ACC + i, 2)))
    for i in range(0, 12, 2):
        a('v_cvt_pk_f16_f32 v%d, v%d, v%d' % (12 + i // 2, ACC + i, ACC + i + 1))
    a('''
    v_and_b32 v8, 31, v1
    v_lshlrev_b32 v8, 1, v8
    v_lshrrev_b32 v9, 5, v1
    v_lshl_add_u32 v8, v9, 8, v8
    v_add_u32 v8, s10, v8
    s_mul_i32 s11, s7, 4608
    ''')
    for r in range(12):
        off = (8 * (r >> 2) + (r & 3)) * 64
        if r % 2 == 0:
            a('ds_write_b16 v8, v%d offset:%d' % (12 + r // 2, off))
        else:
            a('ds_write_b16_d16_hi v8, v%d offset:%d' % (12 + r // 2, off))
    V0, V0N, V4, V2, V6, V1, V3, V5, V7 = 0, 1, 288, 416, 480, 544, 576, 608, 640
    C0 = [V0, V1, V2, V3, V4, V5, V6, V7]
    C1 = [V0, V0, V2, V4, V4, V4, V6, V0N]
    a('v_lshl_add_u32 v8, v1, 1, s10')
    a('s_mov_b32 s66, -1')
    a('s_mov_b32 s67, 0')
    for e in range(8):
        if C0[e] == C1[e]:
            a('ds_read_u16 v%d, v8 offset:%d' % (20 + e, 2 * C0[e]))
        else:
            a('v_mov_b32 v9, %d' % (2 * C1[e]))
            a('v_mov_b32 v11, %d' % (2 * C0[e]))
            a('v_cndmask_b32 v9, v9, v11, s[66:67]')
            a('v_add_u32 v9, v9, v8')
            a('ds_read_u16 v%d, v9' % (20 + e))
    a('ds_read_u16 v28, v8 offset:%d' % (2 * (64 + V0)))
    a('ds_read_u16 v29, v8 offset:%d' % (2 * (64 + V4)))
    a('ds_read_u16 v30, v8 offset:%d' % (2 * (64 + V0N)))
    for rd in (2, 3):
        a('ds_read_u16 v%d, v8 offset:%d' % (27 + 2 * rd, 2 * (64 * rd)))
        a('ds_read_u16 v%d, v8 offset:%d' % (28 + 2 * rd, 2 * (64 * rd + 1)))
    a('''
    v_lshl_add_u32 v9, v1, 4, s11
    v_and_b32 v11, 1, v1
    v_cmp_eq_u32 vcc, 0, v11
    v_mov_b32 v56, 0
    v_mov_b32 v57, 0
    v_mov_b32 v58, 0
    v_mov_b32 v59, 0
    s_mov_b32 s66, 0x10001
    s_waitcnt lgkmcnt(0)
    ''')
    for k in range(4):
        a('v_lshl_or_b32 v%d, v%d, 16, v%d' % (40 + k, 20 + 6 - 2 * k, 20 + 7 - 2 * k))
    a('v_mul_lo_u32 v44, v30, s66')
    a('v_mul_lo_u32 v45, v29, s66')
    a('v_lshl_or_b32 v46, v28, 16, v29')
    a('v_mul_lo_u32 v47, v28, s66')
    for rd in (2, 3):
        A, B, D = 27 + 2 * rd, 28 + 2 * rd, 40 + 4 * rd
        a('v_mul_lo_u32 v%d, v%d, s66' % (D, B))
        a('v_cndmask_b32 v11, v%d, v%d, vcc' % (B, A))
        a('v_mul_lo_u32 v%d, v%d, s66' % (D + 2, A))
        a('v_lshl_or_b32 v%d, v11, 16, v%d' % (D + 1, B))
        a('v_mov_b32 v%d, v%d' % (D + 3, D + 2))
    for rd in range(4):
        a('ds_write_b128 v9, %s offset:%d' % (vr(40 + 4 * rd, 4), 480 + 1024 * rd))
    a('''
    s_mov_b64 exec, 0x3fffffff
    ds_write_b128 v9, v[56:59]
    v_mov_b32 v60, s64
    s_mov_b64 exec, 1
    ds_write_b32 v9, v60 offset:4576
    s_mov_b64 exec, -1
    v_lshrrev_b32 v11, 4, v1
    ''')
    conv_part(a)


C_IN = lambda q: 144 + 8 * q
C_UD = lambda q: 176 + 8 * q
C_OUT = lambda q: 168 + 4 * q
C_BF, C_AF, C_ACC = 40, 104, 216
V_UW0, V_UW2, V_AA, V_BA, V_RW, V_RR = 248, 249, 250, 251, 252, 253


def conv_inputs(a, tag):
    lbl = 'K1_PX' + tag
    if tag == 'O':
        a('''
        s_cmp_lg_u32 s3, 1
        s_cbranch_scc1 %s_ok
        s_lshl_b32 s11, s78, 7
        s_add_u32 s11, s11, 0xb40000
        v_mov_b32 v3, 0
        s_mov_b32 s72, 0
        s_mov_b64 exec, 1
        ''' % lbl)
        a.label(lbl)
        a('''
        buffer_load_dword v2, v3, s[56:59], s11 offen sc1
        s_add_u32 s72, s72, 1
        s_waitcnt vmcnt(0)
        v_readfirstlane_b32 s12, v2
        s_cmp_eq_u32 s12, 1
        s_cbranch_scc1 %s_ok
        s_cmp_gt_u32 s72, 0x8000
        s_cbranch_scc1 %s_ok
        s_sleep 4
        s_branch %s
        ''' % (lbl, lbl, lbl))
    a.label(lbl + '_ok')
    return


def conv_loads(a):
    a('''
    v_lshlrev_b32 v2, 4, v0
    v_subrev_u32 v5, 4, v2
    v_and_b32 v4, 31, v1
    v_lshlrev_b32 v4, 2, v4
    s_mul_i32 s11, s78, 8704
    s_add_u32 s11, s11, 0x%x
    s_add_u32 s52, s46, s11
    s_addc_u32 s53, s47, 0
    s_and_b32 s53, s53, 0xffff
    s_mov_b32 s54, 4096
    s_mov_b32 s55, 0x20000
    s_add_u32 s68, s52, 4352
    s_addc_u32 s69, s53, 0
    s_mov_b32 s70, 4096
    s_mov_b32 s71, 0x20000
    s_lshl_b32 s11, s4, 8
    s_add_u32 s11, s11, 0x%x
    ''' % (WS_XT, WS_PM))
    for q in range(2):
        b = C_IN(q)
        S = 's[52:55]' if q == 0 else 's[68:71]'
        a('buffer_load_dword v%d, v5, %s, 0 offen sc1' % (b + 1, S))
        a('buffer_load_dwordx4 %s, v2, %s, 0 offen sc1' % (vr(b + 2, 4), S))


def conv_part(a):
    a.label('K1_CONV')
    a('s_setprio %d' % CPRIO)
    lg = Cnt(a, 'lgkmcnt', 15)
    a('s_waitcnt lgkmcnt(0)')
    a('s_barrier')
    a('''
    v_lshlrev_b32 v3, 4, v1
    v_lshrrev_b32 v12, 2, v10
    v_add_u32 v%d, %d, v2
    v_add_u32 v%d, %d, v2
    v_not_b32 v13, v10
    v_and_b32 v13, 3, v13
    v_mul_u32_u24 v13, %d, v13
    v_lshl_add_u32 v13, v12, 3, v13
    v_lshlrev_b32 v14, 4, v11
    v_sub_u32 v13, v13, v14
    s_lshl_b32 s9, s3, 6
    s_add_u32 s11, s9, %d
    v_add_u32 v%d, s11, v13
    v_lshl_add_u32 v13, v10, 5, v14
    s_sub_u32 s11, 192, s9
    v_add_u32 v%d, s11, v13
    v_lshl_add_u32 v13, v10, 2, v11
    v_bfe_u32 v14, v10, 1, 2
    v_xor_b32 v13, v13, v14
    s_lshl_b32 s9, s3, 10
    s_add_u32 s9, s9, %d
    v_lshl_add_u32 v%d, v13, 4, s9
    v_and_b32 v13, 31, v1
    v_lshlrev_b32 v13, 1, v13
    v_bfe_u32 v14, v13, 3, 2
    v_xor_b32 v13, v13, v14
    v_lshlrev_b32 v13, 4, v13
    v_lshrrev_b32 v14, 5, v1
    v_lshl_add_u32 v13, v14, 12, v13
    s_lshl_b32 s9, s3, 13
    s_add_u32 s9, s9, %d
    v_add_u32 v%d, s9, v13
    v_lshrrev_b32 v12, 1, v1
    v_mul_u32_u24 v12, %d, v12
    v_and_b32 v13, 1, v1
    v_lshl_add_u32 v12, v13, 4, v12
    v_add_u32 v12, %d, v12
    v_and_b32 v13, 1, v1
    v_bfe_u32 v14, v1, 1, 1
    v_lshl_add_u32 v13, v14, 2, v13
    v_add_u32 v13, 2, v13
    v_mul_u32_u24 v13, %d, v13
    v_add_u32 v13, %d, v13
    v_mov_b32 v16, 0
    v_mov_b32 v17, 0
    v_mov_b32 v18, 0
    v_mov_b32 v19, 0
    v_mov_b32 v15, 4576
    ds_read_b32 v20, v15
    ds_read_b32 v21, v15 offset:4608
    s_mov_b64 exec, 0xffff
    ds_write_b128 v12, v[16:19]
    s_mov_b64 exec, 15
    ds_write_b32 v13, v16
    s_mov_b64 exec, -1
    s_waitcnt vmcnt(0) lgkmcnt(0)
    v_readfirstlane_b32 s76, v20
    v_readfirstlane_b32 s77, v21
    ''' % (V_UW0, RA + 32, V_UW2, RA + 2 * CSZ + 36, CSZ, RA + 56, V_AA, V_BA, L_RED, V_RW, L_RED, V_RR, CSZ, RA, CSZ, RA + 32))
    a.stamp(6)
    DPPS = ('quad_perm:[1,0,3,2]', 'quad_perm:[2,3,0,1]', 'row_half_mirror', 'row_mirror')
    a('s_mov_b32 s8, 0x7fff7fff')
    for q in range(2):
        for k in range(4):
            a('v_and_b32 v%d, s8, v%d' % (16 + 4 * q + k, C_IN(q) + 2 + k))
    for q in range(2):
        a('v_pk_max_u16 v%d, v%d, v%d' % (16 + 4 * q, 16 + 4 * q, 17 + 4 * q))
        a('v_pk_max_u16 v%d, v%d, v%d' % (18 + 4 * q, 18 + 4 * q, 19 + 4 * q))
    for q in range(2):
        a('v_pk_max_u16 v%d, v%d, v%d' % (16 + 4 * q, 16 + 4 * q, 18 + 4 * q))
    a('v_and_b32 v17, 0xffff, v16')
    a('v_lshl_or_b32 v17, v20, 16, v17')
    a('v_lshrrev_b32 v18, 16, v16')
    a('v_and_b32 v19, 0xffff0000, v20')
    a('v_or_b32 v18, v18, v19')
    a('v_pk_max_u16 v16, v17, v18')
    for dpp in DPPS:
        a.nop(2)
        a('v_mov_b32_dpp v17, v16 %s row_mask:0xf bank_mask:0xf' % dpp)
        a('v_pk_max_u16 v16, v16, v17')
    a('''
    v_lshrrev_b32 v17, 4, v0
    v_lshlrev_b32 v17, 2, v17
    v_add_u32 v17, %d, v17
    v_cmp_eq_u32 vcc, 0, v10
    v_lshlrev_b32 v18, 2, v10
    v_add_u32 v18, %d, v18
    s_and_saveexec_b64 s[74:75], vcc
    ds_write_b32 v17, v16
    s_mov_b64 exec, s[74:75]
    s_waitcnt lgkmcnt(0)
    s_barrier
    ds_read_b32 v16, v18
    s_waitcnt lgkmcnt(0)
    ''' % (L_RED, L_RED))
    for dpp in DPPS:
        a.nop(2)
        a('v_mov_b32_dpp v17, v16 %s row_mask:0xf bank_mask:0xf' % dpp)
        a('v_pk_max_u16 v16, v16, v17')
    a.nop(1)
    a('v_readfirstlane_b32 s15, v16')
    def stage(q):
        b = C_IN(q)
        ub = 4 * CSZ * q
        T = 16
        for k in range(4):
            a('v_lshlrev_b32 v%d, 16, v%d' % (T + 2 * k, b + 2 + k))
            a('v_and_b32 v%d, 0xffff0000, v%d' % (T + 2 * k + 1, b + 2 + k))
        a('''
        v_and_b32 v%d, 0xffff0000, v%d
        %s
        s_mov_b32 s13, s12
        %s
        s_lshr_b32 s8, s8, 7
        s_sub_u32 s8, 268, s8
        s_min_u32 s8, s8, 254
        s_add_u32 s%d, s8, s%d
        s_sub_u32 s%d, 254, s%d
        s_lshl_b32 s8, s8, 23
        s_mov_b32 s9, s8
        ''' % (T + 8, b + 1, 's_nop 0' if CLOOP else ('s_lshl_b32 s12, s97, 16' if q == 0 else 's_and_b32 s12, s97, 0xffff0000'),
               's_mov_b32 s8, s14' if CLOOP else ('s_and_b32 s8, s15, 0xffff' if q == 0 else 's_lshr_b32 s8, s15, 16'), 76 + q, 76 + q, 76 + q, 76 + q))
        u = C_UD(q)
        for k in range(4):
            a('v_pk_mul_f32 %s, %s, s[12:13]' % (vr(u + 2 * k, 2), vr(T + 2 * k, 2)))
        for k in range(4):
            a('v_pk_mul_f32 %s, %s, s[8:9]' % (vr(T + 2 * k, 2), vr(T + 2 * k, 2)))
        a('v_mul_f32 v%d, s8, v%d' % (T + 8, T + 8))
        F = 32
        for k in range(4):
            a('v_cvt_pk_f16_f32 v%d, v%d, v%d' % (F + k, T + 2 * k, T + 2 * k + 1))
        a('v_cvt_pk_f16_f32 v%d, v%d, v%d' % (F - 1, T + 8, T + 8))
        if ub:
            a('v_add_u32 v12, %d, v%d' % (ub, V_UW2))
            w2 = 12
        else:
            w2 = V_UW2
        a('ds_write_b128 v%d, %s offset:%d' % (V_UW0, vr(F, 4), ub))
        a('ds_write2_b32 v%d, v%d, v%d offset0:0 offset1:1' % (w2, F, F + 1))
        a('ds_write2_b32 v%d, v%d, v%d offset0:2 offset1:3' % (w2, F + 2, F + 3))
        for k in range(4):
            a('v_alignbit_b32 v%d, v%d, v%d, 16' % (36 + k, F + k, F + k - 1))
        a('v_add_u32 v13, %d, v%d' % (CSZ, w2))
        a('ds_write_b128 v%d, v[36:39] offset:%d' % (V_UW0, ub + CSZ))
        a('ds_write2_b32 v13, v36, v37 offset0:0 offset1:1')
        a('ds_write2_b32 v13, v38, v39 offset0:2 offset1:3')
        for k in range(4):
            a('v_cvt_pk_bf16_f32 v%d, v%d, v%d' % (T + k, u + 2 * k, u + 2 * k + 1))
        for k in range(4):
            a('v_lshlrev_b32 v%d, 16, v%d' % (u + 2 * k, T + k))
            a('v_and_b32 v%d, 0xffff0000, v%d' % (u + 2 * k + 1, T + k))
    BF, AFR, ACC = C_BF, C_AF, C_ACC
    def mfma_loop(q):
        ub = 4 * CSZ * q
        kb = KLB(q)
        def aread(t):
            r = AFR + 4 * (t % 8)
            a('ds_read_b64 %s, v%d offset:%d' % (vr(r, 2), V_AA, ub + 256 * t))
            lg.issue(('A', t))
            a('ds_read_b64 %s, v%d offset:%d' % (vr(r + 2, 2), V_AA, ub + 256 * t + 8))
            lg.issue(('A', t))
        def bread(s_):
            a('ds_read_b128 %s, v%d offset:%d' % (vr(BF + 4 * s_, 4), V_BA, kb + 256 * s_))
            lg.issue(('B', s_))
        aread(0)
        for n in range(8): bread(2 * n + 1)
        aread(1)
        for n in range(8): bread(2 * n)
        started = set()
        for t in range(16):
            lg.wait(('A', t))
            for n in range(8):
                if 2 * n + 1 < t: continue
                s_ = 2 * n - t + 1
                if t < 2 and n % 2 == 0:
                    lg.wait(('B', min(s_ + 2, 15 if t == 0 else 14)))
                cin = vr(ACC + 4 * n, 4) if n in started else '0'
                started.add(n)
                a('v_mfma_f32_16x16x32_f16 %s, %s, %s, %s' % (vr(ACC + 4 * n, 4), vr(AFR + 4 * (t % 8), 4), vr(BF + 4 * s_, 4), cin))
            if t == 0:
                for tt in range(2, 5): aread(tt)
            elif t == 1:
                for tt in range(5, 8): aread(tt)
            if t + 8 < 16: aread(t + 8)
        a.nop(8)
    def reduce_store(q):
        if q: a('s_barrier')
        for n in range(8):
            a('ds_write_b128 v%d, %s offset:%d' % (V_RW, vr(ACC + 4 * n, 4), n * 4096))
        a('v_xor_b32 v12, 16, v%d' % V_RR)
        a('s_waitcnt lgkmcnt(0)')
        lg.ops = []
        a('s_barrier')
        R = 40
        for w in range(4):
            a('ds_read_b128 %s, v%d offset:%d' % (vr(R + 8 * w, 4), V_RR, w * 1024))
            a('ds_read_b128 %s, v12 offset:%d' % (vr(R + 8 * w + 4, 4), w * 1024))
        if CLOOP:
            a('s_mov_b32 s8, s79')
        else:
            a('s_mul_i32 s8, s78, %d' % (2 * TS))
            a('s_add_u32 s8, s8, 0x%x' % (WS_BT + TS * q))
        a('s_waitcnt lgkmcnt(4)')
        for h in range(0, 8, 2):
            a('v_pk_add_f32 %s, %s, %s' % (vr(R + h, 2), vr(R + h, 2), vr(R + 8 + h, 2)))
        a('s_waitcnt lgkmcnt(0)')
        for h in range(0, 8, 2):
            a('v_pk_add_f32 %s, %s, %s' % (vr(R + 16 + h, 2), vr(R + 16 + h, 2), vr(R + 24 + h, 2)))
        for h in range(0, 8, 2):
            a('v_pk_add_f32 %s, %s, %s' % (vr(R + h, 2), vr(R + h, 2), vr(R + 16 + h, 2)))
        for k in range(8):
            a('v_ldexp_f32 v%d, v%d, s%d' % (R + k, R + k, 76 + q))
        for k in range(4):
            a('v_cvt_pk_bf16_f32 v%d, v%d, v%d' % (R + 8 + k, R + 2 * k, R + 2 * k + 1))
        for k in range(4):
            a('v_lshlrev_b32 v%d, 16, v%d' % (R + 2 * k, R + 8 + k))
            a('v_and_b32 v%d, 0xffff0000, v%d' % (R + 2 * k + 1, R + 8 + k))
        u = C_UD(q)
        for k in range(4):
            a('v_pk_add_f32 %s, %s, %s' % (vr(R + 2 * k, 2), vr(R + 2 * k, 2), vr(u + 2 * k, 2)))
        O = C_OUT(q)
        for k in range(4):
            a('v_cvt_pk_bf16_f32 v%d, v%d, v%d' % (O + k, R + 2 * k, R + 2 * k + 1))
        a('buffer_store_dwordx4 %s, v2, %s, s8 offen' % (vr(O, 4), sr(S_SWS, 4)))
    if CLOOP:
        a('s_lshl_b32 s12, s97, 16')
        a('s_and_b32 s14, s15, 0xffff')
        a('s_mul_i32 s79, s78, %d' % (2 * TS))
        a('s_add_u32 s79, s79, 0x%x' % WS_BT)
        a('s_mov_b32 s73, 0')
        a.label('K1_CLOOP')
        stage(0)
        a('s_waitcnt lgkmcnt(0)')
        a('s_barrier')
        mfma_loop(0)
        reduce_store(0)
        a('s_cmp_lg_u32 s73, 0')
        a('s_cbranch_scc1 K1_CEND')
        for k in range(1, 6):
            a('v_mov_b32 v%d, v%d' % (C_IN(0) + k, C_IN(1) + k))
        a('''
        s_mov_b32 s73, 1
        s_and_b32 s12, s97, 0xffff0000
        s_lshr_b32 s14, s15, 16
        s_mov_b32 s76, s77
        s_add_u32 s79, s79, %d
        v_add_u32 v%d, 4608, v%d
        s_branch K1_CLOOP
        ''' % (TS, V_BA, V_BA))
        a.label('K1_CEND')
    else:
        stage(0)
        stage(1)
        a('s_waitcnt lgkmcnt(0)')
        a('s_barrier')
        mfma_loop(0)
        reduce_store(0)
        mfma_loop(1)
        reduce_store(1)
    a.endpgm()


def gen_k1(a):
    a.lines.append('.globl k1_kernel\n.p2align 8\n.type k1_kernel,@function\nk1_kernel:')
    a('s_cmp_ge_u32 s2, %d' % K1_GRID)
    a('s_cbranch_scc1 K1_EXIT')
    a.kidx = 0
    a.stamp_init()
    load_kernargs(a)
    a('''
    v_lshrrev_b32 v2, 6, v0
    v_and_b32 v1, 63, v0
    s_nop 0
    v_readfirstlane_b32 s3, v2
    ''')
    if GFIRST:
        a('''
        s_mov_b32 s97, s2
        s_sub_u32 s2, s2, %d
        s_cmp_ge_u32 s97, %d
        s_cbranch_scc1 K1_PREP
        s_add_u32 s2, s97, %d
        ''' % (N_GEMM, N_GEMM, N_PREP))
    else:
        a('''
        s_cmp_lt_u32 s2, %d
        s_cbranch_scc1 K1_PREP
        s_sub_u32 s97, s2, %d
        ''' % (N_PREP, N_PREP))
    gemm_part(a)
    prep_part(a)
    a.label('K1_EXIT')
    a('s_endpgm')
```

```python
from asmlib import *
import math

WS_PQ = 0x000000
TS = 4352
WS_XT = 0x240000
WS_BT = 0x4B0000
WS_KF = 0x720000
KF_STRIDE = 4608
WS_KVP = 0x950000
KVP_REC = 13 * 1024 + 512
WS_KVF = 0xB00000
WS_SEL = 0xB18000
WS_G = 0xB1C000
WS_PM = 0xB20000
WS_FLG = 0xB34000
WS_GO1 = 0xB40000
WS_GO2 = 0xB50000
WS_GO3 = 0xB60000
WS_END = 0xB70000

N_GEMM = 192
N_PREP = 288
K1_GRID = N_GEMM + N_PREP
K1_LDS = 81920

import os
TOUCH = int(os.environ.get('TOUCH', '1'))
TOUCH_FLAGS = os.environ.get('TOUCH_FLAGS', '')
WFLAGS = os.environ.get('WFLAGS', '')
AFLAGS = os.environ.get('AFLAGS', '')
NOMEM = int(os.environ.get('NOMEM', '0'))
NOPREP = int(os.environ.get('NOPREP', '0'))
NOXS = int(os.environ.get('NOXS', '0'))
PRO = int(os.environ.get('PRO', '2'))
GPRIO = int(os.environ.get('GPRIO', '3'))
PPRIO = int(os.environ.get('PPRIO', '0'))
S3 = int(os.environ.get('S3', '0'))
NOX = int(os.environ.get('NOX', '0'))
NOW = int(os.environ.get('NOW', '0'))
CPRIO = int(os.environ.get('CPRIO', '2'))
QPRIO = int(os.environ.get('QPRIO', '-1'))
IPRIO = int(os.environ.get('IPRIO', '0'))
NOBAR = int(os.environ.get('NOBAR', '0'))
CLOOP = int(os.environ.get('CLOOP', '1'))
ROLL = int(os.environ.get('ROLL', '0'))
GFIRST = int(os.environ.get('GFIRST', '0'))
PQF = os.environ.get('PQF', 'sc1')
BTF = os.environ.get('BTF', 'sc1')
LOG2E = 1.4426950408889634

P_X, P_W, P_WO, P_BU, P_ARE, P_AIM, P_BRE, P_BIM = 16, 18, 20, 22, 24, 26, 28, 30
P_CRE, P_CIM, P_LDT, P_DSK, P_GW, P_OUT, P_DBG, P_WS = 32, 34, 36, 38, 40, 42, 44, 46


class Cnt:
    def __init__(self, a, name, cap):
        self.a, self.name, self.cap = a, name, cap
        self.ops = []
    def issue(self, tag):
        self.ops.append(tag)
    def wait(self, tag):
        idx = max(i for i, t in enumerate(self.ops) if t == tag) if tag in self.ops else None
        if idx is None:
            return
        n = len(self.ops) - 1 - idx
        n = min(n, self.cap)
        self.a('s_waitcnt %s(%d)' % (self.name, n))
        self.ops = self.ops[len(self.ops) - n:] if n > 0 else []
    def wait_all(self):
        self.a('s_waitcnt %s(0)' % self.name)
        self.ops = []


def load_kernargs(a):
    a('s_load_dwordx16 s[16:31], s[0:1], 0')
    a('s_load_dwordx16 s[32:47], s[0:1], 64')


def phi_batch(a, pairs, tmp, s_l2e, s_eps, keep_raw=None):
    n = len(pairs)
    H = lambda i: (keep_raw[i] if keep_raw else tmp + 6 * i)
    T = lambda i: tmp + 6 * i + 2
    E = lambda i: tmp + 6 * i + 4
    for i, (a0, a1, d) in enumerate(pairs):
        a('v_cvt_pk_bf16_f32 v%d, v%d, v%d' % (H(i), a0, a1))
    for i in range(n):
        a('v_lshlrev_b32 v%d, 16, v%d' % (T(i), H(i)))
        a('v_and_b32 v%d, 0xffff0000, v%d' % (T(i) + 1, H(i)))
    for i in range(n):
        a('v_pk_mul_f32 %s, %s, %s' % (vr(E(i), 2), vr(T(i), 2), sr(s_l2e, 2)))
    for i in range(n):
        a('v_exp_f32_e64 v%d, v%d clamp' % (E(i), E(i)))
        a('v_exp_f32_e64 v%d, v%d clamp' % (E(i) + 1, E(i) + 1))
    for i in range(n):
        a('v_max_f32 v%d, 0, v%d' % (T(i), T(i)))
        a('v_max_f32 v%d, 0, v%d' % (T(i) + 1, T(i) + 1))
    for i in range(n):
        a('v_pk_add_f32 %s, %s, %s' % (vr(E(i), 2), vr(E(i), 2), vr(T(i), 2)))
    for i, (a0, a1, d) in enumerate(pairs):
        a('v_cvt_pk_bf16_f32 v%d, v%d, v%d' % (d, E(i), E(i) + 1))
    for i, (a0, a1, d) in enumerate(pairs):
        a('v_pk_min_u16 v%d, v%d, v%d' % (V_PMIN, V_PMIN, d))


V_PMIN = 243


def phi_fix(a, regs, tmp, s_eps, lbl):
    a('''
    v_lshrrev_b32 v%d, 16, v%d
    v_and_b32 v%d, 0xffff, v%d
    v_min_u32 v%d, v%d, v%d
    v_cmp_gt_u32 vcc, 0x3a00, v%d
    s_cbranch_vccz %s
    ''' % (tmp, V_PMIN, tmp + 1, V_PMIN, tmp, tmp, tmp + 1, tmp, lbl))
    for r in regs:
        a('v_lshlrev_b32 v%d, 16, v%d' % (tmp, r))
        a('v_and_b32 v%d, 0xffff0000, v%d' % (tmp + 1, r))
        a('v_pk_add_f32 %s, %s, %s' % (vr(tmp, 2), vr(tmp, 2), sr(s_eps, 2)))
        a('v_cvt_pk_bf16_f32 v%d, v%d, v%d' % (r, tmp, tmp + 1))
    a.label(lbl)


V_XOFF, V_SW, V_DMA, V_TR, V_TR2, V_SR0, V_SR1 = 2, 3, 4, 9, 240, 241, 242
V_XR, V_AF, V_B, V_ACC = 16, 96, 128, 168
V_A = 16
V_T = 96
SLOT = 18432
SCR = 4 * SLOT
S_SX, S_SW, S_SWS = 48, 52, 56
PAIRS = [(0, 4), (0, 5), (1, 4), (1, 5), (1, 6), (2, 5), (2, 6), (2, 7), (3, 6), (3, 7), (3, 8), (4, 7), (4, 8)]


STEPS = {0: [0], 1: [0, 1], 2: [0, 1], 3: [1, 2], 4: [1, 2], 5: [2, 3], 6: [2, 3], 7: [3, 4], 8: [3, 4]}
FRAGS = [('Z', k) for k in range(5)] + [(c, k) for c in range(9) for k in STEPS[c]]


def reduce_task(a):
    cb = sum(((15 if c == 'Z' else c) << (4 * f)) for f, (c, k) in enumerate(FRAGS))
    kb = sum((k << (4 * f)) for f, (c, k) in enumerate(FRAGS))
    a('''
    s_mul_i32 s64, s15, 94
    s_lshr_b32 s64, s64, 11
    s_mul_i32 s65, s64, 22
    s_sub_u32 s65, s15, s65
    s_mov_b32 s66, 0x%x
    s_mov_b32 s67, 0x%x
    s_mov_b32 s68, 0x%x
    s_mov_b32 s69, 0x%x
    s_cmp_ge_u32 s65, 16
    s_cselect_b32 s66, 0x%x, s66
    s_cselect_b32 s68, 0x%x, s68
    s_and_b32 s70, s65, 15
    s_lshl_b32 s70, s70, 2
    s_lshr_b64 s[66:67], s[66:67], s70
    s_lshr_b64 s[68:69], s[68:69], s70
    s_and_b32 s66, s66, 15
    s_and_b32 s68, s68, 15
    s_lshl_b32 s70, s68, 5
    v_lshl_add_u32 v16, v11, 3, s70
    s_cmp_eq_u32 s66, 15
    s_cbranch_scc1 K1_RZ
    s_lshl_b32 s70, s66, 4
    v_add_u32 v17, s70, v10
    v_mul_u32_u24 v18, 57, v17
    v_lshrrev_b32 v18, 10, v18
    v_lshrrev_b32 v19, 2, v18
    v_mul_u32_u24 v20, 72, v19
    v_sub_u32 v21, v17, v20
    v_add_u32 v21, 72, v21
    v_sub_u32 v22, v16, v20
    v_lshrrev_b32 v23, 4, v22
    v_lshrrev_b32 v24, 4, v21
    v_lshl_add_u32 v23, v23, 1, v24
    v_subrev_u32 v23, 4, v23
    v_and_b32 v24, 15, v21
    v_and_b32 v25, 12, v22
    v_lshl_add_u32 v24, v25, 2, v24
    v_lshlrev_b32 v24, 4, v24
    v_lshl_add_u32 v24, v23, 10, v24
    v_add_u32 v25, 256, v24
    s_mov_b64 s[74:75], -1
    s_branch K1_RC
    ''' % (cb & 0xffffffff, (cb >> 32) & 0xffffffff, kb & 0xffffffff, (kb >> 32) & 0xffffffff, cb >> 64, kb >> 64))
    a.label('K1_RZ')
    a('''
    v_lshrrev_b32 v18, 2, v10
    v_lshlrev_b32 v18, 1, v18
    v_and_b32 v19, 1, v10
    v_add_u32 v18, v18, v19
    v_and_b32 v19, 2, v10
    v_cmp_eq_u32 s[74:75], 0, v19
    v_lshrrev_b32 v19, 2, v18
    v_mul_u32_u24 v20, 72, v19
    v_sub_u32 v22, v16, v20
    v_lshlrev_b32 v24, 2, v22
    v_add_u32 v24, 13312, v24
    v_add_u32 v25, 16, v24
    ''')
    a.label('K1_RC')
    a('''
    v_mul_u32_u24 v26, 18, v18
    v_sub_u32 v26, v26, v16
    v_add_u32 v27, 17, v26
    v_cmp_gt_u32 vcc, 25, v27
    s_and_b64 s[74:75], s[74:75], vcc
    s_lshl_b32 s70, s64, 1
    v_add_u32 v19, s70, v19
    v_mul_u32_u24 v19, %d, v19
    v_add_u32 v24, v24, v19
    v_add_u32 v25, v25, v19
    v_mov_b32 v27, 0x40000000
    v_cndmask_b32 v24, v27, v24, s[74:75]
    v_cndmask_b32 v25, v27, v25, s[74:75]
    s_mul_i32 s70, s3, %d
    s_add_u32 s70, s70, 0x%x
    ''' % (KVP_REC, 32 * KVP_REC, WS_KVP))
    R = 32
    for rb in range(4):
        a('buffer_load_dwordx4 %s, v24, %s, s70 offen sc1' % (vr(R + 8 * rb, 4), sr(S_SWS, 4)))
        a('buffer_load_dwordx4 %s, v25, %s, s70 offen sc1' % (vr(R + 8 * rb + 4, 4), sr(S_SWS, 4)))
        if rb < 3:
            a('s_add_u32 s70, s70, %d' % (8 * KVP_REC))
    a('''
    s_lshl_b32 s70, s15, 10
    s_add_u32 s70, s70, 0x%x
    s_lshl_b32 s71, s3, 11
    s_add_u32 s71, s71, 1024
    v_add_u32 v2, s71, v3
    s_waitcnt vmcnt(0)
    ''' % WS_KVF)
    for st in (2, 1):
        for i in range(st):
            for h in range(0, 8, 2):
                a('v_pk_add_f32 %s, %s, %s' % (vr(R + 8 * i + h, 2), vr(R + 8 * i + h, 2), vr(R + 8 * (i + st) + h, 2)))
    a('ds_write_b128 v2, %s' % vr(R, 4))
    a('ds_write_b128 v2, %s offset:1024' % vr(R + 4, 4))
    a('s_waitcnt lgkmcnt(0)')
    a('s_barrier')
    a('s_cmp_lg_u32 s3, 0')
    a('s_cbranch_scc1 K1_KVEXIT')
    for w in range(1, 4):
        a('ds_read_b128 %s, v2 offset:%d' % (vr(R + 8 * w, 4), 2048 * w))
        a('ds_read_b128 %s, v2 offset:%d' % (vr(R + 8 * w + 4, 4), 2048 * w + 1024))
    a('s_waitcnt lgkmcnt(0)')
    for st in (2, 1):
        for i in range(st):
            for h in range(0, 8, 2):
                a('v_pk_add_f32 %s, %s, %s' % (vr(R + 8 * i + h, 2), vr(R + 8 * i + h, 2), vr(R + 8 * (i + st) + h, 2)))
    for j in range(8):
        a('v_subrev_u32 v27, v26, %d' % j if False else 'v_sub_u32 v27, %d, v26' % j)
        a('v_cmp_gt_u32 vcc, 18, v27')
        a('s_and_b64 vcc, vcc, s[74:75]')
        a('s_nop 0')
        a('v_cndmask_b32 v%d, 0, v%d, vcc' % (R + j, R + j))
    for k in range(4):
        a('v_cvt_pk_bf16_f32 v%d, v%d, v%d' % (28 + k, R + 2 * k, R + 2 * k + 1))
    a('buffer_store_dwordx4 v[28:31], v3, %s, s70 offen' % sr(S_SWS, 4))


def gemm_roll(a, qtype):
    tag = 'Q' if qtype else 'K'
    lg = Cnt(a, 'lgkmcnt', 15)
    XR = lambda p: V_XR + 16 * p
    VB = 56
    V_CUR, V_NXT = V_TR, V_TR2
    def wdma(mbase4, mbase5, slotoff):
        ops = []
        for i in range(4):
            ops.append(['s_add_u32 m0, s%d, 0x%x' % (mbase4, slotoff + i * 1024), 's_mov_b64 exec, s[74:75]',
                        'buffer_load_dwordx4 v%d, %s, s68 offen lds' % (V_DMA + i, sr(S_SW, 4)), 's_mov_b64 exec, -1'])
        ops.append(['s_add_u32 m0, s%d, 0x%x' % (mbase5, slotoff + 16384), 's_mov_b64 exec, s[76:77]',
                    'buffer_load_dwordx4 v%d, %s, s68 offen lds' % (V_DMA + 4, sr(S_SW, 4)), 's_mov_b64 exec, -1',
                    's_add_u32 s68, s68, 0x%x' % (64 * 3456),
                    's_cmp_lt_u32 s68, 0x%x' % (9 * 64 * 3456), 's_cselect_b64 s[74:75], -1, 0', 's_cselect_b32 s76, -1, 0'])
        return ops
    def xld(p, off):
        ops = []
        for q in range(4):
            ops.append(['s_mov_b64 exec, s[78:79]',
                        'buffer_load_dwordx4 %s, v%d, %s, s%d offen offset:%d' % (vr(XR(p) + 4 * q, 4), V_XOFF, sr(S_SX, 4), 64 + q, off),
                        's_mov_b64 exec, -1'])
        ops[-1] += ['s_add_u32 s73, s73, 1', 's_cmp_lt_u32 s73, 9', 's_cselect_b64 s[78:79], -1, 0']
        return ops
    def xstage(p):
        r = XR(p)
        for rt in range(2):
            for q in range(2):
                a('ds_write_b128 v%d, %s offset:%d' % (V_SW, vr(r + 4 * (2 * rt + q), 4), 1024 * q))
                lg.issue(('XW', p))
            for kk in range(2):
                a('ds_read_b128 %s, v%d' % (vr(V_AF + p * 16 + (kk * 2 + rt) * 4, 4), V_SR0 + kk))
                lg.issue(('A', p))
    def bread(base, off, kk, j, t):
        for hh in range(2):
            a('ds_read_b64_tr_b16 %s, v%d offset:%d' % (vr(VB + 4 * j + 2 * hh, 2), base, off + (8 * hh + 32 * kk) * 288 + 32 * j))
            lg.issue(('B', t, j))
    a('''
    s_mov_b32 s68, 0
    s_mov_b32 s69, s8
    s_add_u32 s70, s8, %d
    s_mov_b32 s71, s9
    s_add_u32 s72, s9, %d
    s_mov_b64 s[74:75], -1
    s_mov_b32 s76, -1
    s_mov_b32 s77, 0
    s_mov_b64 s[78:79], -1
    s_mov_b32 s73, 2
    s_mov_b32 s96, 0
    ''' % (2 * SLOT, 2 * SLOT))
    for op in wdma(69, 71, 0) + wdma(69, 71, SLOT):
        for ln in op: a(ln)
    for i in range(72):
        a('v_mov_b32 v%d, 0' % (V_ACC + i))
    a.stamp(1)
    a('s_waitcnt vmcnt(14)')
    xstage(0)
    for op in xld(0, 256) + wdma(70, 72, 0):
        for ln in op: a(ln)
    a('s_waitcnt vmcnt(14)')
    a('s_barrier')
    a.stamp(2)
    a('s_waitcnt lgkmcnt(0)')
    lg.ops = []
    for j in range(9):
        bread(V_CUR, 0, 0, j, 0)
    entry = list(lg.ops)
    a.label('K1_GL' + tag)
    for t in range(4):
        p, kk = t // 2, t % 2
        side = []
        if kk == 1:
            a('s_waitcnt vmcnt(13)')
            a('s_barrier')
            side = wdma(70, 72, SLOT) if p == 0 else wdma(69, 71, 0)
        if t == 2:
            a('s_cmp_eq_u32 s96, 4')
            a('s_cbranch_scc1 K1_GX' + tag)
        lg.wait(('A', p))
        for j in range(9):
            if j % 3 == 0:
                lg.wait(('B', t, j + 2))
            for rt in range(2):
                ra = V_AF + p * 16 + (kk * 2 + rt) * 4
                acc = V_ACC + (rt * 9 + j) * 4
                if qtype:
                    a('v_mfma_f32_16x16x32_bf16 %s, %s, %s, %s' % (vr(acc, 4), vr(VB + 4 * j, 4), vr(ra, 4), vr(acc, 4)))
                else:
                    a('v_mfma_f32_16x16x32_bf16 %s, %s, %s, %s' % (vr(acc, 4), vr(ra, 4), vr(VB + 4 * j, 4), vr(acc, 4)))
            jj = j - 1
            def pf(jj):
                if t == 0: bread(V_CUR, 0, 1, jj, 1)
                elif t == 1: bread(V_CUR, SLOT, 0, jj, 2)
                elif t == 2: bread(V_CUR, SLOT, 1, jj, 3)
                else: bread(V_NXT, 0, 0, jj, 0)
            if jj >= 0: pf(jj)
            if side:
                for ln in side.pop(0): a(ln)
            if kk == 0 and j == 3:
                a('s_waitcnt vmcnt(14)')
                xstage(1 - p)
                side = xld(1 - p, 384 if p == 0 else 512)
        pf(8)
        assert not side
    a('''
    v_swap_b32 v%d, v%d
    v_add_u32 v%d, 256, v%d
    s_mov_b32 s15, s69
    s_mov_b32 s69, s70
    s_mov_b32 s70, s15
    s_mov_b32 s15, s71
    s_mov_b32 s71, s72
    s_mov_b32 s72, s15
    s_add_u32 s96, s96, 1
    s_branch K1_GL%s
    ''' % (V_CUR, V_NXT, V_XOFF, V_XOFF, tag))
    assert [x for x in lg.ops if x[0] == 'B'] == entry[-len([x for x in lg.ops if x[0] == 'B']):], (lg.ops, entry)
    a.label('K1_GX' + tag)
    a('s_waitcnt lgkmcnt(0)')
    a.stamp(5)
    a.nop(10)


def gemm_main(a, qtype):
    if ROLL:
        return gemm_roll(a, qtype)
    vm = Cnt(a, 'vmcnt', 63)
    lg = Cnt(a, 'lgkmcnt', 15)
    side = []
    wcount = {}
    xcount = {}

    def dma_ops(c):
        if NOMEM or NOW: return []
        slot = (c % 4) * SLOT
        ops = []
        def one(i):
            a('s_add_u32 m0, s8, 0x%x' % (slot + i * 1024))
            a('s_mov_b32 s10, 0x%x' % (c * 64 * 3456))
            a('buffer_load_dwordx4 v%d, %s, s10 offen lds' % (V_DMA + i, sr(S_SW, 4)))
            vm.issue(('W', c)); wcount[c] = wcount.get(c, 0) + 1
        def last():
            a('s_add_u32 m0, s9, 0x%x' % (slot + 16384))
            a('s_mov_b32 exec_hi, 0')
            a('buffer_load_dwordx4 v%d, %s, s10 offen lds' % (V_DMA + 4, sr(S_SW, 4)))
            a('s_mov_b32 exec_hi, -1')
            vm.issue(('W', c)); wcount[c] = wcount.get(c, 0) + 1
        for i in range(4):
            ops.append(lambda i=i: one(i))
        ops.append(last)
        return ops

    def x_ops(c):
        if NOMEM or NOX: return []
        r = V_XR + (c % 5) * 16
        def one(q):
            a('buffer_load_dwordx4 %s, v%d, %s, s%d offen offset:%d' % (vr(r + 4 * q, 4), V_XOFF, sr(S_SX, 4), 64 + q, c * 128))
            vm.issue(('X', c)); xcount[c] = xcount.get(c, 0) + 1
        return [lambda q=q: one(q) for q in range(4)]

    def flush(tagc=None):
        while side:
            side.pop(0)()

    def xstage(c):
        if NOXS: return
        while not NOMEM and not NOX and c >= 2 and xcount.get(c, 0) < 4:
            side.pop(0)()
        vm.wait(('X', c))
        r = V_XR + (c % 5) * 16
        for rt in range(2):
            for q in range(2):
                a('ds_write_b128 v%d, %s offset:%d' % (V_SW, vr(r + 4 * (2 * rt + q), 4), 1024 * q))
                lg.issue(('XW', c))
            for kk in range(2):
                a('ds_read_b128 %s, v%d' % (vr(V_AF + (c % 2) * 16 + (kk * 2 + rt) * 4, 4), V_SR0 + kk))
                lg.issue(('A', c))

    def bread(k, j):
        c, kk = k // 2, k % 2
        r = V_B + ((k * 9 + j) % 10) * 4
        for hh in range(2):
            off = (c % 2) * SLOT + (8 * hh + 32 * kk) * 288 + 32 * j
            a('ds_read_b64_tr_b16 %s, v%d offset:%d' % (vr(r + 2 * hh, 2), V_TR if (c % 4) < 2 else V_TR2, off))
            lg.issue(('B', k, j))

    for c in range(PRO):
        for op in dma_ops(c): op()
        if c >= 2:
            for op in x_ops(c): op()
    if not S3: a.stamp(1)
    vm.ops = [('X', 0)] * 4 + [('X', 1)] * 4 + vm.ops
    xstage(0)
    vm.wait(('W', 0))
    a('s_barrier')
    if not S3: a.stamp(2)
    for c in range(PRO, 4):
        side.extend(dma_ops(c)); side.extend(x_ops(c))
    side.extend(x_ops(4)); side.extend(x_ops(5))
    wq = set(range(4)); xq = set(range(6))
    for j in range(9):
        bread(0, j)
    for k in range(18):
        c, kk = k // 2, k % 2
        if kk == 1 and c + 1 <= 8:
            while not NOMEM and not NOW and wcount.get(c + 1, 0) < 5:
                side.pop(0)()
            vm.wait(('W', c + 1))
            if not NOBAR: a('s_barrier')
            if c >= 1 and c + 3 <= 8:
                side.extend(dma_ops(c + 3))
        if S3:
            if k % 3 == 0 and k: a.stamp(k // 3)
        else:
            if k == 6: a.stamp(3)
            if k == 12: a.stamp(4)
        lg.wait(('A', c))
        for j in range(9):
            if j % 3 == 0:
                lg.wait(('B', k, j + 2))
            rb = V_B + ((k * 9 + j) % 10) * 4
            for rt in range(2):
                ra = V_AF + (c % 2) * 16 + (kk * 2 + rt) * 4
                acc = V_ACC + (rt * 9 + j) * 4
                cin = '0' if k == 0 else vr(acc, 4)
                if qtype:
                    a('v_mfma_f32_16x16x32_bf16 %s, %s, %s, %s' % (vr(acc, 4), vr(rb, 4), vr(ra, 4), cin))
                else:
                    a('v_mfma_f32_16x16x32_bf16 %s, %s, %s, %s' % (vr(acc, 4), vr(ra, 4), vr(rb, 4), cin))
            if k + 1 < 18:
                bread(k + 1, j)
            if side:
                side.pop(0)()
            if kk == 0 and j == 4 and c + 1 <= 8:
                xstage(c + 1)
                if c + 6 <= 8:
                    side.extend(x_ops(c + 6))
    assert not side
    a.stamp(6 if S3 else 5)
    a.nop(10)


def gemm_part(a):
    a.label('K1_GEMM')
    a('s_setprio %d' % GPRIO)
    a('''
    s_and_b32 s4, s97, 7
    s_lshr_b32 s5, s97, 3
    s_and_b32 s6, s4, 3
    s_lshl_b32 s6, s6, 2
    s_and_b32 s7, s5, 3
    s_add_u32 s6, s6, s7
    s_lshr_b32 s4, s4, 2
    s_mul_i32 s4, s4, 6
    s_lshr_b32 s5, s5, 2
    s_add_u32 s7, s4, s5
    ''')
    a('''
    s_mul_i32 s4, s7, 11
    s_lshr_b32 s4, s4, 5
    s_mul_i32 s5, s4, 3
    s_sub_u32 s5, s7, s5
    s_sub_u32 s11, s7, s4
    s_sub_u32 s11, s11, 1
    ''')
    a('''
    s_mul_i32 s12, s4, 288
    s_mul_i32 s13, s11, 144
    s_add_u32 s13, s13, 1152
    s_cmp_eq_u32 s5, 0
    s_cselect_b32 s12, s12, s13
    s_cselect_b32 s13, 0, 1008
    s_lshl_b32 s8, s3, 12
    s_lshl_b32 s9, s3, 9
    ''')
    a('''
    v_and_b32 v10, 15, v1
    v_lshrrev_b32 v11, 4, v1
    ''')
    a('''
    s_lshl_b32 s14, s6, 7
    s_lshl_b32 s15, s3, 5
    s_add_u32 s14, s14, s15
    v_lshrrev_b32 v13, 3, v1
    v_and_b32 v14, 7, v1
    v_add_u32 v12, s14, v13
    v_mul_u32_u24 v12, 1152, v12
    v_lshl_add_u32 v2, v14, 4, v12
    s_mov_b32 s64, 0
    s_mov_b32 s65, 9216
    s_mov_b32 s66, 18432
    s_mov_b32 s67, 27648
    s_lshl_b32 s15, s3, 11
    s_add_u32 s15, s15, %d
    v_xor_b32 v14, v14, v13
    v_lshlrev_b32 v14, 4, v14
    v_lshl_add_u32 v14, v13, 7, v14
    v_add_u32 v3, s15, v14
    v_and_b32 v13, 7, v10
    v_xor_b32 v13, v13, v11
    v_lshlrev_b32 v14, 7, v10
    v_add_u32 v14, s15, v14
    v_lshl_add_u32 v241, v13, 4, v14
    v_xor_b32 v13, 4, v13
    v_lshl_add_u32 v242, v13, 4, v14
    ''' % SCR)
    a('s_waitcnt lgkmcnt(0)')
    srd(a, S_SX, P_X, 2048 * 576 * 2)
    if not NOMEM:
        for c in range(2):
            for q in range(4):
                a('buffer_load_dwordx4 %s, v%d, %s, s%d offen offset:%d' % (vr(V_XR + c * 16 + 4 * q, 4), V_XOFF, sr(S_SX, 4), 64 + q, c * 128))
    def dma_addr(dst):
        a('''
        v_and_b32 v12, 0x33, v13
        v_and_b32 v15, 4, v13
        v_lshl_or_b32 v12, v15, 1, v12
        v_bfe_u32 v15, v13, 3, 1
        v_lshl_or_b32 v12, v15, 2, v12
        v_cmp_le_u32 vcc, 9, v14
        v_mul_u32_u24 v12, 3456, v12
        v_lshl_add_u32 v12, v14, 4, v12
        v_cndmask_b32 v15, v244, v245, vcc
        v_add_u32 v%d, v12, v15
        ''' % dst)
    a('''
    v_mov_b32 v244, s12
    s_add_u32 s15, s12, s13
    v_mov_b32 v245, s15
    s_lshl_b32 s15, s3, 8
    v_add_u32 v12, s15, v1
    v_mul_u32_u24 v13, 3641, v12
    v_lshrrev_b32 v13, 16, v13
    v_mul_u32_u24 v14, 18, v13
    v_sub_u32 v14, v12, v14
    ''')
    for i in range(4):
        dma_addr(V_DMA + i)
        if i < 3:
            a('''
            v_add_u32 v14, 10, v14
            v_cmp_le_u32 vcc, 18, v14
            v_subrev_u32 v15, 18, v14
            v_add_u32 v13, 3, v13
            v_cndmask_b32 v14, v14, v15, vcc
            v_addc_co_u32 v13, vcc, 0, v13, vcc
            ''')
    a('''
    s_lshl_b32 s15, s3, 5
    s_add_u32 s15, s15, 1024
    v_add_u32 v12, s15, v1
    v_mul_u32_u24 v13, 3641, v12
    v_lshrrev_b32 v13, 16, v13
    v_mul_u32_u24 v14, 18, v13
    v_sub_u32 v14, v12, v14
    ''')
    dma_addr(V_DMA + 4)
    a('''
    v_lshrrev_b32 v12, 2, v10
    v_and_b32 v13, 1, v11
    v_lshl_add_u32 v12, v13, 2, v12
    v_lshrrev_b32 v13, 1, v11
    v_lshl_add_u32 v12, v13, 4, v12
    v_mul_u32_u24 v12, 288, v12
    v_and_b32 v13, 3, v1
    v_lshl_add_u32 v9, v13, 3, v12
    v_add_u32 v240, 36864, v9
    ''')
    srd(a, S_SW, P_W, 576 * 1728 * 2)
    srd(a, S_SWS, P_WS, WS_END)
    a('s_mov_b32 s60, 0x%x' % f32bits(LOG2E))
    a('s_mov_b32 s61, 0x%x' % f32bits(LOG2E))
    a('s_mov_b32 s62, 0x%x' % f32bits(1e-6))
    a('s_mov_b32 s63, 0x%x' % f32bits(1e-6))
    a('s_cmp_eq_u32 s5, 0')
    a('s_cbranch_scc0 K1_GEMM_KV')

    if QPRIO >= 0: a('s_setprio %d' % QPRIO)
    gemm_main(a, True)
    a('s_setprio 0')
    P = lambda rt, j: V_A + (rt * 9 + j) * 2
    allp = []
    for rt in range(2):
        for j in range(9):
            acc = V_ACC + (rt * 9 + j) * 4
            allp.append((acc, acc + 1, P(rt, j)))
            allp.append((acc + 2, acc + 3, P(rt, j) + 1))
    RS = 304
    a('''
    s_mul_i32 s15, s3, 9728
    v_mul_u32_u24 v12, %d, v10
    v_lshl_add_u32 v12, v11, 3, v12
    v_add_u32 v12, s15, v12
    s_mul_i32 s64, s14, 1152
    s_add_u32 s64, s64, s12
    s_barrier
    ''' % RS)
    a('v_mov_b32 v%d, -1' % V_PMIN)
    for b in range(0, 36, 6):
        phi_batch(a, allp[b:b + 6], V_T, 60, 62)
    phi_fix(a, [d for (x, y, d) in allp], V_T, 62, 'K1_QFIX')
    for t in range(18):
        rt, j = t // 9, t % 9
        a('ds_write_b64 v12, %s offset:%d' % (vr(P(rt, j), 2), rt * 16 * RS + 32 * j))
    if not S3: a.stamp(6)
    for i in range(9):
        a('''
        v_add_u32 v13, %d, v1
        v_mul_u32_u24 v14, 3641, v13
        v_lshrrev_b32 v14, 16, v14
        v_mul_u32_u24 v15, 18, v14
        v_sub_u32 v15, v13, v15
        v_lshlrev_b32 v15, 4, v15
        v_mul_u32_u24 v13, %d, v14
        v_add3_u32 v13, v13, v15, s15
        v_mul_u32_u24 v14, 1152, v14
        v_add_u32 v%d, v14, v15
        ds_read_b128 %s, v13
        ''' % (64 * i, RS, V_T + i, vr(V_ACC + 4 * i, 4)))
    for i in range(9):
        a('s_waitcnt lgkmcnt(%d)' % (8 - i))
        a('buffer_store_dwordx4 %s, v%d, %s, s64 offen %s' % (vr(V_ACC + 4 * i, 4), V_T + i, sr(S_SWS, 4), PQF))
    a.endpgm()

    a.label('K1_GEMM_KV')
    gemm_main(a, False)
    a('''
    s_lshl_b32 s98, s6, 1
    s_and_b32 s99, s11, 1
    s_add_u32 s98, s98, s99
    s_lshr_b32 s99, s11, 1
    s_lshl_b32 s99, s99, 5
    s_add_u32 s99, s99, s98
    s_lshl_b32 s99, s99, 7
    s_add_u32 s99, s99, 0x%x
    v_mov_b32 v12, 0
    s_mov_b64 exec, 1
    buffer_store_dword v12, v12, %s, s99 offen sc1
    s_mov_b64 exec, -1
    ''' % (WS_GO3, sr(S_SWS, 4)))
    O = lambda j: V_A + 4 * j
    pk = []
    for j in range(5):
        for rt in range(2):
            acc = V_ACC + (rt * 9 + j) * 4
            pk.append((acc, acc + 1, O(j) + 2 * rt))
            pk.append((acc + 2, acc + 3, O(j) + 2 * rt + 1))
    a('v_mov_b32 v%d, -1' % V_PMIN)
    phi_batch(a, pk[0:8], V_T, 60, 62)
    phi_batch(a, pk[8:16], V_T, 60, 62)
    RAW = V_A + 40
    phi_batch(a, pk[16:20], V_T, 60, 62, keep_raw=[RAW + i for i in range(4)])
    phi_fix(a, [d for (x, y, d) in pk], V_T, 62, 'K1_KFIX')
    a('v_cmp_gt_u32 vcc, 8, v10')
    for j in range(5, 9):
        for rt in range(2):
            acc = V_ACC + (rt * 9 + j) * 4
            a('v_cvt_pk_bf16_f32 v%d, v%d, v%d' % (O(j) + 2 * rt, acc, acc + 1))
            a('v_cvt_pk_bf16_f32 v%d, v%d, v%d' % (O(j) + 2 * rt + 1, acc + 2, acc + 3))
    for i in range(4):
        a('v_cndmask_b32 v%d, v%d, v%d, vcc' % (O(4) + i, RAW + i, O(4) + i))
    a.nop(2)
    pairs = PAIRS
    KV = lambda p: V_ACC + 4 * p
    for p, (ta, tb) in enumerate(pairs):
        a('v_mfma_f32_16x16x32_bf16 %s, %s, %s, 0' % (vr(KV(p), 4), vr(O(ta), 4), vr(O(tb), 4)))
    a('s_mov_b32 s64, 0x3f803f80')
    Z = V_T
    for t in range(5):
        a('v_dot2_f32_bf16 v%d, v%d, s64, 0' % (Z + t, O(t)))
    for i in range(1, 4):
        for t in range(5):
            a('v_dot2_f32_bf16 v%d, v%d, s64, v%d' % (Z + t, O(t) + i, Z + t))
    if not S3: a.stamp(6)
    a('s_barrier')
    a('''
    s_lshl_b32 s15, s3, 10
    v_lshlrev_b32 v12, 4, v1
    v_add_u32 v13, s15, v12
    ''')
    for p in range(13):
        a('ds_write_b128 v13, %s offset:%d' % (vr(KV(p), 4), p * 4096))
    a('''
    s_lshl_b32 s15, s3, 2
    v_add_u32 v14, s15, v11
    v_mul_u32_u24 v14, 320, v14
    v_lshl_add_u32 v14, v10, 2, v14
    ''')
    for t in range(5):
        a('ds_write_b32 v14, v%d offset:%d' % (Z + t, 53248 + 64 * t))
    a('s_waitcnt lgkmcnt(0)')
    a('s_barrier')
    a('s_lshl_b32 s68, s6, 3')
    a('s_add_u32 s68, s68, s11')
    a('s_mul_i32 s68, s68, %d' % KVP_REC)
    a('s_add_u32 s68, s68, 0x%x' % WS_KVP)
    a('s_lshl_b32 s15, s3, 12')
    a('v_add_u32 v13, s15, v12')
    a('s_lshl_b32 s15, s3, 10')
    a('v_add_u32 v14, s15, v12')
    done = a.newlabel('K1_KVZ')
    for it in range(3):
        R = V_A + 16 * it
        for w in range(4):
            a('ds_read_b128 %s, v13 offset:%d' % (vr(R + 4 * w, 4), it * 16384 + w * 1024))
    def red_store(it):
        R = V_A + 16 * it
        a('v_pk_add_f32 %s, %s, %s' % (vr(R, 2), vr(R, 2), vr(R + 4, 2)))
        a('v_pk_add_f32 %s, %s, %s' % (vr(R + 2, 2), vr(R + 2, 2), vr(R + 6, 2)))
        a('v_pk_add_f32 %s, %s, %s' % (vr(R + 8, 2), vr(R + 8, 2), vr(R + 12, 2)))
        a('v_pk_add_f32 %s, %s, %s' % (vr(R + 10, 2), vr(R + 10, 2), vr(R + 14, 2)))
        a('v_pk_add_f32 %s, %s, %s' % (vr(R, 2), vr(R, 2), vr(R + 8, 2)))
        a('v_pk_add_f32 %s, %s, %s' % (vr(R + 2, 2), vr(R + 2, 2), vr(R + 10, 2)))
        a('s_add_u32 s69, s68, %d' % (4096 * it))
        a('buffer_store_dwordx4 %s, v14, %s, s69 offen sc1' % (vr(R, 4), sr(S_SWS, 4)))
    for it in range(3):
        a('s_waitcnt lgkmcnt(%d)' % (8 - 4 * it))
        red_store(it)
    a('s_cmp_lg_u32 s3, 0')
    a('s_cbranch_scc1 %s' % done)
    for w in range(4):
        a('ds_read_b128 %s, v13 offset:%d' % (vr(V_A + 48 + 4 * w, 4), 3 * 16384 + w * 1024))
    a('s_waitcnt lgkmcnt(0)')
    red_store(3)
    a('s_branch K1_KVFIN')
    a.label(done)
    a('s_cmp_lt_u32 s3, 2')
    fin = a.newlabel('K1_KVEND')
    a('s_cbranch_scc1 %s' % fin)
    a('''
    v_subrev_u32 v14, 128, v0
    v_cmp_gt_u32 vcc, 80, v14
    s_and_saveexec_b64 s[74:75], vcc
    s_cbranch_execz %s
    v_lshlrev_b32 v15, 2, v14
    ''' % fin)
    for i in range(16):
        a('ds_read_b32 v%d, v15 offset:%d' % (V_T + i, 53248 + 320 * i))
    a('s_add_u32 s69, s68, 13312')
    a('s_waitcnt lgkmcnt(0)')
    for st in (8, 4, 2, 1):
        for i in range(st):
            a('v_add_f32 v%d, v%d, v%d' % (V_T + i, V_T + i, V_T + i + st))
    a('buffer_store_dword v%d, v15, %s, s69 offen sc1' % (V_T, sr(S_SWS, 4)))
    a.label(fin)
    a.label('K1_KVFIN')
    srd(a, 48, P_DBG, 256)
    a('''
    s_mov_b64 exec, -1
    s_waitcnt vmcnt(0)
    s_barrier
    v_mov_b32 v3, 0
    s_cmp_lg_u32 s3, 0
    s_cbranch_scc1 K1_KVW
    v_mov_b32 v2, 1
    s_lshr_b32 s12, s11, 1
    s_lshl_b32 s12, s12, 4
    s_add_u32 s12, s12, 160
    s_mov_b64 exec, 1
    buffer_atomic_add v2, v3, s[48:51], s12 offen sc0 sc1
    s_waitcnt vmcnt(0)
    v_readfirstlane_b32 s12, v2
    s_mov_b64 exec, -1
    s_cmp_lg_u32 s12, 31
    s_cbranch_scc1 K1_KVP
    v_mov_b32 v2, 1
    v_lshlrev_b32 v4, 7, v1
    s_lshr_b32 s12, s11, 1
    s_lshl_b32 s12, s12, 12
    s_add_u32 s12, s12, 0x%x
    s_mov_b32 exec_hi, 0
    buffer_store_dword v2, v4, %s, s12 offen sc1
    s_mov_b32 exec_hi, -1
    s_branch K1_KVW
    ''' % (WS_GO3, sr(S_SWS, 4)))
    a.label('K1_KVP')
    a('''
    s_cmp_ge_u32 s98, 22
    s_cbranch_scc1 K1_KVEXIT
    s_mov_b32 s72, 0
    s_mov_b64 exec, 1
    ''')
    a.label('K1_KVPL')
    a('''
    buffer_load_dword v2, v3, %s, s99 offen sc1
    s_add_u32 s72, s72, 1
    s_waitcnt vmcnt(0)
    v_readfirstlane_b32 s12, v2
    s_cmp_eq_u32 s12, 1
    s_cbranch_scc1 K1_KVW
    s_cmp_gt_u32 s72, 0x8000
    s_cbranch_scc1 K1_KVW
    s_sleep 2
    s_branch K1_KVPL
    ''' % sr(S_SWS, 4))
    a.label('K1_KVW')
    a('''
    s_mov_b64 exec, -1
    s_cmp_ge_u32 s98, 22
    s_cbranch_scc1 K1_KVEXIT
    s_barrier
    v_lshlrev_b32 v3, 4, v1
    s_lshr_b32 s12, s11, 1
    s_mul_i32 s12, s12, 22
    s_add_u32 s15, s12, s98
    ''')
    reduce_task(a)
    a.label('K1_KVEXIT')
    a.endpgm()


KG_ROW = 272
KG_LO = 32 * KG_ROW
KG_WAVE = KG_LO + 21 * KG_ROW + 16 * 0
KLB = lambda q: 4608 * q
RA = 9216
XTL = RA + 4 * KG_WAVE
CSZ = 4160
UCB = lambda q: RA + 4 * CSZ * q
L_RED = RA + 8 * CSZ


def cmul(a, d, x, y, t):
    a('v_pk_mul_f32 %s, %s, %s op_sel:[1,1] op_sel_hi:[1,0]' % (vr(t, 2), vr(x, 2), vr(y, 2)))
    a('v_pk_fma_f32 %s, %s, %s, %s op_sel:[0,0,0] op_sel_hi:[0,1,1] neg_lo:[0,0,1]' % (vr(d, 2), vr(x, 2), vr(y, 2), vr(t, 2)))


def split_write(a, rows, tmp, vaddr, s_c1, s_c2, base=0):
    for i, (r, p) in enumerate(rows):
        a('v_cvt_pk_f16_f32 v%d, v%d, v%d' % (tmp + i, p, p + 1))
    for i, (r, p) in enumerate(rows):
        a('ds_write_b32 v%d, v%d offset:%d' % (vaddr, tmp + i, base + r * KG_ROW))


def deval(a, items, L, tmp):
    for i, (A, d) in enumerate(items):
        a('v_mul_f32 v%d, 0x%x, v%d' % (tmp + 4 * i, f32bits(float(A)), L))
        a('v_mul_f32 v%d, 0x%x, v%d' % (tmp + 4 * i + 1, f32bits(float(A)), L + 1))
    for i, (A, d) in enumerate(items):
        a('v_fract_f32 v%d, v%d' % (tmp + 4 * i + 1, tmp + 4 * i + 1))
        a('v_exp_f32 v%d, v%d' % (tmp + 4 * i, tmp + 4 * i))
    for i, (A, d) in enumerate(items):
        a('v_cos_f32 v%d, v%d' % (tmp + 4 * i + 2, tmp + 4 * i + 1))
        a('v_sin_f32 v%d, v%d' % (tmp + 4 * i + 3, tmp + 4 * i + 1))
    a.nop(1)
    for i, (A, d) in enumerate(items):
        a('v_pk_mul_f32 %s, %s, %s op_sel:[0,0] op_sel_hi:[0,1]' % (vr(d, 2), vr(tmp + 4 * i, 2), vr(tmp + 4 * i + 2, 2)))


def prep_part(a):
    a.label('K1_PREP')
    if NOPREP: a('s_endpgm')
    a('s_setprio %d' % IPRIO)
    if TOUCH:
        a('''
        s_and_b32 s64, s2, 7
        s_lshr_b32 s65, s2, 3
        s_lshl_b32 s65, s65, 2
        s_add_u32 s65, s65, s3
        s_lshl_b32 s67, s65, 6
        v_add_u32 v28, s67, v1
        v_mul_u32_u24 v29, 34953, v28
        v_lshrrev_b32 v29, 19, v29
        v_mul_u32_u24 v30, 15, v29
        v_sub_u32 v30, v28, v30
        v_mul_u32_u24 v31, 52, v30
        v_lshrrev_b32 v31, 8, v31
        v_mul_u32_u24 v32, 5, v31
        v_sub_u32 v32, v30, v32
        v_mul_u32_u24 v29, 3456, v29
        v_mul_u32_u24 v31, 1152, v31
        v_add_u32 v29, v29, v31
        v_lshl_add_u32 v29, v32, 7, v29
        s_lshr_b32 s66, s64, 2
        s_lshl_b32 s66, s66, 9
        s_and_b32 s67, s64, 3
        s_mul_i32 s67, s67, 589824
        s_lshl_b32 s65, s65, 12
        s_add_u32 s67, s67, s65
        v_lshlrev_b32 v28, 7, v1
        s_waitcnt lgkmcnt(0)
        ''')
        srd(a, 48, P_X, 2048 * 576 * 2)
        srd(a, 52, P_W, 576 * 1728 * 2)
    a('s_mov_b32 s4, s2')
    a('''
    s_mul_i32 s5, s4, 7282
    s_lshr_b32 s5, s5, 16
    s_mul_i32 s6, s5, 9
    s_sub_u32 s6, s4, s6
    s_lshr_b32 s7, s3, 1
    s_lshl_b32 s78, s6, 5
    s_add_u32 s78, s78, s5
    s_lshl_b32 s8, s78, 1
    s_add_u32 s8, s8, s7
    s_and_b32 s9, s3, 1
    s_mul_i32 s10, s3, %d
    s_add_u32 s10, s10, %d
    v_and_b32 v10, 15, v1
    v_lshrrev_b32 v11, 4, v1
    ''' % (KG_WAVE, RA))
    a('''
    s_lshl_b32 s11, s8, 8
    s_lshl_b32 s12, s9, 7
    s_add_u32 s11, s11, s12
    v_lshl_add_u32 v2, v1, 1, s11
    s_lshl_b32 s12, s78, 2
    s_waitcnt lgkmcnt(0)
    s_load_dword s13, s[36:37], s12
    s_load_dword s97, s[38:39], s12
    global_load_ushort v12, v2, s[24:25]
    global_load_ushort v13, v2, s[26:27]
    global_load_ushort v14, v2, s[28:29]
    global_load_ushort v15, v2, s[30:31]
    global_load_ushort v16, v2, s[32:33]
    global_load_ushort v17, v2, s[34:35]
    ''')
    a('''
    s_lshl_b32 s11, s5, 6
    s_lshl_b32 s12, s3, 4
    s_add_u32 s11, s11, s12
    v_lshrrev_b32 v3, 3, v1
    v_add_u32 v3, s11, v3
    v_mul_u32_u24 v3, 1152, v3
    v_and_b32 v4, 7, v1
    v_lshl_add_u32 v3, v4, 4, v3
    s_lshl_b32 s11, s6, 7
    v_add_u32 v3, s11, v3
    v_add_u32 v4, 9216, v3
    global_load_dwordx4 v[20:23], v3, s[16:17]
    global_load_dwordx4 v[24:27], v4, s[16:17]
    ''')
    if TOUCH:
        a('''
        buffer_load_dword v78, v29, s[52:55], s66 offen
        s_mov_b32 exec_hi, 0
        buffer_load_dword v79, v28, s[48:51], s67 offen
        s_mov_b32 exec_hi, -1
        ''')
    srd(a, S_SWS, P_WS, WS_END)
    a('s_mov_b32 s60, 0x0000bf80')
    a('s_mov_b32 s61, 0xbf800000')
    a.stamp(1)
    a('s_waitcnt vmcnt(%d) lgkmcnt(0)' % (2 if TOUCH else 0))
    a.stamp(2)
    a('''
    s_lshl_b32 s11, s3, 11
    s_add_u32 s11, s11, %d
    v_lshl_add_u32 v7, v1, 4, s11
    ds_write_b128 v7, v[20:23]
    ds_write_b128 v7, v[24:27] offset:1024
    v_lshrrev_b32 v8, 2, v10
    v_lshl_add_u32 v8, v11, 4, v8
    v_lshlrev_b32 v8, 7, v8
    v_and_b32 v9, 3, v1
    v_lshl_add_u32 v8, v9, 3, v8
    s_lshl_b32 s11, s3, 5
    s_add_u32 s11, s11, %d
    v_add_u32 v8, s11, v8
    s_waitcnt lgkmcnt(0)
    s_barrier
    ds_read_b64_tr_b16 v[20:21], v8
    ds_read_b64_tr_b16 v[22:23], v8 offset:512
    ds_read_b64_tr_b16 v[24:25], v8 offset:1024
    ds_read_b64_tr_b16 v[26:27], v8 offset:1536
    v_mul_u32_u24 v9, 144, v10
    v_lshl_add_u32 v9, v11, 5, v9
    v_add_u32 v9, s10, v9
    v_lshrrev_b32 v7, 3, v1
    v_mul_u32_u24 v8, 144, v7
    v_and_b32 v6, 7, v1
    v_lshl_add_u32 v8, v6, 4, v8
    v_add_u32 v8, s10, v8
    s_lshl_b32 s11, s6, 6
    s_lshl_b32 s12, s3, 4
    s_add_u32 s11, s11, s12
    v_add_u32 v7, s11, v7
    v_mul_u32_u24 v7, 4352, v7
    v_lshl_add_u32 v6, v6, 4, v7
    s_lshl_b32 s15, s5, 7
    s_add_u32 s15, s15, 0x%x
    s_add_u32 s98, s15, 34816
    s_waitcnt lgkmcnt(0)
    ds_write_b128 v9, v[20:23]
    ds_write_b128 v9, v[24:27] offset:16
    ds_read_b128 v[248:251], v8
    ds_read_b128 v[252:255], v8 offset:1152
    ''' % (XTL, XTL, WS_XT))
    a('s_waitcnt lgkmcnt(0)')
    a('buffer_store_dwordx4 v[248:251], v6, %s, s15 offen sc1' % sr(S_SWS, 4))
    a('buffer_store_dwordx4 v[252:255], v6, %s, s98 offen sc1' % sr(S_SWS, 4))
    a('''
    s_lshl_b32 s11, s78, 7
    s_add_u32 s11, s11, 0x%x
    s_lshl_b32 s12, s4, 7
    s_add_u32 s12, s12, 0x%x
    s_cmp_eq_u32 s3, 0
    s_cselect_b32 s11, s11, s12
    v_mov_b32 v2, 0
    s_mov_b64 exec, 1
    buffer_store_dword v2, v2, %s, s11 offen sc1
    s_mov_b64 exec, -1
    ''' % (WS_GO1, WS_GO2, sr(S_SWS, 4)))
    a('s_setprio %d' % PPRIO)
    a('''
    s_lshl_b32 s12, s7, 4
    s_lshr_b32 s13, s13, s12
    s_lshl_b32 s13, s13, 16
    v_mov_b32 v18, s13
    v_mul_f32 v18, 0x%x, v18
    v_exp_f32 v18, v18
    v_lshlrev_b32 v12, 16, v12
    v_lshlrev_b32 v13, 16, v13
    v_cvt_pk_bf16_f32 v18, v18, v18
    v_lshlrev_b32 v14, 16, v14
    v_lshlrev_b32 v15, 16, v15
    v_lshlrev_b32 v18, 16, v18
    v_lshlrev_b32 v16, 16, v16
    v_lshlrev_b32 v17, 16, v17
    v_mul_f32 v12, v18, v12
    v_mul_f32 v13, v18, v13
    v_mul_f32 v14, v18, v14
    v_mul_f32 v15, v18, v15
    v_mul_f32 v28, 0x%x, v12
    v_mul_f32 v29, 0x%x, v13
    v_mov_b32 v30, v28
    v_sub_f32 v31, 0, v29
    ''' % (f32bits(LOG2E), f32bits(LOG2E), f32bits(1.0 / (2 * math.pi))))
    L, LC = 28, 30
    X0 = 32
    cmul(a, X0, 16, 14, 34)
    a('v_sub_f32 v%d, 0, v%d' % (X0 + 1, X0 + 1))
    a('v_max_f32_e64 v34, abs(v%d), abs(v%d)' % (X0, X0 + 1))
    for dpp in ('quad_perm:[1,0,3,2]', 'quad_perm:[2,3,0,1]', 'row_half_mirror', 'row_mirror'):
        a.nop(2)
        a('v_max_f32_dpp v34, v34, v34 %s row_mask:0xf bank_mask:0xf' % dpp)
    a.nop(1)
    a('''
    v_readlane_b32 s64, v34, 0
    v_readlane_b32 s65, v34, 16
    v_readlane_b32 s66, v34, 32
    v_readlane_b32 s67, v34, 48
    s_nop 3
    s_max_u32 s64, s64, s65
    s_max_u32 s66, s66, s67
    s_max_u32 s64, s64, s66
    s_lshr_b32 s64, s64, 23
    s_sub_u32 s64, 263, s64
    s_min_u32 s64, s64, 227
    s_max_u32 s64, s64, 27
    s_lshl_b32 s66, s64, 23
    s_mov_b32 s67, s66
    s_sub_u32 s99, 254, s64
    s_lshl_b32 s99, s99, 23
    v_pk_mul_f32 v[32:33], v[32:33], s[66:67]
    ''')
    a('v_lshl_add_u32 v7, v1, 2, s10')
    YB = 40
    Y = lambda b: YB + 2 * b
    TMP = 80
    T2 = 112
    OUT = 128
    deval(a, [(8, Y(1)), (16, Y(2)), (32, Y(4)), (64, Y(8)), (128, Y(16))], L, TMP)
    srd(a, 48, P_DBG, 256)
    nopub = a.newlabel('K1_NOPUB')
    a('''
    s_waitcnt vmcnt(0)
    s_barrier
    s_cmp_lg_u32 s3, 1
    s_cbranch_scc1 %s
    v_mov_b32 v2, 1
    v_mov_b32 v3, 0
    s_lshl_b32 s11, s6, 4
    s_mov_b64 exec, 1
    buffer_atomic_add v2, v3, s[48:51], s11 offen sc0 sc1
    s_waitcnt vmcnt(0)
    v_readfirstlane_b32 s11, v2
    s_mov_b64 exec, -1
    s_cmp_lg_u32 s11, 31
    s_cbranch_scc1 %s
    v_mov_b32 v2, 1
    v_lshlrev_b32 v3, 7, v1
    s_lshl_b32 s11, s6, 12
    s_add_u32 s11, s11, 0x%x
    s_mov_b32 exec_hi, 0
    buffer_store_dword v2, v3, %s, s11 offen sc1
    s_mov_b32 exec_hi, -1
    ''' % (nopub, nopub, WS_GO1, sr(S_SWS, 4)))
    a.label(nopub)
    a('s_setprio %d' % PPRIO)
    GX, GW = 176, 212
    nog = a.newlabel('K1_NOG')
    a('''
    s_cmp_eq_u32 s3, 3
    s_cselect_b32 s14, 1, 0
    s_cmp_lt_u32 s4, 256
    s_cselect_b32 s14, s14, 0
    s_cmp_eq_u32 s14, 0
    s_cbranch_scc1 %s
    s_lshl_b32 s11, s4, 3
    v_lshrrev_b32 v4, 3, v1
    v_add_u32 v4, s11, v4
    v_mul_u32_u24 v5, 1152, v4
    v_and_b32 v6, 7, v1
    v_lshlrev_b32 v6, 4, v6
    v_add_u32 v5, v5, v6
    ''' % nog)
    for i in range(9):
        a('global_load_dwordx4 %s, v5, s[16:17] offset:%d' % (vr(GX + 4 * i, 4), 128 * i))
        a('global_load_dwordx4 %s, v6, s[40:41] offset:%d' % (vr(GW + 4 * i, 4), 128 * i))
    a.label(nog)
    a('v_mov_b32 v%d, 0x3c00' % TMP)
    a('ds_write_b32 v7, v%d' % TMP)
    cmul(a, Y(3), Y(2), Y(1), T2)
    cmul(a, Y(5), Y(4), Y(1), T2 + 2)
    cmul(a, Y(6), Y(4), Y(2), T2 + 4)
    cmul(a, Y(9), Y(8), Y(1), T2 + 6)
    cmul(a, Y(10), Y(8), Y(2), T2 + 8)
    cmul(a, Y(12), Y(8), Y(4), T2 + 10)
    cmul(a, Y(7), Y(4), Y(3), T2)
    cmul(a, Y(11), Y(8), Y(3), T2 + 2)
    cmul(a, Y(13), Y(8), Y(5), T2 + 4)
    cmul(a, Y(14), Y(8), Y(6), T2 + 6)
    cmul(a, Y(15), Y(8), Y(7), T2 + 8)
    split_write(a, [(b, Y(b)) for b in range(1, 9)], TMP, 7, 60, 61)
    split_write(a, [(b, Y(b)) for b in range(9, 17)], TMP, 7, 60, 61)
    for b0 in (1, 9):
        bs = [b for b in range(b0, b0 + 8) if b <= 15]
        for i, b in enumerate(bs):
            cmul(a, OUT + 2 * i, Y(16), Y(b), T2 + 2 * i)
        split_write(a, [(16 + b, OUT + 2 * i) for i, b in enumerate(bs)], TMP, 7, 60, 61)
    a.stamp(3)
    a('''
    v_and_b32 v8, 31, v1
    v_mul_u32_u24 v8, %d, v8
    v_lshrrev_b32 v9, 5, v1
    v_lshl_add_u32 v8, v9, 4, v8
    v_add_u32 v8, s10, v8
    ''' % KG_ROW)
    BF = 112
    for k in range(8):
        a('ds_read_b128 %s, v8 offset:%d' % (vr(BF + 4 * k, 4), 32 * k))
    E = {1: 12, 2: 14, 4: 16, 256: 18, 512: 20, 1024: 22, 2048: 24}
    deval(a, [(A, r) for A, r in E.items()], LC, TMP)
    XR = lambda r: 36 + 2 * r
    def X(r): return X0 if r == 0 else XR(r)
    T3 = 2
    tp = [2, 4, 26, 34]
    seq = [(1, 0, 256), (2, 0, 512), (4, 0, 1024), (8, 0, 2048), (9, 0, 4), (13, 0, 2), (17, 0, 1),
           (3, 2, 256), (5, 1, 1024), (6, 2, 1024), (10, 1, 4), (11, 2, 4), (14, 1, 2), (15, 9, 2), (18, 13, 1), (19, 9, 1),
           (7, 3, 1024), (12, 3, 4), (16, 10, 2), (20, 15, 1)]
    for i, (r, src, A) in enumerate(seq):
        cmul(a, X(r), X(src), E[A], tp[i % 4])
    split_write(a, [(r, X(r)) for r in range(0, 21)], TMP, 7, 60, 61, base=KG_LO)
    a.stamp(4)
    AF = 144
    for k in range(8):
        a('ds_read_b128 %s, v8 offset:%d' % (vr(AF + 4 * k, 4), KG_LO + 32 * k))
    ACC = 80
    for k in range(8):
        a('s_waitcnt lgkmcnt(%d)' % (7 - k))
        cin = '0' if k == 0 else vr(ACC, 16)
        a('v_mfma_f32_32x32x16_f16 %s, %s, %s, %s' % (vr(ACC, 16), vr(AF + 4 * k, 4), vr(BF + 4 * k, 4), cin))
    a.nop(16)
    a.stamp(5)
    if TOUCH:
        srd(a, 52, P_WO, 576 * 576 * 2)
        a('''
        s_lshr_b32 s65, s2, 3
        s_lshl_b32 s65, s65, 2
        s_add_u32 s65, s65, s3
        s_mul_i32 s65, s65, 4608
        v_lshlrev_b32 v101, 7, v1
        s_mov_b32 exec_hi, 0xf
        buffer_load_dword v78, v101, s[52:55], s65 offen
        s_mov_b64 exec, -1
        ''')
    even = a.newlabel('K1_EVEN')
    a('s_mov_b32 s66, s99')
    a('s_mov_b32 s67, s99')
    for i in range(0, 12, 2):
        a('v_pk_mul_f32 %s, %s, s[66:67]' % (vr(ACC + i, 2), vr(ACC + i, 2)))
    a('v_lshlrev_b32 v9, 4, v1')
    a('s_cmp_eq_u32 s9, 0')
    a('s_cbranch_scc1 %s' % even)
    a('v_add_u32 v9, s10, v9')
    for i in range(3):
        a('ds_write_b128 v9, %s offset:%d' % (vr(ACC + 4 * i, 4), 1024 * i))
    conv_inputs(a, 'O')
    a('s_mov_b64 exec, -1')
    a('s_waitcnt lgkmcnt(0)')
    a('s_barrier')
    conv_loads(a)
    endl = a.newlabel('K1_PEND')
    nosel = a.newlabel('K1_NOSEL')
    zf = a.newlabel('K1_ZF')
    a('''
    s_cmp_lg_u32 s3, 1
    s_cbranch_scc1 %s
    s_cmp_gt_u32 s4, 9
    s_cbranch_scc1 %s
    s_cmp_eq_u32 s4, 9
    s_cbranch_scc1 %s
    s_lshl_b32 s11, s4, 4
    v_add_u32 v12, s11, v10
    v_mul_u32_u24 v12, 57, v12
    v_lshrrev_b32 v12, 10, v12
    v_lshrrev_b32 v13, 1, v12
    v_cmp_eq_u32 vcc, v13, v11
    v_and_b32 v13, 1, v12
    v_lshlrev_b32 v13, 4, v13
    v_mov_b32 v14, 0x3f80
    v_lshlrev_b32 v13, v13, v14
    v_cndmask_b32 v16, 0, v13, vcc
    v_mov_b32 v17, v16
    v_mov_b32 v18, v16
    v_mov_b32 v19, v16
    v_lshlrev_b32 v12, 4, v1
    s_lshl_b32 s11, s4, 10
    s_add_u32 s11, s11, 0x%x
    buffer_store_dwordx4 v[16:19], v12, %s, s11 offen
    s_branch %s
    ''' % (nosel, endl, zf, WS_SEL, sr(S_SWS, 4), endl))
    a.label(zf)
    a('''
    v_mov_b32 v16, 0
    v_mov_b32 v17, 0
    v_mov_b32 v18, 0
    v_mov_b32 v19, 0
    v_lshlrev_b32 v12, 4, v1
    s_mov_b32 s11, 0x%x
    buffer_store_dwordx4 v[16:19], v12, %s, s11 offen
    buffer_store_dwordx4 v[16:19], v12, %s, s11 offen offset:1024
    buffer_store_dwordx4 v[16:19], v12, %s, s11 offen offset:2048
    buffer_store_dwordx4 v[16:19], v12, %s, s11 offen offset:3072
    s_add_u32 s11, s11, 4096
    buffer_store_dwordx4 v[16:19], v12, %s, s11 offen
    s_branch %s
    ''' % ((WS_FLG,) + (sr(S_SWS, 4),) * 5 + (endl,)))
    a.label(nosel)
    a('s_cmp_eq_u32 s14, 0')
    a('s_cbranch_scc1 %s' % endl)
    a('s_mov_b32 s62, 0x3f803f80')
    a('v_mov_b32 v12, 0')
    a('v_mov_b32 v13, 0')
    a('s_waitcnt vmcnt(%d)' % (4 + (1 if TOUCH else 0)))
    for i in range(0, 36, 4):
        for k in range(4):
            a('v_and_b32 v%d, 0xffff, v%d' % (20 + 2 * k, GW + i + k))
            a('v_and_b32 v%d, 0xffff0000, v%d' % (21 + 2 * k, GW + i + k))
        for k in range(4):
            a('v_dot2_f32_bf16 v%d, v%d, v%d, 0' % (30 + 2 * k, GX + i + k, 20 + 2 * k))
            a('v_dot2_f32_bf16 v%d, v%d, v%d, 0' % (31 + 2 * k, GX + i + k, 21 + 2 * k))
        a.nop(3)
        for k in range(4):
            a('v_cvt_pk_bf16_f32 v%d, v%d, v%d' % (40 + k, 30 + 2 * k, 31 + 2 * k))
        a('v_dot2_f32_bf16 v12, v40, s62, v12')
        a('v_dot2_f32_bf16 v13, v41, s62, v13')
        a('v_dot2_f32_bf16 v12, v42, s62, v12')
        a('v_dot2_f32_bf16 v13, v43, s62, v13')
    a.nop(3)
    a('v_add_f32 v12, v12, v13')
    a.nop(2)
    a('v_add_f32_dpp v12, v12, v12 quad_perm:[1,0,3,2] row_mask:0xf bank_mask:0xf')
    a.nop(2)
    a('v_add_f32_dpp v12, v12, v12 quad_perm:[2,3,0,1] row_mask:0xf bank_mask:0xf')
    a.nop(2)
    a('v_add_f32_dpp v12, v12, v12 row_half_mirror row_mask:0xf bank_mask:0xf')
    a('''
    v_cvt_pk_bf16_f32 v12, v12, v12
    v_lshlrev_b32 v12, 16, v12
    v_mul_f32 v12, 0x%x, v12
    v_exp_f32 v12, v12
    s_nop 0
    v_add_f32 v12, 1.0, v12
    v_rcp_f32 v12, v12
    s_nop 0
    v_cvt_pk_bf16_f32 v12, v12, v12
    v_lshlrev_b32 v12, 16, v12
    v_lshrrev_b32 v13, 3, v1
    v_lshlrev_b32 v13, 2, v13
    s_lshl_b32 s11, s4, 5
    s_add_u32 s11, s11, 0x%x
    v_and_b32 v14, 7, v1
    v_cmp_eq_u32 vcc, 0, v14
    s_and_saveexec_b64 s[74:75], vcc
    buffer_store_dword v12, v13, %s, s11 offen
    ''' % (f32bits(-LOG2E), WS_G, sr(S_SWS, 4)))
    a('s_mov_b64 exec, -1')
    a.label(endl)
    a('s_branch K1_CONV')
    a.label(even)
    a('s_add_u32 s11, s10, %d' % KG_WAVE)
    a('v_add_u32 v9, s11, v9')
    a('s_barrier')
    for i in range(3):
        a('ds_read_b128 %s, v9 offset:%d' % (vr(12 + 4 * i, 4), 1024 * i))
    conv_loads(a)
    a('''
    s_mov_b32 s64, 1
    s_mov_b32 s65, -1
    s_mov_b32 s66, -1
    s_mov_b32 s67, 0
    s_waitcnt lgkmcnt(0)
    ''')
    for i in range(0, 12, 2):
        a('v_pk_add_f32 %s, %s, %s' % (vr(ACC + i, 2), vr(ACC + i, 2), vr(12 + i, 2)))
    a('v_cndmask_b32 v%d, 0, v%d, s[64:65]' % (ACC + 4, ACC + 4))
    for i in (9, 10, 11):
        a('v_cndmask_b32 v%d, 0, v%d, s[66:67]' % (ACC + i, ACC + i))
    a('v_max3_f32 v12, abs(v%d), abs(v%d), abs(v%d)' % (ACC, ACC + 1, ACC + 2))
    a('v_max3_f32 v13, abs(v%d), abs(v%d), abs(v%d)' % (ACC + 3, ACC + 4, ACC + 5))
    a('v_max3_f32 v14, abs(v%d), abs(v%d), abs(v%d)' % (ACC + 6, ACC + 7, ACC + 8))
    a('v_max3_f32 v15, abs(v%d), abs(v%d), abs(v%d)' % (ACC + 9, ACC + 10, ACC + 11))
    a('v_max3_f32 v12, v12, v13, v14')
    a('v_max_f32 v12, v12, v15')
    for dpp in ('quad_perm:[1,0,3,2]', 'quad_perm:[2,3,0,1]', 'row_half_mirror', 'row_mirror'):
        a.nop(2)
        a('v_max_f32_dpp v12, v12, v12 %s row_mask:0xf bank_mask:0xf' % dpp)
    a.nop(2)
    a('''
    v_readlane_b32 s64, v12, 0
    v_readlane_b32 s65, v12, 16
    v_readlane_b32 s66, v12, 32
    v_readlane_b32 s67, v12, 48
    s_nop 3
    s_max_u32 s64, s64, s65
    s_max_u32 s66, s66, s67
    s_max_u32 s64, s64, s66
    s_lshr_b32 s64, s64, 23
    s_sub_u32 s64, 268, s64
    s_min_u32 s64, s64, 254
    s_lshl_b32 s66, s64, 23
    s_mov_b32 s67, s66
    ''')
    for i in range(0, 12, 2):
        a('v_pk_mul_f32 %s, %s, s[66:67]' % (vr(ACC + i, 2), vr(ACC + i, 2)))
    for i in range(0, 12, 2):
        a('v_cvt_pk_f16_f32 v%d, v%d, v%d' % (12 + i // 2, ACC + i, ACC + i + 1))
    a('''
    v_and_b32 v8, 31, v1
    v_lshlrev_b32 v8, 1, v8
    v_lshrrev_b32 v9, 5, v1
    v_lshl_add_u32 v8, v9, 8, v8
    v_add_u32 v8, s10, v8
    s_mul_i32 s11, s7, 4608
    ''')
    for r in range(12):
        off = (8 * (r >> 2) + (r & 3)) * 64
        if r % 2 == 0:
            a('ds_write_b16 v8, v%d offset:%d' % (12 + r // 2, off))
        else:
            a('ds_write_b16_d16_hi v8, v%d offset:%d' % (12 + r // 2, off))
    V0, V0N, V4, V2, V6, V1, V3, V5, V7 = 0, 1, 288, 416, 480, 544, 576, 608, 640
    C0 = [V0, V1, V2, V3, V4, V5, V6, V7]
    C1 = [V0, V0, V2, V4, V4, V4, V6, V0N]
    a('v_lshl_add_u32 v8, v1, 1, s10')
    a('s_mov_b32 s66, -1')
    a('s_mov_b32 s67, 0')
    for e in range(8):
        if C0[e] == C1[e]:
            a('ds_read_u16 v%d, v8 offset:%d' % (20 + e, 2 * C0[e]))
        else:
            a('v_mov_b32 v9, %d' % (2 * C1[e]))
            a('v_mov_b32 v11, %d' % (2 * C0[e]))
            a('v_cndmask_b32 v9, v9, v11, s[66:67]')
            a('v_add_u32 v9, v9, v8')
            a('ds_read_u16 v%d, v9' % (20 + e))
    a('ds_read_u16 v28, v8 offset:%d' % (2 * (64 + V0)))
    a('ds_read_u16 v29, v8 offset:%d' % (2 * (64 + V4)))
    a('ds_read_u16 v30, v8 offset:%d' % (2 * (64 + V0N)))
    for rd in (2, 3):
        a('ds_read_u16 v%d, v8 offset:%d' % (27 + 2 * rd, 2 * (64 * rd)))
        a('ds_read_u16 v%d, v8 offset:%d' % (28 + 2 * rd, 2 * (64 * rd + 1)))
    a('''
    v_lshl_add_u32 v9, v1, 4, s11
    v_and_b32 v11, 1, v1
    v_cmp_eq_u32 vcc, 0, v11
    v_mov_b32 v56, 0
    v_mov_b32 v57, 0
    v_mov_b32 v58, 0
    v_mov_b32 v59, 0
    s_mov_b32 s66, 0x10001
    s_waitcnt lgkmcnt(0)
    ''')
    for k in range(4):
        a('v_lshl_or_b32 v%d, v%d, 16, v%d' % (40 + k, 20 + 6 - 2 * k, 20 + 7 - 2 * k))
    a('v_mul_lo_u32 v44, v30, s66')
    a('v_mul_lo_u32 v45, v29, s66')
    a('v_lshl_or_b32 v46, v28, 16, v29')
    a('v_mul_lo_u32 v47, v28, s66')
    for rd in (2, 3):
        A, B, D = 27 + 2 * rd, 28 + 2 * rd, 40 + 4 * rd
        a('v_mul_lo_u32 v%d, v%d, s66' % (D, B))
        a('v_cndmask_b32 v11, v%d, v%d, vcc' % (B, A))
        a('v_mul_lo_u32 v%d, v%d, s66' % (D + 2, A))
        a('v_lshl_or_b32 v%d, v11, 16, v%d' % (D + 1, B))
        a('v_mov_b32 v%d, v%d' % (D + 3, D + 2))
    for rd in range(4):
        a('ds_write_b128 v9, %s offset:%d' % (vr(40 + 4 * rd, 4), 480 + 1024 * rd))
    a('''
    s_mov_b64 exec, 0x3fffffff
    ds_write_b128 v9, v[56:59]
    v_mov_b32 v60, s64
    s_mov_b64 exec, 1
    ds_write_b32 v9, v60 offset:4576
    s_mov_b64 exec, -1
    v_lshrrev_b32 v11, 4, v1
    ''')
    conv_part(a)


C_IN = lambda q: 144 + 8 * q
C_UD = lambda q: 176 + 8 * q
C_OUT = lambda q: 168 + 4 * q
C_BF, C_AF, C_ACC = 40, 104, 216
V_UW0, V_UW2, V_AA, V_BA, V_RW, V_RR = 248, 249, 250, 251, 252, 253


def conv_inputs(a, tag):
    lbl = 'K1_PX' + tag
    if tag == 'O':
        a('''
        s_cmp_lg_u32 s3, 1
        s_cbranch_scc1 %s_ok
        s_lshl_b32 s11, s78, 7
        s_add_u32 s11, s11, 0xb40000
        v_mov_b32 v3, 0
        s_mov_b32 s72, 0
        s_mov_b64 exec, 1
        ''' % lbl)
        a.label(lbl)
        a('''
        buffer_load_dword v2, v3, s[56:59], s11 offen sc1
        s_add_u32 s72, s72, 1
        s_waitcnt vmcnt(0)
        v_readfirstlane_b32 s12, v2
        s_cmp_eq_u32 s12, 1
        s_cbranch_scc1 %s_ok
        s_cmp_gt_u32 s72, 0x8000
        s_cbranch_scc1 %s_ok
        s_sleep 4
        s_branch %s
        ''' % (lbl, lbl, lbl))
    a.label(lbl + '_ok')
    return


def conv_loads(a):
    a('''
    v_lshlrev_b32 v2, 4, v0
    v_subrev_u32 v5, 4, v2
    v_and_b32 v4, 31, v1
    v_lshlrev_b32 v4, 2, v4
    s_mul_i32 s11, s78, 8704
    s_add_u32 s11, s11, 0x%x
    s_add_u32 s52, s46, s11
    s_addc_u32 s53, s47, 0
    s_and_b32 s53, s53, 0xffff
    s_mov_b32 s54, 4096
    s_mov_b32 s55, 0x20000
    s_add_u32 s68, s52, 4352
    s_addc_u32 s69, s53, 0
    s_mov_b32 s70, 4096
    s_mov_b32 s71, 0x20000
    s_lshl_b32 s11, s4, 8
    s_add_u32 s11, s11, 0x%x
    ''' % (WS_XT, WS_PM))
    for q in range(2):
        b = C_IN(q)
        S = 's[52:55]' if q == 0 else 's[68:71]'
        a('buffer_load_dword v%d, v5, %s, 0 offen sc1' % (b + 1, S))
        a('buffer_load_dwordx4 %s, v2, %s, 0 offen sc1' % (vr(b + 2, 4), S))


def conv_part(a):
    a.label('K1_CONV')
    a('s_setprio %d' % CPRIO)
    lg = Cnt(a, 'lgkmcnt', 15)
    a('s_waitcnt lgkmcnt(0)')
    a('s_barrier')
    a('''
    v_lshlrev_b32 v3, 4, v1
    v_lshrrev_b32 v12, 2, v10
    v_add_u32 v%d, %d, v2
    v_add_u32 v%d, %d, v2
    v_not_b32 v13, v10
    v_and_b32 v13, 3, v13
    v_mul_u32_u24 v13, %d, v13
    v_lshl_add_u32 v13, v12, 3, v13
    v_lshlrev_b32 v14, 4, v11
    v_sub_u32 v13, v13, v14
    s_lshl_b32 s9, s3, 6
    s_add_u32 s11, s9, %d
    v_add_u32 v%d, s11, v13
    v_lshl_add_u32 v13, v10, 5, v14
    s_sub_u32 s11, 192, s9
    v_add_u32 v%d, s11, v13
    v_lshl_add_u32 v13, v10, 2, v11
    v_bfe_u32 v14, v10, 1, 2
    v_xor_b32 v13, v13, v14
    s_lshl_b32 s9, s3, 10
    s_add_u32 s9, s9, %d
    v_lshl_add_u32 v%d, v13, 4, s9
    v_and_b32 v13, 31, v1
    v_lshlrev_b32 v13, 1, v13
    v_bfe_u32 v14, v13, 3, 2
    v_xor_b32 v13, v13, v14
    v_lshlrev_b32 v13, 4, v13
    v_lshrrev_b32 v14, 5, v1
    v_lshl_add_u32 v13, v14, 12, v13
    s_lshl_b32 s9, s3, 13
    s_add_u32 s9, s9, %d
    v_add_u32 v%d, s9, v13
    v_lshrrev_b32 v12, 1, v1
    v_mul_u32_u24 v12, %d, v12
    v_and_b32 v13, 1, v1
    v_lshl_add_u32 v12, v13, 4, v12
    v_add_u32 v12, %d, v12
    v_and_b32 v13, 1, v1
    v_bfe_u32 v14, v1, 1, 1
    v_lshl_add_u32 v13, v14, 2, v13
    v_add_u32 v13, 2, v13
    v_mul_u32_u24 v13, %d, v13
    v_add_u32 v13, %d, v13
    v_mov_b32 v16, 0
    v_mov_b32 v17, 0
    v_mov_b32 v18, 0
    v_mov_b32 v19, 0
    v_mov_b32 v15, 4576
    ds_read_b32 v20, v15
    ds_read_b32 v21, v15 offset:4608
    s_mov_b64 exec, 0xffff
    ds_write_b128 v12, v[16:19]
    s_mov_b64 exec, 15
    ds_write_b32 v13, v16
    s_mov_b64 exec, -1
    s_waitcnt vmcnt(0) lgkmcnt(0)
    v_readfirstlane_b32 s76, v20
    v_readfirstlane_b32 s77, v21
    ''' % (V_UW0, RA + 32, V_UW2, RA + 2 * CSZ + 36, CSZ, RA + 56, V_AA, V_BA, L_RED, V_RW, L_RED, V_RR, CSZ, RA, CSZ, RA + 32))
    a.stamp(6)
    DPPS = ('quad_perm:[1,0,3,2]', 'quad_perm:[2,3,0,1]', 'row_half_mirror', 'row_mirror')
    a('s_mov_b32 s8, 0x7fff7fff')
    for q in range(2):
        for k in range(4):
            a('v_and_b32 v%d, s8, v%d' % (16 + 4 * q + k, C_IN(q) + 2 + k))
    for q in range(2):
        a('v_pk_max_u16 v%d, v%d, v%d' % (16 + 4 * q, 16 + 4 * q, 17 + 4 * q))
        a('v_pk_max_u16 v%d, v%d, v%d' % (18 + 4 * q, 18 + 4 * q, 19 + 4 * q))
    for q in range(2):
        a('v_pk_max_u16 v%d, v%d, v%d' % (16 + 4 * q, 16 + 4 * q, 18 + 4 * q))
    a('v_and_b32 v17, 0xffff, v16')
    a('v_lshl_or_b32 v17, v20, 16, v17')
    a('v_lshrrev_b32 v18, 16, v16')
    a('v_and_b32 v19, 0xffff0000, v20')
    a('v_or_b32 v18, v18, v19')
    a('v_pk_max_u16 v16, v17, v18')
    for dpp in DPPS:
        a.nop(2)
        a('v_mov_b32_dpp v17, v16 %s row_mask:0xf bank_mask:0xf' % dpp)
        a('v_pk_max_u16 v16, v16, v17')
    a('''
    v_lshrrev_b32 v17, 4, v0
    v_lshlrev_b32 v17, 2, v17
    v_add_u32 v17, %d, v17
    v_cmp_eq_u32 vcc, 0, v10
    v_lshlrev_b32 v18, 2, v10
    v_add_u32 v18, %d, v18
    s_and_saveexec_b64 s[74:75], vcc
    ds_write_b32 v17, v16
    s_mov_b64 exec, s[74:75]
    s_waitcnt lgkmcnt(0)
    s_barrier
    ds_read_b32 v16, v18
    s_waitcnt lgkmcnt(0)
    ''' % (L_RED, L_RED))
    for dpp in DPPS:
        a.nop(2)
        a('v_mov_b32_dpp v17, v16 %s row_mask:0xf bank_mask:0xf' % dpp)
        a('v_pk_max_u16 v16, v16, v17')
    a.nop(1)
    a('v_readfirstlane_b32 s15, v16')
    def stage(q):
        b = C_IN(q)
        ub = 4 * CSZ * q
        T = 16
        for k in range(4):
            a('v_lshlrev_b32 v%d, 16, v%d' % (T + 2 * k, b + 2 + k))
            a('v_and_b32 v%d, 0xffff0000, v%d' % (T + 2 * k + 1, b + 2 + k))
        a('''
        v_and_b32 v%d, 0xffff0000, v%d
        %s
        s_mov_b32 s13, s12
        %s
        s_lshr_b32 s8, s8, 7
        s_sub_u32 s8, 268, s8
        s_min_u32 s8, s8, 254
        s_add_u32 s%d, s8, s%d
        s_sub_u32 s%d, 254, s%d
        s_lshl_b32 s8, s8, 23
        s_mov_b32 s9, s8
        ''' % (T + 8, b + 1, 's_nop 0' if CLOOP else ('s_lshl_b32 s12, s97, 16' if q == 0 else 's_and_b32 s12, s97, 0xffff0000'),
               's_mov_b32 s8, s14' if CLOOP else ('s_and_b32 s8, s15, 0xffff' if q == 0 else 's_lshr_b32 s8, s15, 16'), 76 + q, 76 + q, 76 + q, 76 + q))
        u = C_UD(q)
        for k in range(4):
            a('v_pk_mul_f32 %s, %s, s[12:13]' % (vr(u + 2 * k, 2), vr(T + 2 * k, 2)))
        for k in range(4):
            a('v_pk_mul_f32 %s, %s, s[8:9]' % (vr(T + 2 * k, 2), vr(T + 2 * k, 2)))
        a('v_mul_f32 v%d, s8, v%d' % (T + 8, T + 8))
        F = 32
        for k in range(4):
            a('v_cvt_pk_f16_f32 v%d, v%d, v%d' % (F + k, T + 2 * k, T + 2 * k + 1))
        a('v_cvt_pk_f16_f32 v%d, v%d, v%d' % (F - 1, T + 8, T + 8))
        if ub:
            a('v_add_u32 v12, %d, v%d' % (ub, V_UW2))
            w2 = 12
        else:
            w2 = V_UW2
        a('ds_write_b128 v%d, %s offset:%d' % (V_UW0, vr(F, 4), ub))
        a('ds_write2_b32 v%d, v%d, v%d offset0:0 offset1:1' % (w2, F, F + 1))
        a('ds_write2_b32 v%d, v%d, v%d offset0:2 offset1:3' % (w2, F + 2, F + 3))
        for k in range(4):
            a('v_alignbit_b32 v%d, v%d, v%d, 16' % (36 + k, F + k, F + k - 1))
        a('v_add_u32 v13, %d, v%d' % (CSZ, w2))
        a('ds_write_b128 v%d, v[36:39] offset:%d' % (V_UW0, ub + CSZ))
        a('ds_write2_b32 v13, v36, v37 offset0:0 offset1:1')
        a('ds_write2_b32 v13, v38, v39 offset0:2 offset1:3')
        for k in range(4):
            a('v_cvt_pk_bf16_f32 v%d, v%d, v%d' % (T + k, u + 2 * k, u + 2 * k + 1))
        for k in range(4):
            a('v_lshlrev_b32 v%d, 16, v%d' % (u + 2 * k, T + k))
            a('v_and_b32 v%d, 0xffff0000, v%d' % (u + 2 * k + 1, T + k))
    BF, AFR, ACC = C_BF, C_AF, C_ACC
    def mfma_loop(q):
        ub = 4 * CSZ * q
        kb = KLB(q)
        def aread(t):
            r = AFR + 4 * (t % 8)
            a('ds_read_b64 %s, v%d offset:%d' % (vr(r, 2), V_AA, ub + 256 * t))
            lg.issue(('A', t))
            a('ds_read_b64 %s, v%d offset:%d' % (vr(r + 2, 2), V_AA, ub + 256 * t + 8))
            lg.issue(('A', t))
        def bread(s_):
            a('ds_read_b128 %s, v%d offset:%d' % (vr(BF + 4 * s_, 4), V_BA, kb + 256 * s_))
            lg.issue(('B', s_))
        aread(0)
        for n in range(8): bread(2 * n + 1)
        aread(1)
        for n in range(8): bread(2 * n)
        started = set()
        for t in range(16):
            lg.wait(('A', t))
            for n in range(8):
                if 2 * n + 1 < t: continue
                s_ = 2 * n - t + 1
                if t < 2 and n % 2 == 0:
                    lg.wait(('B', min(s_ + 2, 15 if t == 0 else 14)))
                cin = vr(ACC + 4 * n, 4) if n in started else '0'
                started.add(n)
                a('v_mfma_f32_16x16x32_f16 %s, %s, %s, %s' % (vr(ACC + 4 * n, 4), vr(AFR + 4 * (t % 8), 4), vr(BF + 4 * s_, 4), cin))
            if t == 0:
                for tt in range(2, 5): aread(tt)
            elif t == 1:
                for tt in range(5, 8): aread(tt)
            if t + 8 < 16: aread(t + 8)
        a.nop(8)
    def reduce_store(q):
        if q: a('s_barrier')
        for n in range(8):
            a('ds_write_b128 v%d, %s offset:%d' % (V_RW, vr(ACC + 4 * n, 4), n * 4096))
        a('v_xor_b32 v12, 16, v%d' % V_RR)
        a('s_waitcnt lgkmcnt(0)')
        lg.ops = []
        a('s_barrier')
        R = 40
        for w in range(4):
            a('ds_read_b128 %s, v%d offset:%d' % (vr(R + 8 * w, 4), V_RR, w * 1024))
            a('ds_read_b128 %s, v12 offset:%d' % (vr(R + 8 * w + 4, 4), w * 1024))
        if CLOOP:
            a('s_mov_b32 s8, s79')
        else:
            a('s_mul_i32 s8, s78, %d' % (2 * TS))
            a('s_add_u32 s8, s8, 0x%x' % (WS_BT + TS * q))
        a('s_waitcnt lgkmcnt(4)')
        for h in range(0, 8, 2):
            a('v_pk_add_f32 %s, %s, %s' % (vr(R + h, 2), vr(R + h, 2), vr(R + 8 + h, 2)))
        a('s_waitcnt lgkmcnt(0)')
        for h in range(0, 8, 2):
            a('v_pk_add_f32 %s, %s, %s' % (vr(R + 16 + h, 2), vr(R + 16 + h, 2), vr(R + 24 + h, 2)))
        for h in range(0, 8, 2):
            a('v_pk_add_f32 %s, %s, %s' % (vr(R + h, 2), vr(R + h, 2), vr(R + 16 + h, 2)))
        for k in range(8):
            a('v_ldexp_f32 v%d, v%d, s%d' % (R + k, R + k, 76 + q))
        for k in range(4):
            a('v_cvt_pk_bf16_f32 v%d, v%d, v%d' % (R + 8 + k, R + 2 * k, R + 2 * k + 1))
        for k in range(4):
            a('v_lshlrev_b32 v%d, 16, v%d' % (R + 2 * k, R + 8 + k))
            a('v_and_b32 v%d, 0xffff0000, v%d' % (R + 2 * k + 1, R + 8 + k))
        u = C_UD(q)
        for k in range(4):
            a('v_pk_add_f32 %s, %s, %s' % (vr(R + 2 * k, 2), vr(R + 2 * k, 2), vr(u + 2 * k, 2)))
        O = C_OUT(q)
        for k in range(4):
            a('v_cvt_pk_bf16_f32 v%d, v%d, v%d' % (O + k, R + 2 * k, R + 2 * k + 1))
        a('buffer_store_dwordx4 %s, v2, %s, s8 offen %s' % (vr(O, 4), sr(S_SWS, 4), BTF))
    if CLOOP:
        a('s_lshl_b32 s12, s97, 16')
        a('s_and_b32 s14, s15, 0xffff')
        a('s_mul_i32 s79, s78, %d' % (2 * TS))
        a('s_add_u32 s79, s79, 0x%x' % WS_BT)
        a('s_mov_b32 s73, 0')
        a.label('K1_CLOOP')
        stage(0)
        a('s_waitcnt lgkmcnt(0)')
        a('s_barrier')
        mfma_loop(0)
        reduce_store(0)
        a('s_cmp_lg_u32 s73, 0')
        a('s_cbranch_scc1 K1_CEND')
        for k in range(1, 6):
            a('v_mov_b32 v%d, v%d' % (C_IN(0) + k, C_IN(1) + k))
        a('''
        s_mov_b32 s73, 1
        s_and_b32 s12, s97, 0xffff0000
        s_lshr_b32 s14, s15, 16
        s_mov_b32 s76, s77
        s_add_u32 s79, s79, %d
        v_add_u32 v%d, 4608, v%d
        s_branch K1_CLOOP
        ''' % (TS, V_BA, V_BA))
        a.label('K1_CEND')
    else:
        stage(0)
        stage(1)
        a('s_waitcnt lgkmcnt(0)')
        a('s_barrier')
        mfma_loop(0)
        reduce_store(0)
        mfma_loop(1)
        reduce_store(1)
    a.endpgm()


def gen_k1(a):
    a.lines.append('.globl k1_kernel\n.p2align 8\n.type k1_kernel,@function\nk1_kernel:')
    a('s_cmp_ge_u32 s2, %d' % K1_GRID)
    a('s_cbranch_scc1 K1_EXIT')
    a.kidx = 0
    a.stamp_init()
    load_kernargs(a)
    a('''
    v_lshrrev_b32 v2, 6, v0
    v_and_b32 v1, 63, v0
    s_nop 0
    v_readfirstlane_b32 s3, v2
    ''')
    if GFIRST:
        a('''
        s_mov_b32 s97, s2
        s_sub_u32 s2, s2, %d
        s_cmp_ge_u32 s97, %d
        s_cbranch_scc1 K1_PREP
        s_add_u32 s2, s97, %d
        ''' % (N_GEMM, N_GEMM, N_PREP))
    else:
        a('''
        s_cmp_lt_u32 s2, %d
        s_cbranch_scc1 K1_PREP
        s_sub_u32 s97, s2, %d
        ''' % (N_PREP, N_PREP))
    gemm_part(a)
    prep_part(a)
    a.label('K1_EXIT')
    a('s_endpgm')
```

```python
from asmlib import *
from gen_k1 import *

KM_GRID = 256
WSLOT = 9216
NSL = 3
L_WO = 0
L_PQ = 4 * NSL * WSLOT
L_BT = L_PQ + 36864
KM_LDS = L_BT + 9216
KM_ACCUM = 256
KM_VGPR = 256 + 256

S_SWO, S_SWS3, S_SOUT, S_SU = 48, 52, 56, 60
STEPS = {0: [0], 1: [0, 1], 2: [0, 1], 3: [1, 2], 4: [1, 2], 5: [2, 3], 6: [2, 3], 7: [3, 4], 8: [3, 4]}
FRAGS = [('Z', k) for k in range(5)] + [(c, k) for c in range(9) for k in STEPS[c]]

V_TID16 = 2
V_L16 = 3
V_TRW, V_TRB = 6, 7
V_G, V_OMG = 8, 9
V_UW0, V_UW2 = 236, 237
V_AA, V_BA = 238, 239
WD = 240
PQA = 249
PQB = 228
V_RW, V_RR = 254, 255
WOF = lambda j, k: (k * 36 + 4 * j) if k < 4 else (144 + 2 * j)
A_KVF = 164
A_ZF = 232


SK = lambda q: [76, 78, 100][q]


def poll(a, vaddr, soff, nlanes, tmpv, lbl):
    mask_lo = (1 << min(nlanes, 32)) - 1
    mask_hi = ((1 << (nlanes - 32)) - 1) if nlanes > 32 else 0
    a('s_mov_b32 s70, 0x%x' % mask_lo)
    a('s_mov_b32 s71, 0x%x' % mask_hi)
    a('s_mov_b32 s72, 0')
    a.label(lbl)
    a('buffer_load_dword v%d, v%d, %s, %s offen sc1' % (tmpv, vaddr, sr(S_SWS3, 4), soff))
    a('s_add_u32 s72, s72, 1')
    a('s_waitcnt vmcnt(0)')
    a('v_cmp_ne_u32 vcc, 0, v%d' % tmpv)
    a('s_and_b64 vcc, vcc, s[70:71]')
    a('s_cmp_eq_u64 vcc, s[70:71]')
    a('s_cbranch_scc1 %s_ok' % lbl)
    a('s_cmp_gt_u32 s72, 0x8000')
    a('s_cbranch_scc1 %s_ok' % lbl)
    a('s_sleep 2')
    a('s_branch %s' % lbl)
    a.label(lbl + '_ok')


def reduce_task(a):
    cb = sum(((15 if c == 'Z' else c) << (4 * f)) for f, (c, k) in enumerate(FRAGS))
    kb = sum((k << (4 * f)) for f, (c, k) in enumerate(FRAGS))
    a('''
    s_mul_i32 s64, s15, 94
    s_lshr_b32 s64, s64, 11
    s_mul_i32 s65, s64, 22
    s_sub_u32 s65, s15, s65
    s_mov_b32 s66, 0x%x
    s_mov_b32 s67, 0x%x
    s_mov_b32 s68, 0x%x
    s_mov_b32 s69, 0x%x
    s_cmp_ge_u32 s65, 16
    s_cselect_b32 s66, 0x%x, s66
    s_cselect_b32 s68, 0x%x, s68
    s_and_b32 s70, s65, 15
    s_lshl_b32 s70, s70, 2
    s_lshr_b64 s[66:67], s[66:67], s70
    s_lshr_b64 s[68:69], s[68:69], s70
    s_and_b32 s66, s66, 15
    s_and_b32 s68, s68, 15
    s_lshl_b32 s70, s68, 5
    v_lshl_add_u32 v16, v11, 3, s70
    s_cmp_eq_u32 s66, 15
    s_cbranch_scc1 KM_RZ
    s_lshl_b32 s70, s66, 4
    v_add_u32 v17, s70, v10
    v_mul_u32_u24 v18, 57, v17
    v_lshrrev_b32 v18, 10, v18
    v_lshrrev_b32 v19, 2, v18
    v_mul_u32_u24 v20, 72, v19
    v_sub_u32 v21, v17, v20
    v_add_u32 v21, 72, v21
    v_sub_u32 v22, v16, v20
    v_lshrrev_b32 v23, 4, v22
    v_lshrrev_b32 v24, 4, v21
    v_lshl_add_u32 v23, v23, 1, v24
    v_subrev_u32 v23, 4, v23
    v_and_b32 v24, 15, v21
    v_and_b32 v25, 12, v22
    v_lshl_add_u32 v24, v25, 2, v24
    v_lshlrev_b32 v24, 4, v24
    v_lshl_add_u32 v24, v23, 10, v24
    v_add_u32 v25, 256, v24
    s_mov_b64 s[74:75], -1
    s_branch KM_RC
    ''' % (cb & 0xffffffff, (cb >> 32) & 0xffffffff, kb & 0xffffffff, (kb >> 32) & 0xffffffff, cb >> 64, kb >> 64))
    a.label('KM_RZ')
    a('''
    v_lshrrev_b32 v18, 2, v10
    v_lshlrev_b32 v18, 1, v18
    v_and_b32 v19, 1, v10
    v_add_u32 v18, v18, v19
    v_and_b32 v19, 2, v10
    v_cmp_eq_u32 s[74:75], 0, v19
    v_lshrrev_b32 v19, 2, v18
    v_mul_u32_u24 v20, 72, v19
    v_sub_u32 v22, v16, v20
    v_lshlrev_b32 v24, 2, v22
    v_add_u32 v24, 13312, v24
    v_add_u32 v25, 16, v24
    ''')
    a.label('KM_RC')
    a('''
    v_mul_u32_u24 v26, 18, v18
    v_sub_u32 v26, v26, v16
    v_add_u32 v27, 17, v26
    v_cmp_gt_u32 vcc, 25, v27
    s_and_b64 s[74:75], s[74:75], vcc
    s_lshl_b32 s70, s64, 1
    v_add_u32 v19, s70, v19
    v_mul_u32_u24 v19, %d, v19
    v_add_u32 v24, v24, v19
    v_add_u32 v25, v25, v19
    v_mov_b32 v27, 0x40000000
    v_cndmask_b32 v24, v27, v24, s[74:75]
    v_cndmask_b32 v25, v27, v25, s[74:75]
    s_mov_b32 s70, 0x%x
    ''' % (KVP_REC, WS_KVP))
    R = 32
    for rb in range(16):
        a('buffer_load_dwordx4 %s, v24, %s, s70 offen' % (vr(R + 8 * rb, 4), sr(S_SWS3, 4)))
        a('buffer_load_dwordx4 %s, v25, %s, s70 offen' % (vr(R + 8 * rb + 4, 4), sr(S_SWS3, 4)))
        if rb < 15:
            a('s_add_u32 s70, s70, %d' % (8 * KVP_REC))
    a('''
    s_lshl_b32 s70, s15, 10
    s_add_u32 s70, s70, 0x%x
    s_lshl_b32 s71, s64, 7
    s_lshl_b32 s72, s65, 2
    s_add_u32 s71, s71, s72
    s_add_u32 s71, s71, 0x%x
    s_waitcnt vmcnt(0)
    ''' % (WS_KVF, WS_FLG))
    for st in (8, 4, 2, 1):
        for i in range(st):
            for h in range(0, 8, 2):
                a('v_pk_add_f32 %s, %s, %s' % (vr(R + 8 * i + h, 2), vr(R + 8 * i + h, 2), vr(R + 8 * (i + st) + h, 2)))
    for j in range(8):
        a('v_subrev_u32 v27, v26, %d' % j if False else 'v_sub_u32 v27, %d, v26' % j)
        a('v_cmp_gt_u32 vcc, 18, v27')
        a('s_and_b64 vcc, vcc, s[74:75]')
        a('s_nop 0')
        a('v_cndmask_b32 v%d, 0, v%d, vcc' % (R + j, R + j))
    for k in range(4):
        a('v_cvt_pk_bf16_f32 v%d, v%d, v%d' % (28 + k, R + 2 * k, R + 2 * k + 1))
    a('''
    buffer_store_dwordx4 v[28:31], v%d, %s, s70 offen sc1
    v_mov_b32 v27, 1
    v_mov_b32 v26, 0
    s_mov_b32 s64, s44
    s_and_b32 s65, s45, 0xffff
    s_mov_b32 s66, 256
    s_mov_b32 s67, 0x20000
    s_waitcnt vmcnt(0)
    s_mov_b64 exec, 1
    buffer_atomic_add v27, v26, s[64:67], 0 offen sc0 sc1
    s_waitcnt vmcnt(0)
    v_readfirstlane_b32 s70, v27
    s_mov_b64 exec, -1
    s_cmp_lg_u32 s70, 87
    s_cbranch_scc1 KM_NORED
    v_mov_b32 v27, 1
    v_lshlrev_b32 v26, 7, v1
    s_mov_b32 s70, 0x%x
    buffer_store_dword v27, v26, %s, s70 offen sc1
    s_add_u32 s70, s70, 8192
    buffer_store_dword v27, v26, %s, s70 offen sc1
    s_add_u32 s70, s70, 8192
    buffer_store_dword v27, v26, %s, s70 offen sc1
    s_add_u32 s70, s70, 8192
    buffer_store_dword v27, v26, %s, s70 offen sc1
    ''' % ((V_L16, sr(S_SWS3, 4), WS_GO2) + (sr(S_SWS3, 4),) * 4))


class Proxy:
    def __init__(self, a):
        self._a = a
        self.rec = None
    def __call__(self, txt):
        if self.rec is None:
            self._a(txt)
        else:
            for ln in txt.strip('\n').split('\n'):
                if ln.strip():
                    self.rec.append((True, lambda ln=ln: self._a(ln)))
    def __getattr__(self, n):
        return getattr(self._a, n)
    def __setattr__(self, n, v):
        if n in ('_a', 'rec'):
            object.__setattr__(self, n, v)
        else:
            setattr(self._a, n, v)


class PCnt:
    def __init__(self, px, cnt):
        self.px, self.c = px, cnt
    def issue(self, tag):
        if self.px.rec is None: self.c.issue(tag)
        else: self.px.rec.append((False, lambda: self.c.issue(tag)))
    def wait(self, tag):
        if self.px.rec is None: self.c.wait(tag)
        else: self.px.rec.append((True, lambda: self.c.wait(tag)))
    def reset(self):
        self.c.ops = []


def gen_km(a0):
    a = Proxy(a0)
    def record(*fns):
        a.rec = []
        for f in fns: f()
        r = a.rec
        a.rec = None
        return r
    def pump(side, n):
        while side and n > 0:
            isins, f = side.pop(0)
            f()
            if isins: n -= 1
        while side and not side[0][0]:
            side.pop(0)[1]()
    a.lines.append('.globl km_kernel\n.p2align 8\n.type km_kernel,@function\nkm_kernel:')
    a('s_cmp_ge_u32 s2, %d' % KM_GRID)
    a('s_cbranch_scc1 KM_EXIT')
    a.kidx = 1
    a.stamp_init()
    load_kernargs(a)
    a('''
    v_lshrrev_b32 v2, 6, v0
    v_and_b32 v1, 63, v0
    s_nop 0
    v_readfirstlane_b32 s3, v2
    s_and_b32 s4, s2, 7
    s_lshr_b32 s5, s2, 3
    s_lshl_b32 s4, s4, 3
    s_and_b32 s6, s5, 7
    s_add_u32 s4, s4, s6
    s_lshl_b32 s4, s4, 5
    s_lshr_b32 s14, s5, 3
    s_mul_i32 s5, s14, 144
    v_and_b32 v10, 15, v1
    v_lshrrev_b32 v11, 4, v1
    s_mul_i32 s6, s3, 144
    s_mul_i32 s7, s3, %d
    s_add_u32 s7, s7, %d
    s_and_b32 s12, s3, 1
    s_lshr_b32 s13, s3, 1
    s_lshr_b32 s97, s2, 6
    s_and_b32 s98, s2, 63
    s_mul_i32 s99, s97, 144
    s_add_u32 s99, s99, s98
    v_lshlrev_b32 v2, 4, v0
    v_lshlrev_b32 v3, 4, v1
    s_waitcnt lgkmcnt(0)
    ''' % (NSL * WSLOT, L_WO))
    srd(a, S_SWO, P_WO, 576 * 576 * 2)
    srd(a, S_SWS3, P_WS, WS_END)
    srd(a, S_SOUT, P_OUT, 2048 * 576 * 2)
    vm = PCnt(a, Cnt(a0, 'vmcnt', 63))
    lg = PCnt(a, Cnt(a0, 'lgkmcnt', 15))

    a('''
    s_lshl_b32 s9, s3, 3
    s_add_u32 s8, s9, s4
    s_mul_i32 s8, s8, 1152
    s_lshl_b32 s11, s3, 13
    s_add_u32 s11, s11, %d
    s_and_b32 s9, s9, 15
    v_xor_b32 v12, s9, v1
    ''' % L_PQ)
    for i in range(8):
        a('v_xor_b32 v13, %d, v12' % i)
        a('s_add_u32 m0, s11, %d' % (1024 * i))
        a('v_lshlrev_b32 v13, 4, v13')
        a('buffer_load_dwordx4 v13, %s, s8 offen lds' % sr(S_SWS3, 4))
        a('s_add_u32 s8, s8, 1152')
        vm.issue(('PQ',))
    a('''
    v_lshrrev_b32 v12, 3, v1
    v_and_b32 v13, 7, v1
    v_xor_b32 v13, v13, v12
    v_mul_u32_u24 v12, 1152, v12
    v_lshl_add_u32 v13, v13, 4, v12
    s_sub_u32 s8, s8, %d
    s_lshl_b32 s11, s3, 10
    s_add_u32 m0, s11, %d
    s_nop 0
    buffer_load_dwordx4 v13, %s, s8 offen lds
    ''' % (8 * 1152 - 1024, L_PQ + 32768, sr(S_SWS3, 4)))
    vm.issue(('PQ',))
    KVF = {}
    a('s_mul_i32 s8, s3, %d' % (22 * 1024))
    a('s_add_u32 s8, s8, 0x%x' % WS_KVF)
    idx = 0
    for f, (c, k) in enumerate(FRAGS):
        if f % 4 == 0 and f:
            a('s_add_u32 s8, s8, 4096')
        if c == 'Z':
            dst = ar(A_ZF + 4 * k, 4)
        else:
            KVF[(c, k)] = A_KVF + 4 * idx
            idx += 1
            dst = ar(KVF[(c, k)], 4)
        a('buffer_load_dwordx4 %s, v3, %s, s8 offen offset:%d' % (dst, sr(S_SWS3, 4), 1024 * (f % 4)))
        vm.issue(('F', f))
    a('''
    s_mul_i32 s8, s6, 1152
    s_lshl_b32 s9, s5, 1
    s_add_u32 s8, s8, s9
    v_mul_u32_u24 v13, 57, v1
    v_lshrrev_b32 v13, 10, v13
    v_mul_u32_u24 v14, 18, v13
    v_sub_u32 v14, v1, v14
    v_mul_u32_u24 v13, 1152, v13
    v_lshl_add_u32 v13, v14, 4, v13
    v_add_u32 v%d, s8, v13
    v_mov_b32 v15, 864
    ''' % WD)
    for i in range(1, 9):
        a('''
        v_add_u32 v14, 10, v14
        v_cmp_le_u32 vcc, 18, v14
        v_add_u32 v%d, %d, v%d
        v_subrev_u32 v13, 18, v14
        v_cndmask_b32 v12, 0, v15, vcc
        v_cndmask_b32 v14, v14, v13, vcc
        v_add_u32 v%d, v%d, v12
        ''' % (WD + i, 3 * 1152 + 160, WD + i - 1, WD + i, WD + i))

    def wo_dma(k):
        a('s_mov_b32 s73, 0x%x' % (k * 32 * 1152))
        for i in range(9 if k < 4 else 5):
            a('s_add_u32 m0, s7, 0x%x' % ((k % NSL) * WSLOT + i * 1024))
            a('s_nop 0')
            a('buffer_load_dwordx4 v%d, %s, s73 offen lds' % (WD + i, sr(S_SWO, 4)))
            vm.issue(('W', k))
    def wo_drain(k, wait=True):
        vm.wait(('W', k))
        for j in range(9):
            a('ds_read_b64_tr_b16 %s, v%d offset:%d' % (ar(WOF(j, k), 2), V_TRW, (k % NSL) * WSLOT + 32 * j))
            lg.issue(('WO', k))
            if k < 4:
                a('ds_read_b64_tr_b16 %s, v%d offset:%d' % (ar(WOF(j, k) + 2, 2), V_TRW, (k % NSL) * WSLOT + 32 * j + 16 * 288))
                lg.issue(('WO', k))
        if wait:
            lg.wait(('WO', k))
    a('''
    s_lshl_b32 s9, s12, 4
    s_add_u32 s9, s9, s4
    v_add_u32 v12, s9, v10
    v_lshlrev_b32 v12, 2, v12
    s_mov_b32 s9, 0x%x
    buffer_load_dword v%d, v12, %s, s9 offen
    ''' % (WS_G, V_G, sr(S_SWS3, 4)))
    vm.issue(('G',))
    a('''
    v_lshrrev_b32 v12, 2, v10
    v_lshl_add_u32 v13, v11, 2, v12
    v_mul_u32_u24 v14, 288, v13
    v_and_b32 v15, 3, v1
    v_lshl_add_u32 v14, v15, 3, v14
    v_add_u32 v%d, s7, v14
    v_lshlrev_b32 v14, 6, v13
    v_lshl_add_u32 v14, v15, 3, v14
    s_lshl_b32 s9, s12, 5
    s_lshl_b32 s11, s13, 10
    s_add_u32 s9, s9, s11
    s_add_u32 s9, s9, %d
    v_add_u32 v%d, s9, v14
    v_lshlrev_b32 v12, 10, v10
    v_add_u32 v12, %d, v12
    v_lshlrev_b32 v15, 7, v10
    v_add_u32 v15, %d, v15
    v_and_b32 v13, 7, v10
    s_mul_i32 s9, s3, 18
    ''' % (V_TRW, L_BT, V_TRB, L_PQ, L_PQ + 32768))
    for k in range(5):
        if k < 4:
            a('v_add_u32 v14, %d, v11' % (4 * k))
        else:
            a('v_and_b32 v14, 1, v11')
            a('v_add_u32 v14, 16, v14')
        a('v_add_u32 v14, s9, v14')
        a('v_cmp_le_u32 vcc, 64, v14')
        a('v_xor_b32 v16, v14, v10')
        a('v_lshl_add_u32 v16, v16, 4, v12')
        a('v_add_u32 v17, 16384, v16')
        a('v_xor_b32 v14, v14, v13')
        a('v_and_b32 v14, 7, v14')
        a('v_lshl_add_u32 v14, v14, 4, v15')
        a('v_add_u32 v18, 2048, v14')
        a('v_cndmask_b32 v%d, v16, v14, vcc' % (PQA + k))
        a('v_cndmask_b32 v%d, v17, v18, vcc' % (PQB + k))
    def sel_loads():
        a('s_mov_b32 s76, 0x%x' % WS_SEL)
        for c in range(9):
            if c == 4 or c == 8:
                a('s_add_u32 s76, s76, 4096')
            a('buffer_load_dwordx4 %s, v3, %s, s76 offen offset:%d' % (vr(56 + 4 * c, 4), sr(S_SWS3, 4), 1024 * (c % 4)))
            vm.issue(('SEL',))
    def bt_dma():
        a('''
        s_mul_i32 s76, s5, 4352
        s_lshl_b32 s77, s4, 1
        s_add_u32 s76, s76, s77
        s_add_u32 s76, s76, 0x%x
        v_lshrrev_b32 v234, 2, v1
        v_mul_u32_u24 v234, 4352, v234
        v_and_b32 v235, 3, v1
        v_lshl_add_u32 v234, v235, 4, v234
        s_mul_i32 s77, s3, 139264
        s_add_u32 s77, s77, s76
        s_lshl_b32 s78, s3, 11
        s_add_u32 m0, s78, %d
        s_nop 0
        buffer_load_dwordx4 v234, %s, s77 offen lds
        s_add_u32 s77, s77, 69632
        s_add_u32 m0, s78, %d
        s_nop 0
        buffer_load_dwordx4 v234, %s, s77 offen lds
        s_add_u32 s77, s76, 557056
        s_mov_b32 m0, %d
        s_nop 0
        buffer_load_dwordx4 v234, %s, s77 offen lds
        ''' % (WS_BT, L_BT, sr(S_SWS3, 4), L_BT + 1024, sr(S_SWS3, 4), L_BT + 8192, sr(S_SWS3, 4)))
        for i in range(3): vm.issue(('BT',))

    st4 = lambda i: None
    side = record(sel_loads, lambda: wo_dma(0), lambda: wo_dma(1), lambda: wo_dma(2), bt_dma)
    pump(side, 45)
    SELR = 56
    a.stamp(1)
    vm.wait(('PQ',))
    PQ = lambda k, st: 16 + (k * 2 + st) * 4
    a('s_barrier')
    for k in range(5):
        for st in range(2):
            a('ds_read_b128 %s, v%d' % (vr(PQ(k, st), 4), (PQA if st == 0 else PQB) + k))
            lg.issue(('PQF', k))
    a('s_mov_b32 s66, 0x0000bf80')
    a('s_mov_b32 s67, 0xbf800000')
    a('s_mov_b32 s68, 0x%x' % f32bits(1e-6))
    DEN = lambda st: 216 + 4 * st
    lg.wait(('PQF', 4))
    for k in range(5):
        vm.wait(('F', k))
        for st in range(2):
            cin = '0' if k == 0 else vr(DEN(st), 4)
            a('v_mfma_f32_16x16x32_bf16 %s, %s, %s, %s' % (vr(DEN(st), 4), ar(A_ZF + 4 * k, 4), vr(PQ(k, st), 4), cin))
            pump(side, 2)
    NUM = lambda c, st: 144 + (c * 2 + st) * 4
    RT = lambda st: 124 + 4 * st
    T = lambda st: 132 + 6 * st
    def rterms():
        for st in range(2):
            a('v_cvt_pk_bf16_f32 v%d, v%d, v%d' % (T(st), DEN(st), DEN(st) + 1))
        for st in range(2):
            a('v_lshlrev_b32 v%d, 16, v%d' % (T(st) + 2, T(st)))
            a('v_and_b32 v%d, 0xffff0000, v%d' % (T(st) + 3, T(st)))
        for st in range(2):
            a('v_add_f32 v%d, s68, v%d' % (T(st) + 2, T(st) + 2))
            a('v_add_f32 v%d, s68, v%d' % (T(st) + 3, T(st) + 3))
        for st in range(2):
            a('v_cvt_pk_bf16_f32 v%d, v%d, v%d' % (T(st), T(st) + 2, T(st) + 3))
        for st in range(2):
            a('v_lshlrev_b32 v%d, 16, v%d' % (T(st) + 2, T(st)))
            a('v_and_b32 v%d, 0xffff0000, v%d' % (T(st) + 3, T(st)))
        for st in range(2):
            a('v_rcp_f32 v%d, v%d' % (T(st) + 2, T(st) + 2))
            a('v_rcp_f32 v%d, v%d' % (T(st) + 3, T(st) + 3))
        a.nop(1)
        for term in range(3):
            for st in range(2):
                a('v_cvt_pk_bf16_f32 v%d, v%d, v%d' % (RT(st) + term, T(st) + 2, T(st) + 3))
            if term < 2:
                for st in range(2):
                    a('v_dot2_f32_bf16 v%d, v%d, s66, v%d' % (T(st) + 2, RT(st) + term, T(st) + 2))
                    a('v_dot2_f32_bf16 v%d, v%d, s67, v%d' % (T(st) + 3, RT(st) + term, T(st) + 3))
                a.nop(3)
        for st in range(2):
            a('v_mov_b32 v%d, 0' % (RT(st) + 3))
    f = 5
    for c in range(9):
        for i, k in enumerate(STEPS[c]):
            vm.wait(('F', f)); f += 1
            for st in range(2):
                cin = '0' if i == 0 else vr(NUM(c, st), 4)
                a('v_mfma_f32_16x16x32_bf16 %s, %s, %s, %s' % (vr(NUM(c, st), 4), ar(KVF[(c, k)], 4), vr(PQ(k, st), 4), cin))
                pump(side, 2)
        if c == 3:
            rterms()
    a.stamp(4)
    pump(side, 10 ** 6)
    vm.wait(('SEL',))
    side = record(lambda: wo_drain(0), lambda: wo_dma(3), lambda: wo_drain(1), lambda: wo_dma(4))
    OB = 16
    RR = lambda i: 100 + 4 * i
    TT = 116
    def proc(cc):
        for st in range(2):
            n = NUM(cc, st)
            a('v_cvt_pk_bf16_f32 v%d, v%d, v%d' % (n, n, n + 1))
            a('v_cvt_pk_bf16_f32 v%d, v%d, v%d' % (n + 2, n + 2, n + 3))
        for st in range(2):
            n = NUM(cc, st)
            t = TT + 4 * st
            a('v_lshlrev_b32 v%d, 16, v%d' % (t, n))
            a('v_and_b32 v%d, 0xffff0000, v%d' % (t + 1, n))
            a('v_lshlrev_b32 v%d, 16, v%d' % (t + 2, n + 2))
            a('v_and_b32 v%d, 0xffff0000, v%d' % (t + 3, n + 2))
        for st in range(2):
            t = TT + 4 * st
            r = RR((cc % 2) * 2 + st)
            a('v_pk_mul_f32 %s, %s, %s' % (vr(t, 2), vr(t, 2), vr(r, 2)))
            a('v_pk_mul_f32 %s, %s, %s' % (vr(t + 2, 2), vr(t + 2, 2), vr(r + 2, 2)))
        for st in range(2):
            t = TT + 4 * st
            o = OB + st * 18 + 2 * cc
            a('v_cvt_pk_bf16_f32 v%d, v%d, v%d' % (o, t, t + 1))
            a('v_cvt_pk_bf16_f32 v%d, v%d, v%d' % (o + 1, t + 2, t + 3))
    ACC2 = lambda j, st: 56 + (j * 2 + st) * 4 if False else 144 + (j * 2 + st) * 4
    for c in range(9):
        for st in range(2):
            a('v_mfma_f32_16x16x32_bf16 %s, %s, %s, 0' % (vr(RR((c % 2) * 2 + st), 4), vr(SELR + 4 * c, 4), vr(RT(st), 4)))
        if c >= 1:
            proc(c - 1)
        if c >= 2: pump(side, 12)
    a.nop(4)
    proc(8)
    pump(side, 10 ** 6)
    a.stamp(5)
    st4(4)
    wo_drain(2, wait=False)
    for k in range(5):
        if k == 1: wo_drain(3, wait=False)
        if k == 2: wo_drain(4, wait=False)
        lg.wait(('WO', k))
        for j in range(9):
            for st in range(2):
                cin = '0' if k == 0 else vr(ACC2(j, st), 4)
                if k < 4:
                    a('v_mfma_f32_16x16x32_bf16 %s, %s, %s, %s' % (vr(ACC2(j, st), 4), ar(WOF(j, k), 4), vr(OB + st * 18 + 4 * k, 4), cin))
                else:
                    a('v_mfma_f32_16x16x16_bf16 %s, %s, %s, %s' % (vr(ACC2(j, st), 4), ar(WOF(j, k), 2), vr(OB + st * 18 + 16, 2), cin))
    a.stamp(6)
    st4(6)
    RS = 304
    a('''
    s_lshl_b32 s9, s3, 10
    v_add_u32 v13, s9, v3
    v_add_u32 v14, 0x9000, v13
    s_waitcnt vmcnt(0)
    s_nop 4
    s_barrier
    ''')
    for t in range(18):
        j, st = t >> 1, t & 1
        if t < 9:
            a('ds_write_b128 v13, %s offset:%d' % (vr(ACC2(j, st), 4), t * 4096))
        else:
            a('ds_write_b128 v14, %s offset:%d' % (vr(ACC2(j, st), 4), (t - 9) * 4096))
    a('''
    s_lshl_b32 s9, s3, 12
    v_add_u32 v13, s9, v3
    v_add_u32 v14, 0x8000, v13
    s_lshl_b32 s9, s12, 4
    v_add_u32 v15, s9, v10
    v_mul_u32_u24 v15, %d, v15
    v_lshl_add_u32 v15, v11, 3, v15
    s_lshl_b32 s9, s13, 5
    s_add_u32 s9, s9, %d
    v_add_u32 v15, s9, v15
    v_sub_f32 v%d, 1.0, v%d
    v_cvt_pk_bf16_f32 v%d, v%d, v%d
    v_lshlrev_b32 v%d, 16, v%d
    s_mul_i32 s8, s4, 1152
    s_lshl_b32 s9, s5, 1
    s_add_u32 s8, s8, s9
    s_mov_b32 s11, %d
    ''' % (RS, L_PQ, V_OMG, V_G, V_OMG, V_OMG, V_OMG, V_OMG, V_OMG, L_PQ))
    for i in range(3):
        a('''
        v_add_u32 v12, %d, v0
        v_mul_u32_u24 v4, 3641, v12
        v_lshrrev_b32 v4, 16, v4
        v_mul_u32_u24 v5, 18, v4
        v_sub_u32 v5, v12, v5
        v_lshlrev_b32 v5, 4, v5
        v_mul_u32_u24 v12, %d, v4
        v_add3_u32 v%d, v12, v5, s11
        v_mul_u32_u24 v4, 1152, v4
        v_add_u32 v%d, v4, v5
        ''' % (256 * i, RS, 228 + i, 232 + i))
    a('s_waitcnt lgkmcnt(0)')
    a('s_barrier')
    def reads(it):
        R = 16 + 24 * it
        for w in range(4):
            if it < 2:
                a('ds_read_b128 %s, v13 offset:%d' % (vr(R + 4 * w, 4), it * 16384 + w * 1024))
            else:
                a('ds_read_b128 %s, v14 offset:%d' % (vr(R + 4 * w, 4), (it - 2) * 16384 + w * 1024))
        a('ds_read_b64_tr_b16 %s, v%d offset:%d' % (vr(R + 16, 2), V_TRB, it * 2048))
    def comp(its):
        def each(fn):
            for it in its: fn(16 + 24 * it, it)
        each(lambda R, it: [a('v_pk_add_f32 %s, %s, %s' % (vr(R + o + h, 2), vr(R + o + h, 2), vr(R + o + 4 + h, 2))) for h in (0, 2) for o in (0, 8)])
        each(lambda R, it: [a('v_pk_add_f32 %s, %s, %s' % (vr(R + h, 2), vr(R + h, 2), vr(R + 8 + h, 2))) for h in (0, 2)])
        each(lambda R, it: [a('v_cvt_pk_bf16_f32 v%d, v%d, v%d' % (R + 4 + k, R + 2 * k, R + 2 * k + 1)) for k in range(2)])
        def unp(R, it):
            for k in range(2):
                a('v_lshlrev_b32 v%d, 16, v%d' % (R + 2 * k, R + 4 + k))
                a('v_and_b32 v%d, 0xffff0000, v%d' % (R + 2 * k + 1, R + 4 + k))
                a('v_lshlrev_b32 v%d, 16, v%d' % (R + 8 + 2 * k, R + 16 + k))
                a('v_and_b32 v%d, 0xffff0000, v%d' % (R + 8 + 2 * k + 1, R + 16 + k))
        each(unp)
        def mul(R, it):
            for h in (0, 2):
                a('v_pk_mul_f32 %s, %s, %s op_sel_hi:[1,0]' % (vr(R + h, 2), vr(R + h, 2), vr(V_G, 2)))
                a('v_pk_mul_f32 %s, %s, %s op_sel:[0,1] op_sel_hi:[1,1]' % (vr(R + 8 + h, 2), vr(R + 8 + h, 2), vr(V_G, 2)))
        each(mul)
        def cv(R, it):
            for k in range(2):
                a('v_cvt_pk_bf16_f32 v%d, v%d, v%d' % (R + 4 + k, R + 2 * k, R + 2 * k + 1))
                a('v_cvt_pk_bf16_f32 v%d, v%d, v%d' % (R + 6 + k, R + 8 + 2 * k, R + 8 + 2 * k + 1))
        each(cv)
        def unp2(R, it):
            for k in range(2):
                a('v_lshlrev_b32 v%d, 16, v%d' % (R + 2 * k, R + 4 + k))
                a('v_and_b32 v%d, 0xffff0000, v%d' % (R + 2 * k + 1, R + 4 + k))
                a('v_lshlrev_b32 v%d, 16, v%d' % (R + 8 + 2 * k, R + 6 + k))
                a('v_and_b32 v%d, 0xffff0000, v%d' % (R + 8 + 2 * k + 1, R + 6 + k))
        each(unp2)
        each(lambda R, it: [a('v_pk_add_f32 %s, %s, %s' % (vr(R + h, 2), vr(R + h, 2), vr(R + 8 + h, 2))) for h in (0, 2)])
        each(lambda R, it: [a('v_cvt_pk_bf16_f32 v%d, v%d, v%d' % (R + 18 + k, R + 2 * k, R + 2 * k + 1)) for k in range(2)])
        each(lambda R, it: a('ds_write_b64 v15, %s offset:%d' % (vr(R + 18, 2), it * 64)))
    for it in range(4):
        reads(it)
    a('s_waitcnt lgkmcnt(10)')
    comp([0, 1])
    a('s_waitcnt lgkmcnt(2)')
    comp([2, 3])
    a('s_cmp_ge_u32 s3, 2')
    a('s_cbranch_scc1 KM_S4')
    reads(4)
    a('s_waitcnt lgkmcnt(0)')
    comp([4])
    a.label('KM_S4')
    a('''
    s_waitcnt lgkmcnt(0)
    s_barrier
    ds_read_b128 v[16:19], v228
    ds_read_b128 v[20:23], v229
    s_waitcnt lgkmcnt(1)
    buffer_store_dwordx4 v[16:19], v232, %s, s8 offen OUTF
    s_waitcnt lgkmcnt(0)
    buffer_store_dwordx4 v[20:23], v233, %s, s8 offen OUTF
    s_cmp_lg_u32 s3, 0
    s_cbranch_scc1 KM_FIN
    ds_read_b128 v[24:27], v230
    s_waitcnt lgkmcnt(0)
    buffer_store_dwordx4 v[24:27], v234, %s, s8 offen OUTF
    '''.replace('OUTF', os.environ.get('OUTF', '')) % ((sr(S_SOUT, 4),) * 3))
    a.label('KM_FIN')
    a.endpgm()
    a.label('KM_EXIT')
    a('s_endpgm')
```
